```python
import torch

def _softmax(x, axis=-1):
    return torch.softmax(x, dim=axis)
def _gelu(x):
    return torch.nn.functional.gelu(x, approximate="tanh")
def _silu(x):
    return torch.nn.functional.silu(x)
def _sigmoid(x):
    return torch.sigmoid(x)
def _layernorm(x, axis=-1, eps=1e-5):
    m = x.mean(dim=axis, keepdim=True)
    v = x.var(dim=axis, keepdim=True, unbiased=False)
    return (x - m) / torch.sqrt(v + eps)
def _scatter_add(tgt, idx, src, axis=0):
    return tgt.clone().index_add_(axis, idx, src)
def _segment_sum(src, seg, n):
    out = torch.zeros((n,) + src.shape[1:], dtype=src.dtype)
    return out.index_add_(0, seg, src)
def _pad(x, pw):
    flat = tuple(v for pair in reversed(pw) for v in pair)
    return torch.nn.functional.pad(x, flat)

kernel_name = 'concat_heads__mha_block__mha_block__prompt'

def setup_inputs():

    _w = (lambda a: (lambda t: t.to(torch.bfloat16) if t.is_floating_point() else t)(torch.as_tensor(a)))
    def _A_setup():
        B, S, D, H = 1, 2048, 576, 32
        return {
            "x": _w((lambda *s: torch.randn(*s, dtype=torch.bfloat16) * 0.2)(B, S, D)),
            "wqkv": _w((lambda *s: torch.randn(*s, dtype=torch.bfloat16) * 0.2)(D, 3 * D)),
            "wo": _w((lambda *s: torch.randn(*s, dtype=torch.bfloat16) * 0.05)(D, D)),
        }
    _A_in = _A_setup()

    def _B_setup():
        B, S, D, H = 1, 2048, 576, 32
        return {
            "x": _w((lambda *s: torch.randn(*s, dtype=torch.bfloat16) * 0.2)(B, S, D)),
            "wqkv": _w((lambda *s: torch.randn(*s, dtype=torch.bfloat16) * 0.2)(D, 3 * D)),
            "wo": _w((lambda *s: torch.randn(*s, dtype=torch.bfloat16) * 0.05)(D, D)),
        }
    _B_in = _B_setup()

    return {
        "A_x": _A_in["x"],
        "A_wqkv": _A_in["wqkv"],
        "A_wo": _A_in["wo"],
        "B_x": _B_in["x"],
        "B_wqkv": _B_in["wqkv"],
        "B_wo": _B_in["wo"],
    }

def reference(A_x, A_wqkv, A_wo, B_x, B_wqkv, B_wo):
    def _A_ref(x, wqkv, wo):
        B, S, D = x.shape
        H = 32
        Dh = D // H
        qkv = (lambda x, *d: x.permute(*d))((x @ wqkv).reshape(B, S, 3, H, Dh), 2, 0, 3, 1, 4)
        q, k, v = qkv[0], qkv[1], qkv[2]
        scores = torch.einsum("bhqd,bhkd->bhqk", q, k) * (Dh ** -0.5)
        p = _softmax(scores, axis=-1)
        o = torch.einsum("bhqk,bhkd->bhqd", p, v)
        return (lambda x, *d: x.permute(*d))(o, 0, 2, 1, 3).reshape(B, S, D) @ wo

    def _B_ref(x, wqkv, wo):
        B, S, D = x.shape
        H = 32
        Dh = D // H
        qkv = (lambda x, *d: x.permute(*d))((x @ wqkv).reshape(B, S, 3, H, Dh), 2, 0, 3, 1, 4)
        q, k, v = qkv[0], qkv[1], qkv[2]
        scores = torch.einsum("bhqd,bhkd->bhqk", q, k) * (Dh ** -0.5)
        p = _softmax(scores, axis=-1)
        o = torch.einsum("bhqk,bhkd->bhqd", p, v)
        return (lambda x, *d: x.permute(*d))(o, 0, 2, 1, 3).reshape(B, S, D) @ wo

    a = _A_ref(A_x, A_wqkv, A_wo)
    b = _B_ref(B_x, B_wqkv, B_wo)
    return torch.concatenate([a, b], axis=-1)
```

```python
from emit import *

ROWB = 4096
BLK_BYTES = 1728 * ROWB
O_OFF = 0x1000000
O_BLK = 2048 * 1152
KPAIR, VPAIR = 1152, 1056
KBLK, VBLK = 10496, 9728
HEADSZ = KBLK + VBLK
ONES = 2 * HEADSZ
ZEROS = ONES + 768
SLOT = ONES + 1536
NSLOT = 3
QOFF = NSLOT * SLOT
LDS_ATTN = QOFF + 2 * KBLK

OPT = {}

class R:
    pass

def alloc_attn_regs(V, r):
    r.lane = V.alloc("lane")
    r.t = [V.alloc(f"t{i}") for i in range(6)]
    r.vdma = [V.alloc(f"dma{i}") for i in range(5)]
    r.kE = V.alloc("kE"); r.kO = V.alloc("kO"); r.tE = V.alloc("tE"); r.tO = V.alloc("tO"); r.vA = V.alloc("vA")
    r.idx = V.alloc("idx")
    r.Qm = [V.alloc(f"Qm{u}", 4, 2) for u in range(2)]
    r.Qt = [V.alloc(f"Qt{u}", 2, 2) for u in range(2)]
    r.Km = [V.alloc(f"Km{p}", 4, 2) for p in range(2)]
    r.Kt = [V.alloc(f"Kt{p}", 2, 2) for p in range(2)]
    r.V1 = [V.alloc(f"V1{p}", 4, 2) for p in range(2)]
    r.V2 = [V.alloc(f"V2{p}", 4, 2) for p in range(2)]
    r.S = [V.alloc(f"S{i}", 16, 4) for i in range(4)]
    r.O = [V.alloc(f"O{u}", 16, 4) for u in range(2)]

def alloc_sregs(r):
    r.s_ws = 4; r.s_srd = 8; r.s_osrd = 12
    r.s_w = 16; r.s_b = 17; r.s_hp = 18; r.s_c = 19
    r.s_lds = [20, 21, 22, 23, 24]
    r.s_slotw = 25; r.s_chunk = 26; r.s_it = 27; r.s_delta = 28; r.s_rslot = 29
    r.s_t = [30, 31, 32, 33]
    r.s_seg = 34
    r.s_hbase = 35

def emit_ids(A, r):
    t0 = r.t[0]
    A(f"v_and_b32 v{r.lane}, 63, v0")
    A(f"v_lshrrev_b32 v{t0}, 6, v0")
    A("s_and_b32 s3, s2, 7")
    A(f"s_lshr_b32 s{r.s_t[0]}, s2, 3")
    A(f"v_readfirstlane_b32 s{r.s_w}, v{t0}")
    A(f"s_lshr_b32 s{r.s_b}, s3, 2")
    A(f"s_and_b32 s3, s3, 3")
    A(f"s_lshl_b32 s3, s3, 2")
    A(f"s_lshr_b32 s{r.s_hp}, s{r.s_t[0]}, 3")
    A(f"s_add_u32 s{r.s_hp}, s{r.s_hp}, s3")
    A(f"s_and_b32 s{r.s_c}, s{r.s_t[0]}, 7")

def emit_srds(A, r):
    t = r.s_t[0]
    A(f"s_mul_i32 s{t}, s{r.s_b}, {BLK_BYTES}")
    A(f"s_add_u32 s{r.s_srd}, s{r.s_ws}, s{t}")
    A(f"s_addc_u32 s{r.s_srd+1}, s{r.s_ws+1}, 0")
    A(f"s_mov_b32 s{r.s_srd+2}, {BLK_BYTES}")
    A(f"s_mov_b32 s{r.s_srd+3}, 0x20000")
    A(f"s_mul_i32 s{t}, s{r.s_b}, {O_BLK}")
    A(f"s_add_u32 s{t}, s{t}, {O_OFF}")
    A(f"s_add_u32 s{r.s_osrd}, s{r.s_ws}, s{t}")
    A(f"s_addc_u32 s{r.s_osrd+1}, s{r.s_ws+1}, 0")
    A(f"s_mov_b32 s{r.s_osrd+2}, {O_BLK}")
    A(f"s_mov_b32 s{r.s_osrd+3}, 0x20000")

def emit_dma_setup(A, r, with_q):
    t0, t1, t2, t3 = r.t[:4]
    st, st2, st3, st4 = r.s_t
    A(f"v_lshrrev_b32 v{t0}, 5, v{r.lane}")
    A(f"v_and_b32 v{t1}, 31, v{r.lane}")
    A(f"v_lshlrev_b32 v{t2}, 2, v{t0}")
    A(f"v_xor_b32 v{t2}, v{t2}, v{t1}")
    A(f"v_lshlrev_b32 v{t2}, 4, v{t2}")
    A(f"v_lshl_add_u32 v{t2}, v{t0}, 12, v{t2}")
    A(f"v_xor_b32 v{t3}, v{t0}, v{t1}")
    A(f"v_lshlrev_b32 v{t3}, 4, v{t3}")
    A(f"v_lshl_add_u32 v{t3}, v{t0}, 12, v{t3}")
    if with_q:
        A(f"s_lshl_b32 s{r.s_chunk}, s{r.s_c}, 9")
        for i in range(3):
            lab = A.newlabel("Lq")
            A(f"s_add_u32 s{st}, s{r.s_w}, {8*i}")
            if i == 2:
                A(f"s_cmp_ge_u32 s{st}, 18\ns_cbranch_scc1 {lab}")
            A(f"s_cmp_ge_u32 s{st}, 9")
            A(f"s_cselect_b32 s{st2}, {KBLK - 9*KPAIR}, 0")
            A(f"s_mul_i32 s{st3}, s{st}, {KPAIR}")
            A(f"s_add_u32 s{st2}, s{st2}, s{st3}")
            A(f"s_add_u32 m0, s{st2}, {QOFF}")
            A(f"s_mul_i32 s{st3}, s{r.s_hp}, 36")
            A(f"s_lshl_b32 s{st}, s{st}, 1")
            A(f"s_add_u32 s{st3}, s{st3}, s{st}")
            A(f"s_lshl_b32 s{st3}, s{st3}, 12")
            A(f"s_add_u32 s{st3}, s{st3}, s{r.s_chunk}")
            A(f"buffer_load_dwordx4 v{t2}, s[{r.s_srd}:{r.s_srd+3}], s{st3} offen lds")
            A.label(lab)
    for i in range(5):
        if i < 4:
            A(f"s_add_u32 s{st}, s{r.s_w}, {8*i}")
        else:
            A(f"s_and_b32 s{st}, s{r.s_w}, 3\ns_add_u32 s{st}, s{st}, 32")
        A(f"s_cmp_ge_u32 s{st}, 18")
        A(f"s_cselect_b32 s{st2}, 18, 0")
        A(f"s_mov_b32 s{st3}, {KPAIR}\ns_cmov_b32 s{st3}, {VPAIR}")
        A(f"s_cselect_b32 s{st4}, {KBLK}, 0")
        A(f"s_mov_b32 s{r.s_lds[i]}, 576\ns_cmov_b32 s{r.s_lds[i]}, 1152")
        A(f"s_cselect_b64 vcc, -1, 0")
        A(f"s_sub_u32 s{st}, s{st}, s{st2}")
        A(f"s_mul_i32 s{st2}, s{r.s_hp}, 36")
        A(f"s_add_u32 s{r.s_lds[i]}, s{r.s_lds[i]}, s{st2}")
        A(f"s_lshl_b32 s{st2}, s{st}, 1")
        A(f"s_add_u32 s{r.s_lds[i]}, s{r.s_lds[i]}, s{st2}")
        A(f"s_lshl_b32 s{r.s_lds[i]}, s{r.s_lds[i]}, 12")
        A(f"v_cndmask_b32 v{r.vdma[i]}, v{t2}, v{t3}, vcc")
        A(f"v_add_u32 v{r.vdma[i]}, s{r.s_lds[i]}, v{r.vdma[i]}")
        A(f"s_cmp_ge_u32 s{st}, 9")
        A(f"s_cselect_b32 s{st2}, 9, 0")
        A(f"s_cselect_b32 s{r.s_lds[i]}, {HEADSZ}, 0")
        A(f"s_sub_u32 s{st}, s{st}, s{st2}")
        A(f"s_mul_i32 s{st}, s{st}, s{st3}")
        A(f"s_add_u32 s{r.s_lds[i]}, s{r.s_lds[i]}, s{st}")
        A(f"s_add_u32 s{r.s_lds[i]}, s{r.s_lds[i]}, s{st4}")

def emit_dma_segment(A, r, flags=""):
    A(f"s_lshl_b32 s{r.s_chunk}, s{r.s_seg}, 9")
    for i in range(5):
        A(f"s_add_u32 m0, s{r.s_slotw}, s{r.s_lds[i]}")
        A("s_nop 0")
        A(f"buffer_load_dwordx4 v{r.vdma[i]}, s[{r.s_srd}:{r.s_srd+3}], s{r.s_chunk} offen{flags} lds")
    A(f"s_add_u32 s{r.s_seg}, s{r.s_seg}, 1")
    A(f"s_and_b32 s{r.s_seg}, s{r.s_seg}, 7")
    A(f"s_add_u32 s{r.s_slotw}, s{r.s_slotw}, {SLOT}")
    A(f"s_cmp_eq_u32 s{r.s_slotw}, {NSLOT*SLOT}")
    A(f"s_cselect_b32 s{r.s_slotw}, 0, s{r.s_slotw}")

def emit_ones(A, r):
    t0, t1, t2 = r.t[:3]
    A(f"v_mov_b32 v{t0}, 0x3f803f80")
    A(f"v_lshlrev_b32 v{t1}, 2, v0")
    A(f"v_cmp_gt_u32 vcc, 192, v0")
    A("s_and_saveexec_b64 s[36:37], vcc")
    lab = A.newlabel("Lones")
    A(f"s_cbranch_execz {lab}")
    A(f"v_mov_b32 v{r.t[3]}, 0")
    for s in range(NSLOT):
        A(f"v_add_u32 v{t2}, {s*SLOT+ONES}, v{t1}")
        A(f"ds_write_b32 v{t2}, v{t0}")
        A(f"ds_write_b32 v{t2}, v{r.t[3]} offset:768")
    A.label(lab)
    A("s_mov_b64 exec, s[36:37]")

def emit_read_addrs(A, r):
    t0, t1, t2, t3, t4, t5 = r.t
    st = r.s_hbase
    lane = r.lane
    A(f"s_lshr_b32 s{st}, s{r.s_w}, 2")
    A(f"s_mul_i32 s{st}, s{st}, {HEADSZ}")
    A(f"v_lshrrev_b32 v{t0}, 2, v{lane}")
    A(f"v_and_b32 v{t0}, 3, v{t0}")
    A(f"v_lshrrev_b32 v{t1}, 5, v{lane}")
    A(f"v_lshl_add_u32 v{t1}, v{t1}, 3, v{t0}")
    A(f"v_lshrrev_b32 v{t2}, 1, v{t1}")
    A(f"v_mul_u32_u24 v{t2}, {KPAIR}, v{t2}")
    A(f"v_and_b32 v{t1}, 1, v{t1}")
    A(f"v_lshl_add_u32 v{t2}, v{t1}, 9, v{t2}")
    A(f"v_lshrrev_b32 v{t3}, 4, v{lane}")
    A(f"v_and_b32 v{t3}, 1, v{t3}")
    A(f"v_lshlrev_b32 v{t3}, 5, v{t3}")
    A(f"v_and_b32 v{t4}, 3, v{lane}")
    A(f"v_lshl_add_u32 v{t3}, v{t4}, 3, v{t3}")
    A(f"v_add_u32 v{t2}, v{t2}, v{t3}")
    A(f"v_lshlrev_b32 v{t1}, 6, v{t1}")
    A(f"v_add_u32 v{t2}, s{st}, v{t2}")
    A(f"v_add_u32 v{r.kE}, v{t2}, v{t1}")
    A(f"v_sub_u32 v{r.kO}, v{t2}, v{t1}")
    A(f"v_lshlrev_b32 v{t2}, 3, v{t1}")
    A(f"v_add_u32 v{t2}, {8*KPAIR}, v{t2}")
    A(f"v_add_u32 v{t2}, s{st}, v{t2}")
    A(f"v_add_u32 v{t2}, v{t2}, v{t3}")
    A(f"v_add_u32 v{t4}, v{t2}, v{t1}")
    A(f"v_sub_u32 v{t5}, v{t2}, v{t1}")
    A(f"v_add_u32 v{t3}, {ONES+128}, v{t3}")
    A(f"v_cmp_le_u32 vcc, 2, v{t0}")
    A("s_nop 1")
    A(f"v_cndmask_b32 v{r.tE}, v{t4}, v{t3}, vcc")
    A(f"v_cndmask_b32 v{r.tO}, v{t5}, v{t3}, vcc")
    if OPT.get("zrows"):
        A(f"v_lshlrev_b32 v{t2}, 6, v{t0}")
        A(f"v_add_u32 v{t3}, v{t3}, v{t2}")
        A(f"v_add_u32 v{t3}, {768-128-64*0}, v{t3}")
        A(f"v_cmp_eq_u32 vcc, 3, v{t0}")
        A(f"v_cmp_le_u32 s[38:39], 32, v{lane}")
        A("s_or_b64 vcc, vcc, s[38:39]")
        A("s_nop 1")
        A(f"v_cndmask_b32 v{r.tE}, v{r.tE}, v{t3}, vcc")
        A(f"v_cndmask_b32 v{r.tO}, v{r.tO}, v{t3}, vcc")
        A(f"v_lshrrev_b32 v{t2}, 2, v{lane}")
        A(f"v_lshrrev_b32 v{t3}, 5, v{lane}")
        A(f"v_lshlrev_b32 v{t3}, 2, v{t3}")
        A(f"v_and_b32 v{t2}, 3, v{t2}")
        A(f"v_or_b32 v{t2}, v{t2}, v{t3}")
        A(f"v_subrev_u32 v{t3}, 128, v{r.tO}")
        A(f"v_cmp_eq_u32 vcc, 3, v{t2}")
        A("s_nop 1")
        A(f"v_cndmask_b32 v{r.tO}, v{r.tO}, v{t3}, vcc")
    A(f"v_and_b32 v{t0}, 31, v{lane}")
    A(f"v_lshrrev_b32 v{t1}, 2, v{t0}")
    A(f"v_and_b32 v{t1}, 1, v{t1}")
    A(f"v_lshlrev_b32 v{t1}, 3, v{t1}")
    A(f"v_lshrrev_b32 v{t2}, 3, v{t0}")
    A(f"v_and_b32 v{t2}, 1, v{t2}")
    A(f"v_lshl_add_u32 v{t1}, v{t2}, 2, v{t1}")
    A(f"v_and_b32 v{t2}, 3, v{t0}")
    A(f"v_add_u32 v{t1}, v{t1}, v{t2}")
    A(f"v_cmp_gt_u32 vcc, 16, v{t0}")
    A("s_nop 1")
    A(f"v_cndmask_b32 v{t1}, v{t0}, v{t1}, vcc")
    A(f"v_lshrrev_b32 v{t2}, 1, v{t1}")
    A(f"v_mul_u32_u24 v{t2}, {VPAIR}, v{t2}")
    A(f"v_and_b32 v{t3}, 1, v{t1}")
    A(f"v_lshl_add_u32 v{t2}, v{t3}, 9, v{t2}")
    A(f"v_lshrrev_b32 v{t1}, 5, v{lane}")
    A(f"v_xor_b32 v{t3}, v{t3}, v{t1}")
    A(f"v_lshl_add_u32 v{t2}, v{t3}, 4, v{t2}")
    A(f"v_add_u32 v{t2}, {KBLK}, v{t2}")
    A(f"v_add_u32 v{r.vA}, s{st}, v{t2}")
    A(f"v_lshlrev_b32 v{t1}, 4, v{t1}")
    A(f"v_add_u32 v{t2}, {ONES+32}, v{t1}")
    A(f"v_cmp_le_u32 vcc, 18, v{t0}")
    A("s_nop 1")
    A(f"v_cndmask_b32 v{r.vA}, v{r.vA}, v{t2}, vcc")
    A(f"v_add_u32 v{t2}, 32, v{t2}")
    A(f"v_subrev_u32 v{t3}, 20, v{t0}")
    A(f"v_cmp_gt_u32 vcc, 8, v{t3}")
    A("s_nop 1")
    A(f"v_cndmask_b32 v{r.vA}, v{r.vA}, v{t2}, vcc")
    if OPT.get("zrows"):
        A(f"v_cmp_lt_u32 vcc, 18, v{t0}")
        A(f"v_cmp_ne_u32 s[38:39], 22, v{t0}")
        A("s_and_b64 vcc, vcc, s[38:39]")
        A(f"v_add_u32 v{t2}, {768+32}, v{r.vA}")
        A(f"v_add_u32 v{t1}, {768+160}, v{r.vA}")
        A(f"v_subrev_u32 v{t3}, 20, v{t0}")
        A(f"v_cmp_gt_u32 s[38:39], 8, v{t3}")
        A("s_nop 1")
        A(f"v_cndmask_b32 v{t2}, v{t1}, v{t2}, s[38:39]")
        A(f"v_cndmask_b32 v{r.vA}, v{r.vA}, v{t2}, vcc")
    A(f"v_mov_b32 v{r.idx}, 0xdddddddd")

def emit_q_frags(A, r):
    t0, t1, t2, t3, t4, t5 = r.t
    st, st2, st3, st4 = r.s_t
    A(f"s_lshr_b32 s{st2}, s{r.s_w}, 2")
    A(f"s_mul_i32 s{st2}, s{st2}, {KBLK}")
    A(f"s_add_u32 s{st2}, s{st2}, {QOFF}")
    A(f"s_sub_u32 s{st2}, s{st2}, s{r.s_hbase}")
    A(f"s_and_b32 s{st3}, s{r.s_w}, 3")
    A(f"s_lshl_b32 s{st3}, s{st3}, 7")
    A(f"s_add_u32 s{st2}, s{st2}, s{st3}")
    A(f"v_add_u32 v{t0}, s{st2}, v{r.kE}")
    A(f"v_add_u32 v{t1}, s{st2}, v{r.kO}")
    A(f"v_add_u32 v{t2}, s{st2}, v{t4}")
    A(f"v_add_u32 v{t3}, s{st2}, v{t5}")
    A(f"ds_read_b64_tr_b16 v[{r.Qm[0]}:{r.Qm[0]+1}], v{t0}")
    A(f"ds_read_b64_tr_b16 v[{r.Qm[0]+2}:{r.Qm[0]+3}], v{t0} offset:{2*KPAIR}")
    A(f"ds_read_b64_tr_b16 v[{r.Qm[1]}:{r.Qm[1]+1}], v{t1} offset:64")
    A(f"ds_read_b64_tr_b16 v[{r.Qm[1]+2}:{r.Qm[1]+3}], v{t1} offset:{64+2*KPAIR}")
    A(f"ds_read_b64_tr_b16 v[{r.Qt[0]}:{r.Qt[0]+1}], v{t2}")
    A(f"ds_read_b64_tr_b16 v[{r.Qt[1]}:{r.Qt[1]+1}], v{t3} offset:64")

def k_reads(A, r, t, p):
    if OPT.get("nolds") and OPT.get("inloop"): return
    km = r.kE if t % 2 == 0 else r.kO
    kt = r.tE if t % 2 == 0 else r.tO
    A(f"ds_read_b64_tr_b16 v[{r.Km[p]}:{r.Km[p]+1}], v{km} offset:{64*t}")
    A(f"ds_read_b64_tr_b16 v[{r.Km[p]+2}:{r.Km[p]+3}], v{km} offset:{64*t+2*KPAIR}")
    A(f"ds_read_b64_tr_b16 v[{r.Kt[p]}:{r.Kt[p]+1}], v{kt} offset:{64*t}")

def v_reads(A, r, t, p):
    if OPT.get("nolds") and OPT.get("inloop"): return
    A(f"ds_read_b128 v[{r.V1[p]}:{r.V1[p]+3}], v{r.vA} offset:{64*t}")
    A(f"ds_read_b128 v[{r.V2[p]}:{r.V2[p]+3}], v{r.vA} offset:{64*t+32}")

def mf_main(A, r, dst, p, u):
    A(f"v_mfma_f32_32x32x16_bf16 v[{dst}:{dst+15}], v[{r.Km[p]}:{r.Km[p]+3}], v[{r.Qm[u]}:{r.Qm[u]+3}], 0")
def mf_tail(A, r, dst, p, u):
    A(f"v_mfma_f32_32x32x8_bf16 v[{dst}:{dst+15}], v[{r.Kt[p]}:{r.Kt[p]+1}], v[{r.Qt[u]}:{r.Qt[u]+1}], v[{dst}:{dst+15}]")
def mf_pv(A, r, u, va, src):
    A(f"v_smfmac_f32_32x32x32_bf16 v[{r.O[u]}:{r.O[u]+15}], v[{va}:{va+3}], v[{src}:{src+7}], v{r.idx}")
def exps(A, base, n):
    for i in range(n):
        A(f"v_exp_f32 v{base+i}, v{base+i}")

def emit_first_max(A, r):
    t0, t1, t2, t3 = r.t[:4]
    for u in range(2):
        A(f"v_mov_b32 v{r.Qt[u]+1}, 0")
    A("s_mov_b64 s[36:37], exec")
    A("s_mov_b32 exec_lo, 0")
    for u in range(2):
        A(f"v_mov_b32 v{r.Qt[u]}, 0")
    A("s_mov_b64 exec, s[36:37]")
    A("s_nop 4")
    for u in range(2):
        mf_main(A, r, r.S[u], 0, u)
        mf_tail(A, r, r.S[u], 0, u)
    A("s_nop 15")
    for u in range(2):
        s = r.S[u]
        m = r.t[u]
        A(f"v_max3_f32 v{m}, v{s}, v{s+1}, v{s+2}")
        for k in range(3, 15, 2):
            A(f"v_max3_f32 v{m}, v{m}, v{s+k}, v{s+k+1}")
        A(f"v_max_f32 v{m}, v{m}, v{s+15}")
    A(f"v_mov_b32 v{t2}, v{t0}")
    A(f"v_mov_b32 v{t3}, v{t1}")
    A("s_nop 1")
    A(f"v_permlane32_swap_b32 v{t0}, v{t2}")
    A(f"v_permlane32_swap_b32 v{t1}, v{t3}")
    A("s_nop 1")
    A(f"v_max_f32 v{t0}, v{t0}, v{t2}")
    A(f"v_max_f32 v{t1}, v{t1}, v{t3}")
    A("s_mov_b64 s[36:37], exec")
    A("s_mov_b32 exec_hi, 0")
    A(f"v_cvt_pk_bf16_f32 v{r.Qt[0]+1}, -v{t0}, 0")
    A(f"v_cvt_pk_bf16_f32 v{r.Qt[1]+1}, -v{t1}, 0")
    A("s_mov_b64 exec, s[36:37]")

def emit_attn_prologue(A, r):
    k_reads(A, r, 0, 0)
    v_reads(A, r, 0, 0)
    for u in range(2):
        for i in range(16):
            A(f"v_mov_b32 v{r.O[u]+i}, 0")
    for i in range(8, 16):
        A(f"v_mov_b32 v{r.S[3]+i}, 0")
    for i in range(4):
        A(f"v_mov_b32 v{r.V2[1]+i}, 0")
    A("s_waitcnt lgkmcnt(0)")
    emit_first_max(A, r)
    A("s_nop 4")
    mf_main(A, r, r.S[0], 0, 0)
    mf_tail(A, r, r.S[0], 0, 0)
    A("s_nop 15")

def emit_step(A, r, n, hooks):
    t = n // 2; u = n % 2
    cur = r.S[n % 4]; nxt = r.S[(n + 1) % 4]; prv = r.S[(n - 1) % 4]
    pk = ((n + 1) // 2) % 2
    sched = OPT.get("sched", 0)
    for h in hooks.get((n, "pre"), []): h()
    def reads():
        if u == 0:
            if t == 7:
                for h in hooks.get((n, "kaddr"), []): h()
            k_reads(A, r, (t + 1) % 8, (t + 1) % 2)
        else:
            if t == 7:
                for h in hooks.get((n, "vaddr"), []): h()
            v_reads(A, r, (t + 1) % 8, (t + 1) % 2)
    nolds = OPT.get("nolds")
    def w0():
        if u == 1 and not nolds: A("s_waitcnt lgkmcnt(0)")
    def w4():
        if u == 0 and not nolds: A("s_waitcnt lgkmcnt(4)")
    def mid():
        for h in hooks.get((n, "mid"), []): h()
    M1 = lambda: mf_main(A, r, nxt, pk, (n + 1) % 2)
    M2 = lambda: mf_tail(A, r, nxt, pk, (n + 1) % 2)
    P2 = lambda: mf_pv(A, r, (n - 1) % 2, r.V2[((n - 1) // 2) % 2], prv + 8)
    P1 = lambda: mf_pv(A, r, u, r.V1[t % 2], cur)
    E = lambda a, k: exps(A, cur + a, k)
    if OPT.get("nomfma"):
        M1 = M2 = P1 = P2 = lambda: None
    if OPT.get("nomain"): M1 = lambda: None
    if OPT.get("notail"): M2 = lambda: None
    if OPT.get("nopv"): P1 = P2 = lambda: None
    if OPT.get("noexp"):
        E = lambda a, k: None
    if sched == 0:
        w0(); M1(); reads(); E(0, 4); M2(); E(4, 4); P2(); mid(); E(8, 4); w4(); P1(); E(12, 4)
    elif sched == 1:
        w0(); M1(); reads(); E(0, 3); M2(); E(3, 5); P2(); mid(); E(8, 4); w4(); P1(); E(12, 4)
    elif sched == 2:
        w0(); M1(); E(0, 4); M2(); reads(); E(4, 4); P2(); mid(); E(8, 4); P1() if u == 1 else (A("s_waitcnt lgkmcnt(3)") if not nolds else None, P1()); E(12, 4)
    elif sched == 3:
        w0(); M1(); P2(); reads(); E(0, 8); mid(); M2(); E(8, 2); w4(); P1(); E(10, 6)
    elif sched == 5:
        w0(); M1(); reads(); E(0, 4); P2(); mid(); E(4, 4); M2(); E(8, 4); w4(); P1(); E(12, 4)
    elif sched == 6:
        w0(); M1(); reads(); E(0, 4); mf_tail(A, r, r.S[(n + 2) % 4], pk, (n + 1) % 2); E(4, 4); P2(); mid(); E(8, 4); w4(); P1(); E(12, 4)
    elif sched == 4:
        w0(); M1(); reads(); E(0, 5); M2(); E(5, 3); P2(); mid(); E(8, 5); w4(); P1(); E(13, 3)

def emit_attn_loop(A, r, name, nseg=8, dma_flags=""):
    A(f"s_mov_b32 s{r.s_it}, 0")
    A(f"s_mov_b32 s{r.s_rslot}, 0")
    if OPT.get("prio"):
        A(f"s_cmp_ge_u32 s{r.s_w}, 4\ns_cbranch_scc0 {name}_np\ns_setprio 1\n{name}_np:")
    A(".p2align 6")
    A.label(f"{name}_loop")
    OPT["inloop"] = True
    hooks = {}
    def dma_part():
        lab = A.newlabel("Lnodma")
        A(f"s_cmp_ge_u32 s{r.s_it}, {nseg-2}")
        A(f"s_cbranch_scc1 {lab}")
        if not OPT.get("nodma"): emit_dma_segment(A, r, dma_flags)
        A.label(lab)
    def bar():
        A("s_waitcnt vmcnt(0)")
        if not OPT.get("nobar"): A("s_barrier")
        if OPT.get("stag"):
            lab = A.newlabel("Lstag")
            A(f"s_cmp_ge_u32 s{r.s_w}, 4")
            A(f"s_cbranch_scc1 {lab}")
            dma_part()
            A.label(lab)
        else:
            dma_part()
        A(f"s_add_u32 s{r.s_rslot}, s{r.s_rslot}, 1")
        A(f"s_cmp_eq_u32 s{r.s_rslot}, {NSLOT}")
        A(f"s_mov_b32 s{r.s_delta}, {SLOT}\ns_cmov_b32 s{r.s_delta}, {-(NSLOT-1)*SLOT & 0xffffffff}")
        A(f"s_cselect_b32 s{r.s_rslot}, 0, s{r.s_rslot}")
    def dma_late():
        lab = A.newlabel("Lstag2")
        A(f"s_cmp_lt_u32 s{r.s_w}, 4")
        A(f"s_cbranch_scc1 {lab}")
        dma_part()
        A.label(lab)
    def kaddr():
        for x in (r.kE, r.kO, r.tE, r.tO):
            A(f"v_add_u32 v{x}, s{r.s_delta}, v{x}")
    def vaddr():
        A(f"v_add_u32 v{r.vA}, s{r.s_delta}, v{r.vA}")
    hooks[(12, "mid")] = [bar]
    if OPT.get("stag"):
        hooks[(12 + OPT["stag"], "mid")] = [dma_late]
    hooks[(14, "kaddr")] = [kaddr]
    hooks[(15, "vaddr")] = [vaddr]
    pr = OPT.get("pphase", 0)
    if pr:
        if pr == 1: sched_p = {13: 3, 1: 2, 5: 1, 9: 0}
        elif pr == 2: sched_p = {13: 3, 2: 2, 7: 1, 12: 0}
        elif pr == 3: sched_p = {13: 3, 3: 2, 8: 1, 11: 0}
        for k, v in sched_p.items():
            hooks.setdefault((k, "pre"), []).append(lambda v=v: A(f"s_setprio {v}"))
    for n in range(16):
        emit_step(A, r, n, hooks)
    if OPT.get("itstamp"):
        A("s_memtime s[54:55]\ns_memrealtime s[56:57]\ns_waitcnt lgkmcnt(0)")
        A(f"s_lshl_b32 s58, s{r.s_it}, 1")
        A(f"s_mov_b32 m0, s58")
        A(f"v_writelane_b32 v{r.t[5]}, s54, m0")
        A("s_add_u32 m0, m0, 1")
        A(f"v_writelane_b32 v{r.t[5]}, s56, m0")
    A(f"s_add_u32 s{r.s_it}, s{r.s_it}, 1")
    A(f"s_cmp_lt_u32 s{r.s_it}, {nseg}")
    A(f"s_cbranch_scc1 {name}_loop")
    OPT["inloop"] = False
    A("s_nop 1")
    mf_pv(A, r, 1, r.V2[1], r.S[3] + 8)
    A("s_nop 15")

def emit_attn_store(A, r, flags=""):
    t0, t1, t2, t3, t4, t5 = r.t
    st, st2 = r.s_t[:2]
    A(f"s_lshl_b32 s{st}, s{r.s_c}, 8")
    A(f"s_and_b32 s{st2}, s{r.s_w}, 3")
    A(f"s_lshl_b32 s{st2}, s{st2}, 6")
    A(f"s_add_u32 s{st}, s{st}, s{st2}")
    A(f"s_mul_i32 s{st}, s{st}, 1152")
    A(f"s_lshr_b32 s{st2}, s{r.s_w}, 2")
    A(f"s_lshl_b32 s{r.s_t[2]}, s{r.s_hp}, 1")
    A(f"s_add_u32 s{st2}, s{st2}, s{r.s_t[2]}")
    A(f"s_mul_i32 s{st2}, s{st2}, 36")
    A(f"s_add_u32 s{st}, s{st}, s{st2}")
    A(f"v_and_b32 v{t0}, 31, v{r.lane}")
    A(f"v_mul_u32_u24 v{t0}, 1152, v{t0}")
    A(f"v_lshrrev_b32 v{t1}, 5, v{r.lane}")
    A(f"v_lshl_add_u32 v{t0}, v{t1}, 4, v{t0}")
    for u in range(2):
        o = r.O[u]
        A(f"v_rcp_f32 v{t1}, v{o+10}")
        A("s_nop 0")
        for i in range(10):
            A(f"v_mul_f32 v{o+i}, v{o+i}, v{t1}")
        pk = r.S[u]
        for i in range(5):
            A(f"v_cvt_pk_bf16_f32 v{pk+i}, v{o+2*i}, v{o+2*i+1}")
        if u == 1:
            A(f"s_add_u32 s{st}, s{st}, {32*1152}")
        A(f"buffer_store_dwordx4 v[{pk}:{pk+3}], v{t0}, s[{r.s_osrd}:{r.s_osrd+3}], s{st} offen{flags}")
        A("s_mov_b64 s[36:37], exec")
        A("s_mov_b32 exec_hi, 0")
        A(f"buffer_store_dword v{pk+4}, v{t0}, s[{r.s_osrd}:{r.s_osrd+3}], s{st} offen offset:32{flags}")
        A("s_mov_b64 exec, s[36:37]")

def gen_attn_standalone(name="attn_kernel", stamp=False):
    A = Asm(); r = R(); V = RegAlloc(1, 256, "v")
    alloc_attn_regs(V, r); alloc_sregs(r)
    A(f".globl {name}\n.p2align 8\n.type {name},@function")
    A.label(name)
    A(f"s_cmp_ge_u32 s2, 256\ns_cbranch_scc1 {name}_end")
    A(f"s_load_dwordx2 s[{r.s_ws}:{r.s_ws+1}], s[0:1], 64")
    if stamp:
        A("s_load_dwordx2 s[44:45], s[0:1], 48")
        A("s_memtime s[40:41]")
        A("s_memrealtime s[50:51]")
    emit_ids(A, r)
    A("s_waitcnt lgkmcnt(0)")
    emit_srds(A, r)
    emit_dma_setup(A, r, True)
    A(f"s_mov_b32 s{r.s_slotw}, 0")
    A(f"s_mov_b32 s{r.s_seg}, s{r.s_c}")
    emit_dma_segment(A, r)
    emit_dma_segment(A, r)
    emit_ones(A, r)
    emit_read_addrs(A, r)
    A("s_waitcnt vmcnt(5) lgkmcnt(0)")
    A("s_barrier")
    emit_q_frags(A, r)
    emit_attn_prologue(A, r)
    if stamp:
        A("s_memtime s[42:43]")
    emit_attn_loop(A, r, name)
    if stamp:
        A("s_memtime s[46:47]")
    if OPT.get("itstamp"):
        A(f"s_lshl_b32 s38, s2, 3\ns_add_u32 s38, s38, s{r.s_w}\ns_lshl_b32 s38, s38, 6\ns_add_u32 s38, s38, 65536")
        A(f"v_lshl_add_u32 v{r.t[0]}, v{r.lane}, 2, s38")
        A(f"v_cmp_gt_u32 vcc, 16, v{r.lane}")
        A("s_and_saveexec_b64 s[36:37], vcc")
        A(f"global_store_dword v{r.t[0]}, v{r.t[5]}, s[44:45]")
        A("s_mov_b64 exec, s[36:37]")
    emit_attn_store(A, r)
    if stamp:
        A("s_waitcnt vmcnt(0) lgkmcnt(0)")
        A("s_memtime s[48:49]")
        A("s_memrealtime s[52:53]")
        A("s_waitcnt lgkmcnt(0)")
        A("s_sub_u32 s52, s52, s50")
        A("s_sub_u32 s42, s42, s40\ns_sub_u32 s46, s46, s40\ns_sub_u32 s48, s48, s40")
        A(f"s_lshl_b32 s38, s2, 3\ns_add_u32 s38, s38, s{r.s_w}\ns_lshl_b32 s38, s38, 4")
        A(f"v_mov_b32 v{r.t[0]}, s38")
        A(f"v_mov_b32 v{r.S[0]}, s42\nv_mov_b32 v{r.S[0]+1}, s46\nv_mov_b32 v{r.S[0]+2}, s48\nv_mov_b32 v{r.S[0]+3}, s52")
        A(f"v_cmp_eq_u32 vcc, 0, v{r.lane}")
        A("s_and_saveexec_b64 s[36:37], vcc")
        A(f"global_store_dwordx4 v{r.t[0]}, v[{r.S[0]}:{r.S[0]+3}], s[44:45]")
    A.label(f"{name}_end")
    A("s_endpgm")
    return A.text(), V.next

if __name__ == "__main__":
    txt, nv = gen_attn_standalone(stamp=True)
    print("vgprs", nv)
    asm = '.amdgcn_target "amdgcn-amd-amdhsa--gfx950"\n.text\n' + txt + '.section .rodata,"a"\n' + kernel_desc("attn_kernel", nv)
    open("attn_test.s", "w").write(asm)
```

```python
class Asm:
    def __init__(self):
        self.lines = []
        self.nlab = 0
    def __call__(self, s=""):
        for l in s.split("\n"):
            self.lines.append(l if (l.endswith(":") or l.startswith(".") or l.startswith(";")) else "  " + l.strip())
    def label(self, name):
        self.lines.append(name + ":")
    def newlabel(self, p="L"):
        self.nlab += 1
        return f"{p}_{self.nlab}"
    def comment(self, s):
        self.lines.append("  ; " + s)
    def text(self):
        return "\n".join(self.lines) + "\n"

def vr(base, n=1):
    return f"v{base}" if n == 1 else f"v[{base}:{base+n-1}]"
def sr(base, n=1):
    return f"s{base}" if n == 1 else f"s[{base}:{base+n-1}]"
def ar(base, n=1):
    return f"a{base}" if n == 1 else f"a[{base}:{base+n-1}]"

class RegAlloc:
    def __init__(self, start, limit, kind="v"):
        self.next = start; self.limit = limit; self.kind = kind; self.names = {}
    def alloc(self, name, n=1, align=1):
        if n > 1 and align == 1: align = 2
        b = (self.next + align - 1) // align * align
        self.next = b + n
        assert self.next <= self.limit, f"out of {self.kind} regs at {name}"
        self.names[name] = (b, n)
        return b

def kernel_desc(name, vgpr, sgpr=102, accum=None, lds=0):
    if accum is None: accum = (vgpr + 3) // 4 * 4
    return f""".p2align 6
.amdhsa_kernel {name}
  .amdhsa_next_free_vgpr {vgpr}
  .amdhsa_next_free_sgpr {sgpr}
  .amdhsa_accum_offset {accum}
  .amdhsa_group_segment_fixed_size 0
  .amdhsa_kernarg_size 72
  .amdhsa_user_sgpr_count 2
  .amdhsa_user_sgpr_kernarg_segment_ptr 1
  .amdhsa_system_sgpr_workgroup_id_x 1
  .amdhsa_float_denorm_mode_32 3
.end_amdhsa_kernel
"""
```

```python
from emit import *
import attn
from attn import R, O_OFF, O_BLK

XST = 128 * 128
WST = 64 * 256
STAGE = XST + WST
NST = 4
LDS_OP = NST * STAGE
NCH = 9
OPT = {}

def gen_oproj(name="oproj_kernel", stamp=False, nload=4):
    A = Asm(); r = R(); V = RegAlloc(1, 128, "v")
    lane = V.alloc("lane"); t = [V.alloc(f"t{i}") for i in range(6)]
    t0, t1, t2, t3, t4, t5 = t
    vx = [V.alloc(f"vx{i}") for i in range(4)]
    vw = V.alloc("vw")
    aB = [V.alloc(f"aB{k}") for k in range(2)]
    aA = [V.alloc(f"aA{k}") for k in range(5)]
    FO = [[V.alloc(f"FO{s}{i}", 4, 2) for i in range(2)] for s in range(2)]
    FW = [[V.alloc(f"FW{s}{i}", 4, 2) for i in range(5)] for s in range(2)]
    acc = [[V.alloc(f"acc{i}{c}", 4, 4) for c in range(5)] for i in range(2)]
    s_w = 16; s_b = 17; s_mt = 18; s_nt = 19
    s_osrd = 20; s_wsrd = 24; s_dsrd = 28
    st, st2, st3, st4 = 32, 33, 34, 35
    s_kc = 40; s_stw = 41; s_xoff = 42; s_woff = 43; s_mx = 44; s_mw = 45; s_it = 46; s_rst = 47; s_gd = 48
    A(f".globl {name}\n.p2align 8\n.type {name},@function")
    A.label(name)
    A(f"s_cmp_ge_u32 s2, 256\ns_cbranch_scc1 {name}_end")
    A("s_load_dwordx2 s[4:5], s[0:1], 64")
    A("s_load_dwordx2 s[6:7], s[0:1], 16")
    A("s_load_dwordx2 s[8:9], s[0:1], 40")
    A("s_load_dwordx2 s[10:11], s[0:1], 48")
    if stamp:
        A("s_load_dwordx2 s[60:61], s[0:1], 56")
        A("s_memtime s[50:51]\ns_memrealtime s[58:59]")
    A(f"v_and_b32 v{lane}, 63, v0")
    A(f"v_lshrrev_b32 v{t0}, 6, v0")
    A("s_and_b32 s3, s2, 7")
    A(f"s_lshr_b32 s{st}, s2, 3")
    A(f"v_readfirstlane_b32 s{s_w}, v{t0}")
    A(f"s_lshr_b32 s{s_b}, s3, 2")
    A("s_and_b32 s3, s3, 3\ns_lshl_b32 s3, s3, 2")
    A(f"s_lshr_b32 s{s_mt}, s{st}, 3\ns_add_u32 s{s_mt}, s{s_mt}, s3")
    A(f"s_and_b32 s{s_nt}, s{st}, 7")
    A("s_waitcnt lgkmcnt(0)")
    A(f"s_mul_i32 s{st}, s{s_b}, {O_BLK}\ns_add_u32 s{st}, s{st}, {O_OFF}")
    A(f"s_add_u32 s{s_osrd}, s4, s{st}\ns_addc_u32 s{s_osrd+1}, s5, 0")
    A(f"s_mov_b32 s{s_osrd+2}, {O_BLK}\ns_mov_b32 s{s_osrd+3}, 0x20000")
    A(f"s_cmp_eq_u32 s{s_b}, 0")
    A(f"s_cselect_b32 s{s_wsrd}, s6, s8\ns_cselect_b32 s{s_wsrd+1}, s7, s9")
    A(f"s_mov_b32 s{s_wsrd+2}, {576*1152}\ns_mov_b32 s{s_wsrd+3}, 0x20000")
    A(f"s_mov_b32 s{s_dsrd}, s10\ns_mov_b32 s{s_dsrd+1}, s11\ns_mov_b32 s{s_dsrd+2}, {2048*2304}\ns_mov_b32 s{s_dsrd+3}, 0x20000")
    A(f"s_cmp_ge_u32 s{s_w}, 4\ns_cbranch_scc1 {name}_load")
    A(f"v_and_b32 v{t0}, 15, v{lane}")
    A(f"v_lshrrev_b32 v{t1}, 1, v{t0}")
    A(f"v_lshrrev_b32 v{t2}, 4, v{lane}")
    A(f"v_xor_b32 v{t1}, v{t1}, v{t2}")
    A(f"s_lshl_b32 s{st}, s{s_w}, 12")
    A(f"v_lshlrev_b32 v{t0}, 7, v{t0}")
    A(f"v_add_u32 v{t0}, s{st}, v{t0}")
    A(f"v_lshl_add_u32 v{aB[0]}, v{t1}, 4, v{t0}")
    A(f"v_xor_b32 v{t1}, 4, v{t1}")
    A(f"v_lshl_add_u32 v{aB[1]}, v{t1}, 4, v{t0}")
    A(f"v_lshrrev_b32 v{t0}, 4, v{lane}")
    A(f"v_lshrrev_b32 v{t1}, 2, v{lane}")
    A(f"v_and_b32 v{t1}, 3, v{t1}")
    A(f"v_lshl_add_u32 v{t2}, v{t0}, 3, v{t1}")
    A(f"v_lshlrev_b32 v{t2}, 8, v{t2}")
    A(f"v_add_u32 v{t2}, {XST}, v{t2}")
    A(f"v_and_b32 v{t0}, 1, v{t0}")
    A(f"v_lshl_or_b32 v{t0}, v{t0}, 2, v{t1}")
    A(f"v_and_b32 v{t3}, 3, v{lane}")
    for ct in range(5):
        if ct < 4:
            P, T = ct // 2, ct % 2
            A(f"v_add_u32 v{t4}, {4*P}, v{t3}")
            A(f"v_lshlrev_b32 v{t5}, 1, v{t0}")
            A(f"v_xor_b32 v{t4}, v{t4}, v{t5}")
            A(f"v_lshl_add_u32 v{aA[ct]}, v{t4}, 4, v{t2}")
            if T: A(f"v_add_u32 v{aA[ct]}, 8, v{aA[ct]}")
        else:
            A(f"v_lshrrev_b32 v{t4}, 1, v{t3}")
            A(f"v_add_u32 v{t4}, 8, v{t4}")
            A(f"v_lshlrev_b32 v{t5}, 1, v{t0}")
            A(f"v_xor_b32 v{t4}, v{t4}, v{t5}")
            A(f"v_lshl_add_u32 v{aA[ct]}, v{t4}, 4, v{t2}")
            A(f"v_and_b32 v{t5}, 1, v{t3}")
            A(f"v_lshl_add_u32 v{aA[ct]}, v{t5}, 3, v{aA[ct]}")
    for i in range(2):
        for c in range(5):
            for j in range(4): A(f"v_mov_b32 v{acc[i][c]+j}, 0")
    def reads(s, ks):
        for i in range(2):
            A(f"ds_read_b128 v[{FO[s][i]}:{FO[s][i]+3}], v{aB[ks]} offset:{2048*i}")
        for c in range(5):
            A(f"ds_read_b64_tr_b16 v[{FW[s][c]}:{FW[s][c]+1}], v{aA[c]} offset:{8192*ks}")
            A(f"ds_read_b64_tr_b16 v[{FW[s][c]+2}:{FW[s][c]+3}], v{aA[c]} offset:{8192*ks+1024}")
    def mfmas(s):
        for c in range(5):
            for i in range(2):
                A(f"v_mfma_f32_16x16x32_bf16 v[{acc[i][c]}:{acc[i][c]+3}], v[{FW[s][c]}:{FW[s][c]+3}], v[{FO[s][i]}:{FO[s][i]+3}], v[{acc[i][c]}:{acc[i][c]+3}]")
    A(f"s_mov_b32 s{s_rst}, 0\ns_mov_b32 s{s_it}, 0")
    A("s_barrier")
    reads(0, 0)
    A.label(f"{name}_cl")
    reads(1, 1)
    A("s_waitcnt lgkmcnt(12)")
    mfmas(0)
    A("s_waitcnt lgkmcnt(0)")
    A("s_barrier")
    A(f"s_add_u32 s{s_rst}, s{s_rst}, 1\ns_cmp_eq_u32 s{s_rst}, {NST}")
    A(f"s_mov_b32 s{s_gd}, {STAGE}\ns_cmov_b32 s{s_gd}, {-(NST-1)*STAGE & 0xffffffff}")
    A(f"s_cselect_b32 s{s_rst}, 0, s{s_rst}")
    for x in aB + aA: A(f"v_add_u32 v{x}, s{s_gd}, v{x}")
    reads(0, 0)
    mfmas(1)
    A(f"s_add_u32 s{s_it}, s{s_it}, 1\ns_cmp_lt_u32 s{s_it}, {NCH}")
    A("s_waitcnt lgkmcnt(0)")
    A(f"s_cbranch_scc1 {name}_cl")
    A("s_nop 7")
    A(f"v_and_b32 v{t0}, 15, v{lane}")
    A(f"s_lshl_b32 s{st}, s{s_mt}, 7\ns_lshl_b32 s{st2}, s{s_w}, 5\ns_add_u32 s{st}, s{st}, s{st2}")
    A(f"v_add_u32 v{t0}, s{st}, v{t0}")
    A(f"v_mul_u32_u24 v{t0}, 2304, v{t0}")
    A(f"v_lshrrev_b32 v{t1}, 4, v{lane}")
    A(f"s_mul_i32 s{st}, s{s_b}, 1152\ns_mul_i32 s{st2}, s{s_nt}, 144\ns_add_u32 s{st}, s{st}, s{st2}")
    A(f"v_lshl_add_u32 v{t2}, v{t1}, 4, v{t0}")
    A(f"v_lshl_add_u32 v{t3}, v{t1}, 3, v{t0}")
    for i in range(2):
        if i == 1: A(f"s_add_u32 s{st}, s{st}, {16*2304}")
        for P in range(2):
            a0, a1 = acc[i][2*P], acc[i][2*P+1]
            pk = FW[0][2*i+P]
            A(f"v_cvt_pk_bf16_f32 v{pk}, v{a0}, v{a0+1}\nv_cvt_pk_bf16_f32 v{pk+1}, v{a0+2}, v{a0+3}")
            A(f"v_cvt_pk_bf16_f32 v{pk+2}, v{a1}, v{a1+1}\nv_cvt_pk_bf16_f32 v{pk+3}, v{a1+2}, v{a1+3}")
            A(f"buffer_store_dwordx4 v[{pk}:{pk+3}], v{t2}, s[{s_dsrd}:{s_dsrd+3}], s{st} offen offset:{64*P}{OPT.get('stflags','')}")
        a0 = acc[i][4]; pk = FW[1][i]
        A(f"v_cvt_pk_bf16_f32 v{pk}, v{a0}, v{a0+1}\nv_cvt_pk_bf16_f32 v{pk+1}, v{a0+2}, v{a0+3}")
        A(f"v_cmp_gt_u32 vcc, 2, v{t1}")
        A("s_and_saveexec_b64 s[36:37], vcc")
        A(f"buffer_store_dwordx2 v[{pk}:{pk+1}], v{t3}, s[{s_dsrd}:{s_dsrd+3}], s{st} offen offset:128{OPT.get('stflags','')}")
        A("s_mov_b64 exec, s[36:37]")
    A(f"s_branch {name}_fin")
    A.label(f"{name}_load")
    A("s_setprio 3")
    A(f"s_sub_u32 s{s_w}, s{s_w}, 4")
    A(f"v_lshrrev_b32 v{t0}, 3, v{lane}")
    A(f"v_and_b32 v{t1}, 7, v{lane}")
    A(f"v_lshrrev_b32 v{t2}, 4, v{lane}")
    A(f"s_lshl_b32 s{st}, s{s_mt}, 7\ns_lshl_b32 s{st2}, s{s_w}, 5\ns_add_u32 s{st}, s{st}, s{st2}")
    A(f"v_add_u32 v{t0}, s{st}, v{t0}")
    A(f"v_mul_u32_u24 v{t0}, 1152, v{t0}")
    for i in range(4):
        A(f"v_or_b32 v{t3}, {4*(i&1)}, v{t2}")
        A(f"v_xor_b32 v{t3}, v{t3}, v{t1}")
        A(f"v_lshl_add_u32 v{vx[i]}, v{t3}, 4, v{t0}")
        if i: A(f"v_add_u32 v{vx[i]}, {i*8*1152}, v{vx[i]}")
    A(f"v_lshrrev_b32 v{t0}, 4, v{lane}")
    A(f"v_and_b32 v{t2}, 15, v{lane}")
    A(f"s_lshl_b32 s{st}, s{s_w}, 4")
    A(f"v_add_u32 v{t4}, s{st}, v{t0}")
    A(f"v_mul_u32_u24 v{t4}, 1152, v{t4}")
    A(f"s_mul_i32 s{st}, s{s_nt}, 144")
    A(f"v_add_u32 v{t4}, s{st}, v{t4}")
    for var, dst in ((0, vw), (1, t5)):
        A(f"v_or_b32 v{t1}, {4*var}, v{t0}")
        A(f"v_lshlrev_b32 v{t1}, 1, v{t1}")
        A(f"v_xor_b32 v{t1}, v{t1}, v{t2}")
        A(f"v_min_u32 v{t1}, 8, v{t1}")
        A(f"v_lshl_add_u32 v{dst}, v{t1}, 4, v{t4}")
    A(f"s_lshl_b32 s{s_mx}, s{s_w}, 12")
    A(f"s_lshl_b32 s{s_mw}, s{s_w}, 12\ns_add_u32 s{s_mw}, s{s_mw}, {XST}")
    def dma():
        A(f"s_lshl_b32 s{s_xoff}, s{s_kc}, 7")
        A(f"s_mul_i32 s{s_woff}, s{s_kc}, {64*1152}")
        for i in range(4):
            A(f"s_add_u32 s{st}, s{s_stw}, s{s_mw}\ns_add_u32 m0, s{st}, {1024*i}")
            A(f"s_add_u32 s{st2}, s{s_woff}, {4*1152*i}")
            A(f"buffer_load_dwordx4 v{vw if i < 2 else t5}, s[{s_wsrd}:{s_wsrd+3}], s{st2} offen lds")
        for i in range(4):
            A(f"s_add_u32 s{st}, s{s_stw}, s{s_mx}\ns_add_u32 m0, s{st}, {1024*i}\ns_nop 0")
            A(f"buffer_load_dwordx4 v{vx[i]}, s[{s_osrd}:{s_osrd+3}], s{s_xoff} offen lds")
        A(f"s_add_u32 s{s_kc}, s{s_kc}, 1")
        A(f"s_add_u32 s{s_stw}, s{s_stw}, {STAGE}\ns_cmp_eq_u32 s{s_stw}, {NST*STAGE}\ns_cselect_b32 s{s_stw}, 0, s{s_stw}")
    A(f"s_mov_b32 s{s_kc}, 0\ns_mov_b32 s{s_stw}, 0")
    for i in range(NST): dma()
    A(f"s_waitcnt vmcnt({8*(NST-1)})")
    A("s_barrier")
    for it in range(NCH):
        rem = max(0, min(NCH - 1, it + NST - 1) - (it + 1))
        A(f"s_waitcnt vmcnt({8*rem})")
        A("s_barrier")
        if it + NST < NCH: dma()
    A.label(f"{name}_fin")
    if stamp:
        A("s_waitcnt vmcnt(0) lgkmcnt(0)")
        A("s_memtime s[52:53]\ns_memrealtime s[54:55]\ns_waitcnt lgkmcnt(0)")
        A("s_sub_u32 s52, s52, s50\ns_sub_u32 s54, s54, s58")
        A(f"v_lshrrev_b32 v{t0}, 6, v0")
        A(f"s_lshl_b32 s38, s2, 5")
        A(f"v_add_u32 v{t0}, s38, v{t0}")
        A(f"v_lshlrev_b32 v{t0}, 3, v{t0}")
        A(f"v_mov_b32 v{acc[0][0]}, s52\nv_mov_b32 v{acc[0][0]+1}, s54")
        A(f"v_cmp_eq_u32 vcc, 0, v{lane}")
        A("s_and_saveexec_b64 s[36:37], vcc")
        A(f"global_store_dwordx2 v{t0}, v[{acc[0][0]}:{acc[0][0]+1}], s[60:61]")
    A.label(f"{name}_end")
    A("s_endpgm")
    return A.text(), V.next
```

```python
from emit import *
import attn
from attn import R, ROWB, BLK_BYTES, KPAIR, VPAIR, KBLK, VBLK, HEADSZ, QOFF, SLOT

XST = 32768
WST = 16384
STAGE = XST + WST
NST = 3
LDS_GEMM = NST * STAGE
NCH = 9
CSCALE = 1.4426950408889634 / (18.0 ** 0.5)
import struct
def f32bits(x): return struct.unpack("<I", struct.pack("<f", x))[0]

OPT = {}

def alloc_gemm_regs(V, g):
    g.vx = [V.alloc(f"vx{i}") for i in range(4)]
    g.vw = V.alloc("vw")
    g.aA = [V.alloc(f"aA{k}") for k in range(2)]
    g.aB = [V.alloc(f"aB{t}") for t in range(4)]
    g.FA = [[V.alloc(f"FA{s}{i}", 4, 2) for i in range(4)] for s in range(2)]
    g.FB = [[V.alloc(f"FB{s}{t}", 4, 2) for t in range(4)] for s in range(2)]
    g.acc = [[V.alloc(f"acc{i}{t}", 4, 4) for t in range(4)] for i in range(4)]

def alloc_gemm_sregs(g):
    g.s_xsrd = 56
    g.s_wsrd = 60
    g.s_xoff = 64; g.s_woff = 65; g.s_stw = 66; g.s_kc = 67; g.s_gdelta = 68; g.s_rst = 69
    g.s_mx = 70; g.s_mw = 71

def emit_gemm_setup(A, r, g):
    t0, t1, t2, t3, t4, t5 = r.t
    st, st2, st3, st4 = r.s_t
    lane = r.lane
    A("s_load_dwordx4 s[72:75], s[0:1], 0")
    A("s_load_dwordx4 s[76:79], s[0:1], 24")
    A("s_waitcnt lgkmcnt(0)")
    A(f"s_cmp_eq_u32 s{r.s_b}, 0")
    A(f"s_cselect_b32 s{g.s_xsrd}, s72, s76")
    A(f"s_cselect_b32 s{g.s_xsrd+1}, s73, s77")
    A(f"s_cselect_b32 s{g.s_wsrd}, s74, s78")
    A(f"s_cselect_b32 s{g.s_wsrd+1}, s75, s79")
    A(f"s_mov_b32 s{g.s_xsrd+2}, {2048*1152}")
    A(f"s_mov_b32 s{g.s_xsrd+3}, 0x20000")
    A(f"s_mov_b32 s{g.s_wsrd+2}, {576*3456}")
    A(f"s_mov_b32 s{g.s_wsrd+3}, 0x20000")
    A(f"v_lshrrev_b32 v{t0}, 3, v{lane}")
    A(f"v_and_b32 v{t1}, 7, v{lane}")
    A(f"v_lshrrev_b32 v{t2}, 4, v{lane}")
    A(f"v_and_b32 v{t2}, 1, v{t2}")
    A(f"s_lshl_b32 s{st}, s{r.s_c}, 8")
    A(f"s_lshl_b32 s{st2}, s{r.s_w}, 5")
    A(f"s_add_u32 s{st}, s{st}, s{st2}")
    A(f"v_add_u32 v{t0}, s{st}, v{t0}")
    A(f"v_mul_u32_u24 v{t0}, 1152, v{t0}")
    for i in range(4):
        A(f"v_or_b32 v{t3}, {i<<1}, v{t2}")
        A(f"v_xor_b32 v{t3}, v{t3}, v{t1}")
        A(f"v_lshl_add_u32 v{g.vx[i]}, v{t3}, 4, v{t0}")
        if i: A(f"v_add_u32 v{g.vx[i]}, {i*8*1152}, v{g.vx[i]}")
    A(f"v_lshrrev_b32 v{t0}, 4, v{lane}")
    A(f"s_and_b32 s{st}, s{r.s_w}, 1")
    A(f"s_lshl_b32 s{st}, s{st}, 2")
    A(f"v_or_b32 v{t1}, s{st}, v{t0}")
    A(f"v_lshlrev_b32 v{t1}, 1, v{t1}")
    A(f"v_and_b32 v{t2}, 15, v{lane}")
    A(f"v_xor_b32 v{t2}, v{t2}, v{t1}")
    A(f"v_lshrrev_b32 v{t3}, 2, v{t2}")
    A(f"v_and_b32 v{t4}, 3, v{t2}")
    A(f"v_min_u32 v{t5}, 2, v{t4}")
    A(f"v_cmp_eq_u32 vcc, 3, v{t3}")
    A("s_nop 1")
    A(f"v_cndmask_b32 v{t3}, v{t3}, v{t5}, vcc")
    A(f"v_cndmask_b32 v{t4}, v{t4}, 4, vcc")
    A(f"v_mul_u32_u24 v{t3}, 1152, v{t3}")
    A(f"v_lshl_add_u32 v{t3}, v{t4}, 4, v{t3}")
    A(f"v_and_b32 v{t4}, 1, v{t0}")
    A(f"v_lshlrev_b32 v{t4}, 3, v{t4}")
    A(f"v_cndmask_b32 v{t4}, 0, v{t4}, vcc")
    A(f"v_sub_u32 v{t3}, v{t3}, v{t4}")
    A(f"s_lshl_b32 s{st}, s{r.s_w}, 3")
    A(f"v_add_u32 v{t0}, s{st}, v{t0}")
    A(f"v_mul_u32_u24 v{t0}, 3456, v{t0}")
    A(f"v_add_u32 v{t3}, v{t3}, v{t0}")
    A(f"s_mul_i32 s{st}, s{r.s_hp}, 72")
    A(f"v_add_u32 v{g.vw}, s{st}, v{t3}")
    A(f"s_lshl_b32 s{g.s_mx}, s{r.s_w}, 12")
    A(f"s_lshl_b32 s{g.s_mw}, s{r.s_w}, 11")
    A(f"s_add_u32 s{g.s_mw}, s{g.s_mw}, {XST}")
    A(f"v_and_b32 v{t0}, 15, v{lane}")
    A(f"v_lshrrev_b32 v{t1}, 2, v{t0}")
    A(f"v_and_b32 v{t2}, 3, v{t0}")
    A(f"v_lshl_add_u32 v{t2}, v{t1}, 3, v{t2}")
    A(f"v_lshrrev_b32 v{t3}, 1, v{t0}")
    A(f"v_and_b32 v{t3}, 1, v{t3}")
    A(f"v_lshl_or_b32 v{t3}, v{t1}, 1, v{t3}")
    A(f"v_lshrrev_b32 v{t4}, 4, v{lane}")
    A(f"v_xor_b32 v{t3}, v{t3}, v{t4}")
    A(f"s_and_b32 s{st}, s{r.s_w}, 3")
    A(f"s_lshl_b32 s{st}, s{st}, 13")
    A(f"v_lshlrev_b32 v{t2}, 7, v{t2}")
    A(f"v_add_u32 v{t2}, s{st}, v{t2}")
    A(f"v_lshl_add_u32 v{g.aA[0]}, v{t3}, 4, v{t2}")
    A(f"v_xor_b32 v{t3}, 4, v{t3}")
    A(f"v_lshl_add_u32 v{g.aA[1]}, v{t3}, 4, v{t2}")
    A(f"v_lshrrev_b32 v{t0}, 4, v{lane}")
    A(f"v_lshrrev_b32 v{t1}, 2, v{lane}")
    A(f"v_and_b32 v{t1}, 3, v{t1}")
    A(f"v_lshl_add_u32 v{t2}, v{t0}, 3, v{t1}")
    A(f"v_lshlrev_b32 v{t2}, 8, v{t2}")
    A(f"v_add_u32 v{t2}, {XST}, v{t2}")
    A(f"v_and_b32 v{t0}, 1, v{t0}")
    A(f"v_lshl_or_b32 v{t0}, v{t0}, 2, v{t1}")
    A(f"v_and_b32 v{t3}, 3, v{lane}")
    A(f"v_lshlrev_b32 v{t4}, 3, v{t3}")
    A(f"v_add_u32 v{t4}, v{t4}, v{t2}")
    A(f"s_lshr_b32 s{st}, s{r.s_w}, 2")
    A(f"s_lshl_b32 s{st}, s{st}, 2")
    for t in range(4):
        A(f"s_add_u32 s{st2}, s{st}, {t}")
        A(f"v_xor_b32 v{t5}, s{st2}, v{t0}")
        A(f"v_lshl_add_u32 v{g.aB[t]}, v{t5}, 5, v{t4}")
    A(f"v_add_u32 v{t3}, 12, v{t3}")
    A(f"v_lshlrev_b32 v{t0}, 1, v{t0}")
    A(f"v_xor_b32 v{t3}, v{t3}, v{t0}")
    A(f"v_lshl_add_u32 v{t3}, v{t3}, 4, v{t2}")
    A(f"v_and_b32 v{t1}, 1, v{t1}")
    A(f"v_lshl_add_u32 v{t3}, v{t1}, 3, v{t3}")
    A(f"s_cmp_ge_u32 s{r.s_w}, 4")
    A(f"s_cselect_b64 vcc, -1, 0")
    A("s_nop 1")
    A(f"v_cndmask_b32 v{g.aB[2]}, v{g.aB[2]}, v{t3}, vcc")

def emit_gemm_dma(A, r, g):
    st = r.s_t[0]
    A(f"s_lshl_b32 s{g.s_xoff}, s{g.s_kc}, 7")
    A(f"s_mul_i32 s{g.s_woff}, s{g.s_kc}, {64*3456}")
    for i in range(4):
        A(f"s_add_u32 s{st}, s{g.s_stw}, s{g.s_mx}")
        A(f"s_add_u32 m0, s{st}, {1024*i}")
        A("s_nop 0")
        A(f"buffer_load_dwordx4 v{g.vx[i]}, s[{g.s_xsrd}:{g.s_xsrd+3}], s{g.s_xoff} offen lds")
    for i in range(2):
        A(f"s_add_u32 s{st}, s{g.s_stw}, s{g.s_mw}")
        A(f"s_add_u32 m0, s{st}, {1024*i}")
        if i: A(f"s_add_u32 s{g.s_woff}, s{g.s_woff}, {4*3456}")
        else: A("s_nop 0")
        A(f"buffer_load_dwordx4 v{g.vw}, s[{g.s_wsrd}:{g.s_wsrd+3}], s{g.s_woff} offen lds")
    A(f"s_add_u32 s{g.s_kc}, s{g.s_kc}, 1")
    A(f"s_add_u32 s{g.s_stw}, s{g.s_stw}, {STAGE}")
    A(f"s_cmp_eq_u32 s{g.s_stw}, {NST*STAGE}")
    A(f"s_cselect_b32 s{g.s_stw}, 0, s{g.s_stw}")

def g_reads(A, g, s, ks, nt):
    if OPT.get("nolds"): return
    for i in range(4 if not OPT.get("noA") else 0):
        p, T = i // 2, i % 2
        A(f"ds_read_b128 v[{g.FA[s][i]}:{g.FA[s][i]+3}], v{g.aA[ks]} offset:{4096*p+512*T}")
    for t in range(nt if not OPT.get("noB") else 0):
        A(f"ds_read_b64_tr_b16 v[{g.FB[s][t]}:{g.FB[s][t]+1}], v{g.aB[t]} offset:{8192*ks}")
        A(f"ds_read_b64_tr_b16 v[{g.FB[s][t]+2}:{g.FB[s][t]+3}], v{g.aB[t]} offset:{8192*ks+1024}")

def g_mfmas(A, g, s, nt, first=False):
    if OPT.get("nomfma"): return
    for t in range(nt):
        for i in range(4):
            c = "0" if first else f"v[{g.acc[i][t]}:{g.acc[i][t]+3}]"
            A(f"v_mfma_f32_16x16x32_bf16 v[{g.acc[i][t]}:{g.acc[i][t]+3}], v[{g.FA[s][i]}:{g.FA[s][i]+3}], v[{g.FB[s][t]}:{g.FB[s][t]+3}], {c}")

def emit_gemm_main(A, r, g, name):
    A(f"s_mov_b32 s{g.s_kc}, 0")
    A(f"s_mov_b32 s{g.s_stw}, 0")
    if OPT.get("st2"): A("s_memtime s[80:81]")
    for i in range(3): emit_gemm_dma(A, r, g)
    A(f"s_mov_b32 s{g.s_rst}, 0")
    if OPT.get("st2"): A("s_memtime s[82:83]")
    A("s_waitcnt vmcnt(12)")
    A("s_barrier")
    if OPT.get("st2"): A("s_memtime s[84:85]")
    A(f"s_cmp_ge_u32 s{r.s_w}, 4")
    A(f"s_cbranch_scc1 {name}_g1")
    for nh in range(2):
        nt = 4 if nh == 0 else 3
        if nh == 1: A.label(f"{name}_g1")
        g_reads(A, g, 0, 0, nt)
        for i in range(4):
            for t in range(nt):
                for j in range(4): A(f"v_mov_b32 v{g.acc[i][t]+j}, 0")
        A(f"s_mov_b32 s{r.s_it}, 0")
        A.label(f"{name}_gl{nh}")
        g_reads(A, g, 1, 1, nt)
        A(f"s_waitcnt lgkmcnt({4+2*nt})")
        g_mfmas(A, g, 0, nt)
        A("s_waitcnt lgkmcnt(0)")
        lab = A.newlabel("Lgw")
        lab2 = A.newlabel("Lgw")
        A(f"s_cmp_ge_u32 s{r.s_it}, {NCH-2}")
        A(f"s_cbranch_scc1 {lab}")
        A("s_waitcnt vmcnt(6)")
        A(f"s_branch {lab2}")
        A.label(lab)
        A("s_waitcnt vmcnt(0)")
        A.label(lab2)
        A("s_barrier")
        lab3 = A.newlabel("Lgd")
        A(f"s_cmp_ge_u32 s{r.s_it}, {NCH-3}")
        A(f"s_cbranch_scc1 {lab3}")
        if not OPT.get("nodma"): emit_gemm_dma(A, r, g)
        A.label(lab3)
        A(f"s_add_u32 s{g.s_rst}, s{g.s_rst}, 1")
        A(f"s_cmp_eq_u32 s{g.s_rst}, {NST}")
        A(f"s_mov_b32 s{g.s_gdelta}, {STAGE}\ns_cmov_b32 s{g.s_gdelta}, {-(NST-1)*STAGE & 0xffffffff}")
        A(f"s_cselect_b32 s{g.s_rst}, 0, s{g.s_rst}")
        for x in g.aA + g.aB[:nt]:
            A(f"v_add_u32 v{x}, s{g.s_gdelta}, v{x}")
        g_reads(A, g, 0, 0, nt)
        g_mfmas(A, g, 1, nt)
        A(f"s_add_u32 s{r.s_it}, s{r.s_it}, 1")
        A(f"s_cmp_lt_u32 s{r.s_it}, {NCH}")
        A(f"s_waitcnt lgkmcnt(0)")
        A(f"s_cbranch_scc1 {name}_gl{nh}")
        if nh == 0: A(f"s_branch {name}_gdone")
    A.label(f"{name}_gdone")

def emit_gemm_epilogue_global(A, r, g, all_types=True, flags=""):
    t0, t1, t2, t3, t4, t5 = r.t
    st, st2, st3, st4 = r.s_t
    lane = r.lane
    A("s_nop 7")
    A(f"s_lshl_b32 s{st}, s{r.s_c}, 9")
    A(f"s_and_b32 s{st2}, s{r.s_w}, 3")
    A(f"s_lshl_b32 s{st2}, s{st2}, 7")
    A(f"s_add_u32 s{st}, s{st}, s{st2}")
    A(f"v_lshrrev_b32 v{t0}, 4, v{lane}")
    A(f"v_lshlrev_b32 v{t0}, 4, v{t0}")
    A(f"v_and_b32 v{t1}, 15, v{lane}")
    A(f"s_mul_i32 s{st2}, s{r.s_hp}, 36")
    done = A.newlabel("Lepi")
    for nh in range(2):
        lab = A.newlabel("Lepi")
        if nh == 0:
            A(f"s_cmp_ge_u32 s{r.s_w}, 4\ns_cbranch_scc1 {lab}")
            nxt = lab
        nt = 4 if nh == 0 else 3
        for t in range(nt):
            Tf = 4 * nh + t
            if Tf < 6:
                ty = Tf // 2
                base = 576 * ty + 16 * (Tf % 2)
                A(f"s_add_u32 s{st3}, s{st2}, {base}")
                A(f"v_add_u32 v{t2}, s{st3}, v{t1}")
                valid = None
            else:
                A(f"v_lshrrev_b32 v{t2}, 2, v{t1}")
                A(f"v_mul_u32_u24 v{t2}, 576, v{t2}")
                A(f"v_and_b32 v{t3}, 3, v{t1}")
                A(f"v_add_u32 v{t2}, v{t2}, v{t3}")
                A(f"s_add_u32 s{st3}, s{st2}, 32")
                A(f"v_add_u32 v{t2}, s{st3}, v{t2}")
            A(f"v_lshl_add_u32 v{t2}, v{t2}, 12, v{t0}")
            if Tf < 2:
                A(f"s_mov_b32 s{st4}, {f32bits(CSCALE):#x}")
            elif Tf == 6:
                A(f"v_mov_b32 v{t4}, 1.0")
                A(f"v_mov_b32 v{t5}, {f32bits(CSCALE):#x}")
                A(f"v_cmp_gt_u32 vcc, 4, v{t1}")
                A("s_nop 1")
                A(f"v_cndmask_b32 v{t4}, v{t4}, v{t5}, vcc")
            for p in range(2):
                a0 = g.acc[2 * p][t]; a1 = g.acc[2 * p + 1][t]
                if Tf < 2:
                    for j in range(4):
                        A(f"v_mul_f32 v{a0+j}, s{st4}, v{a0+j}")
                        A(f"v_mul_f32 v{a1+j}, s{st4}, v{a1+j}")
                elif Tf == 6:
                    for j in range(4):
                        A(f"v_mul_f32 v{a0+j}, v{t4}, v{a0+j}")
                        A(f"v_mul_f32 v{a1+j}, v{t4}, v{a1+j}")
                pk = g.FA[0][2 * p + (t % 2)] if True else 0
                pk = g.FA[t % 2][2 * p] if False else g.FA[p][t]
                A(f"v_cvt_pk_bf16_f32 v{pk}, v{a0}, v{a0+1}")
                A(f"v_cvt_pk_bf16_f32 v{pk+1}, v{a0+2}, v{a0+3}")
                A(f"v_cvt_pk_bf16_f32 v{pk+2}, v{a1}, v{a1+1}")
                A(f"v_cvt_pk_bf16_f32 v{pk+3}, v{a1+2}, v{a1+3}")
                if Tf == 6:
                    A(f"v_cmp_gt_u32 vcc, 12, v{t1}")
                    A("s_and_saveexec_b64 s[36:37], vcc")
                A(f"buffer_store_dwordx4 v[{pk}:{pk+3}], v{t2}, s[{r.s_srd}:{r.s_srd+3}], s{st} offen offset:{64*p}{flags}")
                if Tf == 6:
                    A("s_mov_b64 exec, s[36:37]")
        if nh == 0:
            A(f"s_branch {done}")
            A.label(nxt)
    A.label(done)

def gen_qkv_standalone(name="qkv_kernel", stamp=False):
    A = Asm(); r = R(); g = R(); V = RegAlloc(1, 256, "v")
    attn.alloc_sregs(r)
    r.lane = V.alloc("lane"); r.t = [V.alloc(f"t{i}") for i in range(6)]
    alloc_gemm_regs(V, g); alloc_gemm_sregs(g)
    A(f".globl {name}\n.p2align 8\n.type {name},@function")
    A.label(name)
    A(f"s_cmp_ge_u32 s2, 256\ns_cbranch_scc1 {name}_end")
    A(f"s_load_dwordx2 s[{r.s_ws}:{r.s_ws+1}], s[0:1], 64")
    if stamp:
        A("s_load_dwordx2 s[44:45], s[0:1], 48")
        A("s_memtime s[40:41]\ns_memrealtime s[50:51]")
    attn.emit_ids(A, r)
    A("s_waitcnt lgkmcnt(0)")
    attn.emit_srds(A, r)
    emit_gemm_setup(A, r, g)
    emit_gemm_main(A, r, g, name)
    if stamp: A("s_memtime s[42:43]")
    emit_gemm_epilogue_global(A, r, g, flags=OPT.get("stflags", ""))
    if stamp:
        A("s_memtime s[46:47]")
        A("s_waitcnt vmcnt(0) lgkmcnt(0)")
        A("s_memtime s[48:49]\ns_memrealtime s[52:53]")
        A("s_waitcnt lgkmcnt(0)")
        A("s_sub_u32 s52, s52, s50")
        A("s_sub_u32 s42, s42, s40\ns_sub_u32 s46, s46, s40\ns_sub_u32 s48, s48, s40")
        A(f"s_lshl_b32 s38, s2, 3\ns_add_u32 s38, s38, s{r.s_w}\ns_lshl_b32 s38, s38, 4")
        A(f"v_mov_b32 v{r.t[0]}, s38")
        a = g.acc[0][0]
        if OPT.get("st2"):
            A("s_sub_u32 s80, s80, s40\ns_sub_u32 s82, s82, s40\ns_sub_u32 s84, s84, s40")
            A("s_mov_b32 s46, s80\ns_mov_b32 s48, s82\ns_mov_b32 s52, s84")
        A(f"v_mov_b32 v{a}, s42\nv_mov_b32 v{a+1}, s46\nv_mov_b32 v{a+2}, s48\nv_mov_b32 v{a+3}, s52")
        A(f"v_cmp_eq_u32 vcc, 0, v{r.lane}")
        A("s_and_saveexec_b64 s[36:37], vcc")
        A(f"global_store_dwordx4 v{r.t[0]}, v[{a}:{a+3}], s[44:45]")
    A.label(f"{name}_end")
    A("s_endpgm")
    return A.text(), V.next
```

```python
import sys
sys.path.insert(0, "gen")
import attn, qkv, oproj
from emit import kernel_desc
attn.OPT.update(dict(zrows=1, pphase=1, stag=2))
t1, n1 = qkv.gen_qkv_standalone("qkv_kernel")
t2, n2 = attn.gen_attn_standalone("attn_kernel")
t3, n3 = oproj.gen_oproj("oproj_kernel")
ref = open("concat_heads__mha_block__mha_block__prompt.s.ref").read().splitlines()
hdr = [l for l in ref if l.startswith(";") and "@launch" not in l and "Override launch" not in l and "grid=ceil" not in l]
hdr = hdr[:11]
out = "\n".join(hdr) + "\n"
out += f"; @launch kernel=qkv_kernel grid=(256,1,1) block=(512,1,1) lds={qkv.LDS_GEMM}\n"
out += f"; @launch kernel=attn_kernel grid=(256,1,1) block=(512,1,1) lds={attn.LDS_ATTN}\n"
out += f"; @launch kernel=oproj_kernel grid=(256,1,1) block=(512,1,1) lds={oproj.LDS_OP}\n"
out += '.amdgcn_target "amdgcn-amd-amdhsa--gfx950"\n.text\n' + t1 + t2 + t3
out += '.section .rodata,"a"\n' + kernel_desc("qkv_kernel", n1) + kernel_desc("attn_kernel", n2) + kernel_desc("oproj_kernel", n3)
dst = sys.argv[1] if len(sys.argv) > 1 else "concat_heads__mha_block__mha_block__prompt.s"
open(dst, "w").write(out)
print("written", dst, len(out))
```

```python
from emit import *

ROWB = 4096
BLK_BYTES = 1728 * ROWB
O_OFF = 0x1000000
O_BLK = 2048 * 1152
KPAIR, VPAIR = 1152, 1056
KBLK, VBLK = 10496, 9728
HEADSZ = KBLK + VBLK
ONES = 2 * HEADSZ
ZEROS = ONES + 768
SLOT = ONES + 1536
NSLOT = 3
QOFF = NSLOT * SLOT
LDS_ATTN = QOFF + 2 * KBLK

OPT = {}

class R:
    pass

def alloc_attn_regs(V, r):
    r.lane = V.alloc("lane")
    r.t = [V.alloc(f"t{i}") for i in range(6)]
    r.vdma = [V.alloc(f"dma{i}") for i in range(5)]
    r.kE = V.alloc("kE"); r.kO = V.alloc("kO"); r.tE = V.alloc("tE"); r.tO = V.alloc("tO"); r.vA = V.alloc("vA")
    r.idx = V.alloc("idx")
    r.Qm = [V.alloc(f"Qm{u}", 4, 2) for u in range(2)]
    r.Qt = [V.alloc(f"Qt{u}", 2, 2) for u in range(2)]
    r.Km = [V.alloc(f"Km{p}", 4, 2) for p in range(2)]
    r.Kt = [V.alloc(f"Kt{p}", 2, 2) for p in range(2)]
    r.V1 = [V.alloc(f"V1{p}", 4, 2) for p in range(2)]
    r.V2 = [V.alloc(f"V2{p}", 4, 2) for p in range(2)]
    r.S = [V.alloc(f"S{i}", 16, 4) for i in range(4)]
    r.O = [V.alloc(f"O{u}", 16, 4) for u in range(2)]

def alloc_sregs(r):
    r.s_ws = 4; r.s_srd = 8; r.s_osrd = 12
    r.s_w = 16; r.s_b = 17; r.s_hp = 18; r.s_c = 19
    r.s_lds = [20, 21, 22, 23, 24]
    r.s_slotw = 25; r.s_chunk = 26; r.s_it = 27; r.s_delta = 28; r.s_rslot = 29
    r.s_t = [30, 31, 32, 33]
    r.s_seg = 34
    r.s_hbase = 35

def emit_ids(A, r):
    t0 = r.t[0]
    A(f"v_and_b32 v{r.lane}, 63, v0")
    A(f"v_lshrrev_b32 v{t0}, 6, v0")
    A("s_and_b32 s3, s2, 7")
    A(f"s_lshr_b32 s{r.s_t[0]}, s2, 3")
    A(f"v_readfirstlane_b32 s{r.s_w}, v{t0}")
    A(f"s_lshr_b32 s{r.s_b}, s3, 2")
    if OPT.get("map", 162) == 162:
        A(f"s_lshr_b32 s{r.s_hp}, s{r.s_t[0]}, 1")
        A(f"s_and_b32 s3, s3, 3\ns_lshl_b32 s3, s3, 1")
        A(f"s_and_b32 s{r.s_c}, s{r.s_t[0]}, 1\ns_add_u32 s{r.s_c}, s{r.s_c}, s3")
    elif OPT.get("map") == 84:
        A(f"s_lshr_b32 s{r.s_hp}, s3, 1\ns_and_b32 s{r.s_hp}, s{r.s_hp}, 1\ns_lshl_b32 s{r.s_hp}, s{r.s_hp}, 3")
        A(f"s_lshr_b32 s{r.s_c}, s{r.s_t[0]}, 2\ns_add_u32 s{r.s_hp}, s{r.s_hp}, s{r.s_c}")
        A(f"s_and_b32 s3, s3, 1\ns_lshl_b32 s3, s3, 2")
        A(f"s_and_b32 s{r.s_c}, s{r.s_t[0]}, 3\ns_add_u32 s{r.s_c}, s{r.s_c}, s3")
    else:
        A(f"s_and_b32 s3, s3, 3")
        A(f"s_lshl_b32 s3, s3, 2")
        A(f"s_lshr_b32 s{r.s_hp}, s{r.s_t[0]}, 3")
        A(f"s_add_u32 s{r.s_hp}, s{r.s_hp}, s3")
        A(f"s_and_b32 s{r.s_c}, s{r.s_t[0]}, 7")

def emit_srds(A, r):
    t = r.s_t[0]
    A(f"s_mul_i32 s{t}, s{r.s_b}, {BLK_BYTES}")
    A(f"s_add_u32 s{r.s_srd}, s{r.s_ws}, s{t}")
    A(f"s_addc_u32 s{r.s_srd+1}, s{r.s_ws+1}, 0")
    A(f"s_mov_b32 s{r.s_srd+2}, {BLK_BYTES}")
    A(f"s_mov_b32 s{r.s_srd+3}, 0x20000")
    A(f"s_mul_i32 s{t}, s{r.s_b}, {O_BLK}")
    A(f"s_add_u32 s{t}, s{t}, {O_OFF}")
    A(f"s_add_u32 s{r.s_osrd}, s{r.s_ws}, s{t}")
    A(f"s_addc_u32 s{r.s_osrd+1}, s{r.s_ws+1}, 0")
    A(f"s_mov_b32 s{r.s_osrd+2}, {O_BLK}")
    A(f"s_mov_b32 s{r.s_osrd+3}, 0x20000")

def emit_dma_setup(A, r, with_q):
    t0, t1, t2, t3 = r.t[:4]
    st, st2, st3, st4 = r.s_t
    A(f"v_lshrrev_b32 v{t0}, 5, v{r.lane}")
    A(f"v_and_b32 v{t1}, 31, v{r.lane}")
    A(f"v_lshlrev_b32 v{t2}, 2, v{t0}")
    A(f"v_xor_b32 v{t2}, v{t2}, v{t1}")
    A(f"v_lshlrev_b32 v{t2}, 4, v{t2}")
    A(f"v_lshl_add_u32 v{t2}, v{t0}, 12, v{t2}")
    A(f"v_xor_b32 v{t3}, v{t0}, v{t1}")
    A(f"v_lshlrev_b32 v{t3}, 4, v{t3}")
    A(f"v_lshl_add_u32 v{t3}, v{t0}, 12, v{t3}")
    if with_q:
        A(f"s_lshl_b32 s{r.s_chunk}, s{r.s_c}, 9")
        for i in range(3):
            lab = A.newlabel("Lq")
            A(f"s_add_u32 s{st}, s{r.s_w}, {8*i}")
            if i == 2:
                A(f"s_cmp_ge_u32 s{st}, 18\ns_cbranch_scc1 {lab}")
            A(f"s_cmp_ge_u32 s{st}, 9")
            A(f"s_cselect_b32 s{st2}, {KBLK - 9*KPAIR}, 0")
            A(f"s_mul_i32 s{st3}, s{st}, {KPAIR}")
            A(f"s_add_u32 s{st2}, s{st2}, s{st3}")
            A(f"s_add_u32 m0, s{st2}, {QOFF}")
            A(f"s_mul_i32 s{st3}, s{r.s_hp}, 36")
            A(f"s_lshl_b32 s{st}, s{st}, 1")
            A(f"s_add_u32 s{st3}, s{st3}, s{st}")
            A(f"s_lshl_b32 s{st3}, s{st3}, 12")
            A(f"s_add_u32 s{st3}, s{st3}, s{r.s_chunk}")
            A(f"buffer_load_dwordx4 v{t2}, s[{r.s_srd}:{r.s_srd+3}], s{st3} offen lds")
            A.label(lab)
    for i in range(5):
        if i < 4:
            A(f"s_add_u32 s{st}, s{r.s_w}, {8*i}")
        else:
            A(f"s_and_b32 s{st}, s{r.s_w}, 3\ns_add_u32 s{st}, s{st}, 32")
        A(f"s_cmp_ge_u32 s{st}, 18")
        A(f"s_cselect_b32 s{st2}, 18, 0")
        A(f"s_mov_b32 s{st3}, {KPAIR}\ns_cmov_b32 s{st3}, {VPAIR}")
        A(f"s_cselect_b32 s{st4}, {KBLK}, 0")
        A(f"s_mov_b32 s{r.s_lds[i]}, 576\ns_cmov_b32 s{r.s_lds[i]}, 1152")
        A(f"s_cselect_b64 vcc, -1, 0")
        A(f"s_sub_u32 s{st}, s{st}, s{st2}")
        A(f"s_mul_i32 s{st2}, s{r.s_hp}, 36")
        A(f"s_add_u32 s{r.s_lds[i]}, s{r.s_lds[i]}, s{st2}")
        A(f"s_lshl_b32 s{st2}, s{st}, 1")
        A(f"s_add_u32 s{r.s_lds[i]}, s{r.s_lds[i]}, s{st2}")
        A(f"s_lshl_b32 s{r.s_lds[i]}, s{r.s_lds[i]}, 12")
        A(f"v_cndmask_b32 v{r.vdma[i]}, v{t2}, v{t3}, vcc")
        A(f"v_add_u32 v{r.vdma[i]}, s{r.s_lds[i]}, v{r.vdma[i]}")
        A(f"s_cmp_ge_u32 s{st}, 9")
        A(f"s_cselect_b32 s{st2}, 9, 0")
        A(f"s_cselect_b32 s{r.s_lds[i]}, {HEADSZ}, 0")
        A(f"s_sub_u32 s{st}, s{st}, s{st2}")
        A(f"s_mul_i32 s{st}, s{st}, s{st3}")
        A(f"s_add_u32 s{r.s_lds[i]}, s{r.s_lds[i]}, s{st}")
        A(f"s_add_u32 s{r.s_lds[i]}, s{r.s_lds[i]}, s{st4}")

def emit_dma_segment(A, r, flags=""):
    A(f"s_lshl_b32 s{r.s_chunk}, s{r.s_seg}, 9")
    for i in range(5):
        A(f"s_add_u32 m0, s{r.s_slotw}, s{r.s_lds[i]}")
        A("s_nop 0")
        A(f"buffer_load_dwordx4 v{r.vdma[i]}, s[{r.s_srd}:{r.s_srd+3}], s{r.s_chunk} offen{flags} lds")
    A(f"s_add_u32 s{r.s_seg}, s{r.s_seg}, 1")
    A(f"s_and_b32 s{r.s_seg}, s{r.s_seg}, 7")
    A(f"s_add_u32 s{r.s_slotw}, s{r.s_slotw}, {SLOT}")
    A(f"s_cmp_eq_u32 s{r.s_slotw}, {NSLOT*SLOT}")
    A(f"s_cselect_b32 s{r.s_slotw}, 0, s{r.s_slotw}")

def emit_ones(A, r):
    t0, t1, t2 = r.t[:3]
    A(f"v_mov_b32 v{t0}, 0x3f803f80")
    A(f"v_lshlrev_b32 v{t1}, 2, v0")
    A(f"v_cmp_gt_u32 vcc, 192, v0")
    A("s_and_saveexec_b64 s[36:37], vcc")
    lab = A.newlabel("Lones")
    A(f"s_cbranch_execz {lab}")
    A(f"v_mov_b32 v{r.t[3]}, 0")
    for s in range(NSLOT):
        A(f"v_add_u32 v{t2}, {s*SLOT+ONES}, v{t1}")
        A(f"ds_write_b32 v{t2}, v{t0}")
        A(f"ds_write_b32 v{t2}, v{r.t[3]} offset:768")
    A.label(lab)
    A("s_mov_b64 exec, s[36:37]")

def emit_read_addrs(A, r):
    t0, t1, t2, t3, t4, t5 = r.t
    st = r.s_hbase
    lane = r.lane
    A(f"s_lshr_b32 s{st}, s{r.s_w}, 2")
    A(f"s_mul_i32 s{st}, s{st}, {HEADSZ}")
    A(f"v_lshrrev_b32 v{t0}, 2, v{lane}")
    A(f"v_and_b32 v{t0}, 3, v{t0}")
    A(f"v_lshrrev_b32 v{t1}, 5, v{lane}")
    A(f"v_lshl_add_u32 v{t1}, v{t1}, 3, v{t0}")
    A(f"v_lshrrev_b32 v{t2}, 1, v{t1}")
    A(f"v_mul_u32_u24 v{t2}, {KPAIR}, v{t2}")
    A(f"v_and_b32 v{t1}, 1, v{t1}")
    A(f"v_lshl_add_u32 v{t2}, v{t1}, 9, v{t2}")
    A(f"v_lshrrev_b32 v{t3}, 4, v{lane}")
    A(f"v_and_b32 v{t3}, 1, v{t3}")
    A(f"v_lshlrev_b32 v{t3}, 5, v{t3}")
    A(f"v_and_b32 v{t4}, 3, v{lane}")
    A(f"v_lshl_add_u32 v{t3}, v{t4}, 3, v{t3}")
    A(f"v_add_u32 v{t2}, v{t2}, v{t3}")
    A(f"v_lshlrev_b32 v{t1}, 6, v{t1}")
    A(f"v_add_u32 v{t2}, s{st}, v{t2}")
    A(f"v_add_u32 v{r.kE}, v{t2}, v{t1}")
    A(f"v_sub_u32 v{r.kO}, v{t2}, v{t1}")
    A(f"v_lshlrev_b32 v{t2}, 3, v{t1}")
    A(f"v_add_u32 v{t2}, {8*KPAIR}, v{t2}")
    A(f"v_add_u32 v{t2}, s{st}, v{t2}")
    A(f"v_add_u32 v{t2}, v{t2}, v{t3}")
    A(f"v_add_u32 v{t4}, v{t2}, v{t1}")
    A(f"v_sub_u32 v{t5}, v{t2}, v{t1}")
    A(f"v_add_u32 v{t3}, {ONES+128}, v{t3}")
    A(f"v_cmp_le_u32 vcc, 2, v{t0}")
    A("s_nop 1")
    A(f"v_cndmask_b32 v{r.tE}, v{t4}, v{t3}, vcc")
    A(f"v_cndmask_b32 v{r.tO}, v{t5}, v{t3}, vcc")
    if OPT.get("zrows"):
        A(f"v_lshlrev_b32 v{t2}, 6, v{t0}")
        A(f"v_add_u32 v{t3}, v{t3}, v{t2}")
        A(f"v_add_u32 v{t3}, {768-128-64*0}, v{t3}")
        A(f"v_cmp_eq_u32 vcc, 3, v{t0}")
        A(f"v_cmp_le_u32 s[38:39], 32, v{lane}")
        A("s_or_b64 vcc, vcc, s[38:39]")
        A("s_nop 1")
        A(f"v_cndmask_b32 v{r.tE}, v{r.tE}, v{t3}, vcc")
        A(f"v_cndmask_b32 v{r.tO}, v{r.tO}, v{t3}, vcc")
        A(f"v_lshrrev_b32 v{t2}, 2, v{lane}")
        A(f"v_lshrrev_b32 v{t3}, 5, v{lane}")
        A(f"v_lshlrev_b32 v{t3}, 2, v{t3}")
        A(f"v_and_b32 v{t2}, 3, v{t2}")
        A(f"v_or_b32 v{t2}, v{t2}, v{t3}")
        A(f"v_subrev_u32 v{t3}, 128, v{r.tO}")
        A(f"v_cmp_eq_u32 vcc, 3, v{t2}")
        A("s_nop 1")
        A(f"v_cndmask_b32 v{r.tO}, v{r.tO}, v{t3}, vcc")
    A(f"v_and_b32 v{t0}, 31, v{lane}")
    A(f"v_lshrrev_b32 v{t1}, 2, v{t0}")
    A(f"v_and_b32 v{t1}, 1, v{t1}")
    A(f"v_lshlrev_b32 v{t1}, 3, v{t1}")
    A(f"v_lshrrev_b32 v{t2}, 3, v{t0}")
    A(f"v_and_b32 v{t2}, 1, v{t2}")
    A(f"v_lshl_add_u32 v{t1}, v{t2}, 2, v{t1}")
    A(f"v_and_b32 v{t2}, 3, v{t0}")
    A(f"v_add_u32 v{t1}, v{t1}, v{t2}")
    A(f"v_cmp_gt_u32 vcc, 16, v{t0}")
    A("s_nop 1")
    A(f"v_cndmask_b32 v{t1}, v{t0}, v{t1}, vcc")
    A(f"v_lshrrev_b32 v{t2}, 1, v{t1}")
    A(f"v_mul_u32_u24 v{t2}, {VPAIR}, v{t2}")
    A(f"v_and_b32 v{t3}, 1, v{t1}")
    A(f"v_lshl_add_u32 v{t2}, v{t3}, 9, v{t2}")
    A(f"v_lshrrev_b32 v{t1}, 5, v{lane}")
    A(f"v_xor_b32 v{t3}, v{t3}, v{t1}")
    A(f"v_lshl_add_u32 v{t2}, v{t3}, 4, v{t2}")
    A(f"v_add_u32 v{t2}, {KBLK}, v{t2}")
    A(f"v_add_u32 v{r.vA}, s{st}, v{t2}")
    A(f"v_lshlrev_b32 v{t1}, 4, v{t1}")
    A(f"v_add_u32 v{t2}, {ONES+32}, v{t1}")
    A(f"v_cmp_le_u32 vcc, 18, v{t0}")
    A("s_nop 1")
    A(f"v_cndmask_b32 v{r.vA}, v{r.vA}, v{t2}, vcc")
    A(f"v_add_u32 v{t2}, 32, v{t2}")
    A(f"v_subrev_u32 v{t3}, 20, v{t0}")
    A(f"v_cmp_gt_u32 vcc, 8, v{t3}")
    A("s_nop 1")
    A(f"v_cndmask_b32 v{r.vA}, v{r.vA}, v{t2}, vcc")
    if OPT.get("zrows"):
        A(f"v_cmp_lt_u32 vcc, 18, v{t0}")
        A(f"v_cmp_ne_u32 s[38:39], 22, v{t0}")
        A("s_and_b64 vcc, vcc, s[38:39]")
        A(f"v_add_u32 v{t2}, {768+32}, v{r.vA}")
        A(f"v_add_u32 v{t1}, {768+160}, v{r.vA}")
        A(f"v_subrev_u32 v{t3}, 20, v{t0}")
        A(f"v_cmp_gt_u32 s[38:39], 8, v{t3}")
        A("s_nop 1")
        A(f"v_cndmask_b32 v{t2}, v{t1}, v{t2}, s[38:39]")
        A(f"v_cndmask_b32 v{r.vA}, v{r.vA}, v{t2}, vcc")
    A(f"v_mov_b32 v{r.idx}, 0xdddddddd")

def emit_q_frags(A, r):
    t0, t1, t2, t3, t4, t5 = r.t
    st, st2, st3, st4 = r.s_t
    A(f"s_lshr_b32 s{st2}, s{r.s_w}, 2")
    A(f"s_mul_i32 s{st2}, s{st2}, {KBLK}")
    A(f"s_add_u32 s{st2}, s{st2}, {QOFF}")
    A(f"s_sub_u32 s{st2}, s{st2}, s{r.s_hbase}")
    A(f"s_and_b32 s{st3}, s{r.s_w}, 3")
    A(f"s_lshl_b32 s{st3}, s{st3}, 7")
    A(f"s_add_u32 s{st2}, s{st2}, s{st3}")
    A(f"v_add_u32 v{t0}, s{st2}, v{r.kE}")
    A(f"v_add_u32 v{t1}, s{st2}, v{r.kO}")
    A(f"v_add_u32 v{t2}, s{st2}, v{t4}")
    A(f"v_add_u32 v{t3}, s{st2}, v{t5}")
    A(f"ds_read_b64_tr_b16 v[{r.Qm[0]}:{r.Qm[0]+1}], v{t0}")
    A(f"ds_read_b64_tr_b16 v[{r.Qm[0]+2}:{r.Qm[0]+3}], v{t0} offset:{2*KPAIR}")
    A(f"ds_read_b64_tr_b16 v[{r.Qm[1]}:{r.Qm[1]+1}], v{t1} offset:64")
    A(f"ds_read_b64_tr_b16 v[{r.Qm[1]+2}:{r.Qm[1]+3}], v{t1} offset:{64+2*KPAIR}")
    A(f"ds_read_b64_tr_b16 v[{r.Qt[0]}:{r.Qt[0]+1}], v{t2}")
    A(f"ds_read_b64_tr_b16 v[{r.Qt[1]}:{r.Qt[1]+1}], v{t3} offset:64")

def k_reads(A, r, t, p):
    if OPT.get("nolds") and OPT.get("inloop"): return
    km = r.kE if t % 2 == 0 else r.kO
    kt = r.tE if t % 2 == 0 else r.tO
    A(f"ds_read_b64_tr_b16 v[{r.Km[p]}:{r.Km[p]+1}], v{km} offset:{64*t}")
    A(f"ds_read_b64_tr_b16 v[{r.Km[p]+2}:{r.Km[p]+3}], v{km} offset:{64*t+2*KPAIR}")
    A(f"ds_read_b64_tr_b16 v[{r.Kt[p]}:{r.Kt[p]+1}], v{kt} offset:{64*t}")

def v_reads(A, r, t, p):
    if OPT.get("nolds") and OPT.get("inloop"): return
    A(f"ds_read_b128 v[{r.V1[p]}:{r.V1[p]+3}], v{r.vA} offset:{64*t}")
    A(f"ds_read_b128 v[{r.V2[p]}:{r.V2[p]+3}], v{r.vA} offset:{64*t+32}")

def mf_main(A, r, dst, p, u):
    A(f"v_mfma_f32_32x32x16_bf16 v[{dst}:{dst+15}], v[{r.Km[p]}:{r.Km[p]+3}], v[{r.Qm[u]}:{r.Qm[u]+3}], 0")
def mf_tail(A, r, dst, p, u):
    A(f"v_mfma_f32_32x32x8_bf16 v[{dst}:{dst+15}], v[{r.Kt[p]}:{r.Kt[p]+1}], v[{r.Qt[u]}:{r.Qt[u]+1}], v[{dst}:{dst+15}]")
def mf_pv(A, r, u, va, src):
    A(f"v_smfmac_f32_32x32x32_bf16 v[{r.O[u]}:{r.O[u]+15}], v[{va}:{va+3}], v[{src}:{src+7}], v{r.idx}")
def exps(A, base, n):
    for i in range(n):
        A(f"v_exp_f32 v{base+i}, v{base+i}")

def emit_first_max(A, r):
    t0, t1, t2, t3 = r.t[:4]
    for u in range(2):
        A(f"v_mov_b32 v{r.Qt[u]+1}, 0")
    A("s_mov_b64 s[36:37], exec")
    A("s_mov_b32 exec_lo, 0")
    for u in range(2):
        A(f"v_mov_b32 v{r.Qt[u]}, 0")
    A("s_mov_b64 exec, s[36:37]")
    A("s_nop 4")
    for u in range(2):
        mf_main(A, r, r.S[u], 0, u)
        mf_tail(A, r, r.S[u], 0, u)
    A("s_nop 15")
    for u in range(2):
        s = r.S[u]
        m = r.t[u]
        A(f"v_max3_f32 v{m}, v{s}, v{s+1}, v{s+2}")
        for k in range(3, 15, 2):
            A(f"v_max3_f32 v{m}, v{m}, v{s+k}, v{s+k+1}")
        A(f"v_max_f32 v{m}, v{m}, v{s+15}")
    A(f"v_mov_b32 v{t2}, v{t0}")
    A(f"v_mov_b32 v{t3}, v{t1}")
    A("s_nop 1")
    A(f"v_permlane32_swap_b32 v{t0}, v{t2}")
    A(f"v_permlane32_swap_b32 v{t1}, v{t3}")
    A("s_nop 1")
    A(f"v_max_f32 v{t0}, v{t0}, v{t2}")
    A(f"v_max_f32 v{t1}, v{t1}, v{t3}")
    A("s_mov_b64 s[36:37], exec")
    A("s_mov_b32 exec_hi, 0")
    A(f"v_cvt_pk_bf16_f32 v{r.Qt[0]+1}, -v{t0}, 0")
    A(f"v_cvt_pk_bf16_f32 v{r.Qt[1]+1}, -v{t1}, 0")
    A("s_mov_b64 exec, s[36:37]")

def emit_attn_prologue(A, r):
    k_reads(A, r, 0, 0)
    v_reads(A, r, 0, 0)
    for u in range(2):
        for i in range(16):
            A(f"v_mov_b32 v{r.O[u]+i}, 0")
    for i in range(8, 16):
        A(f"v_mov_b32 v{r.S[3]+i}, 0")
    for i in range(4):
        A(f"v_mov_b32 v{r.V2[1]+i}, 0")
    A("s_waitcnt lgkmcnt(0)")
    emit_first_max(A, r)
    A("s_nop 4")
    mf_main(A, r, r.S[0], 0, 0)
    mf_tail(A, r, r.S[0], 0, 0)
    A("s_nop 15")

def emit_step(A, r, n, hooks):
    t = n // 2; u = n % 2
    cur = r.S[n % 4]; nxt = r.S[(n + 1) % 4]; prv = r.S[(n - 1) % 4]
    pk = ((n + 1) // 2) % 2
    sched = OPT.get("sched", 0)
    for h in hooks.get((n, "pre"), []): h()
    def reads():
        if u == 0:
            if t == 7:
                for h in hooks.get((n, "kaddr"), []): h()
            k_reads(A, r, (t + 1) % 8, (t + 1) % 2)
        else:
            if t == 7:
                for h in hooks.get((n, "vaddr"), []): h()
            v_reads(A, r, (t + 1) % 8, (t + 1) % 2)
    nolds = OPT.get("nolds")
    def w0():
        if u == 1 and not nolds: A("s_waitcnt lgkmcnt(0)")
    def w4():
        if u == 0 and not nolds: A("s_waitcnt lgkmcnt(4)")
    def mid():
        for h in hooks.get((n, "mid"), []): h()
    M1 = lambda: mf_main(A, r, nxt, pk, (n + 1) % 2)
    M2 = lambda: mf_tail(A, r, nxt, pk, (n + 1) % 2)
    P2 = lambda: mf_pv(A, r, (n - 1) % 2, r.V2[((n - 1) // 2) % 2], prv + 8)
    P1 = lambda: mf_pv(A, r, u, r.V1[t % 2], cur)
    E = lambda a, k: exps(A, cur + a, k)
    if OPT.get("nomfma"):
        M1 = M2 = P1 = P2 = lambda: None
    if OPT.get("nomain"): M1 = lambda: None
    if OPT.get("notail"): M2 = lambda: None
    if OPT.get("nopv"): P1 = P2 = lambda: None
    if OPT.get("noexp"):
        E = lambda a, k: None
    if sched == 0:
        w0(); M1(); reads(); E(0, 4); M2(); E(4, 4); P2(); mid(); E(8, 4); w4(); P1(); E(12, 4)
    elif sched == 1:
        w0(); M1(); reads(); E(0, 3); M2(); E(3, 5); P2(); mid(); E(8, 4); w4(); P1(); E(12, 4)
    elif sched == 2:
        w0(); M1(); E(0, 4); M2(); reads(); E(4, 4); P2(); mid(); E(8, 4); P1() if u == 1 else (A("s_waitcnt lgkmcnt(3)") if not nolds else None, P1()); E(12, 4)
    elif sched == 3:
        w0(); M1(); P2(); reads(); E(0, 8); mid(); M2(); E(8, 2); w4(); P1(); E(10, 6)
    elif sched == 5:
        w0(); M1(); reads(); E(0, 4); P2(); mid(); E(4, 4); M2(); E(8, 4); w4(); P1(); E(12, 4)
    elif sched == 6:
        w0(); M1(); reads(); E(0, 4); mf_tail(A, r, r.S[(n + 2) % 4], pk, (n + 1) % 2); E(4, 4); P2(); mid(); E(8, 4); w4(); P1(); E(12, 4)
    elif sched == 4:
        w0(); M1(); reads(); E(0, 5); M2(); E(5, 3); P2(); mid(); E(8, 5); w4(); P1(); E(13, 3)

def emit_attn_loop(A, r, name, nseg=8, dma_flags=""):
    A(f"s_mov_b32 s{r.s_it}, 0")
    A(f"s_mov_b32 s{r.s_rslot}, 0")
    if OPT.get("prio"):
        A(f"s_cmp_ge_u32 s{r.s_w}, 4\ns_cbranch_scc0 {name}_np\ns_setprio 1\n{name}_np:")
    A(".p2align 6")
    A.label(f"{name}_loop")
    OPT["inloop"] = True
    hooks = {}
    def dma_part():
        lab = A.newlabel("Lnodma")
        A(f"s_cmp_ge_u32 s{r.s_it}, {nseg-2}")
        A(f"s_cbranch_scc1 {lab}")
        if not OPT.get("nodma"): emit_dma_segment(A, r, dma_flags)
        A.label(lab)
    def bar():
        if not OPT.get("extdma"): A("s_waitcnt vmcnt(0)")
        if not OPT.get("nobar"): A("s_barrier")
        if OPT.get("extdma"):
            pass
        elif OPT.get("stag"):
            lab = A.newlabel("Lstag")
            A(f"s_cmp_ge_u32 s{r.s_w}, 4")
            A(f"s_cbranch_scc1 {lab}")
            dma_part()
            A.label(lab)
        else:
            dma_part()
        A(f"s_add_u32 s{r.s_rslot}, s{r.s_rslot}, 1")
        A(f"s_cmp_eq_u32 s{r.s_rslot}, {NSLOT}")
        A(f"s_mov_b32 s{r.s_delta}, {SLOT}\ns_cmov_b32 s{r.s_delta}, {-(NSLOT-1)*SLOT & 0xffffffff}")
        A(f"s_cselect_b32 s{r.s_rslot}, 0, s{r.s_rslot}")
    def dma_late():
        lab = A.newlabel("Lstag2")
        A(f"s_cmp_lt_u32 s{r.s_w}, 4")
        A(f"s_cbranch_scc1 {lab}")
        dma_part()
        A.label(lab)
    def kaddr():
        for x in (r.kE, r.kO, r.tE, r.tO):
            A(f"v_add_u32 v{x}, s{r.s_delta}, v{x}")
    def vaddr():
        A(f"v_add_u32 v{r.vA}, s{r.s_delta}, v{r.vA}")
    hooks[(12, "mid")] = [bar]
    if OPT.get("stag") and not OPT.get("extdma"):
        hooks[(12 + OPT["stag"], "mid")] = [dma_late]
    hooks[(14, "kaddr")] = [kaddr]
    hooks[(15, "vaddr")] = [vaddr]
    pr = OPT.get("pphase", 0)
    if pr:
        if pr == 1: sched_p = {13: 3, 1: 2, 5: 1, 9: 0}
        elif pr == 2: sched_p = {13: 3, 2: 2, 7: 1, 12: 0}
        elif pr == 3: sched_p = {13: 3, 3: 2, 8: 1, 11: 0}
        for k, v in sched_p.items():
            hooks.setdefault((k, "pre"), []).append(lambda v=v: A(f"s_setprio {v}"))
    for n in range(16):
        emit_step(A, r, n, hooks)
    if OPT.get("itstamp"):
        A("s_memtime s[54:55]\ns_memrealtime s[56:57]\ns_waitcnt lgkmcnt(0)")
        A(f"s_lshl_b32 s58, s{r.s_it}, 1")
        A(f"s_mov_b32 m0, s58")
        A(f"v_writelane_b32 v{r.t[5]}, s54, m0")
        A("s_add_u32 m0, m0, 1")
        A(f"v_writelane_b32 v{r.t[5]}, s56, m0")
    A(f"s_add_u32 s{r.s_it}, s{r.s_it}, 1")
    A(f"s_cmp_lt_u32 s{r.s_it}, {nseg}")
    A(f"s_cbranch_scc1 {name}_loop")
    OPT["inloop"] = False
    A("s_nop 1")
    mf_pv(A, r, 1, r.V2[1], r.S[3] + 8)
    A("s_nop 15")

def emit_attn_store(A, r, flags=""):
    t0, t1, t2, t3, t4, t5 = r.t
    st, st2 = r.s_t[:2]
    A(f"s_lshl_b32 s{st}, s{r.s_c}, 8")
    A(f"s_and_b32 s{st2}, s{r.s_w}, 3")
    A(f"s_lshl_b32 s{st2}, s{st2}, 6")
    A(f"s_add_u32 s{st}, s{st}, s{st2}")
    A(f"s_mul_i32 s{st}, s{st}, 1152")
    A(f"s_lshr_b32 s{st2}, s{r.s_w}, 2")
    A(f"s_lshl_b32 s{r.s_t[2]}, s{r.s_hp}, 1")
    A(f"s_add_u32 s{st2}, s{st2}, s{r.s_t[2]}")
    A(f"s_mul_i32 s{st2}, s{st2}, 36")
    A(f"s_add_u32 s{st}, s{st}, s{st2}")
    A(f"v_and_b32 v{t0}, 31, v{r.lane}")
    A(f"v_mul_u32_u24 v{t0}, 1152, v{t0}")
    A(f"v_lshrrev_b32 v{t1}, 5, v{r.lane}")
    A(f"v_lshl_add_u32 v{t0}, v{t1}, 4, v{t0}")
    for u in range(2):
        o = r.O[u]
        A(f"v_rcp_f32 v{t1}, v{o+10}")
        A("s_nop 0")
        for i in range(10):
            A(f"v_mul_f32 v{o+i}, v{o+i}, v{t1}")
        pk = r.S[u]
        for i in range(5):
            A(f"v_cvt_pk_bf16_f32 v{pk+i}, v{o+2*i}, v{o+2*i+1}")
        if u == 1:
            A(f"s_add_u32 s{st}, s{st}, {32*1152}")
        A(f"buffer_store_dwordx4 v[{pk}:{pk+3}], v{t0}, s[{r.s_osrd}:{r.s_osrd+3}], s{st} offen{flags}")
        A("s_mov_b64 s[36:37], exec")
        A("s_mov_b32 exec_hi, 0")
        A(f"buffer_store_dword v{pk+4}, v{t0}, s[{r.s_osrd}:{r.s_osrd+3}], s{st} offen offset:32{flags}")
        A("s_mov_b64 exec, s[36:37]")

def gen_attn_standalone(name="attn_kernel", stamp=False, rt=None):
    A = Asm(); r = R(); V = RegAlloc(1, 256, "v")
    alloc_attn_regs(V, r); alloc_sregs(r)
    A(f".globl {name}\n.p2align 8\n.type {name},@function")
    A.label(name)
    A(f"s_cmp_ge_u32 s2, 256\ns_cbranch_scc1 {name}_end")
    A(f"s_load_dwordx2 s[{r.s_ws}:{r.s_ws+1}], s[0:1], 64")
    if stamp:
        A("s_load_dwordx2 s[44:45], s[0:1], 48")
        A("s_memtime s[40:41]")
        A("s_memrealtime s[50:51]")
    S = Stamper(A, rt, enabled=rt is not None); S.start()
    emit_ids(A, r)
    A("s_waitcnt lgkmcnt(0)")
    emit_srds(A, r)
    emit_dma_setup(A, r, True)
    A(f"s_mov_b32 s{r.s_slotw}, 0")
    A(f"s_mov_b32 s{r.s_seg}, s{r.s_c}")
    emit_dma_segment(A, r)
    emit_dma_segment(A, r)
    emit_ones(A, r)
    emit_read_addrs(A, r)
    A("s_waitcnt vmcnt(5) lgkmcnt(0)")
    A("s_barrier")
    emit_q_frags(A, r)
    S.mark(2)
    emit_attn_prologue(A, r)
    S.mark(3)
    if stamp:
        A("s_memtime s[42:43]")
    emit_attn_loop(A, r, name)
    S.mark(4)
    if stamp:
        A("s_memtime s[46:47]")
    if OPT.get("itstamp"):
        A(f"s_lshl_b32 s38, s2, 3\ns_add_u32 s38, s38, s{r.s_w}\ns_lshl_b32 s38, s38, 6\ns_add_u32 s38, s38, 65536")
        A(f"v_lshl_add_u32 v{r.t[0]}, v{r.lane}, 2, s38")
        A(f"v_cmp_gt_u32 vcc, 16, v{r.lane}")
        A("s_and_saveexec_b64 s[36:37], vcc")
        A(f"global_store_dword v{r.t[0]}, v{r.t[5]}, s[44:45]")
        A("s_mov_b64 exec, s[36:37]")
    emit_attn_store(A, r)
    if stamp:
        A("s_waitcnt vmcnt(0) lgkmcnt(0)")
        A("s_memtime s[48:49]")
        A("s_memrealtime s[52:53]")
        A("s_waitcnt lgkmcnt(0)")
        A("s_sub_u32 s52, s52, s50")
        A("s_sub_u32 s42, s42, s40\ns_sub_u32 s46, s46, s40\ns_sub_u32 s48, s48, s40")
        A(f"s_lshl_b32 s38, s2, 3\ns_add_u32 s38, s38, s{r.s_w}\ns_lshl_b32 s38, s38, 4")
        A(f"v_mov_b32 v{r.t[0]}, s38")
        A(f"v_mov_b32 v{r.S[0]}, s42\nv_mov_b32 v{r.S[0]+1}, s46\nv_mov_b32 v{r.S[0]+2}, s48\nv_mov_b32 v{r.S[0]+3}, s52")
        A(f"v_cmp_eq_u32 vcc, 0, v{r.lane}")
        A("s_and_saveexec_b64 s[36:37], vcc")
        A(f"global_store_dwordx4 v{r.t[0]}, v[{r.S[0]}:{r.S[0]+3}], s[44:45]")
    S.dump(r.s_ws, r.t[0], r.S[0])
    A.label(f"{name}_end")
    A("s_endpgm")
    return A.text(), V.next

if __name__ == "__main__":
    txt, nv = gen_attn_standalone(stamp=True)
    print("vgprs", nv)
    asm = '.amdgcn_target "amdgcn-amd-amdhsa--gfx950"\n.text\n' + txt + '.section .rodata,"a"\n' + kernel_desc("attn_kernel", nv)
    open("attn_test.s", "w").write(asm)
```

```python
class Asm:
    def __init__(self):
        self.lines = []
        self.nlab = 0
    def __call__(self, s=""):
        for l in s.split("\n"):
            self.lines.append(l if (l.endswith(":") or l.startswith(".") or l.startswith(";")) else "  " + l.strip())
    def label(self, name):
        self.lines.append(name + ":")
    def newlabel(self, p="L"):
        self.nlab += 1
        return f"{p}_{self.nlab}"
    def comment(self, s):
        self.lines.append("  ; " + s)
    def text(self):
        return "\n".join(self.lines) + "\n"

def vr(base, n=1):
    return f"v{base}" if n == 1 else f"v[{base}:{base+n-1}]"
def sr(base, n=1):
    return f"s{base}" if n == 1 else f"s[{base}:{base+n-1}]"
def ar(base, n=1):
    return f"a{base}" if n == 1 else f"a[{base}:{base+n-1}]"

class RegAlloc:
    def __init__(self, start, limit, kind="v"):
        self.next = start; self.limit = limit; self.kind = kind; self.names = {}
    def alloc(self, name, n=1, align=1):
        if n > 1 and align == 1: align = 2
        b = (self.next + align - 1) // align * align
        self.next = b + n
        assert self.next <= self.limit, f"out of {self.kind} regs at {name}"
        self.names[name] = (b, n)
        return b

def kernel_desc(name, vgpr, sgpr=102, accum=None, lds=0):
    if accum is None: accum = (vgpr + 3) // 4 * 4
    return f""".p2align 6
.amdhsa_kernel {name}
  .amdhsa_next_free_vgpr {vgpr}
  .amdhsa_next_free_sgpr {sgpr}
  .amdhsa_accum_offset {accum}
  .amdhsa_group_segment_fixed_size 0
  .amdhsa_kernarg_size 72
  .amdhsa_user_sgpr_count 2
  .amdhsa_user_sgpr_kernarg_segment_ptr 1
  .amdhsa_system_sgpr_workgroup_id_x 1
  .amdhsa_float_denorm_mode_32 3
.end_amdhsa_kernel
"""

STAMP_OFF = 0x8000000
class Stamper:
    def __init__(self, A, kidx, sbase=84, stmp=92, enabled=True):
        self.A = A; self.k = kidx; self.sb = sbase; self.tmp = stmp; self.en = enabled
    def start(self):
        if not self.en: return
        A = self.A
        for i in range(8): A(f"s_mov_b32 s{self.sb+i}, 0")
        self.mark(0)
    def mark(self, i):
        if not self.en: return
        A = self.A
        A(f"s_memrealtime s[{self.tmp}:{self.tmp+1}]")
        A("s_waitcnt lgkmcnt(0)")
        A(f"s_mov_b32 s{self.sb+i}, s{self.tmp}")
    def dump(self, s_ws, vtmp, vdata8, wave_sgpr_expr_v0=True):
        if not self.en: return
        A = self.A
        A("s_waitcnt vmcnt(0)")
        self.mark(1)
        A(f"v_lshrrev_b32 v{vtmp}, 6, v0")
        A(f"s_lshl_b32 s{self.tmp}, s2, 4")
        A(f"v_add_u32 v{vtmp}, s{self.tmp}, v{vtmp}")
        A(f"v_lshlrev_b32 v{vtmp}, 5, v{vtmp}")
        A(f"v_add_u32 v{vtmp}, {STAMP_OFF + self.k * 256 * 16 * 32}, v{vtmp}")
        for i in range(8): A(f"v_mov_b32 v{vdata8+i}, s{self.sb+i}")
        A(f"v_and_b32 v{vdata8+8}, 63, v0")
        A(f"v_cmp_eq_u32 vcc, 0, v{vdata8+8}")
        A("s_and_saveexec_b64 s[36:37], vcc")
        A(f"global_store_dwordx4 v{vtmp}, v[{vdata8}:{vdata8+3}], s[{s_ws}:{s_ws+1}]")
        A(f"global_store_dwordx4 v{vtmp}, v[{vdata8+4}:{vdata8+7}], s[{s_ws}:{s_ws+1}] offset:16")
        A("s_mov_b64 exec, s[36:37]")

TRACE_OFF = 0x9000000
class Tracer:
    def __init__(self, A, vtr, tmp=96, enabled=True):
        self.A = A; self.v = vtr; self.tmp = tmp; self.en = enabled; self.n = 0; self.names = []
    def init(self):
        if self.en: self.A(f"v_mov_b32 v{self.v}, 0")
    def mark(self, idx, name=None):
        if not self.en: return
        A = self.A
        A(f"s_memrealtime s[{self.tmp}:{self.tmp+1}]")
        A(f"s_memtime s[{self.tmp+2}:{self.tmp+3}]")
        A("s_waitcnt lgkmcnt(0)")
        A(f"v_writelane_b32 v{self.v}, s{self.tmp}, {2*idx}")
        A(f"v_writelane_b32 v{self.v}, s{self.tmp+2}, {2*idx+1}")
    def dump(self, s_ws, vtmp):
        if not self.en: return
        A = self.A
        A(f"v_lshrrev_b32 v{vtmp}, 6, v0")
        A(f"s_lshl_b32 s{self.tmp}, s2, 4")
        A(f"v_add_u32 v{vtmp}, s{self.tmp}, v{vtmp}")
        A(f"v_lshlrev_b32 v{vtmp}, 8, v{vtmp}")
        A(f"v_and_b32 v{vtmp+1}, 63, v0")
        A(f"v_lshl_add_u32 v{vtmp}, v{vtmp+1}, 2, v{vtmp}")
        A(f"v_add_u32 v{vtmp}, {TRACE_OFF}, v{vtmp}")
        A(f"global_store_dword v{vtmp}, v{self.v}, s[{s_ws}:{s_ws+1}]")
```

```python
from emit import *
import attn, qkv
from attn import R, ROWB, BLK_BYTES, O_OFF, O_BLK, KPAIR, VPAIR, KBLK, VBLK, HEADSZ, ONES, ZEROS, SLOT, NSLOT, QOFF
from qkv import XST, WST, STAGE, NST, NCH, CSCALE, f32bits

OPT = {}
NONCE_LDS = max(qkv.LDS_GEMM, attn.LDS_ATTN)
LDS_FUSED = NONCE_LDS + 256
FLAG_OFF = 0x2000000

def emit_loader_gemm_setup(A, r, g, L):
    t0, t1, t2, t3, t4, t5 = r.t
    st, st2, st3, st4 = r.s_t
    lane = r.lane
    A(f"v_lshrrev_b32 v{t0}, 3, v{lane}")
    A(f"v_and_b32 v{t1}, 7, v{lane}")
    A(f"v_lshrrev_b32 v{t2}, 4, v{lane}")
    A(f"v_and_b32 v{t2}, 1, v{t2}")
    A(f"s_lshl_b32 s{st}, s{r.s_c}, 8")
    A(f"s_lshl_b32 s{st2}, s{L.s_lw}, 6")
    A(f"s_add_u32 s{st}, s{st}, s{st2}")
    A(f"v_add_u32 v{t0}, s{st}, v{t0}")
    A(f"v_mul_u32_u24 v{t0}, 1152, v{t0}")
    for i in range(4):
        A(f"v_or_b32 v{t3}, {i<<1}, v{t2}")
        A(f"v_xor_b32 v{t3}, v{t3}, v{t1}")
        A(f"v_lshl_add_u32 v{L.vx[i]}, v{t3}, 4, v{t0}")
        if i: A(f"v_add_u32 v{L.vx[i]}, {i*8*1152}, v{L.vx[i]}")
    A(f"v_lshrrev_b32 v{t0}, 4, v{lane}")
    A(f"s_lshl_b32 s{st}, s{L.s_lw}, 4")
    A(f"v_add_u32 v{t5}, s{st}, v{t0}")
    A(f"v_mul_u32_u24 v{t5}, 3456, v{t5}")
    A(f"s_mul_i32 s{st}, s{r.s_hp}, 72")
    A(f"v_add_u32 v{t5}, s{st}, v{t5}")
    for var in range(2):
        A(f"v_or_b32 v{t1}, {4*var}, v{t0}")
        A(f"v_lshlrev_b32 v{t1}, 1, v{t1}")
        A(f"v_and_b32 v{t2}, 15, v{lane}")
        A(f"v_xor_b32 v{t2}, v{t2}, v{t1}")
        A(f"v_lshrrev_b32 v{t3}, 2, v{t2}")
        A(f"v_and_b32 v{t4}, 3, v{t2}")
        A(f"v_min_u32 v{t1}, 2, v{t4}")
        A(f"v_cmp_eq_u32 vcc, 3, v{t3}")
        A("s_nop 1")
        A(f"v_cndmask_b32 v{t3}, v{t3}, v{t1}, vcc")
        A(f"v_lshlrev_b32 v{t4}, 4, v{t4}")
        A(f"v_cndmask_b32 v{t4}, v{t4}, 56, vcc")
        A(f"v_mul_u32_u24 v{t3}, 1152, v{t3}")
        A(f"v_add3_u32 v{L.vw[var]}, v{t3}, v{t4}, v{t5}")
    A(f"s_lshl_b32 s{g.s_mx}, s{L.s_lw}, 13")
    A(f"s_lshl_b32 s{g.s_mw}, s{L.s_lw}, 12")
    A(f"s_add_u32 s{g.s_mw}, s{g.s_mw}, {XST}")

def emit_loader_gemm_dma(A, r, g, L):
    st, st2 = r.s_t[:2]
    A(f"s_lshl_b32 s{g.s_xoff}, s{g.s_kc}, 7")
    A(f"s_mul_i32 s{g.s_woff}, s{g.s_kc}, {64*3456}")
    for i in range(4):
        A(f"s_add_u32 s{st}, s{g.s_stw}, s{g.s_mw}")
        A(f"s_add_u32 m0, s{st}, {1024*i}")
        A(f"s_add_u32 s{st2}, s{g.s_woff}, {4*3456*i}")
        A(f"buffer_load_dwordx4 v{L.vw[i>>1]}, s[{g.s_wsrd}:{g.s_wsrd+3}], s{st2} offen lds")
    for i in range(8):
        A(f"s_add_u32 s{st}, s{g.s_stw}, s{g.s_mx}")
        A(f"s_add_u32 m0, s{st}, {1024*i}")
        A(f"s_add_u32 s{st2}, s{g.s_xoff}, {32*1152*(i>>2)}")
        A(f"buffer_load_dwordx4 v{L.vx[i&3]}, s[{g.s_xsrd}:{g.s_xsrd+3}], s{st2} offen lds")
    A(f"s_add_u32 s{g.s_kc}, s{g.s_kc}, 1")
    A(f"s_add_u32 s{g.s_stw}, s{g.s_stw}, {STAGE}")
    A(f"s_cmp_eq_u32 s{g.s_stw}, {NST*STAGE}")
    A(f"s_cselect_b32 s{g.s_stw}, 0, s{g.s_stw}")

def emit_compute_gemm_setup(A, r, g):
    t0, t1, t2, t3, t4, t5 = r.t
    st, st2, st3, st4 = r.s_t
    lane = r.lane
    A(f"v_and_b32 v{t0}, 15, v{lane}")
    A(f"v_lshrrev_b32 v{t1}, 2, v{t0}")
    A(f"v_and_b32 v{t2}, 3, v{t0}")
    A(f"v_lshl_add_u32 v{t2}, v{t1}, 3, v{t2}")
    A(f"v_lshrrev_b32 v{t3}, 1, v{t0}")
    A(f"v_and_b32 v{t3}, 1, v{t3}")
    A(f"v_lshl_or_b32 v{t3}, v{t1}, 1, v{t3}")
    A(f"v_lshrrev_b32 v{t4}, 4, v{lane}")
    A(f"v_xor_b32 v{t3}, v{t3}, v{t4}")
    A(f"s_and_b32 s{st}, s{r.s_w}, 3")
    A(f"s_lshl_b32 s{st}, s{st}, 13")
    A(f"v_lshlrev_b32 v{t2}, 7, v{t2}")
    A(f"v_add_u32 v{t2}, s{st}, v{t2}")
    A(f"v_lshl_add_u32 v{g.aA[0]}, v{t3}, 4, v{t2}")
    A(f"v_xor_b32 v{t3}, 4, v{t3}")
    A(f"v_lshl_add_u32 v{g.aA[1]}, v{t3}, 4, v{t2}")
    A(f"v_lshrrev_b32 v{t0}, 4, v{lane}")
    A(f"v_lshrrev_b32 v{t1}, 2, v{lane}")
    A(f"v_and_b32 v{t1}, 3, v{t1}")
    A(f"v_lshl_add_u32 v{t2}, v{t0}, 3, v{t1}")
    A(f"v_lshlrev_b32 v{t2}, 8, v{t2}")
    A(f"v_add_u32 v{t2}, {XST}, v{t2}")
    A(f"v_and_b32 v{t0}, 1, v{t0}")
    A(f"v_lshl_or_b32 v{t0}, v{t0}, 2, v{t1}")
    A(f"v_and_b32 v{t3}, 3, v{lane}")
    A(f"v_lshlrev_b32 v{t4}, 3, v{t3}")
    A(f"v_add_u32 v{t4}, v{t4}, v{t2}")
    A(f"s_lshr_b32 s{st}, s{r.s_w}, 2")
    A(f"s_lshl_b32 s{st}, s{st}, 2")
    for t in range(4):
        A(f"s_add_u32 s{st2}, s{st}, {t}")
        A(f"v_xor_b32 v{t5}, s{st2}, v{t0}")
        A(f"v_lshl_add_u32 v{g.aB[t]}, v{t5}, 5, v{t4}")
    A(f"v_add_u32 v{t3}, 12, v{t3}")
    A(f"v_lshlrev_b32 v{t0}, 1, v{t0}")
    A(f"v_xor_b32 v{t3}, v{t3}, v{t0}")
    A(f"v_lshl_add_u32 v{t3}, v{t3}, 4, v{t2}")
    A(f"v_add_u32 v{t3}, 8, v{t3}")
    A(f"s_cmp_ge_u32 s{r.s_w}, 4")
    A(f"s_cselect_b64 vcc, -1, 0")
    A("s_nop 1")
    A(f"v_cndmask_b32 v{g.aB[2]}, v{g.aB[2]}, v{t3}, vcc")

def g_read_list(g, s, ks, nt):
    out = []
    for i in range(4):
        p, T = i // 2, i % 2
        out.append(f"ds_read_b128 v[{g.FA[s][i]}:{g.FA[s][i]+3}], v{g.aA[ks]} offset:{4096*p+512*T}")
    for t in range(nt):
        out.append(f"ds_read_b64_tr_b16 v[{g.FB[s][t]}:{g.FB[s][t]+1}], v{g.aB[t]} offset:{8192*ks}")
        out.append(f"ds_read_b64_tr_b16 v[{g.FB[s][t]+2}:{g.FB[s][t]+3}], v{g.aB[t]} offset:{8192*ks+1024}")
    return out
def g_mfma_list(g, s, nt):
    out = []
    for t in range(nt):
        for i in range(4):
            out.append(f"v_mfma_f32_16x16x32_bf16 v[{g.acc[i][t]}:{g.acc[i][t]+3}], v[{g.FA[s][i]}:{g.FA[s][i]+3}], v[{g.FB[s][t]}:{g.FB[s][t]+3}], v[{g.acc[i][t]}:{g.acc[i][t]+3}]")
    return out
def interleave(A, mf, rd, pre=()):
    extra = list(pre) + list(rd)
    k = 0
    for m in mf:
        A(m)
        if k < len(extra):
            A(extra[k]); k += 1
    while k < len(extra):
        A(extra[k]); k += 1

def emit_compute_gemm(A, r, g, name, S):
    A(f"s_mov_b32 s{g.s_rst}, 0")
    for i in range(4):
        for t in range(4):
            for j in range(4): A(f"v_mov_b32 v{g.acc[i][t]+j}, 0")
    if getattr(g, "pf_pre", None): emit_prefetch_batch(A, r, g, g.pfreg, g.pf_pre)
    g.T.mark(1)
    A("s_barrier")
    S.mark(2)
    g.T.mark(2)
    if g.pf2: emit_prefetch_batch(A, r, g, g.pfreg, g.pf2)
    A(f"s_cmp_ge_u32 s{r.s_w}, 4")
    A(f"s_cbranch_scc1 {name}_g1")
    for nh in range(2):
        nt = 4 if nh == 0 else 3
        if nh == 1: A.label(f"{name}_g1")
        for x in g_read_list(g, 0, 0, nt): A(x)
        A(f"s_mov_b32 s{r.s_it}, 0")
        A("s_waitcnt lgkmcnt(0)")
        A.label(f"{name}_gl{nh}")
        interleave(A, g_mfma_list(g, 0, nt), g_read_list(g, 1, 1, nt))
        A(f"s_add_u32 s{g.s_rst}, s{g.s_rst}, 1")
        A(f"s_cmp_eq_u32 s{g.s_rst}, {NST}")
        A(f"s_mov_b32 s{g.s_gdelta}, {STAGE}\ns_cmov_b32 s{g.s_gdelta}, {-(NST-1)*STAGE & 0xffffffff}")
        A(f"s_cselect_b32 s{g.s_rst}, 0, s{g.s_rst}")
        A("s_waitcnt lgkmcnt(0)")
        A("s_barrier")
        upd = [f"v_add_u32 v{x}, s{g.s_gdelta}, v{x}" for x in [g.aA[0]] + g.aB[:nt] + [g.aA[1]]]
        mf = g_mfma_list(g, 1, nt)
        rd = g_read_list(g, 0, 0, nt)
        k = 0
        for x in upd[:2]: A(x)
        seq = upd[2:] + rd
        interleave(A, mf, seq)
        A(f"s_add_u32 s{r.s_it}, s{r.s_it}, 1")
        A(f"s_cmp_lt_u32 s{r.s_it}, {NCH}")
        A(f"s_waitcnt lgkmcnt(0)")
        A(f"s_cbranch_scc1 {name}_gl{nh}")
        emit_epi_lds(A, r, g, nh)
        if nh == 0: A(f"s_branch {name}_gdone")
    A.label(f"{name}_gdone")

def emit_epi_lds(A, r, g, nh):
    t0, t1, t2, t3, t4, t5 = r.t
    st, st2, st3, st4 = r.s_t
    lane = r.lane
    nt = 4 if nh == 0 else 3
    A("s_nop 7")
    A(f"s_and_b32 s{st}, s{r.s_w}, 3")
    A(f"s_lshl_b32 s{st}, s{st}, 7")
    ea = g.aA[0]; ed = g.aA[1]; esc = g.aB[0]; typ = g.aB[1]; col = g.aB[2]; tmp = g.aB[3]
    for t in range(nt):
        Tf = 4 * nh + t
        A(f"v_and_b32 v{t1}, 15, v{lane}")
        if Tf < 6:
            A(f"v_mov_b32 v{typ}, {Tf >> 1}")
            A(f"v_add_u32 v{col}, {16*(Tf & 1)}, v{t1}")
        else:
            A(f"v_lshrrev_b32 v{typ}, 2, v{t1}")
            A(f"v_and_b32 v{col}, 3, v{t1}")
            A(f"v_add_u32 v{col}, 32, v{col}")
        A(f"v_cmp_le_u32 vcc, 18, v{col}")
        A(f"v_subrev_u32 v{tmp}, 18, v{col}")
        A("s_nop 0")
        A(f"v_cndmask_b32 v{col}, v{col}, v{tmp}, vcc")
        A(f"v_cndmask_b32 v{t0}, 0, 1, vcc")
        A(f"v_and_b32 v{t2}, 1, v{col}")
        A(f"v_lshrrev_b32 v{t3}, 1, v{col}")
        A(f"v_lshrrev_b32 v{t4}, 4, v{lane}")
        isq = (Tf < 2); isk = (Tf in (2, 3)); isv = (Tf in (4, 5))
        def ktype(base_const, hstride):
            A(f"v_mul_u32_u24 v{ea}, {KPAIR}, v{t3}")
            A(f"v_mul_u32_u24 v{tmp}, {hstride}, v{t0}")
            A(f"v_add3_u32 v{ea}, v{ea}, v{tmp}, s{st}")
            A(f"v_mul_u32_u24 v{tmp}, {512+64}, v{t2}")
            A(f"v_lshl_add_u32 v{tmp}, v{t4}, 4, v{tmp}")
            A(f"v_add_u32 v{ea}, v{ea}, v{tmp}")
            if base_const: A(f"v_add_u32 v{ea}, {base_const}, v{ea}")
            A(f"v_lshlrev_b32 v{ed}, 7, v{t2}")
            A(f"v_sub_u32 v{ed}, 64, v{ed}")
        def vtype(dst, dd):
            A(f"v_mul_u32_u24 v{dst}, {VPAIR}, v{t3}")
            A(f"v_mul_u32_u24 v{tmp}, {HEADSZ}, v{t0}")
            A(f"v_add3_u32 v{dst}, v{dst}, v{tmp}, s{st}")
            A(f"v_xor_b32 v{tmp}, v{t4}, v{t2}")
            A(f"v_lshlrev_b32 v{tmp}, 4, v{tmp}")
            A(f"v_lshl_add_u32 v{tmp}, v{t2}, 9, v{tmp}")
            A(f"v_add_u32 v{dst}, v{dst}, v{tmp}")
            A(f"v_add_u32 v{dst}, {KBLK}, v{dst}")
            A(f"v_mov_b32 v{dd}, 64")
        if isq: ktype(QOFF, KBLK)
        elif isk: ktype(0, HEADSZ)
        elif isv: vtype(ea, ed)
        else:
            ktype(0, HEADSZ)
            A(f"v_mul_i32_i24 v{tmp}, {KBLK-HEADSZ}, v{t0}")
            A(f"v_add_u32 v{tmp}, {QOFF}, v{tmp}")
            A(f"v_cmp_eq_u32 vcc, 0, v{typ}")
            A("s_nop 1")
            A(f"v_cndmask_b32 v{tmp}, 0, v{tmp}, vcc")
            A(f"v_add_u32 v{ea}, v{ea}, v{tmp}")
            vtype(t5, esc)
            A(f"v_cmp_eq_u32 vcc, 2, v{typ}")
            A("s_nop 1")
            A(f"v_cndmask_b32 v{ea}, v{ea}, v{t5}, vcc")
            A(f"v_cndmask_b32 v{ed}, v{ed}, v{esc}, vcc")
        if isq:
            A(f"s_mov_b32 s{st4}, {f32bits(CSCALE):#x}")
        elif Tf == 6:
            A(f"v_mov_b32 v{esc}, 1.0")
            A(f"v_mov_b32 v{tmp}, {f32bits(CSCALE):#x}")
            A(f"v_cmp_eq_u32 vcc, 0, v{typ}")
            A("s_nop 1")
            A(f"v_cndmask_b32 v{esc}, v{esc}, v{tmp}, vcc")
        if Tf == 6:
            A(f"v_cmp_gt_u32 vcc, 3, v{typ}")
            A("s_and_saveexec_b64 s[36:37], vcc")
        for p in range(2):
            a0 = g.acc[2 * p][t]; a1 = g.acc[2 * p + 1][t]
            if isq:
                for j in range(4):
                    A(f"v_mul_f32 v{a0+j}, s{st4}, v{a0+j}")
                    A(f"v_mul_f32 v{a1+j}, s{st4}, v{a1+j}")
            elif Tf == 6:
                for j in range(4):
                    A(f"v_mul_f32 v{a0+j}, v{esc}, v{a0+j}")
                    A(f"v_mul_f32 v{a1+j}, v{esc}, v{a1+j}")
            pk = g.FA[p][t]
            A(f"v_cvt_pk_bf16_f32 v{pk}, v{a0}, v{a0+1}")
            A(f"v_cvt_pk_bf16_f32 v{pk+1}, v{a0+2}, v{a0+3}")
            A(f"v_cvt_pk_bf16_f32 v{pk+2}, v{a1}, v{a1+1}")
            A(f"v_cvt_pk_bf16_f32 v{pk+3}, v{a1+2}, v{a1+3}")
            if p == 1: A(f"v_add_u32 v{ea}, v{ea}, v{ed}")
            A(f"ds_write_b128 v{ea}, v[{pk}:{pk+3}]")
        if Tf == 6:
            A("s_mov_b64 exec, s[36:37]")

def emit_prefetch(A, r, g, d0, kind, kca, kcb):
    t0, t1, t2, t3 = r.t[:4]
    st, st2, st3, st4 = r.s_t
    A(f"s_lshl_b32 s{st}, s{r.s_hp}, 1\ns_and_b32 s{st2}, s{r.s_c}, 1\ns_add_u32 s{st}, s{st}, s{st2}")
    if kind == "x":
        A(f"v_lshrrev_b32 v{t3}, 4, v{r.lane}")
        A(f"v_add_u32 v{t3}, {kca}, v{t3}")
        A(f"v_min_u32 v{t3}, {kcb}, v{t3}")
        A(f"v_and_b32 v{t0}, 15, v{r.lane}")
        A(f"s_lshr_b32 s{st2}, s{r.s_c}, 1\ns_lshl_b32 s{st2}, s{st2}, 9\ns_lshl_b32 s{st3}, s{st}, 4\ns_add_u32 s{st2}, s{st2}, s{st3}")
        A(f"v_add_u32 v{t0}, s{st2}, v{t0}")
        A(f"v_mul_u32_u24 v{t0}, 1152, v{t0}")
        A(f"v_lshl_add_u32 v{t0}, v{t3}, 7, v{t0}")
        A(f"buffer_load_dword v{d0}, v{t0}, s[{g.s_xsrd}:{g.s_xsrd+3}], 0 offen")
    elif kind == "w":
        A(f"v_min_u32 v{t0}, 53, v{r.lane}")
        A(f"s_mul_i32 s{st2}, s{st}, 54")
        A(f"v_add_u32 v{t0}, s{st2}, v{t0}")
        A(f"v_mul_u32_u24 v{t1}, 2428, v{t0}")
        A(f"v_lshrrev_b32 v{t1}, 16, v{t1}")
        A(f"v_mul_u32_u24 v{t2}, 27, v{t1}")
        A(f"v_sub_u32 v{t2}, v{t0}, v{t2}")
        A(f"v_add_u32 v{t1}, {64*kca}, v{t1}")
        A(f"v_mul_u32_u24 v{t1}, 3456, v{t1}")
        A(f"v_lshl_add_u32 v{t1}, v{t2}, 7, v{t1}")
        A(f"buffer_load_dword v{d0}, v{t1}, s[{g.s_wsrd}:{g.s_wsrd+3}], 0 offen")

def emit_prefetch_batch(A, r, g, d0, jobs):
    done = A.newlabel("Lpfd")
    for w, (kind, a, b) in jobs.items():
        lab = A.newlabel("Lpf")
        A(f"s_cmp_eq_u32 s{r.s_w}, {w}\ns_cbranch_scc0 {lab}")
        emit_prefetch(A, r, g, d0, kind, a, b)
        A(f"s_branch {done}")
        A.label(lab)
    A.label(done)

def emit_loader_kv_setup(A, r, L):
    t0, t1, t2, t3 = r.t[:4]
    st, st2, st3, st4 = r.s_t
    A(f"v_lshrrev_b32 v{t0}, 5, v{r.lane}")
    A(f"v_and_b32 v{t1}, 31, v{r.lane}")
    A(f"v_lshlrev_b32 v{t2}, 2, v{t0}")
    A(f"v_xor_b32 v{t2}, v{t2}, v{t1}")
    A(f"v_lshlrev_b32 v{t2}, 4, v{t2}")
    A(f"v_lshl_add_u32 v{t2}, v{t0}, 12, v{t2}")
    A(f"v_xor_b32 v{t3}, v{t0}, v{t1}")
    A(f"v_lshlrev_b32 v{t3}, 4, v{t3}")
    A(f"v_lshl_add_u32 v{t3}, v{t0}, 12, v{t3}")
    for i in range(9):
        sl = L.s_lds[i]
        A(f"s_add_u32 s{st}, s{L.s_lw}, {4*i}")
        A(f"s_cmp_ge_u32 s{st}, 18")
        A(f"s_cselect_b32 s{st2}, 18, 0")
        A(f"s_mov_b32 s{st3}, {KPAIR}\ns_cmov_b32 s{st3}, {VPAIR}")
        A(f"s_cselect_b32 s{st4}, {KBLK}, 0")
        A(f"s_mov_b32 s{sl}, 576\ns_cmov_b32 s{sl}, 1152")
        A(f"s_cselect_b64 vcc, -1, 0")
        A(f"s_sub_u32 s{st}, s{st}, s{st2}")
        A(f"s_mul_i32 s{st2}, s{r.s_hp}, 36")
        A(f"s_add_u32 s{sl}, s{sl}, s{st2}")
        A(f"s_lshl_b32 s{st2}, s{st}, 1")
        A(f"s_add_u32 s{sl}, s{sl}, s{st2}")
        A(f"s_lshl_b32 s{sl}, s{sl}, 12")
        A(f"v_cndmask_b32 v{L.vdma[i]}, v{t2}, v{t3}, vcc")
        A(f"v_add_u32 v{L.vdma[i]}, s{sl}, v{L.vdma[i]}")
        A(f"s_cmp_ge_u32 s{st}, 9")
        A(f"s_cselect_b32 s{st2}, 9, 0")
        A(f"s_cselect_b32 s{sl}, {HEADSZ}, 0")
        A(f"s_sub_u32 s{st}, s{st}, s{st2}")
        A(f"s_mul_i32 s{st}, s{st}, s{st3}")
        A(f"s_add_u32 s{sl}, s{sl}, s{st}")
        A(f"s_add_u32 s{sl}, s{sl}, s{st4}")

def emit_loader_ones(A, r, L):
    t0, t1, t2, t3 = r.t[:4]
    A(f"v_subrev_u32 v{t1}, 512, v0")
    A(f"v_cmp_gt_u32 vcc, 192, v{t1}")
    A(f"v_lshlrev_b32 v{t1}, 2, v{t1}")
    A(f"v_mov_b32 v{t0}, 0x3f803f80")
    A(f"v_mov_b32 v{t3}, 0")
    A("s_and_saveexec_b64 s[36:37], vcc")
    lab = A.newlabel("Lones")
    A(f"s_cbranch_execz {lab}")
    for s in range(NSLOT):
        A(f"v_add_u32 v{t2}, {s*SLOT+ONES}, v{t1}")
        A(f"ds_write_b32 v{t2}, v{t0}")
        A(f"ds_write_b32 v{t2}, v{t3} offset:768")
    A.label(lab)
    A("s_mov_b64 exec, s[36:37]")

def emit_poll(A, r, L, seg_sgpr):
    t0 = r.t[0]; st, st2 = r.s_t[:2]
    lab = A.newlabel("Lpoll"); done = A.newlabel("Lpolld")
    b = L.buf[0]
    A(f"s_lshl_b32 s{st}, s{seg_sgpr}, 7")
    A(f"v_add_u32 v{t0}, s{st}, v{L.vflag}")
    A(f"s_mov_b32 s{st2}, 0")
    A.label(lab)
    A(f"global_load_dwordx4 v[{b}:{b+3}], v{t0}, s[{r.s_ws}:{r.s_ws+1}] sc1")
    A("s_waitcnt vmcnt(0)")
    A(f"v_xor_b32 v{b}, s{L.s_nonce}, v{b}")
    A(f"v_xor_b32 v{b+1}, s{L.s_nonce}, v{b+1}")
    A(f"v_xor_b32 v{b+2}, s{L.s_nonce}, v{b+2}")
    A(f"v_xor_b32 v{b+3}, s{L.s_nonce}, v{b+3}")
    A(f"v_or_b32 v{b}, v{b}, v{b+1}")
    A(f"v_or3_b32 v{b}, v{b}, v{b+2}, v{b+3}")
    A("s_nop 0")
    A(f"v_readfirstlane_b32 s{st}, v{b}")
    A(f"s_cmp_eq_u32 s{st}, 0")
    A(f"s_cbranch_scc1 {done}")
    A("s_sleep 2")
    A(f"s_add_u32 s{st2}, s{st2}, 1")
    A(f"s_cmp_lt_u32 s{st2}, 0x4000")
    A(f"s_cbranch_scc1 {lab}")
    A.label(done)

def emit_loader_kv_dma(A, r, L):
    A(f"s_lshl_b32 s{r.s_chunk}, s{r.s_seg}, 9")
    for i in range(9):
        A(f"s_add_u32 m0, s{r.s_slotw}, s{L.s_lds[i]}")
        A("s_nop 0")
        A(f"buffer_load_dwordx4 v{L.vdma[i]}, s[{r.s_srd}:{r.s_srd+3}], s{r.s_chunk} offen sc1 lds")
    A(f"s_add_u32 s{r.s_seg}, s{r.s_seg}, 1")
    A(f"s_and_b32 s{r.s_seg}, s{r.s_seg}, 7")
    A(f"s_add_u32 s{r.s_slotw}, s{r.s_slotw}, {SLOT}")
    A(f"s_cmp_eq_u32 s{r.s_slotw}, {NSLOT*SLOT}")
    A(f"s_cselect_b32 s{r.s_slotw}, 0, s{r.s_slotw}")

def gen_fused(name="fused_kernel", rt=None):
    A = Asm(); r = R(); g = R(); L = R()
    V = RegAlloc(1, 168, "v")
    attn.alloc_sregs(r); qkv.alloc_gemm_sregs(g)
    lane = V.alloc("lane"); tt = [V.alloc(f"t{i}") for i in range(6)]
    vN = V.alloc("vN"); vT = V.alloc("vT", 2, 2)
    vTR = V.alloc("vTR")
    base = V.next
    Va = RegAlloc(base, 168, "v")
    r.lane = lane; r.t = tt
    r.kE = Va.alloc("kE"); r.kO = Va.alloc("kO"); r.tE = Va.alloc("tE"); r.tO = Va.alloc("tO"); r.vA = Va.alloc("vA")
    r.idx = Va.alloc("idx")
    r.Qm = [Va.alloc(f"Qm{u}", 4, 2) for u in range(2)]
    r.Qt = [Va.alloc(f"Qt{u}", 2, 2) for u in range(2)]
    r.Km = [Va.alloc(f"Km{p}", 4, 2) for p in range(2)]
    r.Kt = [Va.alloc(f"Kt{p}", 2, 2) for p in range(2)]
    r.V1 = [Va.alloc(f"V1{p}", 4, 2) for p in range(2)]
    r.V2 = [Va.alloc(f"V2{p}", 4, 2) for p in range(2)]
    r.S = [Va.alloc(f"S{i}", 16, 4) for i in range(4)]
    r.O = [Va.alloc(f"O{u}", 16, 4) for u in range(2)]
    Vg = RegAlloc(base, 168, "v")
    g.aA = [Vg.alloc(f"aA{k}") for k in range(2)]
    g.aB = [Vg.alloc(f"aB{t}") for t in range(4)]
    g.FA = [[Vg.alloc(f"FA{s}{i}", 4, 2) for i in range(4)] for s in range(2)]
    g.FB = [[Vg.alloc(f"FB{s}{t}", 4, 2) for t in range(4)] for s in range(2)]
    g.acc = [[Vg.alloc(f"acc{i}{t}", 4, 4) for t in range(4)] for i in range(4)]
    Vl = RegAlloc(base, 168, "v")
    L.vx = [Vl.alloc(f"vx{i}") for i in range(4)]
    L.vw = [Vl.alloc(f"vw{i}") for i in range(2)]
    L.vdma = [Vl.alloc(f"vd{i}") for i in range(9)]
    L.vflag = Vl.alloc("vflag"); L.vlds = Vl.alloc("vlds")
    L.buf = [Vl.alloc(f"buf{i}", 4, 4) for i in range(9)]
    L.s_lw = 38; L.s_lds = list(range(72, 81)); L.s_dbg = 82; L.s_sh = 39; L.s_nonce = 81
    nv = max(Va.next, Vg.next, Vl.next)

    A(f".globl {name}\n.p2align 8\n.type {name},@function")
    A.label(name)
    A(f"s_cmp_ge_u32 s2, 256\ns_cbranch_scc1 {name}_end")
    A(f"s_load_dwordx2 s[{r.s_ws}:{r.s_ws+1}], s[0:1], 64")
    A("s_load_dwordx4 s[72:75], s[0:1], 0")
    A("s_load_dwordx4 s[76:79], s[0:1], 24")
    A(f"s_load_dwordx2 s[{L.s_dbg}:{L.s_dbg+1}], s[0:1], 56")
    S = Stamper(A, rt, enabled=rt is not None); S.start()
    T = Tracer(A, vTR, enabled=bool(OPT.get("trace"))); T.init(); T.mark(0); g.T = T
    attn.emit_ids(A, r)
    A("s_waitcnt lgkmcnt(0)")
    T.mark(22)
    A(f"s_cmp_eq_u32 s{r.s_b}, 0")
    A(f"s_cselect_b32 s{g.s_xsrd}, s72, s76")
    A(f"s_cselect_b32 s{g.s_xsrd+1}, s73, s77")
    A(f"s_cselect_b32 s{g.s_wsrd}, s74, s78")
    A(f"s_cselect_b32 s{g.s_wsrd+1}, s75, s79")
    A(f"s_mov_b32 s{g.s_xsrd+2}, {2048*1152}\ns_mov_b32 s{g.s_xsrd+3}, 0x20000")
    A(f"s_mov_b32 s{g.s_wsrd+2}, {576*3456}\ns_mov_b32 s{g.s_wsrd+3}, 0x20000")
    if OPT.get("tlb", 1):
        labt = A.newlabel("Ltlb")
        A(f"s_cmp_lg_u32 s{r.s_w}, 7\ns_cbranch_scc1 {labt}")
        A(f"s_load_dword s40, s[{g.s_wsrd}:{g.s_wsrd+1}], 0")
        A(f"s_lshl_b32 s46, s{r.s_c}, 8\ns_mul_i32 s46, s46, 1152")
        A(f"s_load_dword s41, s[{g.s_xsrd}:{g.s_xsrd+1}], s46")
        A(f"s_mul_i32 s46, s{r.s_b}, {BLK_BYTES}\ns_mul_i32 s47, s{r.s_hp}, {36*4096}\ns_add_u32 s46, s46, s47\ns_add_u32 s46, s46, {576*4096}")
        A(f"s_load_dword s42, s[{r.s_ws}:{r.s_ws+1}], s46")
        A(f"s_add_u32 s47, s46, {576*4096}")
        A(f"s_load_dword s43, s[{r.s_ws}:{r.s_ws+1}], s47")
        A(f"s_mov_b32 s48, {FLAG_OFF}")
        A(f"s_load_dword s44, s[{r.s_ws}:{r.s_ws+1}], s48")
        A(f"s_mul_i32 s49, s{r.s_b}, {O_BLK}\ns_add_u32 s49, s49, {O_OFF}")
        A(f"s_load_dword s45, s[{r.s_ws}:{r.s_ws+1}], s49")
        A.label(labt)
    A(f"s_cmp_ge_u32 s{r.s_w}, 8")
    A(f"s_cbranch_scc1 {name}_loader")
    pf = OPT.get("pf", 6)
    if pf == 1: emit_prefetch_batch(A, r, g, nv - 1, {0: ("x", 2, 3), 1: ("w", 2, 3)})
    if pf == 2: emit_prefetch_batch(A, r, g, nv - 1, {0: ("x", 2, 3), 1: ("w", 2, 3), 2: ("x", 4, 5), 3: ("w", 4, 5)})
    if pf == 3: emit_prefetch_batch(A, r, g, nv - 1, {0: ("x", 2, 3), 1: ("w", 2, 3), 2: ("x", 4, 5), 3: ("w", 4, 5), 4: ("x", 6, 7), 5: ("w", 6, 7), 6: ("x", 8, 8), 7: ("w", 8, 8)})
    g.pf2 = {1: {2: ("x", 4, 5), 3: ("w", 4, 5), 4: ("x", 6, 7), 5: ("w", 6, 7), 6: ("x", 8, 8), 7: ("w", 8, 8)}, 2: {4: ("x", 6, 7), 5: ("w", 6, 7), 6: ("x", 8, 8), 7: ("w", 8, 8)}}.get(pf, {})
    g.pfreg = nv - 2
    if pf == 6:
        emit_prefetch_batch(A, r, g, nv - 1, {0: ("x", 2, 5), 1: ("w", 2, 2), 2: ("w", 3, 3), 3: ("w", 4, 4)})
        g.pf2 = {0: ("x", 6, 8), 1: ("w", 5, 5), 2: ("w", 6, 6), 3: ("w", 7, 7), 4: ("w", 8, 8)}
    if pf == 7:
        emit_prefetch_batch(A, r, g, nv - 1, {0: ("x", 2, 5), 1: ("w", 2, 2), 2: ("w", 3, 3)})
        g.pf2 = {0: ("x", 6, 8), 1: ("w", 4, 4), 2: ("w", 5, 5), 3: ("w", 6, 6), 4: ("w", 7, 7), 5: ("w", 8, 8)}
    if pf == 4: g.pf2 = {2: ("x", 4, 5), 3: ("w", 4, 5), 4: ("x", 6, 7), 5: ("w", 6, 7), 6: ("x", 8, 8), 7: ("w", 8, 8)}
    if pf == 5: g.pf_pre = {2: ("x", 4, 5), 3: ("w", 4, 5), 4: ("x", 6, 7), 5: ("w", 6, 7), 6: ("x", 8, 8), 7: ("w", 8, 8)}
    attn.emit_srds(A, r)
    labn = A.newlabel("Lnonce")
    A(f"s_cmp_lg_u32 s{r.s_w}, 0\ns_cbranch_scc1 {labn}")
    A("s_memrealtime s[94:95]\ns_waitcnt lgkmcnt(0)")
    A("s_or_b32 s94, s94, 1")
    A(f"v_mov_b32 v{vT}, s94\nv_mov_b32 v{vT+1}, 0\nv_mov_b32 v{vN}, 0")
    A(f"v_cmp_eq_u32 vcc, 0, v{r.lane}")
    A("s_and_saveexec_b64 s[36:37], vcc")
    A(f"global_atomic_cmpswap v{vN}, v{vN}, v[{vT}:{vT+1}], s[{L.s_dbg}:{L.s_dbg+1}] sc0 sc1")
    A("s_mov_b64 exec, s[36:37]")
    A.label(labn)
    emit_compute_gemm_setup(A, r, g)
    emit_compute_gemm(A, r, g, name, S)
    S.mark(3)
    A("s_waitcnt vmcnt(0)")
    labn2 = A.newlabel("Lnonce")
    A(f"s_cmp_lg_u32 s{r.s_w}, 0\ns_cbranch_scc1 {labn2}")
    A("s_waitcnt vmcnt(0)")
    A(f"v_cmp_eq_u32 vcc, 0, v{vN}")
    A(f"v_mov_b32 v{r.t[0]}, {NONCE_LDS}")
    A("s_nop 0")
    A(f"v_cndmask_b32 v{vN}, v{vN}, v{vT}, vcc")
    A(f"v_cmp_eq_u32 vcc, 0, v{r.lane}")
    A("s_and_saveexec_b64 s[36:37], vcc")
    A(f"ds_write_b32 v{r.t[0]}, v{vN}")
    A("s_mov_b64 exec, s[36:37]")
    A.label(labn2)
    attn.emit_read_addrs(A, r)
    A("s_waitcnt lgkmcnt(0)")
    A("s_barrier")
    attn.emit_q_frags(A, r)
    attn.emit_attn_prologue(A, r)
    S.mark(4)
    attn.OPT["nodma"] = 1
    attn.OPT["extdma"] = 1
    attn.emit_attn_loop(A, r, name)
    S.mark(5)
    attn.emit_attn_store(A, r, OPT.get("oflags", ""))
    A(f"s_branch {name}_fin")
    A.label(f"{name}_loader")
    A("s_setprio 3")
    A(f"s_sub_u32 s{L.s_lw}, s{r.s_w}, 8")
    emit_loader_gemm_setup(A, r, g, L)
    A(f"s_mov_b32 s{g.s_kc}, 0\ns_mov_b32 s{g.s_stw}, 0")
    if OPT.get("pf", 6) in (4, 5):
        done4 = A.newlabel("Lpf4")
        for lw, job in {0: ("x", 0, 1), 1: ("w", 0, 1), 2: ("x", 2, 3), 3: ("w", 2, 3)}.items():
            lab4 = A.newlabel("Lpf4")
            A(f"s_cmp_eq_u32 s{L.s_lw}, {lw}\ns_cbranch_scc0 {lab4}")
            emit_prefetch(A, r, g, nv - 1, *job)
            A(f"s_branch {done4}")
            A.label(lab4)
        A.label(done4)
    T.mark(23)
    emit_loader_gemm_dma(A, r, g, L)
    T.mark(24)
    emit_loader_gemm_dma(A, r, g, L)
    npf = 0
    T.mark(1)
    A(f"s_waitcnt vmcnt({12 + npf})")
    T.mark(2)
    A("s_barrier")
    S.mark(2)
    emit_loader_gemm_dma(A, r, g, L)
    attn.emit_srds(A, r)
    emit_loader_kv_setup(A, r, L)
    for kc in range(NCH):
        rem = max(0, min(NCH - 1, kc + 2) - (kc + 1))
        A(f"s_waitcnt vmcnt({12*rem})")
        T.mark(3 + 2 * kc)
        A("s_barrier")
        T.mark(4 + 2 * kc)
        if kc + 3 < NCH: emit_loader_gemm_dma(A, r, g, L)
    S.mark(3)
    emit_loader_ones(A, r, L)
    A(f"s_lshl_b32 s{r.s_t[0]}, s{r.s_b}, 4")
    A(f"s_add_u32 s{r.s_t[0]}, s{r.s_t[0]}, s{r.s_hp}")
    A(f"s_lshl_b32 s{r.s_t[0]}, s{r.s_t[0]}, 10")
    A(f"s_add_u32 s{r.s_t[0]}, s{r.s_t[0]}, {FLAG_OFF}")
    A(f"v_mov_b32 v{L.vflag}, s{r.s_t[0]}")
    A(f"v_lshlrev_b32 v{L.vlds}, 4, v{r.lane}")
    A("s_waitcnt lgkmcnt(0)")
    A("s_barrier")
    A(f"v_mov_b32 v{r.t[0]}, {NONCE_LDS}")
    A(f"ds_read_b32 v{r.t[0]}, v{r.t[0]}")
    A("s_waitcnt lgkmcnt(0)")
    A(f"v_readfirstlane_b32 s{L.s_nonce}, v{r.t[0]}")
    for i in range(9):
        A(f"v_add_u32 v{r.t[1]}, s{L.s_lds[i]}, v{L.vlds}")
        A(f"ds_read_b128 v[{L.buf[i]}:{L.buf[i]+3}], v{r.t[1]}")
    A(f"s_lshl_b32 s{r.s_chunk}, s{r.s_c}, 9")
    for i in range(9):
        A(f"s_waitcnt lgkmcnt({8-i})")
        A(f"buffer_store_dwordx4 v[{L.buf[i]}:{L.buf[i]+3}], v{L.vdma[i]}, s[{r.s_srd}:{r.s_srd+3}], s{r.s_chunk} offen sc1")
    A("s_waitcnt vmcnt(0)")
    S.mark(4)
    A(f"s_lshl_b32 s{r.s_t[0]}, s{r.s_c}, 7")
    A(f"s_lshl_b32 s{r.s_t[1]}, s{L.s_lw}, 2")
    A(f"s_add_u32 s{r.s_t[0]}, s{r.s_t[0]}, s{r.s_t[1]}")
    A(f"v_add_u32 v{r.t[0]}, s{r.s_t[0]}, v{L.vflag}")
    A(f"v_mov_b32 v{r.t[1]}, s{L.s_nonce}")
    A(f"v_cmp_eq_u32 vcc, 0, v{r.lane}")
    A("s_and_saveexec_b64 s[36:37], vcc")
    A(f"global_store_dword v{r.t[0]}, v{r.t[1]}, s[{r.s_ws}:{r.s_ws+1}] sc1")
    A("s_mov_b64 exec, s[36:37]")
    A(f"s_add_u32 s{r.s_seg}, s{r.s_c}, 1\ns_and_b32 s{r.s_seg}, s{r.s_seg}, 7")
    A(f"s_mov_b32 s{r.s_slotw}, {SLOT}")
    emit_poll(A, r, L, r.s_seg)
    S.mark(5)
    emit_loader_kv_dma(A, r, L)
    for i in range(8):
        A("s_waitcnt vmcnt(0)")
        if i == 0: S.mark(6)
        A("s_barrier")
        if i == 5 and OPT.get("pfwo", 1):
            A("s_load_dwordx2 s[40:41], s[0:1], 16")
            A("s_load_dwordx2 s[42:43], s[0:1], 40")
            A(f"s_lshl_b32 s46, s{r.s_hp}, 1\ns_and_b32 s47, s{r.s_c}, 1\ns_add_u32 s46, s46, s47\ns_mul_i32 s46, s46, 162")
            A(f"s_lshl_b32 s47, s{L.s_lw}, 6")
            A(f"v_add_u32 v{r.t[1]}, s47, v{r.lane}")
            A(f"v_min_u32 v{r.t[1]}, 161, v{r.t[1]}")
            A(f"v_add_u32 v{r.t[1]}, s46, v{r.t[1]}")
            A(f"v_lshlrev_b32 v{r.t[1]}, 7, v{r.t[1]}")
            A("s_waitcnt lgkmcnt(0)")
            A(f"s_cmp_eq_u32 s{r.s_b}, 0")
            A("s_cselect_b32 s44, s40, s42\ns_cselect_b32 s45, s41, s43")
            A(f"global_load_dword v{r.t[2]}, v{r.t[1]}, s[44:45]")
        if i + 2 < 8:
            emit_poll(A, r, L, r.s_seg)
            emit_loader_kv_dma(A, r, L)
    A.label(f"{name}_fin")
    T.mark(30)
    T.dump(r.s_ws, r.t[0])
    S.dump(r.s_ws, r.t[0], r.S[0])
    A.label(f"{name}_end")
    A("s_endpgm")
    return A.text(), nv
```

```python
from emit import *
import attn
from attn import R, O_OFF, O_BLK

XST = 128 * 128
WST = 64 * 256
STAGE = XST + WST
NST = 4
LDS_OP = NST * STAGE
NCH = 9
OPT = {}

def gen_oproj(name="oproj_kernel", stamp=False, nload=4, rt=None):
    A = Asm(); r = R(); V = RegAlloc(1, 128, "v")
    lane = V.alloc("lane"); t = [V.alloc(f"t{i}") for i in range(6)]
    t0, t1, t2, t3, t4, t5 = t
    vx = [V.alloc(f"vx{i}") for i in range(4)]
    vw = V.alloc("vw")
    aB = [V.alloc(f"aB{k}") for k in range(2)]
    aA = [V.alloc(f"aA{k}") for k in range(5)]
    FO = [[V.alloc(f"FO{s}{i}", 4, 2) for i in range(2)] for s in range(2)]
    FW = [[V.alloc(f"FW{s}{i}", 4, 2) for i in range(5)] for s in range(2)]
    acc = [[V.alloc(f"acc{i}{c}", 4, 4) for c in range(5)] for i in range(2)]
    s_w = 16; s_b = 17; s_mt = 18; s_nt = 19
    s_osrd = 20; s_wsrd = 24; s_dsrd = 28
    st, st2, st3, st4 = 32, 33, 34, 35
    s_kc = 40; s_stw = 41; s_xoff = 42; s_woff = 43; s_mx = 44; s_mw = 45; s_it = 46; s_rst = 47; s_gd = 48
    A(f".globl {name}\n.p2align 8\n.type {name},@function")
    A.label(name)
    A(f"s_cmp_ge_u32 s2, 256\ns_cbranch_scc1 {name}_end")
    A("s_load_dwordx2 s[4:5], s[0:1], 64")
    A("s_load_dwordx2 s[6:7], s[0:1], 16")
    A("s_load_dwordx2 s[8:9], s[0:1], 40")
    A("s_load_dwordx2 s[10:11], s[0:1], 48")
    if stamp:
        A("s_load_dwordx2 s[60:61], s[0:1], 56")
        A("s_memtime s[50:51]\ns_memrealtime s[58:59]")
    S = Stamper(A, rt, enabled=rt is not None); S.start()
    A(f"v_and_b32 v{lane}, 63, v0")
    A(f"v_lshrrev_b32 v{t0}, 6, v0")
    A("s_and_b32 s3, s2, 7")
    A(f"s_lshr_b32 s{st}, s2, 3")
    A(f"v_readfirstlane_b32 s{s_w}, v{t0}")
    A(f"s_lshr_b32 s{s_b}, s3, 2")
    A("s_and_b32 s3, s3, 3\ns_lshl_b32 s3, s3, 2")
    A(f"s_lshr_b32 s{s_mt}, s{st}, 3\ns_add_u32 s{s_mt}, s{s_mt}, s3")
    A(f"s_and_b32 s{s_nt}, s{st}, 7")
    A("s_waitcnt lgkmcnt(0)")
    A(f"s_mul_i32 s{st}, s{s_b}, {O_BLK}\ns_add_u32 s{st}, s{st}, {O_OFF}")
    A(f"s_add_u32 s{s_osrd}, s4, s{st}\ns_addc_u32 s{s_osrd+1}, s5, 0")
    A(f"s_mov_b32 s{s_osrd+2}, {O_BLK}\ns_mov_b32 s{s_osrd+3}, 0x20000")
    A(f"s_cmp_eq_u32 s{s_b}, 0")
    A(f"s_cselect_b32 s{s_wsrd}, s6, s8\ns_cselect_b32 s{s_wsrd+1}, s7, s9")
    A(f"s_mov_b32 s{s_wsrd+2}, {576*1152}\ns_mov_b32 s{s_wsrd+3}, 0x20000")
    A(f"s_mov_b32 s{s_dsrd}, s10\ns_mov_b32 s{s_dsrd+1}, s11\ns_mov_b32 s{s_dsrd+2}, {2048*2304}\ns_mov_b32 s{s_dsrd+3}, 0x20000")
    A(f"s_cmp_ge_u32 s{s_w}, 4\ns_cbranch_scc1 {name}_load")
    A(f"v_and_b32 v{t0}, 15, v{lane}")
    A(f"v_lshrrev_b32 v{t1}, 1, v{t0}")
    A(f"v_lshrrev_b32 v{t2}, 4, v{lane}")
    A(f"v_xor_b32 v{t1}, v{t1}, v{t2}")
    A(f"s_lshl_b32 s{st}, s{s_w}, 12")
    A(f"v_lshlrev_b32 v{t0}, 7, v{t0}")
    A(f"v_add_u32 v{t0}, s{st}, v{t0}")
    A(f"v_lshl_add_u32 v{aB[0]}, v{t1}, 4, v{t0}")
    A(f"v_xor_b32 v{t1}, 4, v{t1}")
    A(f"v_lshl_add_u32 v{aB[1]}, v{t1}, 4, v{t0}")
    A(f"v_lshrrev_b32 v{t0}, 4, v{lane}")
    A(f"v_lshrrev_b32 v{t1}, 2, v{lane}")
    A(f"v_and_b32 v{t1}, 3, v{t1}")
    A(f"v_lshl_add_u32 v{t2}, v{t0}, 3, v{t1}")
    A(f"v_lshlrev_b32 v{t2}, 8, v{t2}")
    A(f"v_add_u32 v{t2}, {XST}, v{t2}")
    A(f"v_and_b32 v{t0}, 1, v{t0}")
    A(f"v_lshl_or_b32 v{t0}, v{t0}, 2, v{t1}")
    A(f"v_and_b32 v{t3}, 3, v{lane}")
    for ct in range(5):
        if ct < 4:
            P, T = ct // 2, ct % 2
            A(f"v_add_u32 v{t4}, {4*P}, v{t3}")
            A(f"v_lshlrev_b32 v{t5}, 1, v{t0}")
            A(f"v_xor_b32 v{t4}, v{t4}, v{t5}")
            A(f"v_lshl_add_u32 v{aA[ct]}, v{t4}, 4, v{t2}")
            if T: A(f"v_add_u32 v{aA[ct]}, 8, v{aA[ct]}")
        else:
            A(f"v_lshrrev_b32 v{t4}, 1, v{t3}")
            A(f"v_add_u32 v{t4}, 8, v{t4}")
            A(f"v_lshlrev_b32 v{t5}, 1, v{t0}")
            A(f"v_xor_b32 v{t4}, v{t4}, v{t5}")
            A(f"v_lshl_add_u32 v{aA[ct]}, v{t4}, 4, v{t2}")
            A(f"v_and_b32 v{t5}, 1, v{t3}")
            A(f"v_lshl_add_u32 v{aA[ct]}, v{t5}, 3, v{aA[ct]}")
    for i in range(2):
        for c in range(5):
            for j in range(4): A(f"v_mov_b32 v{acc[i][c]+j}, 0")
    def reads(s, ks):
        for i in range(2):
            A(f"ds_read_b128 v[{FO[s][i]}:{FO[s][i]+3}], v{aB[ks]} offset:{2048*i}")
        for c in range(5):
            A(f"ds_read_b64_tr_b16 v[{FW[s][c]}:{FW[s][c]+1}], v{aA[c]} offset:{8192*ks}")
            A(f"ds_read_b64_tr_b16 v[{FW[s][c]+2}:{FW[s][c]+3}], v{aA[c]} offset:{8192*ks+1024}")
    def mfmas(s):
        for c in range(5):
            for i in range(2):
                A(f"v_mfma_f32_16x16x32_bf16 v[{acc[i][c]}:{acc[i][c]+3}], v[{FW[s][c]}:{FW[s][c]+3}], v[{FO[s][i]}:{FO[s][i]+3}], v[{acc[i][c]}:{acc[i][c]+3}]")
    A(f"s_mov_b32 s{s_rst}, 0\ns_mov_b32 s{s_it}, 0")
    A("s_barrier")
    S.mark(2)
    reads(0, 0)
    A.label(f"{name}_cl")
    reads(1, 1)
    A("s_waitcnt lgkmcnt(12)")
    mfmas(0)
    A("s_waitcnt lgkmcnt(0)")
    A("s_barrier")
    A(f"s_add_u32 s{s_rst}, s{s_rst}, 1\ns_cmp_eq_u32 s{s_rst}, {NST}")
    A(f"s_mov_b32 s{s_gd}, {STAGE}\ns_cmov_b32 s{s_gd}, {-(NST-1)*STAGE & 0xffffffff}")
    A(f"s_cselect_b32 s{s_rst}, 0, s{s_rst}")
    for x in aB + aA: A(f"v_add_u32 v{x}, s{s_gd}, v{x}")
    reads(0, 0)
    mfmas(1)
    A(f"s_add_u32 s{s_it}, s{s_it}, 1\ns_cmp_lt_u32 s{s_it}, {NCH}")
    A("s_waitcnt lgkmcnt(0)")
    A(f"s_cbranch_scc1 {name}_cl")
    S.mark(3)
    A("s_nop 7")
    A(f"v_and_b32 v{t0}, 15, v{lane}")
    A(f"s_lshl_b32 s{st}, s{s_mt}, 7\ns_lshl_b32 s{st2}, s{s_w}, 5\ns_add_u32 s{st}, s{st}, s{st2}")
    A(f"v_add_u32 v{t0}, s{st}, v{t0}")
    A(f"v_mul_u32_u24 v{t0}, 2304, v{t0}")
    A(f"v_lshrrev_b32 v{t1}, 4, v{lane}")
    A(f"s_mul_i32 s{st}, s{s_b}, 1152\ns_mul_i32 s{st2}, s{s_nt}, 144\ns_add_u32 s{st}, s{st}, s{st2}")
    A(f"v_lshl_add_u32 v{t2}, v{t1}, 4, v{t0}")
    A(f"v_lshl_add_u32 v{t3}, v{t1}, 3, v{t0}")
    for i in range(2):
        if i == 1: A(f"s_add_u32 s{st}, s{st}, {16*2304}")
        for P in range(2):
            a0, a1 = acc[i][2*P], acc[i][2*P+1]
            pk = FW[0][2*i+P]
            A(f"v_cvt_pk_bf16_f32 v{pk}, v{a0}, v{a0+1}\nv_cvt_pk_bf16_f32 v{pk+1}, v{a0+2}, v{a0+3}")
            A(f"v_cvt_pk_bf16_f32 v{pk+2}, v{a1}, v{a1+1}\nv_cvt_pk_bf16_f32 v{pk+3}, v{a1+2}, v{a1+3}")
            A(f"buffer_store_dwordx4 v[{pk}:{pk+3}], v{t2}, s[{s_dsrd}:{s_dsrd+3}], s{st} offen offset:{64*P}{OPT.get('stflags','')}")
        a0 = acc[i][4]; pk = FW[1][i]
        A(f"v_cvt_pk_bf16_f32 v{pk}, v{a0}, v{a0+1}\nv_cvt_pk_bf16_f32 v{pk+1}, v{a0+2}, v{a0+3}")
        A(f"v_cmp_gt_u32 vcc, 2, v{t1}")
        A("s_and_saveexec_b64 s[36:37], vcc")
        A(f"buffer_store_dwordx2 v[{pk}:{pk+1}], v{t3}, s[{s_dsrd}:{s_dsrd+3}], s{st} offen offset:128{OPT.get('stflags','')}")
        A("s_mov_b64 exec, s[36:37]")
    A(f"s_branch {name}_fin")
    A.label(f"{name}_load")
    A("s_setprio 3")
    A(f"s_sub_u32 s{s_w}, s{s_w}, 4")
    A(f"v_lshrrev_b32 v{t0}, 3, v{lane}")
    A(f"v_and_b32 v{t1}, 7, v{lane}")
    A(f"v_lshrrev_b32 v{t2}, 4, v{lane}")
    A(f"s_lshl_b32 s{st}, s{s_mt}, 7\ns_lshl_b32 s{st2}, s{s_w}, 5\ns_add_u32 s{st}, s{st}, s{st2}")
    A(f"v_add_u32 v{t0}, s{st}, v{t0}")
    A(f"v_mul_u32_u24 v{t0}, 1152, v{t0}")
    for i in range(4):
        A(f"v_or_b32 v{t3}, {4*(i&1)}, v{t2}")
        A(f"v_xor_b32 v{t3}, v{t3}, v{t1}")
        A(f"v_lshl_add_u32 v{vx[i]}, v{t3}, 4, v{t0}")
        if i: A(f"v_add_u32 v{vx[i]}, {i*8*1152}, v{vx[i]}")
    A(f"v_lshrrev_b32 v{t0}, 4, v{lane}")
    A(f"v_and_b32 v{t2}, 15, v{lane}")
    A(f"s_lshl_b32 s{st}, s{s_w}, 4")
    A(f"v_add_u32 v{t4}, s{st}, v{t0}")
    A(f"v_mul_u32_u24 v{t4}, 1152, v{t4}")
    A(f"s_mul_i32 s{st}, s{s_nt}, 144")
    A(f"v_add_u32 v{t4}, s{st}, v{t4}")
    for var, dst in ((0, vw), (1, t5)):
        A(f"v_or_b32 v{t1}, {4*var}, v{t0}")
        A(f"v_lshlrev_b32 v{t1}, 1, v{t1}")
        A(f"v_xor_b32 v{t1}, v{t1}, v{t2}")
        A(f"v_min_u32 v{t1}, 8, v{t1}")
        A(f"v_lshl_add_u32 v{dst}, v{t1}, 4, v{t4}")
    A(f"s_lshl_b32 s{s_mx}, s{s_w}, 12")
    A(f"s_lshl_b32 s{s_mw}, s{s_w}, 12\ns_add_u32 s{s_mw}, s{s_mw}, {XST}")
    def dma():
        A(f"s_lshl_b32 s{s_xoff}, s{s_kc}, 7")
        A(f"s_mul_i32 s{s_woff}, s{s_kc}, {64*1152}")
        for i in range(4):
            A(f"s_add_u32 s{st}, s{s_stw}, s{s_mw}\ns_add_u32 m0, s{st}, {1024*i}")
            A(f"s_add_u32 s{st2}, s{s_woff}, {4*1152*i}")
            A(f"buffer_load_dwordx4 v{vw if i < 2 else t5}, s[{s_wsrd}:{s_wsrd+3}], s{st2} offen lds")
        for i in range(4):
            A(f"s_add_u32 s{st}, s{s_stw}, s{s_mx}\ns_add_u32 m0, s{st}, {1024*i}\ns_nop 0")
            A(f"buffer_load_dwordx4 v{vx[i]}, s[{s_osrd}:{s_osrd+3}], s{s_xoff} offen lds")
        A(f"s_add_u32 s{s_kc}, s{s_kc}, 1")
        A(f"s_add_u32 s{s_stw}, s{s_stw}, {STAGE}\ns_cmp_eq_u32 s{s_stw}, {NST*STAGE}\ns_cselect_b32 s{s_stw}, 0, s{s_stw}")
    A(f"s_mov_b32 s{s_kc}, 0\ns_mov_b32 s{s_stw}, 0")
    for i in range(NST): dma()
    A(f"s_waitcnt vmcnt({8*(NST-1)})")
    A("s_barrier")
    for it in range(NCH):
        rem = max(0, min(NCH - 1, it + NST - 1) - (it + 1))
        A(f"s_waitcnt vmcnt({8*rem})")
        A("s_barrier")
        if it + NST < NCH: dma()
    A.label(f"{name}_fin")
    if stamp:
        A("s_waitcnt vmcnt(0) lgkmcnt(0)")
        A("s_memtime s[52:53]\ns_memrealtime s[54:55]\ns_waitcnt lgkmcnt(0)")
        A("s_sub_u32 s52, s52, s50\ns_sub_u32 s54, s54, s58")
        A(f"v_lshrrev_b32 v{t0}, 6, v0")
        A(f"s_lshl_b32 s38, s2, 5")
        A(f"v_add_u32 v{t0}, s38, v{t0}")
        A(f"v_lshlrev_b32 v{t0}, 3, v{t0}")
        A(f"v_mov_b32 v{acc[0][0]}, s52\nv_mov_b32 v{acc[0][0]+1}, s54")
        A(f"v_cmp_eq_u32 vcc, 0, v{lane}")
        A("s_and_saveexec_b64 s[36:37], vcc")
        A(f"global_store_dwordx2 v{t0}, v[{acc[0][0]}:{acc[0][0]+1}], s[60:61]")
    S.dump(4, t0, acc[0][0])
    A.label(f"{name}_end")
    A("s_endpgm")
    return A.text(), V.next
```

```python
from emit import *
import attn
from attn import R, ROWB, BLK_BYTES, KPAIR, VPAIR, KBLK, VBLK, HEADSZ, QOFF, SLOT

XST = 32768
WST = 16384
STAGE = XST + WST
NST = 3
LDS_GEMM = NST * STAGE
NCH = 9
CSCALE = 1.4426950408889634 / (18.0 ** 0.5)
import struct
def f32bits(x): return struct.unpack("<I", struct.pack("<f", x))[0]

OPT = {}

def alloc_gemm_regs(V, g):
    g.vx = [V.alloc(f"vx{i}") for i in range(4)]
    g.vw = V.alloc("vw")
    g.aA = [V.alloc(f"aA{k}") for k in range(2)]
    g.aB = [V.alloc(f"aB{t}") for t in range(4)]
    g.FA = [[V.alloc(f"FA{s}{i}", 4, 2) for i in range(4)] for s in range(2)]
    g.FB = [[V.alloc(f"FB{s}{t}", 4, 2) for t in range(4)] for s in range(2)]
    g.acc = [[V.alloc(f"acc{i}{t}", 4, 4) for t in range(4)] for i in range(4)]

def alloc_gemm_sregs(g):
    g.s_xsrd = 56
    g.s_wsrd = 60
    g.s_xoff = 64; g.s_woff = 65; g.s_stw = 66; g.s_kc = 67; g.s_gdelta = 68; g.s_rst = 69
    g.s_mx = 70; g.s_mw = 71

def emit_gemm_setup(A, r, g):
    t0, t1, t2, t3, t4, t5 = r.t
    st, st2, st3, st4 = r.s_t
    lane = r.lane
    A("s_load_dwordx4 s[72:75], s[0:1], 0")
    A("s_load_dwordx4 s[76:79], s[0:1], 24")
    A("s_waitcnt lgkmcnt(0)")
    A(f"s_cmp_eq_u32 s{r.s_b}, 0")
    A(f"s_cselect_b32 s{g.s_xsrd}, s72, s76")
    A(f"s_cselect_b32 s{g.s_xsrd+1}, s73, s77")
    A(f"s_cselect_b32 s{g.s_wsrd}, s74, s78")
    A(f"s_cselect_b32 s{g.s_wsrd+1}, s75, s79")
    A(f"s_mov_b32 s{g.s_xsrd+2}, {2048*1152}")
    A(f"s_mov_b32 s{g.s_xsrd+3}, 0x20000")
    A(f"s_mov_b32 s{g.s_wsrd+2}, {576*3456}")
    A(f"s_mov_b32 s{g.s_wsrd+3}, 0x20000")
    A(f"v_lshrrev_b32 v{t0}, 3, v{lane}")
    A(f"v_and_b32 v{t1}, 7, v{lane}")
    A(f"v_lshrrev_b32 v{t2}, 4, v{lane}")
    A(f"v_and_b32 v{t2}, 1, v{t2}")
    A(f"s_lshl_b32 s{st}, s{r.s_c}, 8")
    A(f"s_lshl_b32 s{st2}, s{r.s_w}, 5")
    A(f"s_add_u32 s{st}, s{st}, s{st2}")
    A(f"v_add_u32 v{t0}, s{st}, v{t0}")
    A(f"v_mul_u32_u24 v{t0}, 1152, v{t0}")
    for i in range(4):
        A(f"v_or_b32 v{t3}, {i<<1}, v{t2}")
        A(f"v_xor_b32 v{t3}, v{t3}, v{t1}")
        A(f"v_lshl_add_u32 v{g.vx[i]}, v{t3}, 4, v{t0}")
        if i: A(f"v_add_u32 v{g.vx[i]}, {i*8*1152}, v{g.vx[i]}")
    A(f"v_lshrrev_b32 v{t0}, 4, v{lane}")
    A(f"s_and_b32 s{st}, s{r.s_w}, 1")
    A(f"s_lshl_b32 s{st}, s{st}, 2")
    A(f"v_or_b32 v{t1}, s{st}, v{t0}")
    A(f"v_lshlrev_b32 v{t1}, 1, v{t1}")
    A(f"v_and_b32 v{t2}, 15, v{lane}")
    A(f"v_xor_b32 v{t2}, v{t2}, v{t1}")
    A(f"v_lshrrev_b32 v{t3}, 2, v{t2}")
    A(f"v_and_b32 v{t4}, 3, v{t2}")
    A(f"v_min_u32 v{t5}, 2, v{t4}")
    A(f"v_cmp_eq_u32 vcc, 3, v{t3}")
    A("s_nop 1")
    A(f"v_cndmask_b32 v{t3}, v{t3}, v{t5}, vcc")
    A(f"v_cndmask_b32 v{t4}, v{t4}, 4, vcc")
    A(f"v_mul_u32_u24 v{t3}, 1152, v{t3}")
    A(f"v_lshl_add_u32 v{t3}, v{t4}, 4, v{t3}")
    A(f"v_and_b32 v{t4}, 1, v{t0}")
    A(f"v_lshlrev_b32 v{t4}, 3, v{t4}")
    A(f"v_cndmask_b32 v{t4}, 0, v{t4}, vcc")
    A(f"v_sub_u32 v{t3}, v{t3}, v{t4}")
    A(f"s_lshl_b32 s{st}, s{r.s_w}, 3")
    A(f"v_add_u32 v{t0}, s{st}, v{t0}")
    A(f"v_mul_u32_u24 v{t0}, 3456, v{t0}")
    A(f"v_add_u32 v{t3}, v{t3}, v{t0}")
    A(f"s_mul_i32 s{st}, s{r.s_hp}, 72")
    A(f"v_add_u32 v{g.vw}, s{st}, v{t3}")
    A(f"s_lshl_b32 s{g.s_mx}, s{r.s_w}, 12")
    A(f"s_lshl_b32 s{g.s_mw}, s{r.s_w}, 11")
    A(f"s_add_u32 s{g.s_mw}, s{g.s_mw}, {XST}")
    A(f"v_and_b32 v{t0}, 15, v{lane}")
    A(f"v_lshrrev_b32 v{t1}, 2, v{t0}")
    A(f"v_and_b32 v{t2}, 3, v{t0}")
    A(f"v_lshl_add_u32 v{t2}, v{t1}, 3, v{t2}")
    A(f"v_lshrrev_b32 v{t3}, 1, v{t0}")
    A(f"v_and_b32 v{t3}, 1, v{t3}")
    A(f"v_lshl_or_b32 v{t3}, v{t1}, 1, v{t3}")
    A(f"v_lshrrev_b32 v{t4}, 4, v{lane}")
    A(f"v_xor_b32 v{t3}, v{t3}, v{t4}")
    A(f"s_and_b32 s{st}, s{r.s_w}, 3")
    A(f"s_lshl_b32 s{st}, s{st}, 13")
    A(f"v_lshlrev_b32 v{t2}, 7, v{t2}")
    A(f"v_add_u32 v{t2}, s{st}, v{t2}")
    A(f"v_lshl_add_u32 v{g.aA[0]}, v{t3}, 4, v{t2}")
    A(f"v_xor_b32 v{t3}, 4, v{t3}")
    A(f"v_lshl_add_u32 v{g.aA[1]}, v{t3}, 4, v{t2}")
    A(f"v_lshrrev_b32 v{t0}, 4, v{lane}")
    A(f"v_lshrrev_b32 v{t1}, 2, v{lane}")
    A(f"v_and_b32 v{t1}, 3, v{t1}")
    A(f"v_lshl_add_u32 v{t2}, v{t0}, 3, v{t1}")
    A(f"v_lshlrev_b32 v{t2}, 8, v{t2}")
    A(f"v_add_u32 v{t2}, {XST}, v{t2}")
    A(f"v_and_b32 v{t0}, 1, v{t0}")
    A(f"v_lshl_or_b32 v{t0}, v{t0}, 2, v{t1}")
    A(f"v_and_b32 v{t3}, 3, v{lane}")
    A(f"v_lshlrev_b32 v{t4}, 3, v{t3}")
    A(f"v_add_u32 v{t4}, v{t4}, v{t2}")
    A(f"s_lshr_b32 s{st}, s{r.s_w}, 2")
    A(f"s_lshl_b32 s{st}, s{st}, 2")
    for t in range(4):
        A(f"s_add_u32 s{st2}, s{st}, {t}")
        A(f"v_xor_b32 v{t5}, s{st2}, v{t0}")
        A(f"v_lshl_add_u32 v{g.aB[t]}, v{t5}, 5, v{t4}")
    A(f"v_add_u32 v{t3}, 12, v{t3}")
    A(f"v_lshlrev_b32 v{t0}, 1, v{t0}")
    A(f"v_xor_b32 v{t3}, v{t3}, v{t0}")
    A(f"v_lshl_add_u32 v{t3}, v{t3}, 4, v{t2}")
    A(f"v_and_b32 v{t1}, 1, v{t1}")
    A(f"v_lshl_add_u32 v{t3}, v{t1}, 3, v{t3}")
    A(f"s_cmp_ge_u32 s{r.s_w}, 4")
    A(f"s_cselect_b64 vcc, -1, 0")
    A("s_nop 1")
    A(f"v_cndmask_b32 v{g.aB[2]}, v{g.aB[2]}, v{t3}, vcc")

def emit_gemm_dma(A, r, g):
    st = r.s_t[0]
    A(f"s_lshl_b32 s{g.s_xoff}, s{g.s_kc}, 7")
    A(f"s_mul_i32 s{g.s_woff}, s{g.s_kc}, {64*3456}")
    for i in range(4):
        A(f"s_add_u32 s{st}, s{g.s_stw}, s{g.s_mx}")
        A(f"s_add_u32 m0, s{st}, {1024*i}")
        A("s_nop 0")
        A(f"buffer_load_dwordx4 v{g.vx[i]}, s[{g.s_xsrd}:{g.s_xsrd+3}], s{g.s_xoff} offen lds")
    for i in range(2):
        A(f"s_add_u32 s{st}, s{g.s_stw}, s{g.s_mw}")
        A(f"s_add_u32 m0, s{st}, {1024*i}")
        if i: A(f"s_add_u32 s{g.s_woff}, s{g.s_woff}, {4*3456}")
        else: A("s_nop 0")
        A(f"buffer_load_dwordx4 v{g.vw}, s[{g.s_wsrd}:{g.s_wsrd+3}], s{g.s_woff} offen lds")
    A(f"s_add_u32 s{g.s_kc}, s{g.s_kc}, 1")
    A(f"s_add_u32 s{g.s_stw}, s{g.s_stw}, {STAGE}")
    A(f"s_cmp_eq_u32 s{g.s_stw}, {NST*STAGE}")
    A(f"s_cselect_b32 s{g.s_stw}, 0, s{g.s_stw}")

def g_reads(A, g, s, ks, nt):
    if OPT.get("nolds"): return
    for i in range(4 if not OPT.get("noA") else 0):
        p, T = i // 2, i % 2
        A(f"ds_read_b128 v[{g.FA[s][i]}:{g.FA[s][i]+3}], v{g.aA[ks]} offset:{4096*p+512*T}")
    for t in range(nt if not OPT.get("noB") else 0):
        A(f"ds_read_b64_tr_b16 v[{g.FB[s][t]}:{g.FB[s][t]+1}], v{g.aB[t]} offset:{8192*ks}")
        A(f"ds_read_b64_tr_b16 v[{g.FB[s][t]+2}:{g.FB[s][t]+3}], v{g.aB[t]} offset:{8192*ks+1024}")

def g_mfmas(A, g, s, nt, first=False):
    if OPT.get("nomfma"): return
    for t in range(nt):
        for i in range(4):
            c = "0" if first else f"v[{g.acc[i][t]}:{g.acc[i][t]+3}]"
            A(f"v_mfma_f32_16x16x32_bf16 v[{g.acc[i][t]}:{g.acc[i][t]+3}], v[{g.FA[s][i]}:{g.FA[s][i]+3}], v[{g.FB[s][t]}:{g.FB[s][t]+3}], {c}")

def emit_gemm_main(A, r, g, name):
    A(f"s_mov_b32 s{g.s_kc}, 0")
    A(f"s_mov_b32 s{g.s_stw}, 0")
    if OPT.get("st2"): A("s_memtime s[80:81]")
    for i in range(3): emit_gemm_dma(A, r, g)
    A(f"s_mov_b32 s{g.s_rst}, 0")
    if OPT.get("st2"): A("s_memtime s[82:83]")
    A("s_waitcnt vmcnt(12)")
    A("s_barrier")
    if OPT.get("st2"): A("s_memtime s[84:85]")
    if hasattr(g, "S"): g.S.mark(2)
    A(f"s_cmp_ge_u32 s{r.s_w}, 4")
    A(f"s_cbranch_scc1 {name}_g1")
    for nh in range(2):
        nt = 4 if nh == 0 else 3
        if nh == 1: A.label(f"{name}_g1")
        g_reads(A, g, 0, 0, nt)
        for i in range(4):
            for t in range(nt):
                for j in range(4): A(f"v_mov_b32 v{g.acc[i][t]+j}, 0")
        A(f"s_mov_b32 s{r.s_it}, 0")
        A.label(f"{name}_gl{nh}")
        g_reads(A, g, 1, 1, nt)
        A(f"s_waitcnt lgkmcnt({4+2*nt})")
        g_mfmas(A, g, 0, nt)
        A("s_waitcnt lgkmcnt(0)")
        lab = A.newlabel("Lgw")
        lab2 = A.newlabel("Lgw")
        A(f"s_cmp_ge_u32 s{r.s_it}, {NCH-2}")
        A(f"s_cbranch_scc1 {lab}")
        A("s_waitcnt vmcnt(6)")
        A(f"s_branch {lab2}")
        A.label(lab)
        A("s_waitcnt vmcnt(0)")
        A.label(lab2)
        A("s_barrier")
        lab3 = A.newlabel("Lgd")
        A(f"s_cmp_ge_u32 s{r.s_it}, {NCH-3}")
        A(f"s_cbranch_scc1 {lab3}")
        if not OPT.get("nodma"): emit_gemm_dma(A, r, g)
        A.label(lab3)
        A(f"s_add_u32 s{g.s_rst}, s{g.s_rst}, 1")
        A(f"s_cmp_eq_u32 s{g.s_rst}, {NST}")
        A(f"s_mov_b32 s{g.s_gdelta}, {STAGE}\ns_cmov_b32 s{g.s_gdelta}, {-(NST-1)*STAGE & 0xffffffff}")
        A(f"s_cselect_b32 s{g.s_rst}, 0, s{g.s_rst}")
        for x in g.aA + g.aB[:nt]:
            A(f"v_add_u32 v{x}, s{g.s_gdelta}, v{x}")
        g_reads(A, g, 0, 0, nt)
        g_mfmas(A, g, 1, nt)
        A(f"s_add_u32 s{r.s_it}, s{r.s_it}, 1")
        A(f"s_cmp_lt_u32 s{r.s_it}, {NCH}")
        A(f"s_waitcnt lgkmcnt(0)")
        A(f"s_cbranch_scc1 {name}_gl{nh}")
        if nh == 0: A(f"s_branch {name}_gdone")
    A.label(f"{name}_gdone")

def emit_gemm_epilogue_global(A, r, g, all_types=True, flags=""):
    t0, t1, t2, t3, t4, t5 = r.t
    st, st2, st3, st4 = r.s_t
    lane = r.lane
    A("s_nop 7")
    A(f"s_lshl_b32 s{st}, s{r.s_c}, 9")
    A(f"s_and_b32 s{st2}, s{r.s_w}, 3")
    A(f"s_lshl_b32 s{st2}, s{st2}, 7")
    A(f"s_add_u32 s{st}, s{st}, s{st2}")
    A(f"v_lshrrev_b32 v{t0}, 4, v{lane}")
    A(f"v_lshlrev_b32 v{t0}, 4, v{t0}")
    A(f"v_and_b32 v{t1}, 15, v{lane}")
    A(f"s_mul_i32 s{st2}, s{r.s_hp}, 36")
    done = A.newlabel("Lepi")
    for nh in range(2):
        lab = A.newlabel("Lepi")
        if nh == 0:
            A(f"s_cmp_ge_u32 s{r.s_w}, 4\ns_cbranch_scc1 {lab}")
            nxt = lab
        nt = 4 if nh == 0 else 3
        for t in range(nt):
            Tf = 4 * nh + t
            if Tf < 6:
                ty = Tf // 2
                base = 576 * ty + 16 * (Tf % 2)
                A(f"s_add_u32 s{st3}, s{st2}, {base}")
                A(f"v_add_u32 v{t2}, s{st3}, v{t1}")
                valid = None
            else:
                A(f"v_lshrrev_b32 v{t2}, 2, v{t1}")
                A(f"v_mul_u32_u24 v{t2}, 576, v{t2}")
                A(f"v_and_b32 v{t3}, 3, v{t1}")
                A(f"v_add_u32 v{t2}, v{t2}, v{t3}")
                A(f"s_add_u32 s{st3}, s{st2}, 32")
                A(f"v_add_u32 v{t2}, s{st3}, v{t2}")
            A(f"v_lshl_add_u32 v{t2}, v{t2}, 12, v{t0}")
            if Tf < 2:
                A(f"s_mov_b32 s{st4}, {f32bits(CSCALE):#x}")
            elif Tf == 6:
                A(f"v_mov_b32 v{t4}, 1.0")
                A(f"v_mov_b32 v{t5}, {f32bits(CSCALE):#x}")
                A(f"v_cmp_gt_u32 vcc, 4, v{t1}")
                A("s_nop 1")
                A(f"v_cndmask_b32 v{t4}, v{t4}, v{t5}, vcc")
            for p in range(2):
                a0 = g.acc[2 * p][t]; a1 = g.acc[2 * p + 1][t]
                if Tf < 2:
                    for j in range(4):
                        A(f"v_mul_f32 v{a0+j}, s{st4}, v{a0+j}")
                        A(f"v_mul_f32 v{a1+j}, s{st4}, v{a1+j}")
                elif Tf == 6:
                    for j in range(4):
                        A(f"v_mul_f32 v{a0+j}, v{t4}, v{a0+j}")
                        A(f"v_mul_f32 v{a1+j}, v{t4}, v{a1+j}")
                pk = g.FA[0][2 * p + (t % 2)] if True else 0
                pk = g.FA[t % 2][2 * p] if False else g.FA[p][t]
                A(f"v_cvt_pk_bf16_f32 v{pk}, v{a0}, v{a0+1}")
                A(f"v_cvt_pk_bf16_f32 v{pk+1}, v{a0+2}, v{a0+3}")
                A(f"v_cvt_pk_bf16_f32 v{pk+2}, v{a1}, v{a1+1}")
                A(f"v_cvt_pk_bf16_f32 v{pk+3}, v{a1+2}, v{a1+3}")
                if Tf == 6:
                    A(f"v_cmp_gt_u32 vcc, 12, v{t1}")
                    A("s_and_saveexec_b64 s[36:37], vcc")
                A(f"buffer_store_dwordx4 v[{pk}:{pk+3}], v{t2}, s[{r.s_srd}:{r.s_srd+3}], s{st} offen offset:{64*p}{flags}")
                if Tf == 6:
                    A("s_mov_b64 exec, s[36:37]")
        if nh == 0:
            A(f"s_branch {done}")
            A.label(nxt)
    A.label(done)

def gen_qkv_standalone(name="qkv_kernel", stamp=False, rt=None):
    A = Asm(); r = R(); g = R(); V = RegAlloc(1, 256, "v")
    attn.alloc_sregs(r)
    r.lane = V.alloc("lane"); r.t = [V.alloc(f"t{i}") for i in range(6)]
    alloc_gemm_regs(V, g); alloc_gemm_sregs(g)
    A(f".globl {name}\n.p2align 8\n.type {name},@function")
    A.label(name)
    A(f"s_cmp_ge_u32 s2, 256\ns_cbranch_scc1 {name}_end")
    A(f"s_load_dwordx2 s[{r.s_ws}:{r.s_ws+1}], s[0:1], 64")
    if stamp:
        A("s_load_dwordx2 s[44:45], s[0:1], 48")
        A("s_memtime s[40:41]\ns_memrealtime s[50:51]")
    S = Stamper(A, rt, enabled=rt is not None); S.start(); g.S = S
    attn.emit_ids(A, r)
    A("s_waitcnt lgkmcnt(0)")
    attn.emit_srds(A, r)
    emit_gemm_setup(A, r, g)
    emit_gemm_main(A, r, g, name)
    S.mark(3)
    if stamp: A("s_memtime s[42:43]")
    emit_gemm_epilogue_global(A, r, g, flags=OPT.get("stflags", ""))
    if stamp:
        A("s_memtime s[46:47]")
        A("s_waitcnt vmcnt(0) lgkmcnt(0)")
        A("s_memtime s[48:49]\ns_memrealtime s[52:53]")
        A("s_waitcnt lgkmcnt(0)")
        A("s_sub_u32 s52, s52, s50")
        A("s_sub_u32 s42, s42, s40\ns_sub_u32 s46, s46, s40\ns_sub_u32 s48, s48, s40")
        A(f"s_lshl_b32 s38, s2, 3\ns_add_u32 s38, s38, s{r.s_w}\ns_lshl_b32 s38, s38, 4")
        A(f"v_mov_b32 v{r.t[0]}, s38")
        a = g.acc[0][0]
        if OPT.get("st2"):
            A("s_sub_u32 s80, s80, s40\ns_sub_u32 s82, s82, s40\ns_sub_u32 s84, s84, s40")
            A("s_mov_b32 s46, s80\ns_mov_b32 s48, s82\ns_mov_b32 s52, s84")
        A(f"v_mov_b32 v{a}, s42\nv_mov_b32 v{a+1}, s46\nv_mov_b32 v{a+2}, s48\nv_mov_b32 v{a+3}, s52")
        A(f"v_cmp_eq_u32 vcc, 0, v{r.lane}")
        A("s_and_saveexec_b64 s[36:37], vcc")
        A(f"global_store_dwordx4 v{r.t[0]}, v[{a}:{a+3}], s[44:45]")
    S.dump(r.s_ws, r.t[0], g.acc[0][0])
    A.label(f"{name}_end")
    A("s_endpgm")
    return A.text(), V.next
```

```python
import sys
sys.path.insert(0, "gen")
import attn, qkv, oproj, fused
from emit import kernel_desc
attn.OPT.update(dict(zrows=1, pphase=1))
for a in sys.argv[2:]:
    k, _, v = a.partition("=")
    if k.startswith("a."): attn.OPT[k[2:]] = int(v) if v.lstrip("-").isdigit() else v
    elif k.startswith("f."): fused.OPT[k[2:]] = (int(v) if v.isdigit() else " " + v.replace("+", " "))
    elif k.startswith("o."): oproj.OPT[k[2:]] = (int(v) if v.isdigit() else " " + v.replace("+", " "))
RT = "rt" in sys.argv
t1, n1 = fused.gen_fused("fused_kernel", rt=0 if RT else None)
t3, n3 = oproj.gen_oproj("oproj_kernel", rt=1 if RT else None)
ref = open("concat_heads__mha_block__mha_block__prompt.s.ref").read().splitlines()
hdr = [l for l in ref if l.startswith(";")][:10]
out = "\n".join(hdr) + "\n"
out += f"; @launch kernel=fused_kernel grid=(256,1,1) block=(768,1,1) lds={fused.LDS_FUSED}\n"
out += f"; @launch kernel=oproj_kernel grid=(256,1,1) block=(512,1,1) lds={oproj.LDS_OP}\n"
out += '.amdgcn_target "amdgcn-amd-amdhsa--gfx950"\n.text\n' + t1 + t3
out += '.section .rodata,"a"\n' + kernel_desc("fused_kernel", n1) + kernel_desc("oproj_kernel", n3)
dst = sys.argv[1]
open(dst, "w").write(out)
print("written", dst, len(out), "vgprs", n1, n3)
```

```python
from emit import *

ROWB = 4096
BLK_BYTES = 1728 * ROWB
O_OFF = 0x1000000
O_BLK = 2048 * 1152
KPAIR, VPAIR = 1152, 1056
KBLK, VBLK = 10496, 9728
HEADSZ = KBLK + VBLK
ONES = 2 * HEADSZ
ZEROS = ONES + 768
SLOT = ONES + 1536
NSLOT = 3
QOFF = NSLOT * SLOT
LDS_ATTN = QOFF + 2 * KBLK

OPT = {}

class R:
    pass

def alloc_attn_regs(V, r):
    r.lane = V.alloc("lane")
    r.t = [V.alloc(f"t{i}") for i in range(6)]
    r.vdma = [V.alloc(f"dma{i}") for i in range(5)]
    r.kE = V.alloc("kE"); r.kO = V.alloc("kO"); r.tE = V.alloc("tE"); r.tO = V.alloc("tO"); r.vA = V.alloc("vA")
    r.idx = V.alloc("idx")
    r.Qm = [V.alloc(f"Qm{u}", 4, 2) for u in range(2)]
    r.Qt = [V.alloc(f"Qt{u}", 2, 2) for u in range(2)]
    r.Km = [V.alloc(f"Km{p}", 4, 2) for p in range(2)]
    r.Kt = [V.alloc(f"Kt{p}", 2, 2) for p in range(2)]
    r.V1 = [V.alloc(f"V1{p}", 4, 2) for p in range(2)]
    r.V2 = [V.alloc(f"V2{p}", 4, 2) for p in range(2)]
    r.S = [V.alloc(f"S{i}", 16, 4) for i in range(4)]
    r.O = [V.alloc(f"O{u}", 16, 4) for u in range(2)]

def alloc_sregs(r):
    r.s_ws = 4; r.s_srd = 8; r.s_osrd = 12
    r.s_w = 16; r.s_b = 17; r.s_hp = 18; r.s_c = 19
    r.s_lds = [20, 21, 22, 23, 24]
    r.s_slotw = 25; r.s_chunk = 26; r.s_it = 27; r.s_delta = 28; r.s_rslot = 29
    r.s_t = [30, 31, 32, 33]
    r.s_seg = 34
    r.s_hbase = 35

def emit_ids(A, r):
    t0 = r.t[0]
    A(f"v_and_b32 v{r.lane}, 63, v0")
    A(f"v_lshrrev_b32 v{t0}, 6, v0")
    A("s_and_b32 s3, s2, 7")
    A(f"s_lshr_b32 s{r.s_t[0]}, s2, 3")
    A(f"v_readfirstlane_b32 s{r.s_w}, v{t0}")
    A(f"s_lshr_b32 s{r.s_b}, s3, 2")
    if OPT.get("map", 162) == 162:
        A(f"s_lshr_b32 s{r.s_hp}, s{r.s_t[0]}, 1")
        A(f"s_and_b32 s3, s3, 3\ns_lshl_b32 s3, s3, 1")
        A(f"s_and_b32 s{r.s_c}, s{r.s_t[0]}, 1\ns_add_u32 s{r.s_c}, s{r.s_c}, s3")
    elif OPT.get("map") == 84:
        A(f"s_lshr_b32 s{r.s_hp}, s3, 1\ns_and_b32 s{r.s_hp}, s{r.s_hp}, 1\ns_lshl_b32 s{r.s_hp}, s{r.s_hp}, 3")
        A(f"s_lshr_b32 s{r.s_c}, s{r.s_t[0]}, 2\ns_add_u32 s{r.s_hp}, s{r.s_hp}, s{r.s_c}")
        A(f"s_and_b32 s3, s3, 1\ns_lshl_b32 s3, s3, 2")
        A(f"s_and_b32 s{r.s_c}, s{r.s_t[0]}, 3\ns_add_u32 s{r.s_c}, s{r.s_c}, s3")
    else:
        A(f"s_and_b32 s3, s3, 3")
        A(f"s_lshl_b32 s3, s3, 2")
        A(f"s_lshr_b32 s{r.s_hp}, s{r.s_t[0]}, 3")
        A(f"s_add_u32 s{r.s_hp}, s{r.s_hp}, s3")
        A(f"s_and_b32 s{r.s_c}, s{r.s_t[0]}, 7")

def emit_srds(A, r):
    t = r.s_t[0]
    A(f"s_mul_i32 s{t}, s{r.s_b}, {BLK_BYTES}")
    A(f"s_add_u32 s{r.s_srd}, s{r.s_ws}, s{t}")
    A(f"s_addc_u32 s{r.s_srd+1}, s{r.s_ws+1}, 0")
    A(f"s_mov_b32 s{r.s_srd+2}, {BLK_BYTES}")
    A(f"s_mov_b32 s{r.s_srd+3}, 0x20000")
    if getattr(r, "no_osrd", False): return
    A(f"s_mul_i32 s{t}, s{r.s_b}, {O_BLK}")
    A(f"s_add_u32 s{t}, s{t}, {O_OFF}")
    A(f"s_add_u32 s{r.s_osrd}, s{r.s_ws}, s{t}")
    A(f"s_addc_u32 s{r.s_osrd+1}, s{r.s_ws+1}, 0")
    A(f"s_mov_b32 s{r.s_osrd+2}, {O_BLK}")
    A(f"s_mov_b32 s{r.s_osrd+3}, 0x20000")

def emit_dma_setup(A, r, with_q):
    t0, t1, t2, t3 = r.t[:4]
    st, st2, st3, st4 = r.s_t
    A(f"v_lshrrev_b32 v{t0}, 5, v{r.lane}")
    A(f"v_and_b32 v{t1}, 31, v{r.lane}")
    A(f"v_lshlrev_b32 v{t2}, 2, v{t0}")
    A(f"v_xor_b32 v{t2}, v{t2}, v{t1}")
    A(f"v_lshlrev_b32 v{t2}, 4, v{t2}")
    A(f"v_lshl_add_u32 v{t2}, v{t0}, 12, v{t2}")
    A(f"v_xor_b32 v{t3}, v{t0}, v{t1}")
    A(f"v_lshlrev_b32 v{t3}, 4, v{t3}")
    A(f"v_lshl_add_u32 v{t3}, v{t0}, 12, v{t3}")
    if with_q:
        A(f"s_lshl_b32 s{r.s_chunk}, s{r.s_c}, 9")
        for i in range(3):
            lab = A.newlabel("Lq")
            A(f"s_add_u32 s{st}, s{r.s_w}, {8*i}")
            if i == 2:
                A(f"s_cmp_ge_u32 s{st}, 18\ns_cbranch_scc1 {lab}")
            A(f"s_cmp_ge_u32 s{st}, 9")
            A(f"s_cselect_b32 s{st2}, {KBLK - 9*KPAIR}, 0")
            A(f"s_mul_i32 s{st3}, s{st}, {KPAIR}")
            A(f"s_add_u32 s{st2}, s{st2}, s{st3}")
            A(f"s_add_u32 m0, s{st2}, {QOFF}")
            A(f"s_mul_i32 s{st3}, s{r.s_hp}, 36")
            A(f"s_lshl_b32 s{st}, s{st}, 1")
            A(f"s_add_u32 s{st3}, s{st3}, s{st}")
            A(f"s_lshl_b32 s{st3}, s{st3}, 12")
            A(f"s_add_u32 s{st3}, s{st3}, s{r.s_chunk}")
            A(f"buffer_load_dwordx4 v{t2}, s[{r.s_srd}:{r.s_srd+3}], s{st3} offen lds")
            A.label(lab)
    for i in range(5):
        if i < 4:
            A(f"s_add_u32 s{st}, s{r.s_w}, {8*i}")
        else:
            A(f"s_and_b32 s{st}, s{r.s_w}, 3\ns_add_u32 s{st}, s{st}, 32")
        A(f"s_cmp_ge_u32 s{st}, 18")
        A(f"s_cselect_b32 s{st2}, 18, 0")
        A(f"s_mov_b32 s{st3}, {KPAIR}\ns_cmov_b32 s{st3}, {VPAIR}")
        A(f"s_cselect_b32 s{st4}, {KBLK}, 0")
        A(f"s_mov_b32 s{r.s_lds[i]}, 576\ns_cmov_b32 s{r.s_lds[i]}, 1152")
        A(f"s_cselect_b64 vcc, -1, 0")
        A(f"s_sub_u32 s{st}, s{st}, s{st2}")
        A(f"s_mul_i32 s{st2}, s{r.s_hp}, 36")
        A(f"s_add_u32 s{r.s_lds[i]}, s{r.s_lds[i]}, s{st2}")
        A(f"s_lshl_b32 s{st2}, s{st}, 1")
        A(f"s_add_u32 s{r.s_lds[i]}, s{r.s_lds[i]}, s{st2}")
        A(f"s_lshl_b32 s{r.s_lds[i]}, s{r.s_lds[i]}, 12")
        A(f"v_cndmask_b32 v{r.vdma[i]}, v{t2}, v{t3}, vcc")
        A(f"v_add_u32 v{r.vdma[i]}, s{r.s_lds[i]}, v{r.vdma[i]}")
        A(f"s_cmp_ge_u32 s{st}, 9")
        A(f"s_cselect_b32 s{st2}, 9, 0")
        A(f"s_cselect_b32 s{r.s_lds[i]}, {HEADSZ}, 0")
        A(f"s_sub_u32 s{st}, s{st}, s{st2}")
        A(f"s_mul_i32 s{st}, s{st}, s{st3}")
        A(f"s_add_u32 s{r.s_lds[i]}, s{r.s_lds[i]}, s{st}")
        A(f"s_add_u32 s{r.s_lds[i]}, s{r.s_lds[i]}, s{st4}")

def emit_dma_segment(A, r, flags=""):
    A(f"s_lshl_b32 s{r.s_chunk}, s{r.s_seg}, 9")
    for i in range(5):
        A(f"s_add_u32 m0, s{r.s_slotw}, s{r.s_lds[i]}")
        A("s_nop 0")
        A(f"buffer_load_dwordx4 v{r.vdma[i]}, s[{r.s_srd}:{r.s_srd+3}], s{r.s_chunk} offen{flags} lds")
    A(f"s_add_u32 s{r.s_seg}, s{r.s_seg}, 1")
    A(f"s_and_b32 s{r.s_seg}, s{r.s_seg}, 7")
    A(f"s_add_u32 s{r.s_slotw}, s{r.s_slotw}, {SLOT}")
    A(f"s_cmp_eq_u32 s{r.s_slotw}, {NSLOT*SLOT}")
    A(f"s_cselect_b32 s{r.s_slotw}, 0, s{r.s_slotw}")

def emit_ones(A, r):
    t0, t1, t2 = r.t[:3]
    A(f"v_mov_b32 v{t0}, 0x3f803f80")
    A(f"v_lshlrev_b32 v{t1}, 2, v0")
    A(f"v_cmp_gt_u32 vcc, 192, v0")
    A("s_and_saveexec_b64 s[36:37], vcc")
    lab = A.newlabel("Lones")
    A(f"s_cbranch_execz {lab}")
    A(f"v_mov_b32 v{r.t[3]}, 0")
    for s in range(NSLOT):
        A(f"v_add_u32 v{t2}, {s*SLOT+ONES}, v{t1}")
        A(f"ds_write_b32 v{t2}, v{t0}")
        A(f"ds_write_b32 v{t2}, v{r.t[3]} offset:768")
    A.label(lab)
    A("s_mov_b64 exec, s[36:37]")

def emit_read_addrs(A, r):
    t0, t1, t2, t3, t4, t5 = r.t
    st = r.s_hbase
    lane = r.lane
    A(f"s_lshr_b32 s{st}, s{r.s_w}, 2")
    A(f"s_mul_i32 s{st}, s{st}, {HEADSZ}")
    A(f"v_lshrrev_b32 v{t0}, 2, v{lane}")
    A(f"v_and_b32 v{t0}, 3, v{t0}")
    A(f"v_lshrrev_b32 v{t1}, 5, v{lane}")
    A(f"v_lshl_add_u32 v{t1}, v{t1}, 3, v{t0}")
    A(f"v_lshrrev_b32 v{t2}, 1, v{t1}")
    A(f"v_mul_u32_u24 v{t2}, {KPAIR}, v{t2}")
    A(f"v_and_b32 v{t1}, 1, v{t1}")
    A(f"v_lshl_add_u32 v{t2}, v{t1}, 9, v{t2}")
    A(f"v_lshrrev_b32 v{t3}, 4, v{lane}")
    A(f"v_and_b32 v{t3}, 1, v{t3}")
    A(f"v_lshlrev_b32 v{t3}, 5, v{t3}")
    A(f"v_and_b32 v{t4}, 3, v{lane}")
    A(f"v_lshl_add_u32 v{t3}, v{t4}, 3, v{t3}")
    A(f"v_add_u32 v{t2}, v{t2}, v{t3}")
    A(f"v_lshlrev_b32 v{t1}, 6, v{t1}")
    A(f"v_add_u32 v{t2}, s{st}, v{t2}")
    A(f"v_add_u32 v{r.kE}, v{t2}, v{t1}")
    A(f"v_sub_u32 v{r.kO}, v{t2}, v{t1}")
    A(f"v_lshlrev_b32 v{t2}, 3, v{t1}")
    A(f"v_add_u32 v{t2}, {8*KPAIR}, v{t2}")
    A(f"v_add_u32 v{t2}, s{st}, v{t2}")
    A(f"v_add_u32 v{t2}, v{t2}, v{t3}")
    A(f"v_add_u32 v{t4}, v{t2}, v{t1}")
    A(f"v_sub_u32 v{t5}, v{t2}, v{t1}")
    A(f"v_add_u32 v{t3}, {ONES+128}, v{t3}")
    A(f"v_cmp_le_u32 vcc, 2, v{t0}")
    A("s_nop 1")
    A(f"v_cndmask_b32 v{r.tE}, v{t4}, v{t3}, vcc")
    A(f"v_cndmask_b32 v{r.tO}, v{t5}, v{t3}, vcc")
    if OPT.get("zrows"):
        A(f"v_lshlrev_b32 v{t2}, 6, v{t0}")
        A(f"v_add_u32 v{t3}, v{t3}, v{t2}")
        A(f"v_add_u32 v{t3}, {768-128-64*0}, v{t3}")
        A(f"v_cmp_eq_u32 vcc, 3, v{t0}")
        A(f"v_cmp_le_u32 s[38:39], 32, v{lane}")
        A("s_or_b64 vcc, vcc, s[38:39]")
        A("s_nop 1")
        A(f"v_cndmask_b32 v{r.tE}, v{r.tE}, v{t3}, vcc")
        A(f"v_cndmask_b32 v{r.tO}, v{r.tO}, v{t3}, vcc")
        A(f"v_lshrrev_b32 v{t2}, 2, v{lane}")
        A(f"v_lshrrev_b32 v{t3}, 5, v{lane}")
        A(f"v_lshlrev_b32 v{t3}, 2, v{t3}")
        A(f"v_and_b32 v{t2}, 3, v{t2}")
        A(f"v_or_b32 v{t2}, v{t2}, v{t3}")
        A(f"v_subrev_u32 v{t3}, 128, v{r.tO}")
        A(f"v_cmp_eq_u32 vcc, 3, v{t2}")
        A("s_nop 1")
        A(f"v_cndmask_b32 v{r.tO}, v{r.tO}, v{t3}, vcc")
    A(f"v_and_b32 v{t0}, 31, v{lane}")
    A(f"v_lshrrev_b32 v{t1}, 2, v{t0}")
    A(f"v_and_b32 v{t1}, 1, v{t1}")
    A(f"v_lshlrev_b32 v{t1}, 3, v{t1}")
    A(f"v_lshrrev_b32 v{t2}, 3, v{t0}")
    A(f"v_and_b32 v{t2}, 1, v{t2}")
    A(f"v_lshl_add_u32 v{t1}, v{t2}, 2, v{t1}")
    A(f"v_and_b32 v{t2}, 3, v{t0}")
    A(f"v_add_u32 v{t1}, v{t1}, v{t2}")
    A(f"v_cmp_gt_u32 vcc, 16, v{t0}")
    A("s_nop 1")
    A(f"v_cndmask_b32 v{t1}, v{t0}, v{t1}, vcc")
    A(f"v_lshrrev_b32 v{t2}, 1, v{t1}")
    A(f"v_mul_u32_u24 v{t2}, {VPAIR}, v{t2}")
    A(f"v_and_b32 v{t3}, 1, v{t1}")
    A(f"v_lshl_add_u32 v{t2}, v{t3}, 9, v{t2}")
    A(f"v_lshrrev_b32 v{t1}, 5, v{lane}")
    A(f"v_xor_b32 v{t3}, v{t3}, v{t1}")
    A(f"v_lshl_add_u32 v{t2}, v{t3}, 4, v{t2}")
    A(f"v_add_u32 v{t2}, {KBLK}, v{t2}")
    A(f"v_add_u32 v{r.vA}, s{st}, v{t2}")
    A(f"v_lshlrev_b32 v{t1}, 4, v{t1}")
    A(f"v_add_u32 v{t2}, {ONES+32}, v{t1}")
    A(f"v_cmp_le_u32 vcc, 18, v{t0}")
    A("s_nop 1")
    A(f"v_cndmask_b32 v{r.vA}, v{r.vA}, v{t2}, vcc")
    A(f"v_add_u32 v{t2}, 32, v{t2}")
    A(f"v_subrev_u32 v{t3}, 20, v{t0}")
    A(f"v_cmp_gt_u32 vcc, 8, v{t3}")
    A("s_nop 1")
    A(f"v_cndmask_b32 v{r.vA}, v{r.vA}, v{t2}, vcc")
    if OPT.get("zrows"):
        A(f"v_cmp_lt_u32 vcc, 18, v{t0}")
        A(f"v_cmp_ne_u32 s[38:39], 22, v{t0}")
        A("s_and_b64 vcc, vcc, s[38:39]")
        A(f"v_add_u32 v{t2}, {768+32}, v{r.vA}")
        A(f"v_add_u32 v{t1}, {768+160}, v{r.vA}")
        A(f"v_subrev_u32 v{t3}, 20, v{t0}")
        A(f"v_cmp_gt_u32 s[38:39], 8, v{t3}")
        A("s_nop 1")
        A(f"v_cndmask_b32 v{t2}, v{t1}, v{t2}, s[38:39]")
        A(f"v_cndmask_b32 v{r.vA}, v{r.vA}, v{t2}, vcc")
    A(f"v_mov_b32 v{r.idx}, 0xdddddddd")

def emit_q_frags(A, r):
    t0, t1, t2, t3, t4, t5 = r.t
    st, st2, st3, st4 = r.s_t
    A(f"s_lshr_b32 s{st2}, s{r.s_w}, 2")
    A(f"s_mul_i32 s{st2}, s{st2}, {KBLK}")
    A(f"s_add_u32 s{st2}, s{st2}, {QOFF}")
    A(f"s_sub_u32 s{st2}, s{st2}, s{r.s_hbase}")
    A(f"s_and_b32 s{st3}, s{r.s_w}, 3")
    A(f"s_lshl_b32 s{st3}, s{st3}, 7")
    A(f"s_add_u32 s{st2}, s{st2}, s{st3}")
    A(f"v_add_u32 v{t0}, s{st2}, v{r.kE}")
    A(f"v_add_u32 v{t1}, s{st2}, v{r.kO}")
    A(f"v_add_u32 v{t2}, s{st2}, v{t4}")
    A(f"v_add_u32 v{t3}, s{st2}, v{t5}")
    A(f"ds_read_b64_tr_b16 v[{r.Qm[0]}:{r.Qm[0]+1}], v{t0}")
    A(f"ds_read_b64_tr_b16 v[{r.Qm[0]+2}:{r.Qm[0]+3}], v{t0} offset:{2*KPAIR}")
    A(f"ds_read_b64_tr_b16 v[{r.Qm[1]}:{r.Qm[1]+1}], v{t1} offset:64")
    A(f"ds_read_b64_tr_b16 v[{r.Qm[1]+2}:{r.Qm[1]+3}], v{t1} offset:{64+2*KPAIR}")
    A(f"ds_read_b64_tr_b16 v[{r.Qt[0]}:{r.Qt[0]+1}], v{t2}")
    A(f"ds_read_b64_tr_b16 v[{r.Qt[1]}:{r.Qt[1]+1}], v{t3} offset:64")

def k_reads(A, r, t, p):
    if OPT.get("nolds") and OPT.get("inloop"): return
    km = r.kE if t % 2 == 0 else r.kO
    kt = r.tE if t % 2 == 0 else r.tO
    A(f"ds_read_b64_tr_b16 v[{r.Km[p]}:{r.Km[p]+1}], v{km} offset:{64*t}")
    A(f"ds_read_b64_tr_b16 v[{r.Km[p]+2}:{r.Km[p]+3}], v{km} offset:{64*t+2*KPAIR}")
    A(f"ds_read_b64_tr_b16 v[{r.Kt[p]}:{r.Kt[p]+1}], v{kt} offset:{64*t}")

def v_reads(A, r, t, p):
    if OPT.get("nolds") and OPT.get("inloop"): return
    A(f"ds_read_b128 v[{r.V1[p]}:{r.V1[p]+3}], v{r.vA} offset:{64*t}")
    A(f"ds_read_b128 v[{r.V2[p]}:{r.V2[p]+3}], v{r.vA} offset:{64*t+32}")

def mf_main(A, r, dst, p, u):
    A(f"v_mfma_f32_32x32x16_bf16 v[{dst}:{dst+15}], v[{r.Km[p]}:{r.Km[p]+3}], v[{r.Qm[u]}:{r.Qm[u]+3}], 0")
def mf_tail(A, r, dst, p, u):
    A(f"v_mfma_f32_32x32x8_bf16 v[{dst}:{dst+15}], v[{r.Kt[p]}:{r.Kt[p]+1}], v[{r.Qt[u]}:{r.Qt[u]+1}], v[{dst}:{dst+15}]")
def mf_pv(A, r, u, va, src):
    A(f"v_smfmac_f32_32x32x32_bf16 v[{r.O[u]}:{r.O[u]+15}], v[{va}:{va+3}], v[{src}:{src+7}], v{r.idx}")
def exps(A, base, n):
    for i in range(n):
        A(f"v_exp_f32 v{base+i}, v{base+i}")

def emit_first_max(A, r):
    t0, t1, t2, t3 = r.t[:4]
    for u in range(2):
        A(f"v_mov_b32 v{r.Qt[u]+1}, 0")
    A("s_mov_b64 s[36:37], exec")
    A("s_mov_b32 exec_lo, 0")
    for u in range(2):
        A(f"v_mov_b32 v{r.Qt[u]}, 0")
    A("s_mov_b64 exec, s[36:37]")
    A("s_nop 4")
    for u in range(2):
        mf_main(A, r, r.S[u], 0, u)
        mf_tail(A, r, r.S[u], 0, u)
    A("s_nop 15")
    for u in range(2):
        s = r.S[u]
        m = r.t[u]
        A(f"v_max3_f32 v{m}, v{s}, v{s+1}, v{s+2}")
        for k in range(3, 15, 2):
            A(f"v_max3_f32 v{m}, v{m}, v{s+k}, v{s+k+1}")
        A(f"v_max_f32 v{m}, v{m}, v{s+15}")
    A(f"v_mov_b32 v{t2}, v{t0}")
    A(f"v_mov_b32 v{t3}, v{t1}")
    A("s_nop 1")
    A(f"v_permlane32_swap_b32 v{t0}, v{t2}")
    A(f"v_permlane32_swap_b32 v{t1}, v{t3}")
    A("s_nop 1")
    A(f"v_max_f32 v{t0}, v{t0}, v{t2}")
    A(f"v_max_f32 v{t1}, v{t1}, v{t3}")
    A("s_mov_b64 s[36:37], exec")
    A("s_mov_b32 exec_hi, 0")
    A(f"v_cvt_pk_bf16_f32 v{r.Qt[0]+1}, -v{t0}, 0")
    A(f"v_cvt_pk_bf16_f32 v{r.Qt[1]+1}, -v{t1}, 0")
    A("s_mov_b64 exec, s[36:37]")

def emit_attn_prologue(A, r):
    k_reads(A, r, 0, 0)
    v_reads(A, r, 0, 0)
    for u in range(2):
        for i in range(16):
            A(f"v_mov_b32 v{r.O[u]+i}, 0")
    for i in range(8, 16):
        A(f"v_mov_b32 v{r.S[3]+i}, 0")
    for i in range(4):
        A(f"v_mov_b32 v{r.V2[1]+i}, 0")
    A("s_waitcnt lgkmcnt(0)")
    emit_first_max(A, r)
    A("s_nop 4")
    mf_main(A, r, r.S[0], 0, 0)
    mf_tail(A, r, r.S[0], 0, 0)
    A("s_nop 15")

def emit_step(A, r, n, hooks):
    t = n // 2; u = n % 2
    cur = r.S[n % 4]; nxt = r.S[(n + 1) % 4]; prv = r.S[(n - 1) % 4]
    pk = ((n + 1) // 2) % 2
    sched = OPT.get("sched", 0)
    for h in hooks.get((n, "pre"), []): h()
    def reads():
        if u == 0:
            if t == 7:
                for h in hooks.get((n, "kaddr"), []): h()
            k_reads(A, r, (t + 1) % 8, (t + 1) % 2)
        else:
            if t == 7:
                for h in hooks.get((n, "vaddr"), []): h()
            v_reads(A, r, (t + 1) % 8, (t + 1) % 2)
    nolds = OPT.get("nolds")
    def w0():
        if u == 1 and not nolds: A("s_waitcnt lgkmcnt(0)")
    def w4():
        if u == 0 and not nolds: A("s_waitcnt lgkmcnt(4)")
    def mid():
        for h in hooks.get((n, "mid"), []): h()
    M1 = lambda: mf_main(A, r, nxt, pk, (n + 1) % 2)
    M2 = lambda: mf_tail(A, r, nxt, pk, (n + 1) % 2)
    P2 = lambda: mf_pv(A, r, (n - 1) % 2, r.V2[((n - 1) // 2) % 2], prv + 8)
    P1 = lambda: mf_pv(A, r, u, r.V1[t % 2], cur)
    E = lambda a, k: exps(A, cur + a, k)
    if OPT.get("nomfma"):
        M1 = M2 = P1 = P2 = lambda: None
    if OPT.get("nomain"): M1 = lambda: None
    if OPT.get("notail"): M2 = lambda: None
    if OPT.get("nopv"): P1 = P2 = lambda: None
    if OPT.get("noexp"):
        E = lambda a, k: None
    if sched == 0:
        w0(); M1(); reads(); E(0, 4); M2(); E(4, 4); P2(); mid(); E(8, 4); w4(); P1(); E(12, 4)
    elif sched == 1:
        w0(); M1(); reads(); E(0, 3); M2(); E(3, 5); P2(); mid(); E(8, 4); w4(); P1(); E(12, 4)
    elif sched == 2:
        w0(); M1(); E(0, 4); M2(); reads(); E(4, 4); P2(); mid(); E(8, 4); P1() if u == 1 else (A("s_waitcnt lgkmcnt(3)") if not nolds else None, P1()); E(12, 4)
    elif sched == 3:
        w0(); M1(); P2(); reads(); E(0, 8); mid(); M2(); E(8, 2); w4(); P1(); E(10, 6)
    elif sched == 5:
        w0(); M1(); reads(); E(0, 4); P2(); mid(); E(4, 4); M2(); E(8, 4); w4(); P1(); E(12, 4)
    elif sched == 6:
        w0(); M1(); reads(); E(0, 4); mf_tail(A, r, r.S[(n + 2) % 4], pk, (n + 1) % 2); E(4, 4); P2(); mid(); E(8, 4); w4(); P1(); E(12, 4)
    elif sched == 4:
        w0(); M1(); reads(); E(0, 5); M2(); E(5, 3); P2(); mid(); E(8, 5); w4(); P1(); E(13, 3)

def emit_attn_loop(A, r, name, nseg=8, dma_flags=""):
    A(f"s_mov_b32 s{r.s_it}, 0")
    A(f"s_mov_b32 s{r.s_rslot}, 0")
    if OPT.get("prio"):
        A(f"s_cmp_ge_u32 s{r.s_w}, 4\ns_cbranch_scc0 {name}_np\ns_setprio 1\n{name}_np:")
    A(".p2align 6")
    A.label(f"{name}_loop")
    OPT["inloop"] = True
    hooks = {}
    def dma_part():
        lab = A.newlabel("Lnodma")
        A(f"s_cmp_ge_u32 s{r.s_it}, {nseg-2}")
        A(f"s_cbranch_scc1 {lab}")
        if not OPT.get("nodma"): emit_dma_segment(A, r, dma_flags)
        A.label(lab)
    def bar():
        if not OPT.get("extdma"): A("s_waitcnt vmcnt(0)")
        if not OPT.get("nobar"): A("s_barrier")
        if OPT.get("extdma"):
            pass
        elif OPT.get("stag"):
            lab = A.newlabel("Lstag")
            A(f"s_cmp_ge_u32 s{r.s_w}, 4")
            A(f"s_cbranch_scc1 {lab}")
            dma_part()
            A.label(lab)
        else:
            dma_part()
        A(f"s_add_u32 s{r.s_rslot}, s{r.s_rslot}, 1")
        A(f"s_cmp_eq_u32 s{r.s_rslot}, {NSLOT}")
        A(f"s_mov_b32 s{r.s_delta}, {SLOT}\ns_cmov_b32 s{r.s_delta}, {-(NSLOT-1)*SLOT & 0xffffffff}")
        A(f"s_cselect_b32 s{r.s_rslot}, 0, s{r.s_rslot}")
    def dma_late():
        lab = A.newlabel("Lstag2")
        A(f"s_cmp_lt_u32 s{r.s_w}, 4")
        A(f"s_cbranch_scc1 {lab}")
        dma_part()
        A.label(lab)
    def kaddr():
        for x in (r.kE, r.kO, r.tE, r.tO):
            A(f"v_add_u32 v{x}, s{r.s_delta}, v{x}")
    def vaddr():
        A(f"v_add_u32 v{r.vA}, s{r.s_delta}, v{r.vA}")
    bs = OPT.get("barstep", 12)
    if bs == 14: hooks[(14, "pre")] = [bar]
    else: hooks[(bs, "mid")] = [bar]
    if OPT.get("stag") and not OPT.get("extdma"):
        hooks[(12 + OPT["stag"], "mid")] = [dma_late]
    hooks[(14, "kaddr")] = [kaddr]
    hooks[(15, "vaddr")] = [vaddr]
    pr = OPT.get("pphase", 0)
    if pr:
        if pr == 1: sched_p = {13: 3, 1: 2, 5: 1, 9: 0}
        elif pr == 2: sched_p = {13: 3, 2: 2, 7: 1, 12: 0}
        elif pr == 3: sched_p = {13: 3, 3: 2, 8: 1, 11: 0}
        elif pr == 4: sched_p = {14: 3, 2: 2, 6: 1, 10: 0}
        elif pr == 5: sched_p = {14: 3, 3: 2, 8: 1, 12: 0}
        elif pr == 6: sched_p = {14: 1, 6: 0}
        for k, v in sched_p.items():
            hooks.setdefault((k, "pre"), []).append(lambda v=v: A(f"s_setprio {v}"))
    for n in range(16):
        emit_step(A, r, n, hooks)
    if OPT.get("tracer") is not None: OPT["tracer"].mark_dyn(8, r.s_it)
    if OPT.get("itstamp"):
        A("s_memtime s[54:55]\ns_memrealtime s[56:57]\ns_waitcnt lgkmcnt(0)")
        A(f"s_lshl_b32 s58, s{r.s_it}, 1")
        A(f"s_mov_b32 m0, s58")
        A(f"v_writelane_b32 v{r.t[5]}, s54, m0")
        A("s_add_u32 m0, m0, 1")
        A(f"v_writelane_b32 v{r.t[5]}, s56, m0")
    A(f"s_add_u32 s{r.s_it}, s{r.s_it}, 1")
    A(f"s_cmp_lt_u32 s{r.s_it}, {nseg}")
    A(f"s_cbranch_scc1 {name}_loop")
    OPT["inloop"] = False
    A("s_nop 1")
    mf_pv(A, r, 1, r.V2[1], r.S[3] + 8)
    A("s_nop 15")

def emit_attn_store(A, r, flags=""):
    t0, t1, t2, t3, t4, t5 = r.t
    st, st2 = r.s_t[:2]
    A(f"s_lshl_b32 s{st}, s{r.s_c}, 8")
    A(f"s_and_b32 s{st2}, s{r.s_w}, 3")
    A(f"s_lshl_b32 s{st2}, s{st2}, 6")
    A(f"s_add_u32 s{st}, s{st}, s{st2}")
    A(f"s_mul_i32 s{st}, s{st}, 1152")
    A(f"s_lshr_b32 s{st2}, s{r.s_w}, 2")
    A(f"s_lshl_b32 s{r.s_t[2]}, s{r.s_hp}, 1")
    A(f"s_add_u32 s{st2}, s{st2}, s{r.s_t[2]}")
    A(f"s_mul_i32 s{st2}, s{st2}, 36")
    A(f"s_add_u32 s{st}, s{st}, s{st2}")
    A(f"v_and_b32 v{t0}, 31, v{r.lane}")
    A(f"v_mul_u32_u24 v{t0}, 1152, v{t0}")
    A(f"v_lshrrev_b32 v{t1}, 5, v{r.lane}")
    A(f"v_lshl_add_u32 v{t0}, v{t1}, 4, v{t0}")
    for u in range(2):
        o = r.O[u]
        A(f"v_rcp_f32 v{t1}, v{o+10}")
        A("s_nop 0")
        for i in range(10):
            A(f"v_mul_f32 v{o+i}, v{o+i}, v{t1}")
        pk = r.S[u]
        for i in range(5):
            A(f"v_cvt_pk_bf16_f32 v{pk+i}, v{o+2*i}, v{o+2*i+1}")
        if u == 1:
            A(f"s_add_u32 s{st}, s{st}, {32*1152}")
        A(f"buffer_store_dwordx4 v[{pk}:{pk+3}], v{t0}, s[{r.s_osrd}:{r.s_osrd+3}], s{st} offen{flags}")
        A("s_mov_b64 s[36:37], exec")
        A("s_mov_b32 exec_hi, 0")
        A(f"buffer_store_dword v{pk+4}, v{t0}, s[{r.s_osrd}:{r.s_osrd+3}], s{st} offen offset:32{flags}")
        A("s_mov_b64 exec, s[36:37]")

def gen_attn_standalone(name="attn_kernel", stamp=False, rt=None):
    A = Asm(); r = R(); V = RegAlloc(1, 256, "v")
    alloc_attn_regs(V, r); alloc_sregs(r)
    A(f".globl {name}\n.p2align 8\n.type {name},@function")
    A.label(name)
    A(f"s_cmp_ge_u32 s2, 256\ns_cbranch_scc1 {name}_end")
    A(f"s_load_dwordx2 s[{r.s_ws}:{r.s_ws+1}], s[0:1], 64")
    if stamp:
        A("s_load_dwordx2 s[44:45], s[0:1], 48")
        A("s_memtime s[40:41]")
        A("s_memrealtime s[50:51]")
    S = Stamper(A, rt, enabled=rt is not None); S.start()
    emit_ids(A, r)
    A("s_waitcnt lgkmcnt(0)")
    emit_srds(A, r)
    emit_dma_setup(A, r, True)
    A(f"s_mov_b32 s{r.s_slotw}, 0")
    A(f"s_mov_b32 s{r.s_seg}, s{r.s_c}")
    emit_dma_segment(A, r)
    emit_dma_segment(A, r)
    emit_ones(A, r)
    emit_read_addrs(A, r)
    A("s_waitcnt vmcnt(5) lgkmcnt(0)")
    A("s_barrier")
    emit_q_frags(A, r)
    S.mark(2)
    emit_attn_prologue(A, r)
    S.mark(3)
    if stamp:
        A("s_memtime s[42:43]")
    emit_attn_loop(A, r, name)
    S.mark(4)
    if stamp:
        A("s_memtime s[46:47]")
    if OPT.get("tracer") is not None: OPT["tracer"].mark_dyn(8, r.s_it)
    if OPT.get("itstamp"):
        A(f"s_lshl_b32 s38, s2, 3\ns_add_u32 s38, s38, s{r.s_w}\ns_lshl_b32 s38, s38, 6\ns_add_u32 s38, s38, 65536")
        A(f"v_lshl_add_u32 v{r.t[0]}, v{r.lane}, 2, s38")
        A(f"v_cmp_gt_u32 vcc, 16, v{r.lane}")
        A("s_and_saveexec_b64 s[36:37], vcc")
        A(f"global_store_dword v{r.t[0]}, v{r.t[5]}, s[44:45]")
        A("s_mov_b64 exec, s[36:37]")
    emit_attn_store(A, r)
    if stamp:
        A("s_waitcnt vmcnt(0) lgkmcnt(0)")
        A("s_memtime s[48:49]")
        A("s_memrealtime s[52:53]")
        A("s_waitcnt lgkmcnt(0)")
        A("s_sub_u32 s52, s52, s50")
        A("s_sub_u32 s42, s42, s40\ns_sub_u32 s46, s46, s40\ns_sub_u32 s48, s48, s40")
        A(f"s_lshl_b32 s38, s2, 3\ns_add_u32 s38, s38, s{r.s_w}\ns_lshl_b32 s38, s38, 4")
        A(f"v_mov_b32 v{r.t[0]}, s38")
        A(f"v_mov_b32 v{r.S[0]}, s42\nv_mov_b32 v{r.S[0]+1}, s46\nv_mov_b32 v{r.S[0]+2}, s48\nv_mov_b32 v{r.S[0]+3}, s52")
        A(f"v_cmp_eq_u32 vcc, 0, v{r.lane}")
        A("s_and_saveexec_b64 s[36:37], vcc")
        A(f"global_store_dwordx4 v{r.t[0]}, v[{r.S[0]}:{r.S[0]+3}], s[44:45]")
    S.dump(r.s_ws, r.t[0], r.S[0])
    A.label(f"{name}_end")
    A("s_endpgm")
    return A.text(), V.next

if __name__ == "__main__":
    txt, nv = gen_attn_standalone(stamp=True)
    print("vgprs", nv)
    asm = '.amdgcn_target "amdgcn-amd-amdhsa--gfx950"\n.text\n' + txt + '.section .rodata,"a"\n' + kernel_desc("attn_kernel", nv)
    open("attn_test.s", "w").write(asm)
```

```python
class Asm:
    def __init__(self):
        self.lines = []
        self.nlab = 0
    def __call__(self, s=""):
        for l in s.split("\n"):
            self.lines.append(l if (l.endswith(":") or l.startswith(".") or l.startswith(";")) else "  " + l.strip())
    def label(self, name):
        self.lines.append(name + ":")
    def newlabel(self, p="L"):
        self.nlab += 1
        return f"{p}_{self.nlab}"
    def comment(self, s):
        self.lines.append("  ; " + s)
    def text(self):
        return "\n".join(self.lines) + "\n"

def vr(base, n=1):
    return f"v{base}" if n == 1 else f"v[{base}:{base+n-1}]"
def sr(base, n=1):
    return f"s{base}" if n == 1 else f"s[{base}:{base+n-1}]"
def ar(base, n=1):
    return f"a{base}" if n == 1 else f"a[{base}:{base+n-1}]"

class RegAlloc:
    def __init__(self, start, limit, kind="v"):
        self.next = start; self.limit = limit; self.kind = kind; self.names = {}
    def alloc(self, name, n=1, align=1):
        if n > 1 and align == 1: align = 2
        b = (self.next + align - 1) // align * align
        self.next = b + n
        assert self.next <= self.limit, f"out of {self.kind} regs at {name}"
        self.names[name] = (b, n)
        return b

def kernel_desc(name, vgpr, sgpr=102, accum=None, lds=0):
    if accum is None: accum = (vgpr + 3) // 4 * 4
    return f""".p2align 6
.amdhsa_kernel {name}
  .amdhsa_next_free_vgpr {vgpr}
  .amdhsa_next_free_sgpr {sgpr}
  .amdhsa_accum_offset {accum}
  .amdhsa_group_segment_fixed_size 0
  .amdhsa_kernarg_size 72
  .amdhsa_user_sgpr_count 2
  .amdhsa_user_sgpr_kernarg_segment_ptr 1
  .amdhsa_system_sgpr_workgroup_id_x 1
  .amdhsa_float_denorm_mode_32 3
.end_amdhsa_kernel
"""

STAMP_OFF = 0x8000000
class Stamper:
    def __init__(self, A, kidx, sbase=84, stmp=92, enabled=True):
        self.A = A; self.k = kidx; self.sb = sbase; self.tmp = stmp; self.en = enabled
    def start(self):
        if not self.en: return
        A = self.A
        for i in range(8): A(f"s_mov_b32 s{self.sb+i}, 0")
        self.mark(0)
    def mark(self, i):
        if not self.en: return
        A = self.A
        A(f"s_memrealtime s[{self.tmp}:{self.tmp+1}]")
        A("s_waitcnt lgkmcnt(0)")
        A(f"s_mov_b32 s{self.sb+i}, s{self.tmp}")
    def dump(self, s_ws, vtmp, vdata8, wave_sgpr_expr_v0=True):
        if not self.en: return
        A = self.A
        A("s_waitcnt vmcnt(0)")
        self.mark(1)
        A(f"v_lshrrev_b32 v{vtmp}, 6, v0")
        A(f"s_lshl_b32 s{self.tmp}, s2, 4")
        A(f"v_add_u32 v{vtmp}, s{self.tmp}, v{vtmp}")
        A(f"v_lshlrev_b32 v{vtmp}, 5, v{vtmp}")
        A(f"v_add_u32 v{vtmp}, {STAMP_OFF + self.k * 256 * 16 * 32}, v{vtmp}")
        for i in range(8): A(f"v_mov_b32 v{vdata8+i}, s{self.sb+i}")
        A(f"v_and_b32 v{vdata8+8}, 63, v0")
        A(f"v_cmp_eq_u32 vcc, 0, v{vdata8+8}")
        A("s_and_saveexec_b64 s[36:37], vcc")
        A(f"global_store_dwordx4 v{vtmp}, v[{vdata8}:{vdata8+3}], s[{s_ws}:{s_ws+1}]")
        A(f"global_store_dwordx4 v{vtmp}, v[{vdata8+4}:{vdata8+7}], s[{s_ws}:{s_ws+1}] offset:16")
        A("s_mov_b64 exec, s[36:37]")

TRACE_OFF = 0x9000000
class Tracer:
    def __init__(self, A, vtr, tmp=96, enabled=True):
        self.A = A; self.v = vtr; self.tmp = tmp; self.en = enabled; self.n = 0; self.names = []
    def init(self):
        if self.en: self.A(f"v_mov_b32 v{self.v}, 0")
    def mark(self, idx, name=None):
        if not self.en: return
        A = self.A
        A(f"s_memrealtime s[{self.tmp}:{self.tmp+1}]")
        A(f"s_memtime s[{self.tmp+2}:{self.tmp+3}]")
        A("s_waitcnt lgkmcnt(0)")
        A(f"v_writelane_b32 v{self.v}, s{self.tmp}, {2*idx}")
        A(f"v_writelane_b32 v{self.v}, s{self.tmp+2}, {2*idx+1}")
    def mark_dyn(self, base, s_idx):
        if not self.en: return
        A = self.A
        A(f"s_memrealtime s[{self.tmp}:{self.tmp+1}]")
        A(f"s_memtime s[{self.tmp+2}:{self.tmp+3}]")
        A("s_waitcnt lgkmcnt(0)")
        A(f"s_lshl_b32 s{self.tmp+1}, s{s_idx}, 1")
        A(f"s_add_u32 s{self.tmp+1}, s{self.tmp+1}, {2*base}")
        A(f"s_mov_b32 m0, s{self.tmp+1}")
        A(f"v_writelane_b32 v{self.v}, s{self.tmp}, m0")
        A(f"s_add_u32 m0, m0, 1")
        A(f"v_writelane_b32 v{self.v}, s{self.tmp+2}, m0")
    def dump(self, s_ws, vtmp):
        if not self.en: return
        A = self.A
        A(f"v_lshrrev_b32 v{vtmp}, 6, v0")
        A(f"s_lshl_b32 s{self.tmp}, s2, 4")
        A(f"v_add_u32 v{vtmp}, s{self.tmp}, v{vtmp}")
        A(f"v_lshlrev_b32 v{vtmp}, 8, v{vtmp}")
        A(f"v_and_b32 v{vtmp+1}, 63, v0")
        A(f"v_lshl_add_u32 v{vtmp}, v{vtmp+1}, 2, v{vtmp}")
        A(f"v_add_u32 v{vtmp}, {TRACE_OFF}, v{vtmp}")
        A(f"global_store_dword v{vtmp}, v{self.v}, s[{s_ws}:{s_ws+1}]")
```

```python
from emit import *
import attn, qkv, tail
from attn import R, ROWB, BLK_BYTES, O_OFF, O_BLK, KPAIR, VPAIR, KBLK, VBLK, HEADSZ, ONES, ZEROS, SLOT, NSLOT, QOFF
from qkv import XST, WST, STAGE, NST, NCH, CSCALE, f32bits

OPT = {}
NONCE_LDS = max(qkv.LDS_GEMM, attn.LDS_ATTN)
LDS_FUSED = NONCE_LDS + 256
FLAG_OFF = 0x2000000

def emit_loader_gemm_setup(A, r, g, L):
    t0, t1, t2, t3, t4, t5 = r.t
    st, st2, st3, st4 = r.s_t
    lane = r.lane
    A(f"v_lshrrev_b32 v{t0}, 3, v{lane}")
    A(f"v_and_b32 v{t1}, 7, v{lane}")
    A(f"v_lshrrev_b32 v{t2}, 4, v{lane}")
    A(f"v_and_b32 v{t2}, 1, v{t2}")
    A(f"s_lshl_b32 s{st}, s{r.s_c}, 8")
    A(f"s_lshl_b32 s{st2}, s{L.s_lw}, 6")
    A(f"s_add_u32 s{st}, s{st}, s{st2}")
    A(f"v_add_u32 v{t0}, s{st}, v{t0}")
    A(f"v_mul_u32_u24 v{t0}, 1152, v{t0}")
    for i in range(4):
        A(f"v_or_b32 v{t3}, {i<<1}, v{t2}")
        A(f"v_xor_b32 v{t3}, v{t3}, v{t1}")
        A(f"v_lshl_add_u32 v{L.vx[i]}, v{t3}, 4, v{t0}")
        if i: A(f"v_add_u32 v{L.vx[i]}, {i*8*1152}, v{L.vx[i]}")
    A(f"v_lshrrev_b32 v{t0}, 4, v{lane}")
    A(f"s_lshl_b32 s{st}, s{L.s_lw}, 4")
    A(f"v_add_u32 v{t5}, s{st}, v{t0}")
    A(f"v_mul_u32_u24 v{t5}, 3456, v{t5}")
    A(f"s_mul_i32 s{st}, s{r.s_hp}, 72")
    A(f"v_add_u32 v{t5}, s{st}, v{t5}")
    for var in range(2):
        A(f"v_or_b32 v{t1}, {4*var}, v{t0}")
        A(f"v_lshlrev_b32 v{t1}, 1, v{t1}")
        A(f"v_and_b32 v{t2}, 15, v{lane}")
        A(f"v_xor_b32 v{t2}, v{t2}, v{t1}")
        A(f"v_lshrrev_b32 v{t3}, 2, v{t2}")
        A(f"v_and_b32 v{t4}, 3, v{t2}")
        A(f"v_min_u32 v{t1}, 2, v{t4}")
        A(f"v_cmp_eq_u32 vcc, 3, v{t3}")
        A("s_nop 1")
        A(f"v_cndmask_b32 v{t3}, v{t3}, v{t1}, vcc")
        A(f"v_lshlrev_b32 v{t4}, 4, v{t4}")
        A(f"v_cndmask_b32 v{t4}, v{t4}, 56, vcc")
        A(f"v_mul_u32_u24 v{t3}, 1152, v{t3}")
        A(f"v_add3_u32 v{L.vw[var]}, v{t3}, v{t4}, v{t5}")
    A(f"s_lshl_b32 s{g.s_mx}, s{L.s_lw}, 13")
    A(f"s_lshl_b32 s{g.s_mw}, s{L.s_lw}, 12")
    A(f"s_add_u32 s{g.s_mw}, s{g.s_mw}, {XST}")

def emit_loader_gemm_dma(A, r, g, L):
    st, st2 = r.s_t[:2]
    A(f"s_lshl_b32 s{g.s_xoff}, s{g.s_kc}, 7")
    A(f"s_mul_i32 s{g.s_woff}, s{g.s_kc}, {64*3456}")
    for i in range(4):
        A(f"s_add_u32 s{st}, s{g.s_stw}, s{g.s_mw}")
        A(f"s_add_u32 m0, s{st}, {1024*i}")
        A(f"s_add_u32 s{st2}, s{g.s_woff}, {4*3456*i}")
        A(f"buffer_load_dwordx4 v{L.vw[i>>1]}, s[{g.s_wsrd}:{g.s_wsrd+3}], s{st2} offen lds")
    for i in range(8):
        A(f"s_add_u32 s{st}, s{g.s_stw}, s{g.s_mx}")
        A(f"s_add_u32 m0, s{st}, {1024*i}")
        A(f"s_add_u32 s{st2}, s{g.s_xoff}, {32*1152*(i>>2)}")
        A(f"buffer_load_dwordx4 v{L.vx[i&3]}, s[{g.s_xsrd}:{g.s_xsrd+3}], s{st2} offen lds")
    A(f"s_add_u32 s{g.s_kc}, s{g.s_kc}, 1")
    A(f"s_add_u32 s{g.s_stw}, s{g.s_stw}, {STAGE}")
    A(f"s_cmp_eq_u32 s{g.s_stw}, {NST*STAGE}")
    A(f"s_cselect_b32 s{g.s_stw}, 0, s{g.s_stw}")

def emit_compute_gemm_setup(A, r, g):
    t0, t1, t2, t3, t4, t5 = r.t
    st, st2, st3, st4 = r.s_t
    lane = r.lane
    A(f"v_and_b32 v{t0}, 15, v{lane}")
    A(f"v_lshrrev_b32 v{t1}, 2, v{t0}")
    A(f"v_and_b32 v{t2}, 3, v{t0}")
    A(f"v_lshl_add_u32 v{t2}, v{t1}, 3, v{t2}")
    A(f"v_lshrrev_b32 v{t3}, 1, v{t0}")
    A(f"v_and_b32 v{t3}, 1, v{t3}")
    A(f"v_lshl_or_b32 v{t3}, v{t1}, 1, v{t3}")
    A(f"v_lshrrev_b32 v{t4}, 4, v{lane}")
    A(f"v_xor_b32 v{t3}, v{t3}, v{t4}")
    A(f"s_and_b32 s{st}, s{r.s_w}, 3")
    A(f"s_lshl_b32 s{st}, s{st}, 13")
    A(f"v_lshlrev_b32 v{t2}, 7, v{t2}")
    A(f"v_add_u32 v{t2}, s{st}, v{t2}")
    A(f"v_lshl_add_u32 v{g.aA[0]}, v{t3}, 4, v{t2}")
    A(f"v_xor_b32 v{t3}, 4, v{t3}")
    A(f"v_lshl_add_u32 v{g.aA[1]}, v{t3}, 4, v{t2}")
    A(f"v_lshrrev_b32 v{t0}, 4, v{lane}")
    A(f"v_lshrrev_b32 v{t1}, 2, v{lane}")
    A(f"v_and_b32 v{t1}, 3, v{t1}")
    A(f"v_lshl_add_u32 v{t2}, v{t0}, 3, v{t1}")
    A(f"v_lshlrev_b32 v{t2}, 8, v{t2}")
    A(f"v_add_u32 v{t2}, {XST}, v{t2}")
    A(f"v_and_b32 v{t0}, 1, v{t0}")
    A(f"v_lshl_or_b32 v{t0}, v{t0}, 2, v{t1}")
    A(f"v_and_b32 v{t3}, 3, v{lane}")
    A(f"v_lshlrev_b32 v{t4}, 3, v{t3}")
    A(f"v_add_u32 v{t4}, v{t4}, v{t2}")
    A(f"s_lshr_b32 s{st}, s{r.s_w}, 2")
    A(f"s_lshl_b32 s{st}, s{st}, 2")
    for t in range(4):
        A(f"s_add_u32 s{st2}, s{st}, {t}")
        A(f"v_xor_b32 v{t5}, s{st2}, v{t0}")
        A(f"v_lshl_add_u32 v{g.aB[t]}, v{t5}, 5, v{t4}")
    A(f"v_add_u32 v{t3}, 12, v{t3}")
    A(f"v_lshlrev_b32 v{t0}, 1, v{t0}")
    A(f"v_xor_b32 v{t3}, v{t3}, v{t0}")
    A(f"v_lshl_add_u32 v{t3}, v{t3}, 4, v{t2}")
    A(f"v_add_u32 v{t3}, 8, v{t3}")
    A(f"s_cmp_ge_u32 s{r.s_w}, 4")
    A(f"s_cselect_b64 vcc, -1, 0")
    A("s_nop 1")
    A(f"v_cndmask_b32 v{g.aB[2]}, v{g.aB[2]}, v{t3}, vcc")

def g_read_list(g, s, ks, nt):
    out = []
    for i in range(4):
        p, T = i // 2, i % 2
        out.append(f"ds_read_b128 v[{g.FA[s][i]}:{g.FA[s][i]+3}], v{g.aA[ks]} offset:{4096*p+512*T}")
    for t in range(nt):
        out.append(f"ds_read_b64_tr_b16 v[{g.FB[s][t]}:{g.FB[s][t]+1}], v{g.aB[t]} offset:{8192*ks}")
        out.append(f"ds_read_b64_tr_b16 v[{g.FB[s][t]+2}:{g.FB[s][t]+3}], v{g.aB[t]} offset:{8192*ks+1024}")
    return out
def g_mfma_list(g, s, nt):
    out = []
    for t in range(nt):
        for i in range(4):
            out.append(f"v_mfma_f32_16x16x32_bf16 v[{g.acc[i][t]}:{g.acc[i][t]+3}], v[{g.FA[s][i]}:{g.FA[s][i]+3}], v[{g.FB[s][t]}:{g.FB[s][t]+3}], v[{g.acc[i][t]}:{g.acc[i][t]+3}]")
    return out
def interleave(A, mf, rd, pre=()):
    extra = list(pre) + list(rd)
    k = 0
    for m in mf:
        A(m)
        if k < len(extra):
            A(extra[k]); k += 1
    while k < len(extra):
        A(extra[k]); k += 1

def emit_compute_gemm(A, r, g, name, S):
    A(f"s_mov_b32 s{g.s_rst}, 0")
    for i in range(4):
        for t in range(4):
            for j in range(4): A(f"v_mov_b32 v{g.acc[i][t]+j}, 0")
    if getattr(g, "pf_pre", None): emit_prefetch_batch(A, r, g, g.pfreg, g.pf_pre)
    g.T.mark(1)
    A("s_barrier")
    S.mark(2)
    g.T.mark(2)
    if g.pf2: emit_prefetch_batch(A, r, g, g.pfreg, g.pf2)
    A(f"s_cmp_ge_u32 s{r.s_w}, 4")
    A(f"s_cbranch_scc1 {name}_g1")
    for nh in range(2):
        nt = 4 if nh == 0 else 3
        if nh == 1: A.label(f"{name}_g1")
        for x in g_read_list(g, 0, 0, nt): A(x)
        A(f"s_mov_b32 s{r.s_it}, 0")
        A("s_waitcnt lgkmcnt(0)")
        A.label(f"{name}_gl{nh}")
        interleave(A, g_mfma_list(g, 0, nt), g_read_list(g, 1, 1, nt))
        A(f"s_add_u32 s{g.s_rst}, s{g.s_rst}, 1")
        A(f"s_cmp_eq_u32 s{g.s_rst}, {NST}")
        A(f"s_mov_b32 s{g.s_gdelta}, {STAGE}\ns_cmov_b32 s{g.s_gdelta}, {-(NST-1)*STAGE & 0xffffffff}")
        A(f"s_cselect_b32 s{g.s_rst}, 0, s{g.s_rst}")
        A("s_waitcnt lgkmcnt(0)")
        A("s_barrier")
        upd = [f"v_add_u32 v{x}, s{g.s_gdelta}, v{x}" for x in [g.aA[0]] + g.aB[:nt] + [g.aA[1]]]
        mf = g_mfma_list(g, 1, nt)
        rd = g_read_list(g, 0, 0, nt)
        k = 0
        for x in upd[:2]: A(x)
        seq = upd[2:] + rd
        interleave(A, mf, seq)
        A(f"s_add_u32 s{r.s_it}, s{r.s_it}, 1")
        A(f"s_cmp_lt_u32 s{r.s_it}, {NCH}")
        A(f"s_waitcnt lgkmcnt(0)")
        A(f"s_cbranch_scc1 {name}_gl{nh}")
        emit_epi_lds(A, r, g, nh)
        if nh == 0: A(f"s_branch {name}_gdone")
    A.label(f"{name}_gdone")

def emit_epi_lds(A, r, g, nh):
    t0, t1, t2, t3, t4, t5 = r.t
    st, st2, st3, st4 = r.s_t
    lane = r.lane
    nt = 4 if nh == 0 else 3
    A("s_nop 7")
    A(f"s_and_b32 s{st}, s{r.s_w}, 3")
    A(f"s_lshl_b32 s{st}, s{st}, 7")
    ea = g.aA[0]; ed = g.aA[1]; esc = g.aB[0]; typ = g.aB[1]; col = g.aB[2]; tmp = g.aB[3]
    for t in range(nt):
        Tf = 4 * nh + t
        A(f"v_and_b32 v{t1}, 15, v{lane}")
        if Tf < 6:
            A(f"v_mov_b32 v{typ}, {Tf >> 1}")
            A(f"v_add_u32 v{col}, {16*(Tf & 1)}, v{t1}")
        else:
            A(f"v_lshrrev_b32 v{typ}, 2, v{t1}")
            A(f"v_and_b32 v{col}, 3, v{t1}")
            A(f"v_add_u32 v{col}, 32, v{col}")
        A(f"v_cmp_le_u32 vcc, 18, v{col}")
        A(f"v_subrev_u32 v{tmp}, 18, v{col}")
        A("s_nop 0")
        A(f"v_cndmask_b32 v{col}, v{col}, v{tmp}, vcc")
        A(f"v_cndmask_b32 v{t0}, 0, 1, vcc")
        A(f"v_and_b32 v{t2}, 1, v{col}")
        A(f"v_lshrrev_b32 v{t3}, 1, v{col}")
        A(f"v_lshrrev_b32 v{t4}, 4, v{lane}")
        isq = (Tf < 2); isk = (Tf in (2, 3)); isv = (Tf in (4, 5))
        def ktype(base_const, hstride):
            A(f"v_mul_u32_u24 v{ea}, {KPAIR}, v{t3}")
            A(f"v_mul_u32_u24 v{tmp}, {hstride}, v{t0}")
            A(f"v_add3_u32 v{ea}, v{ea}, v{tmp}, s{st}")
            A(f"v_mul_u32_u24 v{tmp}, {512+64}, v{t2}")
            A(f"v_lshl_add_u32 v{tmp}, v{t4}, 4, v{tmp}")
            A(f"v_add_u32 v{ea}, v{ea}, v{tmp}")
            if base_const: A(f"v_add_u32 v{ea}, {base_const}, v{ea}")
            A(f"v_lshlrev_b32 v{ed}, 7, v{t2}")
            A(f"v_sub_u32 v{ed}, 64, v{ed}")
        def vtype(dst, dd):
            A(f"v_mul_u32_u24 v{dst}, {VPAIR}, v{t3}")
            A(f"v_mul_u32_u24 v{tmp}, {HEADSZ}, v{t0}")
            A(f"v_add3_u32 v{dst}, v{dst}, v{tmp}, s{st}")
            A(f"v_xor_b32 v{tmp}, v{t4}, v{t2}")
            A(f"v_lshlrev_b32 v{tmp}, 4, v{tmp}")
            A(f"v_lshl_add_u32 v{tmp}, v{t2}, 9, v{tmp}")
            A(f"v_add_u32 v{dst}, v{dst}, v{tmp}")
            A(f"v_add_u32 v{dst}, {KBLK}, v{dst}")
            A(f"v_mov_b32 v{dd}, 64")
        if isq: ktype(QOFF, KBLK)
        elif isk: ktype(0, HEADSZ)
        elif isv: vtype(ea, ed)
        else:
            ktype(0, HEADSZ)
            A(f"v_mul_i32_i24 v{tmp}, {KBLK-HEADSZ}, v{t0}")
            A(f"v_add_u32 v{tmp}, {QOFF}, v{tmp}")
            A(f"v_cmp_eq_u32 vcc, 0, v{typ}")
            A("s_nop 1")
            A(f"v_cndmask_b32 v{tmp}, 0, v{tmp}, vcc")
            A(f"v_add_u32 v{ea}, v{ea}, v{tmp}")
            vtype(t5, esc)
            A(f"v_cmp_eq_u32 vcc, 2, v{typ}")
            A("s_nop 1")
            A(f"v_cndmask_b32 v{ea}, v{ea}, v{t5}, vcc")
            A(f"v_cndmask_b32 v{ed}, v{ed}, v{esc}, vcc")
        if isq:
            A(f"s_mov_b32 s{st4}, {f32bits(CSCALE):#x}")
        elif Tf == 6:
            A(f"v_mov_b32 v{esc}, 1.0")
            A(f"v_mov_b32 v{tmp}, {f32bits(CSCALE):#x}")
            A(f"v_cmp_eq_u32 vcc, 0, v{typ}")
            A("s_nop 1")
            A(f"v_cndmask_b32 v{esc}, v{esc}, v{tmp}, vcc")
        if Tf == 6:
            A(f"v_cmp_gt_u32 vcc, 3, v{typ}")
            A("s_and_saveexec_b64 s[36:37], vcc")
        for p in range(2):
            a0 = g.acc[2 * p][t]; a1 = g.acc[2 * p + 1][t]
            if isq:
                for j in range(4):
                    A(f"v_mul_f32 v{a0+j}, s{st4}, v{a0+j}")
                    A(f"v_mul_f32 v{a1+j}, s{st4}, v{a1+j}")
            elif Tf == 6:
                for j in range(4):
                    A(f"v_mul_f32 v{a0+j}, v{esc}, v{a0+j}")
                    A(f"v_mul_f32 v{a1+j}, v{esc}, v{a1+j}")
            pk = g.FA[p][t]
            A(f"v_cvt_pk_bf16_f32 v{pk}, v{a0}, v{a0+1}")
            A(f"v_cvt_pk_bf16_f32 v{pk+1}, v{a0+2}, v{a0+3}")
            A(f"v_cvt_pk_bf16_f32 v{pk+2}, v{a1}, v{a1+1}")
            A(f"v_cvt_pk_bf16_f32 v{pk+3}, v{a1+2}, v{a1+3}")
            if p == 1: A(f"v_add_u32 v{ea}, v{ea}, v{ed}")
            A(f"ds_write_b128 v{ea}, v[{pk}:{pk+3}]")
        if Tf == 6:
            A("s_mov_b64 exec, s[36:37]")

def emit_prefetch(A, r, g, d0, kind, kca, kcb):
    t0, t1, t2, t3 = r.t[:4]
    st, st2, st3, st4 = r.s_t
    A(f"s_lshl_b32 s{st}, s{r.s_hp}, 1\ns_and_b32 s{st2}, s{r.s_c}, 1\ns_add_u32 s{st}, s{st}, s{st2}")
    if kind == "x":
        A(f"v_lshrrev_b32 v{t3}, 4, v{r.lane}")
        A(f"v_add_u32 v{t3}, {kca}, v{t3}")
        A(f"v_min_u32 v{t3}, {kcb}, v{t3}")
        A(f"v_and_b32 v{t0}, 15, v{r.lane}")
        A(f"s_lshr_b32 s{st2}, s{r.s_c}, 1\ns_lshl_b32 s{st2}, s{st2}, 9\ns_lshl_b32 s{st3}, s{st}, 4\ns_add_u32 s{st2}, s{st2}, s{st3}")
        A(f"v_add_u32 v{t0}, s{st2}, v{t0}")
        A(f"v_mul_u32_u24 v{t0}, 1152, v{t0}")
        A(f"v_lshl_add_u32 v{t0}, v{t3}, 7, v{t0}")
        A(f"buffer_load_dword v{d0}, v{t0}, s[{g.s_xsrd}:{g.s_xsrd+3}], 0 offen")
    elif kind == "w":
        A(f"v_min_u32 v{t0}, 53, v{r.lane}")
        A(f"s_mul_i32 s{st2}, s{st}, 54")
        A(f"v_add_u32 v{t0}, s{st2}, v{t0}")
        A(f"v_mul_u32_u24 v{t1}, 2428, v{t0}")
        A(f"v_lshrrev_b32 v{t1}, 16, v{t1}")
        A(f"v_mul_u32_u24 v{t2}, 27, v{t1}")
        A(f"v_sub_u32 v{t2}, v{t0}, v{t2}")
        A(f"v_add_u32 v{t1}, {64*kca}, v{t1}")
        A(f"v_mul_u32_u24 v{t1}, 3456, v{t1}")
        A(f"v_lshl_add_u32 v{t1}, v{t2}, 7, v{t1}")
        A(f"buffer_load_dword v{d0}, v{t1}, s[{g.s_wsrd}:{g.s_wsrd+3}], 0 offen")

def emit_prefetch_batch(A, r, g, d0, jobs):
    done = A.newlabel("Lpfd")
    for w, (kind, a, b) in jobs.items():
        lab = A.newlabel("Lpf")
        A(f"s_cmp_eq_u32 s{r.s_w}, {w}\ns_cbranch_scc0 {lab}")
        emit_prefetch(A, r, g, d0, kind, a, b)
        A(f"s_branch {done}")
        A.label(lab)
    A.label(done)

def emit_loader_kv_setup(A, r, L):
    t0, t1, t2, t3 = r.t[:4]
    st, st2, st3, st4 = r.s_t
    A(f"v_lshrrev_b32 v{t0}, 5, v{r.lane}")
    A(f"v_and_b32 v{t1}, 31, v{r.lane}")
    A(f"v_lshlrev_b32 v{t2}, 2, v{t0}")
    A(f"v_xor_b32 v{t2}, v{t2}, v{t1}")
    A(f"v_lshlrev_b32 v{t2}, 4, v{t2}")
    A(f"v_lshl_add_u32 v{t2}, v{t0}, 12, v{t2}")
    A(f"v_xor_b32 v{t3}, v{t0}, v{t1}")
    A(f"v_lshlrev_b32 v{t3}, 4, v{t3}")
    A(f"v_lshl_add_u32 v{t3}, v{t0}, 12, v{t3}")
    for i in range(9):
        sl = L.s_lds[i]
        A(f"s_add_u32 s{st}, s{L.s_lw}, {4*i}")
        A(f"s_cmp_ge_u32 s{st}, 18")
        A(f"s_cselect_b32 s{st2}, 18, 0")
        A(f"s_mov_b32 s{st3}, {KPAIR}\ns_cmov_b32 s{st3}, {VPAIR}")
        A(f"s_cselect_b32 s{st4}, {KBLK}, 0")
        A(f"s_mov_b32 s{sl}, 576\ns_cmov_b32 s{sl}, 1152")
        A(f"s_cselect_b64 vcc, -1, 0")
        A(f"s_sub_u32 s{st}, s{st}, s{st2}")
        A(f"s_mul_i32 s{st2}, s{r.s_hp}, 36")
        A(f"s_add_u32 s{sl}, s{sl}, s{st2}")
        A(f"s_lshl_b32 s{st2}, s{st}, 1")
        A(f"s_add_u32 s{sl}, s{sl}, s{st2}")
        A(f"s_lshl_b32 s{sl}, s{sl}, 12")
        A(f"v_cndmask_b32 v{L.vdma[i]}, v{t2}, v{t3}, vcc")
        A(f"v_add_u32 v{L.vdma[i]}, s{sl}, v{L.vdma[i]}")
        A(f"s_cmp_ge_u32 s{st}, 9")
        A(f"s_cselect_b32 s{st2}, 9, 0")
        A(f"s_cselect_b32 s{sl}, {HEADSZ}, 0")
        A(f"s_sub_u32 s{st}, s{st}, s{st2}")
        A(f"s_mul_i32 s{st}, s{st}, s{st3}")
        A(f"s_add_u32 s{sl}, s{sl}, s{st}")
        A(f"s_add_u32 s{sl}, s{sl}, s{st4}")

def emit_loader_ones(A, r, L):
    t0, t1, t2, t3 = r.t[:4]
    A(f"v_subrev_u32 v{t1}, 512, v0")
    A(f"v_cmp_gt_u32 vcc, 192, v{t1}")
    A(f"v_lshlrev_b32 v{t1}, 2, v{t1}")
    A(f"v_mov_b32 v{t0}, 0x3f803f80")
    A(f"v_mov_b32 v{t3}, 0")
    A("s_and_saveexec_b64 s[36:37], vcc")
    lab = A.newlabel("Lones")
    A(f"s_cbranch_execz {lab}")
    for s in range(NSLOT):
        A(f"v_add_u32 v{t2}, {s*SLOT+ONES}, v{t1}")
        A(f"ds_write_b32 v{t2}, v{t0}")
        A(f"ds_write_b32 v{t2}, v{t3} offset:768")
    A.label(lab)
    A("s_mov_b64 exec, s[36:37]")

def emit_poll(A, r, L, seg_sgpr):
    t0 = r.t[0]; st, st2 = r.s_t[:2]
    lab = A.newlabel("Lpoll"); done = A.newlabel("Lpolld")
    b = L.buf[0]
    A(f"s_lshl_b32 s{st}, s{seg_sgpr}, 7")
    A(f"v_add_u32 v{t0}, s{st}, v{L.vflag}")
    A(f"s_mov_b32 s{st2}, 0")
    A.label(lab)
    A(f"global_load_dwordx4 v[{b}:{b+3}], v{t0}, s[{r.s_ws}:{r.s_ws+1}] sc1")
    A("s_waitcnt vmcnt(0)")
    A(f"v_xor_b32 v{b}, s{L.s_nonce}, v{b}")
    A(f"v_xor_b32 v{b+1}, s{L.s_nonce}, v{b+1}")
    A(f"v_xor_b32 v{b+2}, s{L.s_nonce}, v{b+2}")
    A(f"v_xor_b32 v{b+3}, s{L.s_nonce}, v{b+3}")
    A(f"v_or_b32 v{b}, v{b}, v{b+1}")
    A(f"v_or3_b32 v{b}, v{b}, v{b+2}, v{b+3}")
    A("s_nop 0")
    A(f"v_readfirstlane_b32 s{st}, v{b}")
    A(f"s_cmp_eq_u32 s{st}, 0")
    A(f"s_cbranch_scc1 {done}")
    A("s_sleep 2")
    A(f"s_add_u32 s{st2}, s{st2}, 1")
    A(f"s_cmp_lt_u32 s{st2}, 0x4000")
    A(f"s_cbranch_scc1 {lab}")
    A.label(done)

def emit_loader_kv_dma(A, r, L):
    A(f"s_lshl_b32 s{r.s_chunk}, s{r.s_seg}, 9")
    for i in range(9):
        A(f"s_add_u32 m0, s{r.s_slotw}, s{L.s_lds[i]}")
        A("s_nop 0")
        A(f"buffer_load_dwordx4 v{L.vdma[i]}, s[{r.s_srd}:{r.s_srd+3}], s{r.s_chunk} offen sc1 lds")
    A(f"s_add_u32 s{r.s_seg}, s{r.s_seg}, 1")
    A(f"s_and_b32 s{r.s_seg}, s{r.s_seg}, 7")
    A(f"s_add_u32 s{r.s_slotw}, s{r.s_slotw}, {SLOT}")
    A(f"s_cmp_eq_u32 s{r.s_slotw}, {NSLOT*SLOT}")
    A(f"s_cselect_b32 s{r.s_slotw}, 0, s{r.s_slotw}")

def emit_check(A, r, name, part=1):
    t0, t1 = r.t[:2]
    A(f"s_mov_b32 s40, 0x30800000")
    A(f"s_mov_b32 s41, 0x71800000")
    for u in range(2):
        A(f"v_mul_f32 v{r.t[2+u]}, 0, v{r.O[u]}")
        for i in range(1, 10): A(f"v_fma_f32 v{r.t[2+u]}, v{r.O[u]+i}, 0, v{r.t[2+u]}")
    A(f"v_add_f32 v{r.t[2]}, v{r.t[2]}, v{r.t[3]}")
    A(f"v_cmp_gt_f32 vcc, v{r.O[0]+10}, s40")
    A(f"v_cmp_lt_f32 s[42:43], v{r.O[0]+10}, s41")
    A("s_nop 3")
    A(f"s_and_b64 s[44:45], vcc, s[42:43]")
    A(f"v_cmp_gt_f32 vcc, v{r.O[1]+10}, s40")
    A(f"v_cmp_lt_f32 s[42:43], v{r.O[1]+10}, s41")
    A("s_nop 3")
    A(f"s_and_b64 s[44:45], s[44:45], vcc")
    A(f"s_and_b64 s[44:45], s[44:45], s[42:43]")
    A(f"v_cmp_o_f32 vcc, v{r.t[2]}, v{r.t[2]}")
    A("s_nop 3")
    A(f"s_and_b64 s[44:45], s[44:45], vcc")
    if OPT.get("forceslow"): A("s_mov_b64 s[44:45], 0")
    lab = A.newlabel("Lok")
    A("s_cmp_eq_u64 s[44:45], -1")
    A(f"s_cbranch_scc1 {lab}")
    A(f"v_mov_b32 v{t0}, {NONCE_LDS + 4}")
    A(f"v_mov_b32 v{t1}, 1")
    A(f"ds_write_b32 v{t0}, v{t1}")
    A("s_waitcnt lgkmcnt(0)")
    A.label(lab)
    if part: emit_flag_read(A, r)

def emit_flag_read(A, r):
    t0 = r.t[0]
    A("s_barrier")
    A(f"v_mov_b32 v{t0}, {NONCE_LDS + 4}")
    A(f"ds_read_b32 v{t0}, v{t0}")
    A("s_waitcnt lgkmcnt(0)")
    A(f"v_readfirstlane_b32 s40, v{t0}")
    A("s_nop 3")
    A("s_cmp_lg_u32 s40, 0")

def emit_slow_compute(A, r, name):
    t = r.t
    m = [t[4], t[5]]
    addrs = [r.kE, r.kO, r.tE, r.tO, r.vA]
    back = (8 % NSLOT) * SLOT
    for x in addrs: A(f"v_subrev_u32 v{x}, {back}, v{x}")
    for u in range(2):
        A(f"v_mov_b32 v{r.Qt[u]+1}, 0")
        A(f"v_mov_b32 v{m[u]}, 0xff800000")
        for i in range(16): A(f"v_mov_b32 v{r.O[u]+i}, 0")
    for ps in range(2):
        A(f"s_mov_b32 s46, 0")
        A.label(f"{name}_sl{ps}")
        A("s_barrier")
        A(f"s_mov_b32 s47, 0")
        A.label(f"{name}_st{ps}")
        for par in range(2):
            attn.k_reads(A, r, par, 0)
            if ps == 1: attn.v_reads(A, r, par, 0)
            A("s_waitcnt lgkmcnt(0)")
            for u in range(2):
                S0 = r.S[u]
                attn.mf_main(A, r, S0, 0, u)
                attn.mf_tail(A, r, S0, 0, u)
            A("s_nop 15")
            for u in range(2):
                S0 = r.S[u]
                if ps == 0:
                    for k in range(0, 16, 2):
                        A(f"v_max3_f32 v{m[u]}, v{m[u]}, v{S0+k}, v{S0+k+1}")
                else:
                    for k in range(16): A(f"v_sub_f32 v{S0+k}, v{S0+k}, v{m[u]}")
                    for k in range(16): A(f"v_exp_f32 v{S0+k}, v{S0+k}")
                    A("s_nop 1")
                    attn.mf_pv(A, r, u, r.V1[0], S0)
                    attn.mf_pv(A, r, u, r.V2[0], S0 + 8)
            if ps == 1: A("s_nop 7")
        for x in addrs: A(f"v_add_u32 v{x}, 128, v{x}")
        A("s_add_u32 s47, s47, 1\ns_cmp_lt_u32 s47, 4")
        A(f"s_cbranch_scc1 {name}_st{ps}")
        for x in addrs: A(f"v_subrev_u32 v{x}, 512, v{x}")
        A("s_barrier")
        A("s_add_u32 s46, s46, 1\ns_cmp_lt_u32 s46, 8")
        A(f"s_cbranch_scc1 {name}_sl{ps}")
        if ps == 0:
            A(f"v_mov_b32 v{t[0]}, v{m[0]}\nv_mov_b32 v{t[1]}, v{m[1]}")
            A("s_nop 1")
            A(f"v_permlane32_swap_b32 v{m[0]}, v{t[0]}")
            A(f"v_permlane32_swap_b32 v{m[1]}, v{t[1]}")
            A("s_nop 1")
            A(f"v_max_f32 v{m[0]}, v{m[0]}, v{t[0]}")
            A(f"v_max_f32 v{m[1]}, v{m[1]}, v{t[1]}")
    A("s_nop 15")

def emit_slow_loader(A, r, L, name):
    A(f"s_mov_b32 s46, 0")
    A.label(f"{name}_lsl")
    A(f"s_and_b32 s{r.s_seg}, s46, 7")
    A(f"s_mov_b32 s{r.s_slotw}, 0")
    emit_loader_kv_dma(A, r, L)
    A("s_waitcnt vmcnt(0)")
    A("s_barrier")
    A("s_barrier")
    A("s_add_u32 s46, s46, 1\ns_cmp_lt_u32 s46, 16")
    A(f"s_cbranch_scc1 {name}_lsl")

def gen_fused(name="fused_kernel", rt=None):
    A = Asm(); r = R(); g = R(); L = R()
    V = RegAlloc(1, 168, "v")
    attn.alloc_sregs(r); qkv.alloc_gemm_sregs(g)
    lane = V.alloc("lane"); tt = [V.alloc(f"t{i}") for i in range(6)]
    vN = V.alloc("vN"); vT = V.alloc("vT", 2, 2)
    vTR = V.alloc("vTR")
    base = V.next
    Va = RegAlloc(base, 168, "v")
    r.lane = lane; r.t = tt
    r.kE = Va.alloc("kE"); r.kO = Va.alloc("kO"); r.tE = Va.alloc("tE"); r.tO = Va.alloc("tO"); r.vA = Va.alloc("vA")
    r.idx = Va.alloc("idx")
    r.Qm = [Va.alloc(f"Qm{u}", 4, 2) for u in range(2)]
    r.Qt = [Va.alloc(f"Qt{u}", 2, 2) for u in range(2)]
    r.Km = [Va.alloc(f"Km{p}", 4, 2) for p in range(2)]
    r.Kt = [Va.alloc(f"Kt{p}", 2, 2) for p in range(2)]
    r.V1 = [Va.alloc(f"V1{p}", 4, 2) for p in range(2)]
    r.V2 = [Va.alloc(f"V2{p}", 4, 2) for p in range(2)]
    r.S = [Va.alloc(f"S{i}", 16, 4) for i in range(4)]
    r.O = [Va.alloc(f"O{u}", 16, 4) for u in range(2)]
    Vg = RegAlloc(base, 168, "v")
    g.aA = [Vg.alloc(f"aA{k}") for k in range(2)]
    g.aB = [Vg.alloc(f"aB{t}") for t in range(4)]
    g.FA = [[Vg.alloc(f"FA{s}{i}", 4, 2) for i in range(4)] for s in range(2)]
    g.FB = [[Vg.alloc(f"FB{s}{t}", 4, 2) for t in range(4)] for s in range(2)]
    g.acc = [[Vg.alloc(f"acc{i}{t}", 4, 4) for t in range(4)] for i in range(4)]
    Vl = RegAlloc(base, 168, "v")
    L.vx = [Vl.alloc(f"vx{i}") for i in range(4)]
    L.vw = [Vl.alloc(f"vw{i}") for i in range(2)]
    L.vdma = [Vl.alloc(f"vd{i}") for i in range(9)]
    L.vflag = Vl.alloc("vflag"); L.vlds = Vl.alloc("vlds")
    L.buf = [Vl.alloc(f"buf{i}", 4, 4) for i in range(9)]
    L.s_lw = 38; L.s_lds = list(range(72, 81)); L.s_dbg = 82; L.s_sh = 39; L.s_nonce = 81
    nv = max(Va.next, Vg.next, Vl.next)

    A(f".globl {name}\n.p2align 8\n.type {name},@function")
    A.label(name)
    A(f"s_cmp_ge_u32 s2, 256\ns_cbranch_scc1 {name}_end")
    A(f"s_load_dwordx2 s[{r.s_ws}:{r.s_ws+1}], s[0:1], 64")
    A("s_load_dwordx4 s[72:75], s[0:1], 0")
    A("s_load_dwordx4 s[76:79], s[0:1], 24")
    A(f"s_load_dwordx2 s[{L.s_dbg}:{L.s_dbg+1}], s[0:1], 56")
    F3 = OPT.get("fuse3", 1)
    if F3:
        r.no_osrd = True
        A("s_load_dwordx2 s[12:13], s[0:1], 16")
        A("s_load_dwordx2 s[6:7], s[0:1], 40")
        A("s_load_dwordx2 s[14:15], s[0:1], 48")
    S = Stamper(A, rt, enabled=rt is not None); S.start()
    T = Tracer(A, vTR, enabled=bool(OPT.get("trace"))); T.init(); T.mark(0); g.T = T
    attn.emit_ids(A, r)
    A("s_waitcnt lgkmcnt(0)")
    T.mark(22)
    A(f"s_cmp_eq_u32 s{r.s_b}, 0")
    A(f"s_cselect_b32 s{g.s_xsrd}, s72, s76")
    A(f"s_cselect_b32 s{g.s_xsrd+1}, s73, s77")
    A(f"s_cselect_b32 s{g.s_wsrd}, s74, s78")
    A(f"s_cselect_b32 s{g.s_wsrd+1}, s75, s79")
    if F3: A("s_cselect_b32 s12, s12, s6\ns_cselect_b32 s13, s13, s7")
    A(f"s_mov_b32 s{g.s_xsrd+2}, {2048*1152}\ns_mov_b32 s{g.s_xsrd+3}, 0x20000")
    A(f"s_mov_b32 s{g.s_wsrd+2}, {576*3456}\ns_mov_b32 s{g.s_wsrd+3}, 0x20000")
    if OPT.get("tlb", 0):
        labt = A.newlabel("Ltlb")
        A(f"s_cmp_lg_u32 s{r.s_w}, 7\ns_cbranch_scc1 {labt}")
        A(f"s_load_dword s40, s[{g.s_wsrd}:{g.s_wsrd+1}], 0")
        A(f"s_lshl_b32 s46, s{r.s_c}, 8\ns_mul_i32 s46, s46, 1152")
        A(f"s_load_dword s41, s[{g.s_xsrd}:{g.s_xsrd+1}], s46")
        A(f"s_mul_i32 s46, s{r.s_b}, {BLK_BYTES}\ns_mul_i32 s47, s{r.s_hp}, {36*4096}\ns_add_u32 s46, s46, s47\ns_add_u32 s46, s46, {576*4096}")
        A(f"s_load_dword s42, s[{r.s_ws}:{r.s_ws+1}], s46")
        A(f"s_add_u32 s47, s46, {576*4096}")
        A(f"s_load_dword s43, s[{r.s_ws}:{r.s_ws+1}], s47")
        A(f"s_mov_b32 s48, {FLAG_OFF}")
        A(f"s_load_dword s44, s[{r.s_ws}:{r.s_ws+1}], s48")
        A(f"s_mul_i32 s49, s{r.s_b}, {O_BLK}\ns_add_u32 s49, s49, {O_OFF}")
        A(f"s_load_dword s45, s[{r.s_ws}:{r.s_ws+1}], s49")
        A.label(labt)
    A(f"s_cmp_ge_u32 s{r.s_w}, 8")
    A(f"s_cbranch_scc1 {name}_loader")
    pf = OPT.get("pf", 6)
    if pf == 1: emit_prefetch_batch(A, r, g, nv - 1, {0: ("x", 2, 3), 1: ("w", 2, 3)})
    if pf == 2: emit_prefetch_batch(A, r, g, nv - 1, {0: ("x", 2, 3), 1: ("w", 2, 3), 2: ("x", 4, 5), 3: ("w", 4, 5)})
    if pf == 3: emit_prefetch_batch(A, r, g, nv - 1, {0: ("x", 2, 3), 1: ("w", 2, 3), 2: ("x", 4, 5), 3: ("w", 4, 5), 4: ("x", 6, 7), 5: ("w", 6, 7), 6: ("x", 8, 8), 7: ("w", 8, 8)})
    g.pf2 = {1: {2: ("x", 4, 5), 3: ("w", 4, 5), 4: ("x", 6, 7), 5: ("w", 6, 7), 6: ("x", 8, 8), 7: ("w", 8, 8)}, 2: {4: ("x", 6, 7), 5: ("w", 6, 7), 6: ("x", 8, 8), 7: ("w", 8, 8)}}.get(pf, {})
    g.pfreg = nv - 2
    if pf == 6:
        emit_prefetch_batch(A, r, g, nv - 1, {0: ("x", 2, 5), 1: ("w", 2, 2), 2: ("w", 3, 3), 3: ("w", 4, 4)})
        g.pf2 = {0: ("x", 6, 8), 1: ("w", 5, 5), 2: ("w", 6, 6), 3: ("w", 7, 7), 4: ("w", 8, 8)}
    if pf == 7:
        emit_prefetch_batch(A, r, g, nv - 1, {0: ("x", 2, 5), 1: ("w", 2, 2), 2: ("w", 3, 3)})
        g.pf2 = {0: ("x", 6, 8), 1: ("w", 4, 4), 2: ("w", 5, 5), 3: ("w", 6, 6), 4: ("w", 7, 7), 5: ("w", 8, 8)}
    if pf == 4: g.pf2 = {2: ("x", 4, 5), 3: ("w", 4, 5), 4: ("x", 6, 7), 5: ("w", 6, 7), 6: ("x", 8, 8), 7: ("w", 8, 8)}
    if pf == 5: g.pf_pre = {2: ("x", 4, 5), 3: ("w", 4, 5), 4: ("x", 6, 7), 5: ("w", 6, 7), 6: ("x", 8, 8), 7: ("w", 8, 8)}
    attn.emit_srds(A, r)
    labn = A.newlabel("Lnonce")
    A(f"s_cmp_lg_u32 s{r.s_w}, 0\ns_cbranch_scc1 {labn}")
    A("s_memrealtime s[94:95]\ns_waitcnt lgkmcnt(0)")
    A("s_or_b32 s94, s94, 1")
    A(f"v_mov_b32 v{vT}, s94\nv_mov_b32 v{vT+1}, 0\nv_mov_b32 v{vN}, 0")
    A(f"v_cmp_eq_u32 vcc, 0, v{r.lane}")
    A("s_and_saveexec_b64 s[36:37], vcc")
    A(f"global_atomic_cmpswap v{vN}, v{vN}, v[{vT}:{vT+1}], s[{L.s_dbg}:{L.s_dbg+1}] sc0 sc1")
    A("s_mov_b64 exec, s[36:37]")
    A.label(labn)
    emit_compute_gemm_setup(A, r, g)
    emit_compute_gemm(A, r, g, name, S)
    S.mark(3)
    A("s_waitcnt vmcnt(0)")
    labn2 = A.newlabel("Lnonce")
    A(f"s_cmp_lg_u32 s{r.s_w}, 0\ns_cbranch_scc1 {labn2}")
    A("s_waitcnt vmcnt(0)")
    A(f"v_cmp_eq_u32 vcc, 0, v{vN}")
    A(f"v_mov_b32 v{r.t[0]}, {NONCE_LDS}")
    A("s_nop 0")
    A(f"v_cndmask_b32 v{vN}, v{vN}, v{vT}, vcc")
    A(f"v_cmp_eq_u32 vcc, 0, v{r.lane}")
    A("s_and_saveexec_b64 s[36:37], vcc")
    A(f"ds_write_b32 v{r.t[0]}, v{vN}")
    A(f"v_mov_b32 v{r.t[1]}, 0")
    A(f"ds_write_b32 v{r.t[0]}, v{r.t[1]} offset:4")
    A("s_mov_b64 exec, s[36:37]")
    A.label(labn2)
    attn.emit_read_addrs(A, r)
    A("s_waitcnt lgkmcnt(0)")
    A("s_barrier")
    if OPT.get("fuse3", 1): tail.emit_srds(A, r)
    attn.emit_q_frags(A, r)
    attn.emit_attn_prologue(A, r)
    S.mark(4)
    T.mark(26)
    attn.OPT["nodma"] = 1
    attn.OPT["extdma"] = 1
    attn.OPT["tracer"] = T if OPT.get("itrace") else None
    attn.emit_attn_loop(A, r, name)
    S.mark(5)
    T.mark(27)
    if OPT.get("fuse3", 1):
        emit_check(A, r, name, part=0)
        tail.emit_stage_o(A, r)
        emit_flag_read(A, r)
        A(f"s_cbranch_scc0 {name}_go3")
        emit_slow_compute(A, r, name)
        tail.emit_stage_o(A, r)
        A("s_barrier")
        A.label(f"{name}_go3")
        nv3 = tail.emit_compute(A, r, name, base, T)
        assert nv3 <= nv
    else:
        emit_check(A, r, name)
        A(f"s_cbranch_scc0 {name}_store")
        emit_slow_compute(A, r, name)
        A.label(f"{name}_store")
        attn.emit_attn_store(A, r, OPT.get("oflags", ""))
    A(f"s_branch {name}_fin")
    A.label(f"{name}_loader")
    A("s_setprio 3")
    A(f"s_sub_u32 s{L.s_lw}, s{r.s_w}, 8")
    emit_loader_gemm_setup(A, r, g, L)
    A(f"s_mov_b32 s{g.s_kc}, 0\ns_mov_b32 s{g.s_stw}, 0")
    if OPT.get("pf", 6) in (4, 5):
        done4 = A.newlabel("Lpf4")
        for lw, job in {0: ("x", 0, 1), 1: ("w", 0, 1), 2: ("x", 2, 3), 3: ("w", 2, 3)}.items():
            lab4 = A.newlabel("Lpf4")
            A(f"s_cmp_eq_u32 s{L.s_lw}, {lw}\ns_cbranch_scc0 {lab4}")
            emit_prefetch(A, r, g, nv - 1, *job)
            A(f"s_branch {done4}")
            A.label(lab4)
        A.label(done4)
    T.mark(23)
    emit_loader_gemm_dma(A, r, g, L)
    T.mark(24)
    emit_loader_gemm_dma(A, r, g, L)
    npf = 0
    T.mark(1)
    A(f"s_waitcnt vmcnt({12 + npf})")
    T.mark(2)
    A("s_barrier")
    S.mark(2)
    emit_loader_gemm_dma(A, r, g, L)
    attn.emit_srds(A, r)
    emit_loader_kv_setup(A, r, L)
    for kc in range(NCH):
        rem = max(0, min(NCH - 1, kc + 2) - (kc + 1))
        A(f"s_waitcnt vmcnt({12*rem})")
        T.mark(3 + 2 * kc)
        A("s_barrier")
        T.mark(4 + 2 * kc)
        if kc + 3 < NCH: emit_loader_gemm_dma(A, r, g, L)
    S.mark(3)
    emit_loader_ones(A, r, L)
    A(f"s_lshl_b32 s{r.s_t[0]}, s{r.s_b}, 4")
    A(f"s_add_u32 s{r.s_t[0]}, s{r.s_t[0]}, s{r.s_hp}")
    A(f"s_lshl_b32 s{r.s_t[0]}, s{r.s_t[0]}, 10")
    A(f"s_add_u32 s{r.s_t[0]}, s{r.s_t[0]}, {FLAG_OFF}")
    A(f"v_mov_b32 v{L.vflag}, s{r.s_t[0]}")
    A(f"v_lshlrev_b32 v{L.vlds}, 4, v{r.lane}")
    A("s_waitcnt lgkmcnt(0)")
    A("s_barrier")
    A(f"v_mov_b32 v{r.t[0]}, {NONCE_LDS}")
    A(f"ds_read_b32 v{r.t[0]}, v{r.t[0]}")
    A("s_waitcnt lgkmcnt(0)")
    A(f"v_readfirstlane_b32 s{L.s_nonce}, v{r.t[0]}")
    for i in range(9):
        A(f"v_add_u32 v{r.t[1]}, s{L.s_lds[i]}, v{L.vlds}")
        A(f"ds_read_b128 v[{L.buf[i]}:{L.buf[i]+3}], v{r.t[1]}")
    A(f"s_lshl_b32 s{r.s_chunk}, s{r.s_c}, 9")
    for i in range(9):
        A(f"s_waitcnt lgkmcnt({8-i})")
        A(f"buffer_store_dwordx4 v[{L.buf[i]}:{L.buf[i]+3}], v{L.vdma[i]}, s[{r.s_srd}:{r.s_srd+3}], s{r.s_chunk} offen sc1")
    A("s_waitcnt vmcnt(0)")
    S.mark(4)
    A(f"s_lshl_b32 s{r.s_t[0]}, s{r.s_c}, 7")
    A(f"s_lshl_b32 s{r.s_t[1]}, s{L.s_lw}, 2")
    A(f"s_add_u32 s{r.s_t[0]}, s{r.s_t[0]}, s{r.s_t[1]}")
    A(f"v_add_u32 v{r.t[0]}, s{r.s_t[0]}, v{L.vflag}")
    A(f"v_mov_b32 v{r.t[1]}, s{L.s_nonce}")
    A(f"v_cmp_eq_u32 vcc, 0, v{r.lane}")
    A("s_and_saveexec_b64 s[36:37], vcc")
    A(f"global_store_dword v{r.t[0]}, v{r.t[1]}, s[{r.s_ws}:{r.s_ws+1}] sc1")
    A("s_mov_b64 exec, s[36:37]")
    A(f"s_add_u32 s{r.s_seg}, s{r.s_c}, 1\ns_and_b32 s{r.s_seg}, s{r.s_seg}, 7")
    A(f"s_mov_b32 s{r.s_slotw}, {SLOT}")
    emit_poll(A, r, L, r.s_seg)
    S.mark(5)
    emit_loader_kv_dma(A, r, L)
    if OPT.get("fuse3", 1):
        tail.emit_srds(A, r)
        P = tail.emit_loader_setup(A, r, L, Vl.next)
        assert P.top <= nv
    for i in range(8):
        A("s_waitcnt vmcnt(0)")
        if i == 0: S.mark(6)
        A("s_barrier")
        if i == 5 and OPT.get("pfwo", 1):
            if not F3:
                A("s_load_dwordx2 s[40:41], s[0:1], 16")
                A("s_load_dwordx2 s[42:43], s[0:1], 40")
            A(f"s_lshl_b32 s46, s{r.s_hp}, 1\ns_and_b32 s47, s{r.s_c}, 1\ns_add_u32 s46, s46, s47\ns_mul_i32 s46, s46, 162")
            A(f"s_lshl_b32 s47, s{L.s_lw}, 6")
            A(f"v_add_u32 v{r.t[1]}, s47, v{r.lane}")
            A(f"v_min_u32 v{r.t[1]}, 161, v{r.t[1]}")
            A(f"v_add_u32 v{r.t[1]}, s46, v{r.t[1]}")
            A(f"v_lshlrev_b32 v{r.t[1]}, 7, v{r.t[1]}")
            if not F3:
                A("s_waitcnt lgkmcnt(0)")
                A(f"s_cmp_eq_u32 s{r.s_b}, 0")
                A("s_cselect_b32 s44, s40, s42\ns_cselect_b32 s45, s41, s43")
                A(f"global_load_dword v{r.t[2]}, v{r.t[1]}, s[44:45]")
            else:
                A(f"global_load_dword v{r.t[2]}, v{r.t[1]}, s[12:13]")
        if i + 2 < 8:
            emit_poll(A, r, L, r.s_seg)
            emit_loader_kv_dma(A, r, L)
    emit_flag_read(A, r)
    A(f"s_cbranch_scc0 {name}_noslow")
    emit_slow_loader(A, r, L, name)
    if OPT.get("fuse3", 1): A("s_barrier")
    A.label(f"{name}_noslow")
    if OPT.get("fuse3", 1):
        tail.emit_loader(A, r, L, P, name, T, S)
    A.label(f"{name}_fin")
    T.mark(30)
    T.dump(r.s_ws, r.t[0])
    S.dump(r.s_ws, r.t[0], r.S[0])
    A.label(f"{name}_end")
    A("s_endpgm")
    return A.text(), nv
```

```python
from emit import *

OX_OFF = 0x1000000
OXB = 18432
FL_REL = 0x900000
X_BYTES = 0xA00000
P3 = 4096
XST = 16384; WST = 16384; STAGE = 32768; NST = 4; NCH = 9
STG = P3 + STAGE
TSTG = P3 + 2 * STAGE
S_XSRD = 56; S_WSRD = 60; S_DSRD = 64
OPT = {}

def emit_srds(A, r):
    A(f"s_add_u32 s{S_XSRD}, s{r.s_ws}, {OX_OFF}\ns_addc_u32 s{S_XSRD+1}, s{r.s_ws+1}, 0")
    A(f"s_mov_b32 s{S_XSRD+2}, {X_BYTES}\ns_mov_b32 s{S_XSRD+3}, 0x20000")
    A(f"s_mov_b32 s{S_WSRD}, s12\ns_mov_b32 s{S_WSRD+1}, s13")
    A(f"s_mov_b32 s{S_WSRD+2}, {576*1152}\ns_mov_b32 s{S_WSRD+3}, 0x20000")
    A(f"s_mov_b32 s{S_DSRD}, s14\ns_mov_b32 s{S_DSRD+1}, s15\ns_mov_b32 s{S_DSRD+2}, {2048*2304}\ns_mov_b32 s{S_DSRD+3}, 0x20000")

def emit_stage_o(A, r):
    t0, t1, t2, t3 = r.t[:4]
    st, st2 = r.s_t[:2]
    A(f"s_and_b32 s{st}, s{r.s_w}, 3\ns_lshl_b32 s{st}, s{st}, 6")
    A(f"v_and_b32 v{t0}, 31, v{r.lane}")
    A(f"v_add_u32 v{t0}, s{st}, v{t0}")
    A(f"s_lshr_b32 s{st2}, s{r.s_w}, 2")
    A(f"v_lshrrev_b32 v{t1}, 5, v{r.lane}")
    A(f"v_lshlrev_b32 v{t2}, 6, v{t0}")
    A(f"v_lshl_add_u32 v{t2}, v{t1}, 4, v{t2}")
    A(f"s_lshl_b32 s{st}, s{st2}, 5\ns_add_u32 s{st}, s{st}, {STG}")
    A(f"v_add_u32 v{t2}, s{st}, v{t2}")
    A(f"v_lshlrev_b32 v{t3}, 3, v{t0}")
    A(f"s_lshl_b32 s{st}, s{st2}, 2\ns_add_u32 s{st}, s{st}, {TSTG}")
    A(f"v_add_u32 v{t3}, s{st}, v{t3}")
    for u in range(2):
        A(f"v_rcp_f32 v{r.t[4+u]}, v{r.O[u]+10}")
    for u in range(2):
        o = r.O[u]; rc = r.t[4 + u]
        for i in range(10):
            A(f"v_mul_f32 v{o+i}, v{o+i}, v{rc}")
        pk = r.S[u]
        for i in range(5):
            A(f"v_cvt_pk_bf16_f32 v{pk+i}, v{o+2*i}, v{o+2*i+1}")
        A(f"ds_write_b128 v{t2}, v[{pk}:{pk+3}] offset:{32*64*u}")
        A("s_mov_b64 s[36:37], exec")
        A("s_mov_b32 exec_hi, 0")
        A(f"ds_write_b32 v{t3}, v{pk+4} offset:{32*8*u}")
        A("s_mov_b64 exec, s[36:37]")
    A("s_waitcnt lgkmcnt(0)")

def emit_compute(A, r, name, base, T=None):
    V = RegAlloc(base, 168, "v")
    t0, t1, t2, t3, t4, t5 = r.t
    lane = r.lane
    aB = [V.alloc(f"aB{k}") for k in range(2)]
    aA = [V.alloc(f"aA{k}") for k in range(3)]
    aT = V.alloc("aT")
    FO = [[V.alloc(f"FO{s}{i}", 4, 2) for i in range(2)] for s in range(2)]
    FW = [[V.alloc(f"FW{s}{i}", 4, 2) for i in range(3)] for s in range(2)]
    acc = [[V.alloc(f"acc{i}{c}", 4, 4) for c in range(3)] for i in range(2)]
    st, st2, st3, st4 = r.s_t
    s_w = r.s_w; s_it = r.s_it; s_rst = 46; s_gd = 47
    A(f"s_and_b32 s{st3}, s{s_w}, 3")
    A(f"v_and_b32 v{t0}, 15, v{lane}")
    A(f"v_lshrrev_b32 v{t1}, 1, v{t0}")
    A(f"v_lshrrev_b32 v{t2}, 4, v{lane}")
    A(f"v_xor_b32 v{t1}, v{t1}, v{t2}")
    A(f"s_lshl_b32 s{st}, s{st3}, 12\ns_add_u32 s{st}, s{st}, {P3}")
    A(f"v_lshlrev_b32 v{t3}, 7, v{t0}")
    A(f"v_add_u32 v{t3}, s{st}, v{t3}")
    A(f"v_lshl_add_u32 v{aB[0]}, v{t1}, 4, v{t3}")
    A(f"v_xor_b32 v{t1}, 4, v{t1}")
    A(f"v_lshl_add_u32 v{aB[1]}, v{t1}, 4, v{t3}")
    A(f"v_lshlrev_b32 v{t2}, 11, v{t2}")
    A(f"v_lshl_add_u32 v{t2}, v{t0}, 3, v{t2}")
    A(f"s_lshl_b32 s{st}, s{st3}, 8\ns_add_u32 s{st}, s{st}, {P3 + (8 % NST) * STAGE}")
    A(f"v_add_u32 v{aT}, s{st}, v{t2}")
    A(f"v_lshrrev_b32 v{t0}, 4, v{lane}")
    A(f"v_lshrrev_b32 v{t1}, 2, v{lane}")
    A(f"v_and_b32 v{t1}, 3, v{t1}")
    A(f"v_lshl_add_u32 v{t2}, v{t0}, 3, v{t1}")
    A(f"v_lshlrev_b32 v{t2}, 8, v{t2}")
    A(f"v_add_u32 v{t2}, {P3 + XST}, v{t2}")
    A(f"v_and_b32 v{t0}, 1, v{t0}")
    A(f"v_lshl_or_b32 v{t0}, v{t0}, 2, v{t1}")
    A(f"v_and_b32 v{t3}, 3, v{lane}")
    A(f"v_lshlrev_b32 v{t5}, 1, v{t0}")
    def tile_addr(dst, ct):
        if ct < 4:
            P, Tt = ct // 2, ct % 2
            A(f"v_add_u32 v{t4}, {4*P}, v{t3}")
            A(f"v_xor_b32 v{t4}, v{t4}, v{t5}")
            A(f"v_lshl_add_u32 v{dst}, v{t4}, 4, v{t2}")
            if Tt: A(f"v_add_u32 v{dst}, 8, v{dst}")
        else:
            A(f"v_lshrrev_b32 v{t4}, 1, v{t3}")
            A(f"v_add_u32 v{t4}, 8, v{t4}")
            A(f"v_xor_b32 v{t4}, v{t4}, v{t5}")
            A(f"v_lshl_add_u32 v{dst}, v{t4}, 4, v{t2}")
            A(f"v_and_b32 v{t4}, 1, v{t3}")
            A(f"v_lshl_add_u32 v{dst}, v{t4}, 3, v{dst}")
    end = A.newlabel("Lt3e")
    for cg in range(2):
        tiles = [0, 1, 4] if cg == 0 else [2, 3]
        nt = len(tiles)
        nxt = A.newlabel("Lt3c")
        if cg == 0: A(f"s_cmp_ge_u32 s{s_w}, 4\ns_cbranch_scc1 {nxt}")
        for k, ct in enumerate(tiles): tile_addr(aA[k], ct)
        for i in range(2):
            for c in range(nt):
                for j in range(4): A(f"v_mov_b32 v{acc[i][c]+j}, 0")
        def rlist(s, ks, tailchunk=False):
            out = []
            for i in range(2):
                if tailchunk:
                    out.append(f"ds_read_b64 v[{FO[s][i]}:{FO[s][i]+1}], v{aT} offset:{8192*ks + 128*i}")
                    out.append(f"ds_read_b64 v[{FO[s][i]+2}:{FO[s][i]+3}], v{aT} offset:{8192*ks + 128*i + 1024}")
                else:
                    out.append(f"ds_read_b128 v[{FO[s][i]}:{FO[s][i]+3}], v{aB[ks]} offset:{2048*i}")
            for c in range(nt):
                out.append(f"ds_read_b64_tr_b16 v[{FW[s][c]}:{FW[s][c]+1}], v{aA[c]} offset:{8192*ks}")
                out.append(f"ds_read_b64_tr_b16 v[{FW[s][c]+2}:{FW[s][c]+3}], v{aA[c]} offset:{8192*ks+1024}")
            return out
        def mlist(s):
            out = []
            for c in range(nt):
                for i in range(2):
                    out.append(f"v_mfma_f32_16x16x32_bf16 v[{acc[i][c]}:{acc[i][c]+3}], v[{FW[s][c]}:{FW[s][c]+3}], v[{FO[s][i]}:{FO[s][i]+3}], v[{acc[i][c]}:{acc[i][c]+3}]")
            return out
        def inter(mf, ex):
            per = -(-len(ex) // len(mf))
            k = 0
            for m in mf:
                A(m)
                for _ in range(per):
                    if k < len(ex): A(ex[k]); k += 1
        A(f"s_mov_b32 s{s_rst}, 0\ns_mov_b32 s{s_it}, 0")
        A("s_barrier")
        if T and cg == 0: T.mark(28)
        for x in rlist(0, 0): A(x)
        A("s_waitcnt lgkmcnt(0)")
        lab = f"{name}_t3l{cg}"
        A.label(lab)
        inter(mlist(0), rlist(1, 1))
        A(f"s_add_u32 s{s_rst}, s{s_rst}, 1\ns_cmp_eq_u32 s{s_rst}, {NST}")
        A(f"s_mov_b32 s{s_gd}, {STAGE}\ns_cmov_b32 s{s_gd}, {-(NST-1)*STAGE & 0xffffffff}")
        A(f"s_cselect_b32 s{s_rst}, 0, s{s_rst}")
        A("s_waitcnt lgkmcnt(0)")
        A("s_barrier")
        for x in [aB[0]] + aA[:nt] + [aB[1]]: A(f"v_add_u32 v{x}, s{s_gd}, v{x}")
        A(f"s_add_u32 s{s_it}, s{s_it}, 1\ns_cmp_lt_u32 s{s_it}, 8")
        labp = A.newlabel("Lt3p")
        A(f"s_cbranch_scc0 {labp}")
        inter(mlist(1), rlist(0, 0))
        A("s_waitcnt lgkmcnt(0)")
        A(f"s_branch {lab}")
        A.label(labp)
        inter(mlist(1), rlist(0, 0, True))
        A("s_waitcnt lgkmcnt(0)")
        inter(mlist(0), rlist(1, 1, True))
        A("s_waitcnt lgkmcnt(0)")
        A("s_barrier")
        for m in mlist(1): A(m)
        if T and cg == 0: T.mark(29)
        A("s_nop 7")
        A(f"v_and_b32 v{t0}, 15, v{lane}")
        A(f"s_lshl_b32 s{st}, s{r.s_c}, 8\ns_lshr_b32 s{st2}, s{r.s_hp}, 3\ns_lshl_b32 s{st2}, s{st2}, 7\ns_add_u32 s{st}, s{st}, s{st2}")
        A(f"s_and_b32 s{st2}, s{s_w}, 3\ns_lshl_b32 s{st2}, s{st2}, 5\ns_add_u32 s{st}, s{st}, s{st2}")
        A(f"v_add_u32 v{t0}, s{st}, v{t0}")
        A(f"v_mul_u32_u24 v{t0}, 2304, v{t0}")
        A(f"v_lshrrev_b32 v{t1}, 4, v{lane}")
        A(f"s_mul_i32 s{st}, s{r.s_b}, 1152\ns_and_b32 s{st2}, s{r.s_hp}, 7\ns_mul_i32 s{st2}, s{st2}, 144\ns_add_u32 s{st}, s{st}, s{st2}")
        A(f"v_lshl_add_u32 v{t2}, v{t1}, 4, v{t0}")
        A(f"v_lshl_add_u32 v{t3}, v{t1}, 3, v{t0}")
        fl = OPT.get("stflags", "")
        for i in range(2):
            if i == 1: A(f"s_add_u32 s{st}, s{st}, {16*2304}")
            a0, a1 = acc[i][0], acc[i][1]
            pk = FW[0][i]
            A(f"v_cvt_pk_bf16_f32 v{pk}, v{a0}, v{a0+1}\nv_cvt_pk_bf16_f32 v{pk+1}, v{a0+2}, v{a0+3}")
            A(f"v_cvt_pk_bf16_f32 v{pk+2}, v{a1}, v{a1+1}\nv_cvt_pk_bf16_f32 v{pk+3}, v{a1+2}, v{a1+3}")
            A(f"buffer_store_dwordx4 v[{pk}:{pk+3}], v{t2}, s[{S_DSRD}:{S_DSRD+3}], s{st} offen offset:{64*cg}{fl}")
            if cg == 0:
                a0 = acc[i][2]; pk = FW[1][i]
                A(f"v_cvt_pk_bf16_f32 v{pk}, v{a0}, v{a0+1}\nv_cvt_pk_bf16_f32 v{pk+1}, v{a0+2}, v{a0+3}")
                A(f"v_cmp_gt_u32 vcc, 2, v{t1}")
                A("s_and_saveexec_b64 s[36:37], vcc")
                A(f"buffer_store_dwordx2 v[{pk}:{pk+1}], v{t3}, s[{S_DSRD}:{S_DSRD+3}], s{st} offen offset:128{fl}")
                A("s_mov_b64 exec, s[36:37]")
        if cg == 0:
            A(f"s_branch {end}")
            A.label(nxt)
    A.label(end)
    return V.next

def emit_loader_setup(A, r, L, base):
    V = RegAlloc(base, 168, "v")
    t0, t1, t2, t3, t4, t5 = r.t
    lane = r.lane; st, st2, st3, st4 = r.s_t
    P = type("P", (), {})()
    P.vo = [V.alloc(f"vo{i}") for i in range(4)]
    P.vt = V.alloc("vt")
    P.vw = [V.alloc(f"vw{i}") for i in range(2)]
    P.vw8 = [V.alloc(f"vw8{i}") for i in range(2)]
    P.vfl = V.alloc("vfl")
    P.buf = [V.alloc(f"b{i}", 4, 4) for i in range(5)]
    P.top = V.next
    lw = L.s_lw
    A(f"v_lshrrev_b32 v{t0}, 3, v{lane}")
    A(f"s_lshr_b32 s{st}, s{r.s_hp}, 3\ns_lshl_b32 s{st3}, s{st}, 7\ns_lshl_b32 s{st2}, s{lw}, 5\ns_add_u32 s{st}, s{st3}, s{st2}")
    A(f"v_add_u32 v{t0}, s{st}, v{t0}")
    A(f"v_and_b32 v{t1}, 7, v{lane}")
    A(f"v_lshrrev_b32 v{t2}, 4, v{lane}")
    for i in range(4):
        A(f"v_or_b32 v{t3}, {4*(i&1)}, v{t2}")
        A(f"v_xor_b32 v{t3}, v{t3}, v{t1}")
        A(f"v_add_u32 v{t4}, {8*i}, v{t0}")
        A(f"v_lshrrev_b32 v{t5}, 2, v{t3}")
        A(f"v_mul_u32_u24 v{t5}, {OXB}, v{t5}")
        A(f"v_lshl_add_u32 v{t5}, v{t4}, 6, v{t5}")
        A(f"v_and_b32 v{P.vo[i]}, 3, v{t3}")
        A(f"v_lshl_add_u32 v{P.vo[i]}, v{P.vo[i]}, 4, v{t5}")
    A(f"s_lshl_b32 s{st3}, s{st3}, 3\ns_add_u32 s{st3}, s{st3}, 16384")
    A(f"v_lshlrev_b32 v{P.vt}, 4, v{lane}")
    A(f"v_add_u32 v{P.vt}, s{st3}, v{P.vt}")
    A(f"v_lshrrev_b32 v{t0}, 4, v{lane}")
    A(f"v_and_b32 v{t2}, 15, v{lane}")
    A(f"s_and_b32 s{st}, s{r.s_hp}, 7\ns_mul_i32 s{st}, s{st}, 144")
    A(f"s_mul_i32 s{st2}, s{lw}, 18")
    A(f"v_add_u32 v{t4}, s{st2}, v{t0}")
    A(f"v_mul_u32_u24 v{t4}, 1152, v{t4}")
    A(f"v_add_u32 v{t4}, s{st}, v{t4}")
    A(f"v_lshrrev_b32 v{t5}, 1, v{t0}")
    A(f"v_lshl_add_u32 v{t5}, v{t5}, 4, v{t0}")
    A(f"s_mul_i32 s{st2}, s{lw}, 144\ns_add_u32 s{st2}, s{st2}, 16")
    A(f"v_add_u32 v{t5}, s{st2}, v{t5}")
    A(f"v_mul_u32_u24 v{t5}, 1152, v{t5}")
    A(f"v_add_u32 v{t5}, s{st}, v{t5}")
    for var in range(2):
        A(f"v_or_b32 v{t1}, {4*var}, v{t0}")
        A(f"v_lshlrev_b32 v{t1}, 1, v{t1}")
        A(f"v_xor_b32 v{t1}, v{t1}, v{t2}")
        A(f"v_min_u32 v{t1}, 8, v{t1}")
        A(f"v_lshl_add_u32 v{P.vw[var]}, v{t1}, 4, v{t4}")
        A(f"v_lshl_add_u32 v{P.vw8[var]}, v{t1}, 4, v{t5}")
    A(f"s_lshl_b32 s{st}, s{r.s_b}, 3\ns_add_u32 s{st}, s{st}, s{r.s_c}\ns_lshl_b32 s{st}, s{st}, 11\ns_add_u32 s{st}, s{st}, {FL_REL}")
    A(f"v_lshrrev_b32 v{t0}, 2, v{lane}")
    A(f"v_lshlrev_b32 v{t0}, 7, v{t0}")
    A(f"v_and_b32 v{t1}, 3, v{lane}")
    A(f"v_lshl_add_u32 v{t0}, v{t1}, 2, v{t0}")
    A(f"v_add_u32 v{P.vfl}, s{st}, v{t0}")
    A(f"s_lshl_b32 s51, s{r.s_b}, 3\ns_add_u32 s51, s51, s{r.s_c}\ns_mul_i32 s51, s51, {16*OXB}")
    A(f"s_mul_i32 s52, s{r.s_hp}, {OXB}\ns_add_u32 s52, s52, s51")
    A(f"s_lshl_b32 s53, s{r.s_b}, 3\ns_add_u32 s53, s53, s{r.s_c}\ns_lshl_b32 s53, s53, 4\ns_add_u32 s53, s53, s{r.s_hp}")
    A(f"s_lshl_b32 s53, s53, 7\ns_lshl_b32 s{st2}, s{lw}, 2\ns_add_u32 s53, s53, s{st2}\ns_add_u32 s53, s53, {FL_REL}")
    return P

def emit_loader(A, r, L, P, name, T=None, S=None):
    t0, t1, t2 = r.t[:3]
    lane = r.lane; st, st2, st3, st4 = r.s_t
    lw = L.s_lw
    A(f"v_lshlrev_b32 v{t2}, 4, v{lane}")
    A(f"s_lshl_b32 s{st}, s{lw}, 12\ns_add_u32 s{st}, s{st}, {STG}")
    A(f"v_add_u32 v{t0}, s{st}, v{t2}")
    for i in range(4):
        A(f"ds_read_b128 v[{P.buf[i]}:{P.buf[i]+3}], v{t0} offset:{1024*i}")
    A(f"s_lshl_b32 s{st}, s{lw}, 10\ns_add_u32 s{st}, s{st}, {TSTG}")
    A(f"v_add_u32 v{t1}, s{st}, v{t2}")
    A(f"ds_read_b128 v[{P.buf[4]}:{P.buf[4]+3}], v{t1}")
    A(f"s_lshl_b32 s{st2}, s{lw}, 12\ns_add_u32 s{st}, s52, s{st2}")
    for i in range(4):
        A(f"s_waitcnt lgkmcnt({4-i})")
        A(f"buffer_store_dwordx4 v[{P.buf[i]}:{P.buf[i]+3}], v{t2}, s[{S_XSRD}:{S_XSRD+3}], s{st} offen offset:{1024*i} sc1")
    labt = A.newlabel("Ltt")
    A(f"s_cmp_ge_u32 s{lw}, 2\ns_cbranch_scc1 {labt}")
    A(f"s_lshl_b32 s{st2}, s{lw}, 10\ns_add_u32 s{st}, s52, s{st2}\ns_add_u32 s{st}, s{st}, 16384")
    A("s_waitcnt lgkmcnt(0)")
    A(f"buffer_store_dwordx4 v[{P.buf[4]}:{P.buf[4]+3}], v{t2}, s[{S_XSRD}:{S_XSRD+3}], s{st} offen sc1")
    A.label(labt)
    def w_dma(j, stage):
        for i in range(4):
            A(f"s_lshl_b32 s{st}, s{lw}, 12\ns_add_u32 m0, s{st}, {P3 + stage*STAGE + XST + 1024*i}")
            if j < 8:
                A(f"s_mov_b32 s{st2}, {(72*j + 4*i)*1152}")
                A(f"buffer_load_dwordx4 v{P.vw[i>>1]}, s[{S_WSRD}:{S_WSRD+3}], s{st2} offen lds")
            else:
                A(f"s_mov_b32 s{st2}, {36*i*1152}")
                A(f"buffer_load_dwordx4 v{P.vw8[i>>1]}, s[{S_WSRD}:{S_WSRD+3}], s{st2} offen lds")
    def o_dma(j, stage):
        for i in range(4):
            A(f"s_lshl_b32 s{st}, s{lw}, 12\ns_add_u32 m0, s{st}, {P3 + stage*STAGE + 1024*i}")
            if j < 8:
                A(f"s_add_u32 s{st2}, s51, {2*j*OXB}")
                A(f"buffer_load_dwordx4 v{P.vo[i]}, s[{S_XSRD}:{S_XSRD+3}], s{st2} offen sc1 lds")
            else:
                A(f"s_lshl_b32 s{st2}, s{lw}, 2\ns_add_u32 s{st2}, s{st2}, {i}\ns_mul_i32 s{st2}, s{st2}, {OXB}\ns_add_u32 s{st2}, s{st2}, s51")
                A(f"buffer_load_dwordx4 v{P.vt}, s[{S_XSRD}:{S_XSRD+3}], s{st2} offen sc1 lds")
    A("s_waitcnt lgkmcnt(0)")
    A("s_waitcnt vmcnt(0)")
    if S: S.mark(7)
    A(f"v_mov_b32 v{t0}, s53\nv_mov_b32 v{t1}, s{L.s_nonce}")
    A(f"v_cmp_eq_u32 vcc, 0, v{lane}")
    A("s_and_saveexec_b64 s[36:37], vcc")
    A(f"buffer_store_dword v{t1}, v{t0}, s[{S_XSRD}:{S_XSRD+3}], 0 offen sc1")
    A("s_mov_b64 exec, s[36:37]")
    lab = A.newlabel("Lp3"); done = A.newlabel("Lp3d")
    A(f"buffer_load_dword v{t0}, v{P.vfl}, s[{S_XSRD}:{S_XSRD+3}], 0 offen sc1")
    for j in range(NST): w_dma(j, j)
    A(f"s_waitcnt vmcnt({4*NST})")
    A(f"v_cmp_eq_u32 vcc, s{L.s_nonce}, v{t0}")
    A("s_nop 3")
    A("s_cmp_eq_u64 vcc, -1")
    A(f"s_cbranch_scc1 {done}")
    A(f"s_mov_b32 s{st3}, 0")
    A.label(lab)
    A(f"buffer_load_dword v{t0}, v{P.vfl}, s[{S_XSRD}:{S_XSRD+3}], 0 offen sc1")
    A("s_waitcnt vmcnt(0)")
    A(f"v_cmp_eq_u32 vcc, s{L.s_nonce}, v{t0}")
    A("s_nop 3")
    A("s_cmp_eq_u64 vcc, -1")
    A(f"s_cbranch_scc1 {done}")
    A(f"s_add_u32 s{st3}, s{st3}, 1\ns_cmp_lt_u32 s{st3}, 0x4000")
    A(f"s_cbranch_scc1 {lab}")
    A.label(done)
    if T: T.mark(28)
    q = []
    for j in range(NST):
        o_dma(j, j); q += [j] * 4
    if OPT.get("pfo", 1):
        labp = A.newlabel("Lpfo"); labq = A.newlabel("Lpfo")
        A(f"s_cmp_ge_u32 s{lw}, 2\ns_cbranch_scc1 {labp}")
        A(f"s_cmp_eq_u32 s{lw}, 0\ns_cbranch_scc0 {labq}")
        A(f"s_and_b32 s{st}, s{r.s_hp}, 7\ns_add_u32 s{st}, s{st}, 8\ns_mul_i32 s{st}, s{st}, {OXB}\ns_add_u32 s{st}, s{st}, s51")
        A(f"s_lshr_b32 s{st2}, s{r.s_hp}, 3\ns_lshl_b32 s{st2}, s{st2}, 13\ns_add_u32 s{st}, s{st}, s{st2}")
        A(f"v_lshlrev_b32 v{t1}, 7, v{lane}")
        A(f"buffer_load_dword v{t2}, v{t1}, s[{S_XSRD}:{S_XSRD+3}], s{st} offen sc1")
        A(f"s_branch {labp}")
        A.label(labq)
        A(f"s_and_b32 s{st}, s{r.s_hp}, 7\ns_lshl_b32 s{st}, s{st}, 1\ns_mul_i32 s{st}, s{st}, {OXB}\ns_add_u32 s{st}, s{st}, s51")
        A(f"s_lshr_b32 s{st2}, s{r.s_hp}, 3\ns_lshl_b32 s{st2}, s{st2}, 10\ns_add_u32 s{st}, s{st}, s{st2}\ns_add_u32 s{st}, s{st}, 16384")
        A(f"v_and_b32 v{t1}, 7, v{lane}")
        A(f"v_lshlrev_b32 v{t1}, 7, v{t1}")
        A(f"v_bfe_u32 v{t2}, v{lane}, 3, 1")
        A(f"v_mul_u32_u24 v{t2}, {OXB}, v{t2}")
        A(f"v_add_u32 v{t1}, v{t1}, v{t2}")
        A(f"buffer_load_dword v{t2}, v{t1}, s[{S_XSRD}:{S_XSRD+3}], s{st} offen sc1")
        A.label(labp)
        PFO = True
    else:
        PFO = False
    def wait_for(j):
        last = max(i for i, c in enumerate(q) if c <= j)
        A(f"s_waitcnt vmcnt({len(q) - 1 - last})")
    wait_for(0)
    A("s_barrier")
    for it in range(NCH):
        if it + 1 < NCH: wait_for(it + 1)
        A("s_barrier")
        j = it + NST
        if j < NCH:
            w_dma(j, j % NST); o_dma(j, j % NST); q += [j] * 8
```

```python
import sys
sys.path.insert(0, "gen")
import attn, qkv, oproj, fused
from emit import kernel_desc
attn.OPT.update(dict(zrows=1, pphase=1))
for a in sys.argv[2:]:
    k, _, v = a.partition("=")
    if k.startswith("a."): attn.OPT[k[2:]] = int(v) if v.lstrip("-").isdigit() else v
    elif k.startswith("f."): fused.OPT[k[2:]] = (int(v) if v.isdigit() else " " + v.replace("+", " "))
    elif k.startswith("o."): oproj.OPT[k[2:]] = (int(v) if v.isdigit() else " " + v.replace("+", " "))
RT = "rt" in sys.argv
KN = "concat_heads__mha_block__mha_block__prompt_kernel" if fused.OPT.get("fuse3", 1) else "fused_kernel"
t1, n1 = fused.gen_fused(KN, rt=0 if RT else None)
F3 = fused.OPT.get("fuse3", 1)
t3, n3 = oproj.gen_oproj("oproj_kernel", rt=1 if RT else None) if not F3 else ("", 0)
ref = open("concat_heads__mha_block__mha_block__prompt.s.ref").read().splitlines()
hdr = [l for l in ref if l.startswith(";")][:10]
out = "\n".join(hdr) + "\n"
if F3:
    out += f"; @launch grid=(256,1,1) block=(768,1,1) lds={fused.LDS_FUSED}\n"
else:
    out += f"; @launch kernel=fused_kernel grid=(256,1,1) block=(768,1,1) lds={fused.LDS_FUSED}\n"
    out += f"; @launch kernel=oproj_kernel grid=(256,1,1) block=(512,1,1) lds={oproj.LDS_OP}\n"
out += '.amdgcn_target "amdgcn-amd-amdhsa--gfx950"\n.text\n' + t1 + t3
out += '.section .rodata,"a"\n' + kernel_desc(KN, n1) + (kernel_desc("oproj_kernel", n3) if not F3 else "")
dst = sys.argv[1]
open(dst, "w").write(out)
print("written", dst, len(out), "vgprs", n1, n3)
```

```python
from emit import *

ROWB = 4096
BLK_BYTES = 1728 * ROWB
O_OFF = 0x1000000
O_BLK = 2048 * 1152
KPAIR, VPAIR = 1152, 1056
KBLK, VBLK = 10496, 9728
HEADSZ = KBLK + VBLK
ONES = 2 * HEADSZ
ZEROS = ONES + 768
SLOT = ONES + 1536
NSLOT = 3
QOFF = NSLOT * SLOT
LDS_ATTN = QOFF + 2 * KBLK

OPT = {}

class R:
    pass

def alloc_attn_regs(V, r):
    r.lane = V.alloc("lane")
    r.t = [V.alloc(f"t{i}") for i in range(6)]
    r.vdma = [V.alloc(f"dma{i}") for i in range(5)]
    r.kE = V.alloc("kE"); r.kO = V.alloc("kO"); r.tE = V.alloc("tE"); r.tO = V.alloc("tO"); r.vA = V.alloc("vA")
    r.idx = V.alloc("idx")
    r.Qm = [V.alloc(f"Qm{u}", 4, 2) for u in range(2)]
    r.Qt = [V.alloc(f"Qt{u}", 2, 2) for u in range(2)]
    r.Km = [V.alloc(f"Km{p}", 4, 2) for p in range(2)]
    r.Kt = [V.alloc(f"Kt{p}", 2, 2) for p in range(2)]
    r.V1 = [V.alloc(f"V1{p}", 4, 2) for p in range(2)]
    r.V2 = [V.alloc(f"V2{p}", 4, 2) for p in range(2)]
    r.S = [V.alloc(f"S{i}", 16, 4) for i in range(4)]
    r.O = [V.alloc(f"O{u}", 16, 4) for u in range(2)]

def alloc_sregs(r):
    r.s_ws = 4; r.s_srd = 8; r.s_osrd = 12
    r.s_w = 16; r.s_b = 17; r.s_hp = 18; r.s_c = 19
    r.s_lds = [20, 21, 22, 23, 24]
    r.s_slotw = 25; r.s_chunk = 26; r.s_it = 27; r.s_delta = 28; r.s_rslot = 29
    r.s_t = [30, 31, 32, 33]
    r.s_seg = 34
    r.s_hbase = 35

def emit_ids(A, r):
    t0 = r.t[0]
    A(f"v_and_b32 v{r.lane}, 63, v0")
    A(f"v_lshrrev_b32 v{t0}, 6, v0")
    A("s_and_b32 s3, s2, 7")
    A(f"s_lshr_b32 s{r.s_t[0]}, s2, 3")
    A(f"v_readfirstlane_b32 s{r.s_w}, v{t0}")
    A(f"s_lshr_b32 s{r.s_b}, s3, 2")
    if OPT.get("map", 162) == 162:
        A(f"s_lshr_b32 s{r.s_hp}, s{r.s_t[0]}, 1")
        A(f"s_and_b32 s3, s3, 3\ns_lshl_b32 s3, s3, 1")
        A(f"s_and_b32 s{r.s_c}, s{r.s_t[0]}, 1\ns_add_u32 s{r.s_c}, s{r.s_c}, s3")
    elif OPT.get("map") == 200:
        A(f"s_lshr_b32 s{r.s_b}, s3, 1\ns_and_b32 s{r.s_b}, s{r.s_b}, 1")
        A(f"s_lshr_b32 s{r.s_hp}, s{r.s_t[0]}, 2")
        A(f"s_cmp_lt_u32 s{r.s_hp}, 4\ns_cselect_b32 s{r.s_c}, 1, 0")
        A(f"s_lshr_b32 s{r.s_t[1]}, s3, 2")
        A(f"s_xor_b32 s{r.s_c}, s{r.s_c}, s{r.s_t[1]}")
        A(f"s_lshl_b32 s{r.s_hp}, s{r.s_hp}, 1\ns_add_u32 s{r.s_hp}, s{r.s_hp}, s{r.s_c}")
        A(f"s_and_b32 s3, s3, 1\ns_lshl_b32 s3, s3, 2")
        A(f"s_and_b32 s{r.s_c}, s{r.s_t[0]}, 3\ns_add_u32 s{r.s_c}, s{r.s_c}, s3")
    elif OPT.get("map") == 84:
        A(f"s_lshr_b32 s{r.s_hp}, s3, 1\ns_and_b32 s{r.s_hp}, s{r.s_hp}, 1\ns_lshl_b32 s{r.s_hp}, s{r.s_hp}, 3")
        A(f"s_lshr_b32 s{r.s_c}, s{r.s_t[0]}, 2\ns_add_u32 s{r.s_hp}, s{r.s_hp}, s{r.s_c}")
        A(f"s_and_b32 s3, s3, 1\ns_lshl_b32 s3, s3, 2")
        A(f"s_and_b32 s{r.s_c}, s{r.s_t[0]}, 3\ns_add_u32 s{r.s_c}, s{r.s_c}, s3")
    else:
        A(f"s_and_b32 s3, s3, 3")
        A(f"s_lshl_b32 s3, s3, 2")
        A(f"s_lshr_b32 s{r.s_hp}, s{r.s_t[0]}, 3")
        A(f"s_add_u32 s{r.s_hp}, s{r.s_hp}, s3")
        A(f"s_and_b32 s{r.s_c}, s{r.s_t[0]}, 7")

def emit_srds(A, r):
    t = r.s_t[0]
    A(f"s_mul_i32 s{t}, s{r.s_b}, {BLK_BYTES}")
    A(f"s_add_u32 s{r.s_srd}, s{r.s_ws}, s{t}")
    A(f"s_addc_u32 s{r.s_srd+1}, s{r.s_ws+1}, 0")
    A(f"s_mov_b32 s{r.s_srd+2}, {BLK_BYTES}")
    A(f"s_mov_b32 s{r.s_srd+3}, 0x20000")
    if getattr(r, "no_osrd", False): return
    A(f"s_mul_i32 s{t}, s{r.s_b}, {O_BLK}")
    A(f"s_add_u32 s{t}, s{t}, {O_OFF}")
    A(f"s_add_u32 s{r.s_osrd}, s{r.s_ws}, s{t}")
    A(f"s_addc_u32 s{r.s_osrd+1}, s{r.s_ws+1}, 0")
    A(f"s_mov_b32 s{r.s_osrd+2}, {O_BLK}")
    A(f"s_mov_b32 s{r.s_osrd+3}, 0x20000")

def emit_dma_setup(A, r, with_q):
    t0, t1, t2, t3 = r.t[:4]
    st, st2, st3, st4 = r.s_t
    A(f"v_lshrrev_b32 v{t0}, 5, v{r.lane}")
    A(f"v_and_b32 v{t1}, 31, v{r.lane}")
    A(f"v_lshlrev_b32 v{t2}, 2, v{t0}")
    A(f"v_xor_b32 v{t2}, v{t2}, v{t1}")
    A(f"v_lshlrev_b32 v{t2}, 4, v{t2}")
    A(f"v_lshl_add_u32 v{t2}, v{t0}, 12, v{t2}")
    A(f"v_xor_b32 v{t3}, v{t0}, v{t1}")
    A(f"v_lshlrev_b32 v{t3}, 4, v{t3}")
    A(f"v_lshl_add_u32 v{t3}, v{t0}, 12, v{t3}")
    if with_q:
        A(f"s_lshl_b32 s{r.s_chunk}, s{r.s_c}, 9")
        for i in range(3):
            lab = A.newlabel("Lq")
            A(f"s_add_u32 s{st}, s{r.s_w}, {8*i}")
            if i == 2:
                A(f"s_cmp_ge_u32 s{st}, 18\ns_cbranch_scc1 {lab}")
            A(f"s_cmp_ge_u32 s{st}, 9")
            A(f"s_cselect_b32 s{st2}, {KBLK - 9*KPAIR}, 0")
            A(f"s_mul_i32 s{st3}, s{st}, {KPAIR}")
            A(f"s_add_u32 s{st2}, s{st2}, s{st3}")
            A(f"s_add_u32 m0, s{st2}, {QOFF}")
            A(f"s_mul_i32 s{st3}, s{r.s_hp}, 36")
            A(f"s_lshl_b32 s{st}, s{st}, 1")
            A(f"s_add_u32 s{st3}, s{st3}, s{st}")
            A(f"s_lshl_b32 s{st3}, s{st3}, 12")
            A(f"s_add_u32 s{st3}, s{st3}, s{r.s_chunk}")
            A(f"buffer_load_dwordx4 v{t2}, s[{r.s_srd}:{r.s_srd+3}], s{st3} offen lds")
            A.label(lab)
    for i in range(5):
        if i < 4:
            A(f"s_add_u32 s{st}, s{r.s_w}, {8*i}")
        else:
            A(f"s_and_b32 s{st}, s{r.s_w}, 3\ns_add_u32 s{st}, s{st}, 32")
        A(f"s_cmp_ge_u32 s{st}, 18")
        A(f"s_cselect_b32 s{st2}, 18, 0")
        A(f"s_mov_b32 s{st3}, {KPAIR}\ns_cmov_b32 s{st3}, {VPAIR}")
        A(f"s_cselect_b32 s{st4}, {KBLK}, 0")
        A(f"s_mov_b32 s{r.s_lds[i]}, 576\ns_cmov_b32 s{r.s_lds[i]}, 1152")
        A(f"s_cselect_b64 vcc, -1, 0")
        A(f"s_sub_u32 s{st}, s{st}, s{st2}")
        A(f"s_mul_i32 s{st2}, s{r.s_hp}, 36")
        A(f"s_add_u32 s{r.s_lds[i]}, s{r.s_lds[i]}, s{st2}")
        A(f"s_lshl_b32 s{st2}, s{st}, 1")
        A(f"s_add_u32 s{r.s_lds[i]}, s{r.s_lds[i]}, s{st2}")
        A(f"s_lshl_b32 s{r.s_lds[i]}, s{r.s_lds[i]}, 12")
        A(f"v_cndmask_b32 v{r.vdma[i]}, v{t2}, v{t3}, vcc")
        A(f"v_add_u32 v{r.vdma[i]}, s{r.s_lds[i]}, v{r.vdma[i]}")
        A(f"s_cmp_ge_u32 s{st}, 9")
        A(f"s_cselect_b32 s{st2}, 9, 0")
        A(f"s_cselect_b32 s{r.s_lds[i]}, {HEADSZ}, 0")
        A(f"s_sub_u32 s{st}, s{st}, s{st2}")
        A(f"s_mul_i32 s{st}, s{st}, s{st3}")
        A(f"s_add_u32 s{r.s_lds[i]}, s{r.s_lds[i]}, s{st}")
        A(f"s_add_u32 s{r.s_lds[i]}, s{r.s_lds[i]}, s{st4}")

def emit_dma_segment(A, r, flags=""):
    A(f"s_lshl_b32 s{r.s_chunk}, s{r.s_seg}, 9")
    for i in range(5):
        A(f"s_add_u32 m0, s{r.s_slotw}, s{r.s_lds[i]}")
        A("s_nop 0")
        A(f"buffer_load_dwordx4 v{r.vdma[i]}, s[{r.s_srd}:{r.s_srd+3}], s{r.s_chunk} offen{flags} lds")
    A(f"s_add_u32 s{r.s_seg}, s{r.s_seg}, 1")
    A(f"s_and_b32 s{r.s_seg}, s{r.s_seg}, 7")
    A(f"s_add_u32 s{r.s_slotw}, s{r.s_slotw}, {SLOT}")
    A(f"s_cmp_eq_u32 s{r.s_slotw}, {NSLOT*SLOT}")
    A(f"s_cselect_b32 s{r.s_slotw}, 0, s{r.s_slotw}")

def emit_ones(A, r):
    t0, t1, t2 = r.t[:3]
    A(f"v_mov_b32 v{t0}, 0x3f803f80")
    A(f"v_lshlrev_b32 v{t1}, 2, v0")
    A(f"v_cmp_gt_u32 vcc, 192, v0")
    A("s_and_saveexec_b64 s[36:37], vcc")
    lab = A.newlabel("Lones")
    A(f"s_cbranch_execz {lab}")
    A(f"v_mov_b32 v{r.t[3]}, 0")
    for s in range(NSLOT):
        A(f"v_add_u32 v{t2}, {s*SLOT+ONES}, v{t1}")
        A(f"ds_write_b32 v{t2}, v{t0}")
        A(f"ds_write_b32 v{t2}, v{r.t[3]} offset:768")
    A.label(lab)
    A("s_mov_b64 exec, s[36:37]")

def emit_read_addrs(A, r):
    t0, t1, t2, t3, t4, t5 = r.t
    st = r.s_hbase
    lane = r.lane
    A(f"s_lshr_b32 s{st}, s{r.s_w}, 2")
    A(f"s_mul_i32 s{st}, s{st}, {HEADSZ}")
    A(f"v_lshrrev_b32 v{t0}, 2, v{lane}")
    A(f"v_and_b32 v{t0}, 3, v{t0}")
    A(f"v_lshrrev_b32 v{t1}, 5, v{lane}")
    A(f"v_lshl_add_u32 v{t1}, v{t1}, 3, v{t0}")
    A(f"v_lshrrev_b32 v{t2}, 1, v{t1}")
    A(f"v_mul_u32_u24 v{t2}, {KPAIR}, v{t2}")
    A(f"v_and_b32 v{t1}, 1, v{t1}")
    A(f"v_lshl_add_u32 v{t2}, v{t1}, 9, v{t2}")
    A(f"v_lshrrev_b32 v{t3}, 4, v{lane}")
    A(f"v_and_b32 v{t3}, 1, v{t3}")
    A(f"v_lshlrev_b32 v{t3}, 5, v{t3}")
    A(f"v_and_b32 v{t4}, 3, v{lane}")
    A(f"v_lshl_add_u32 v{t3}, v{t4}, 3, v{t3}")
    A(f"v_add_u32 v{t2}, v{t2}, v{t3}")
    A(f"v_lshlrev_b32 v{t1}, 6, v{t1}")
    A(f"v_add_u32 v{t2}, s{st}, v{t2}")
    A(f"v_add_u32 v{r.kE}, v{t2}, v{t1}")
    A(f"v_sub_u32 v{r.kO}, v{t2}, v{t1}")
    A(f"v_lshlrev_b32 v{t2}, 3, v{t1}")
    A(f"v_add_u32 v{t2}, {8*KPAIR}, v{t2}")
    A(f"v_add_u32 v{t2}, s{st}, v{t2}")
    A(f"v_add_u32 v{t2}, v{t2}, v{t3}")
    A(f"v_add_u32 v{t4}, v{t2}, v{t1}")
    A(f"v_sub_u32 v{t5}, v{t2}, v{t1}")
    A(f"v_add_u32 v{t3}, {ONES+128}, v{t3}")
    A(f"v_cmp_le_u32 vcc, 2, v{t0}")
    A("s_nop 1")
    A(f"v_cndmask_b32 v{r.tE}, v{t4}, v{t3}, vcc")
    A(f"v_cndmask_b32 v{r.tO}, v{t5}, v{t3}, vcc")
    if OPT.get("zrows"):
        A(f"v_lshlrev_b32 v{t2}, 6, v{t0}")
        A(f"v_add_u32 v{t3}, v{t3}, v{t2}")
        A(f"v_add_u32 v{t3}, {768-128-64*0}, v{t3}")
        A(f"v_cmp_eq_u32 vcc, 3, v{t0}")
        A(f"v_cmp_le_u32 s[38:39], 32, v{lane}")
        A("s_or_b64 vcc, vcc, s[38:39]")
        A("s_nop 1")
        A(f"v_cndmask_b32 v{r.tE}, v{r.tE}, v{t3}, vcc")
        A(f"v_cndmask_b32 v{r.tO}, v{r.tO}, v{t3}, vcc")
        A(f"v_lshrrev_b32 v{t2}, 2, v{lane}")
        A(f"v_lshrrev_b32 v{t3}, 5, v{lane}")
        A(f"v_lshlrev_b32 v{t3}, 2, v{t3}")
        A(f"v_and_b32 v{t2}, 3, v{t2}")
        A(f"v_or_b32 v{t2}, v{t2}, v{t3}")
        A(f"v_subrev_u32 v{t3}, 128, v{r.tO}")
        A(f"v_cmp_eq_u32 vcc, 3, v{t2}")
        A("s_nop 1")
        A(f"v_cndmask_b32 v{r.tO}, v{r.tO}, v{t3}, vcc")
    A(f"v_and_b32 v{t0}, 31, v{lane}")
    A(f"v_lshrrev_b32 v{t1}, 2, v{t0}")
    A(f"v_and_b32 v{t1}, 1, v{t1}")
    A(f"v_lshlrev_b32 v{t1}, 3, v{t1}")
    A(f"v_lshrrev_b32 v{t2}, 3, v{t0}")
    A(f"v_and_b32 v{t2}, 1, v{t2}")
    A(f"v_lshl_add_u32 v{t1}, v{t2}, 2, v{t1}")
    A(f"v_and_b32 v{t2}, 3, v{t0}")
    A(f"v_add_u32 v{t1}, v{t1}, v{t2}")
    A(f"v_cmp_gt_u32 vcc, 16, v{t0}")
    A("s_nop 1")
    A(f"v_cndmask_b32 v{t1}, v{t0}, v{t1}, vcc")
    A(f"v_lshrrev_b32 v{t2}, 1, v{t1}")
    A(f"v_mul_u32_u24 v{t2}, {VPAIR}, v{t2}")
    A(f"v_and_b32 v{t3}, 1, v{t1}")
    A(f"v_lshl_add_u32 v{t2}, v{t3}, 9, v{t2}")
    A(f"v_lshrrev_b32 v{t1}, 5, v{lane}")
    A(f"v_xor_b32 v{t3}, v{t3}, v{t1}")
    A(f"v_lshl_add_u32 v{t2}, v{t3}, 4, v{t2}")
    A(f"v_add_u32 v{t2}, {KBLK}, v{t2}")
    A(f"v_add_u32 v{r.vA}, s{st}, v{t2}")
    A(f"v_lshlrev_b32 v{t1}, 4, v{t1}")
    A(f"v_add_u32 v{t2}, {ONES+32}, v{t1}")
    A(f"v_cmp_le_u32 vcc, 18, v{t0}")
    A("s_nop 1")
    A(f"v_cndmask_b32 v{r.vA}, v{r.vA}, v{t2}, vcc")
    A(f"v_add_u32 v{t2}, 32, v{t2}")
    A(f"v_subrev_u32 v{t3}, 20, v{t0}")
    A(f"v_cmp_gt_u32 vcc, 8, v{t3}")
    A("s_nop 1")
    A(f"v_cndmask_b32 v{r.vA}, v{r.vA}, v{t2}, vcc")
    if OPT.get("zrows"):
        A(f"v_cmp_lt_u32 vcc, 18, v{t0}")
        A(f"v_cmp_ne_u32 s[38:39], 22, v{t0}")
        A("s_and_b64 vcc, vcc, s[38:39]")
        A(f"v_add_u32 v{t2}, {768+32}, v{r.vA}")
        A(f"v_add_u32 v{t1}, {768+160}, v{r.vA}")
        A(f"v_subrev_u32 v{t3}, 20, v{t0}")
        A(f"v_cmp_gt_u32 s[38:39], 8, v{t3}")
        A("s_nop 1")
        A(f"v_cndmask_b32 v{t2}, v{t1}, v{t2}, s[38:39]")
        A(f"v_cndmask_b32 v{r.vA}, v{r.vA}, v{t2}, vcc")
    if not hasattr(r, "qE"): A(f"v_mov_b32 v{r.idx}, 0xdddddddd")

def emit_q_frags(A, r):
    t0, t1, t2, t3, t4, t5 = r.t
    st, st2, st3, st4 = r.s_t
    A(f"s_lshr_b32 s{st2}, s{r.s_w}, 2")
    A(f"s_mul_i32 s{st2}, s{st2}, {KBLK}")
    A(f"s_add_u32 s{st2}, s{st2}, {QOFF}")
    A(f"s_sub_u32 s{st2}, s{st2}, s{r.s_hbase}")
    A(f"s_and_b32 s{st3}, s{r.s_w}, 3")
    A(f"s_lshl_b32 s{st3}, s{st3}, 7")
    A(f"s_add_u32 s{st2}, s{st2}, s{st3}")
    A(f"v_add_u32 v{t0}, s{st2}, v{r.kE}")
    A(f"v_add_u32 v{t1}, s{st2}, v{r.kO}")
    A(f"v_add_u32 v{t2}, s{st2}, v{getattr(r, 'qE', t4)}")
    A(f"v_add_u32 v{t3}, s{st2}, v{getattr(r, 'qO', t5)}")
    A(f"ds_read_b64_tr_b16 v[{r.Qm[0]}:{r.Qm[0]+1}], v{t0}")
    A(f"ds_read_b64_tr_b16 v[{r.Qm[0]+2}:{r.Qm[0]+3}], v{t0} offset:{2*KPAIR}")
    A(f"ds_read_b64_tr_b16 v[{r.Qm[1]}:{r.Qm[1]+1}], v{t1} offset:64")
    A(f"ds_read_b64_tr_b16 v[{r.Qm[1]+2}:{r.Qm[1]+3}], v{t1} offset:{64+2*KPAIR}")
    A(f"ds_read_b64_tr_b16 v[{r.Qt[0]}:{r.Qt[0]+1}], v{t2}")
    A(f"ds_read_b64_tr_b16 v[{r.Qt[1]}:{r.Qt[1]+1}], v{t3} offset:64")

def k_reads(A, r, t, p):
    if OPT.get("nolds") and OPT.get("inloop"): return
    km = r.kE if t % 2 == 0 else r.kO
    kt = r.tE if t % 2 == 0 else r.tO
    A(f"ds_read_b64_tr_b16 v[{r.Km[p]}:{r.Km[p]+1}], v{km} offset:{64*t}")
    A(f"ds_read_b64_tr_b16 v[{r.Km[p]+2}:{r.Km[p]+3}], v{km} offset:{64*t+2*KPAIR}")
    A(f"ds_read_b64_tr_b16 v[{r.Kt[p]}:{r.Kt[p]+1}], v{kt} offset:{64*t}")

def v_reads(A, r, t, p):
    if OPT.get("nolds") and OPT.get("inloop"): return
    A(f"ds_read_b128 v[{r.V1[p]}:{r.V1[p]+3}], v{r.vA} offset:{64*t}")
    A(f"ds_read_b128 v[{r.V2[p]}:{r.V2[p]+3}], v{r.vA} offset:{64*t+32}")

def mf_main(A, r, dst, p, u):
    A(f"v_mfma_f32_32x32x16_bf16 v[{dst}:{dst+15}], v[{r.Km[p]}:{r.Km[p]+3}], v[{r.Qm[u]}:{r.Qm[u]+3}], 0")
def mf_tail(A, r, dst, p, u):
    A(f"v_mfma_f32_32x32x8_bf16 v[{dst}:{dst+15}], v[{r.Kt[p]}:{r.Kt[p]+1}], v[{r.Qt[u]}:{r.Qt[u]+1}], v[{dst}:{dst+15}]")
def mf_pv(A, r, u, va, src):
    A(f"v_smfmac_f32_32x32x32_bf16 v[{r.O[u]}:{r.O[u]+15}], v[{va}:{va+3}], v[{src}:{src+7}], v{r.idx}")
def exps(A, base, n):
    for i in range(n):
        A(f"v_exp_f32 v{base+i}, v{base+i}")

def emit_first_max(A, r):
    t0, t1, t2, t3 = r.t[:4]
    for u in range(2):
        A(f"v_mov_b32 v{r.Qt[u]+1}, 0")
    A("s_mov_b64 s[36:37], exec")
    A("s_mov_b32 exec_lo, 0")
    for u in range(2):
        A(f"v_mov_b32 v{r.Qt[u]}, 0")
    A("s_mov_b64 exec, s[36:37]")
    A("s_nop 4")
    for u in range(2):
        mf_main(A, r, r.S[u], 0, u)
        mf_tail(A, r, r.S[u], 0, u)
    A("s_nop 15")
    for u in range(2):
        s = r.S[u]
        m = r.t[u]
        A(f"v_max3_f32 v{m}, v{s}, v{s+1}, v{s+2}")
        for k in range(3, 15, 2):
            A(f"v_max3_f32 v{m}, v{m}, v{s+k}, v{s+k+1}")
        A(f"v_max_f32 v{m}, v{m}, v{s+15}")
    A(f"v_mov_b32 v{t2}, v{t0}")
    A(f"v_mov_b32 v{t3}, v{t1}")
    A("s_nop 1")
    A(f"v_permlane32_swap_b32 v{t0}, v{t2}")
    A(f"v_permlane32_swap_b32 v{t1}, v{t3}")
    A("s_nop 1")
    A(f"v_max_f32 v{t0}, v{t0}, v{t2}")
    A(f"v_max_f32 v{t1}, v{t1}, v{t3}")
    A("s_mov_b64 s[36:37], exec")
    A("s_mov_b32 exec_hi, 0")
    A(f"v_cvt_pk_bf16_f32 v{r.Qt[0]+1}, -v{t0}, 0")
    A(f"v_cvt_pk_bf16_f32 v{r.Qt[1]+1}, -v{t1}, 0")
    A("s_mov_b64 exec, s[36:37]")

def emit_attn_prologue(A, r):
    k_reads(A, r, 0, 0)
    v_reads(A, r, 0, 0)
    for u in range(2):
        for i in range(16):
            A(f"v_mov_b32 v{r.O[u]+i}, 0")
    for i in range(8, 16):
        A(f"v_mov_b32 v{r.S[3]+i}, 0")
    for i in range(4):
        A(f"v_mov_b32 v{r.V2[1]+i}, 0")
    A("s_waitcnt lgkmcnt(0)")
    emit_first_max(A, r)
    A("s_nop 4")
    mf_main(A, r, r.S[0], 0, 0)
    mf_tail(A, r, r.S[0], 0, 0)
    A("s_nop 15")

def emit_step(A, r, n, hooks):
    t = n // 2; u = n % 2
    cur = r.S[n % 4]; nxt = r.S[(n + 1) % 4]; prv = r.S[(n - 1) % 4]
    pk = ((n + 1) // 2) % 2
    sched = OPT.get("sched", 0)
    for h in hooks.get((n, "pre"), []): h()
    def reads():
        if u == 0:
            if t == 7:
                for h in hooks.get((n, "kaddr"), []): h()
            k_reads(A, r, (t + 1) % 8, (t + 1) % 2)
        else:
            if t == 7:
                for h in hooks.get((n, "vaddr"), []): h()
            v_reads(A, r, (t + 1) % 8, (t + 1) % 2)
    nolds = OPT.get("nolds")
    def w0():
        if u == 1 and not nolds: A("s_waitcnt lgkmcnt(0)")
    def w4():
        if u == 0 and not nolds: A("s_waitcnt lgkmcnt(4)")
    def mid():
        for h in hooks.get((n, "mid"), []): h()
    M1 = lambda: mf_main(A, r, nxt, pk, (n + 1) % 2)
    M2 = lambda: mf_tail(A, r, nxt, pk, (n + 1) % 2)
    P2 = lambda: mf_pv(A, r, (n - 1) % 2, r.V2[((n - 1) // 2) % 2], prv + 8)
    P1 = lambda: mf_pv(A, r, u, r.V1[t % 2], cur)
    E = lambda a, k: exps(A, cur + a, k)
    if OPT.get("nomfma"):
        M1 = M2 = P1 = P2 = lambda: None
    if OPT.get("nomain"): M1 = lambda: None
    if OPT.get("notail"): M2 = lambda: None
    if OPT.get("nopv"): P1 = P2 = lambda: None
    if OPT.get("noexp"):
        E = lambda a, k: None
    if sched == 0:
        w0(); M1(); reads(); E(0, 4); M2(); E(4, 4); P2(); mid(); E(8, 4); w4(); P1(); E(12, 4)
    elif sched == 1:
        w0(); M1(); reads(); E(0, 3); M2(); E(3, 5); P2(); mid(); E(8, 4); w4(); P1(); E(12, 4)
    elif sched == 2:
        w0(); M1(); E(0, 4); M2(); reads(); E(4, 4); P2(); mid(); E(8, 4); P1() if u == 1 else (A("s_waitcnt lgkmcnt(3)") if not nolds else None, P1()); E(12, 4)
    elif sched == 3:
        w0(); M1(); P2(); reads(); E(0, 8); mid(); M2(); E(8, 2); w4(); P1(); E(10, 6)
    elif sched == 5:
        w0(); M1(); reads(); E(0, 4); P2(); mid(); E(4, 4); M2(); E(8, 4); w4(); P1(); E(12, 4)
    elif sched == 6:
        w0(); M1(); reads(); E(0, 4); mf_tail(A, r, r.S[(n + 2) % 4], pk, (n + 1) % 2); E(4, 4); P2(); mid(); E(8, 4); w4(); P1(); E(12, 4)
    elif sched == 4:
        w0(); M1(); reads(); E(0, 5); M2(); E(5, 3); P2(); mid(); E(8, 5); w4(); P1(); E(13, 3)

def emit_attn_loop(A, r, name, nseg=8, dma_flags=""):
    A(f"s_mov_b32 s{r.s_it}, 0")
    A(f"s_mov_b32 s{r.s_rslot}, 0")
    if OPT.get("prio"):
        A(f"s_cmp_ge_u32 s{r.s_w}, 4\ns_cbranch_scc0 {name}_np\ns_setprio 1\n{name}_np:")
    A(".p2align 6")
    A.label(f"{name}_loop")
    OPT["inloop"] = True
    hooks = {}
    def dma_part():
        lab = A.newlabel("Lnodma")
        A(f"s_cmp_ge_u32 s{r.s_it}, {nseg-2}")
        A(f"s_cbranch_scc1 {lab}")
        if not OPT.get("nodma"): emit_dma_segment(A, r, dma_flags)
        A.label(lab)
    def bar():
        if not OPT.get("extdma"): A("s_waitcnt vmcnt(0)")
        if not OPT.get("nobar"): A("s_barrier")
        if OPT.get("extdma"):
            pass
        elif OPT.get("stag"):
            lab = A.newlabel("Lstag")
            A(f"s_cmp_ge_u32 s{r.s_w}, 4")
            A(f"s_cbranch_scc1 {lab}")
            dma_part()
            A.label(lab)
        else:
            dma_part()
        A(f"s_add_u32 s{r.s_rslot}, s{r.s_rslot}, 1")
        A(f"s_cmp_eq_u32 s{r.s_rslot}, {NSLOT}")
        A(f"s_mov_b32 s{r.s_delta}, {SLOT}\ns_cmov_b32 s{r.s_delta}, {-(NSLOT-1)*SLOT & 0xffffffff}")
        A(f"s_cselect_b32 s{r.s_rslot}, 0, s{r.s_rslot}")
    def dma_late():
        lab = A.newlabel("Lstag2")
        A(f"s_cmp_lt_u32 s{r.s_w}, 4")
        A(f"s_cbranch_scc1 {lab}")
        dma_part()
        A.label(lab)
    def kaddr():
        for x in (r.kE, r.kO, r.tE, r.tO):
            A(f"v_add_u32 v{x}, s{r.s_delta}, v{x}")
    def vaddr():
        A(f"v_add_u32 v{r.vA}, s{r.s_delta}, v{r.vA}")
    bs = OPT.get("barstep", 12)
    if bs == 14: hooks[(14, "pre")] = [bar]
    else: hooks[(bs, "mid")] = [bar]
    if OPT.get("stag") and not OPT.get("extdma"):
        hooks[(12 + OPT["stag"], "mid")] = [dma_late]
    hooks[(14, "kaddr")] = [kaddr]
    hooks[(15, "vaddr")] = [vaddr]
    pr = OPT.get("pphase", 0)
    if pr:
        if pr == 1: sched_p = {13: 3, 1: 2, 5: 1, 9: 0}
        elif pr == 2: sched_p = {13: 3, 2: 2, 7: 1, 12: 0}
        elif pr == 3: sched_p = {13: 3, 3: 2, 8: 1, 11: 0}
        elif pr == 4: sched_p = {14: 3, 2: 2, 6: 1, 10: 0}
        elif pr == 5: sched_p = {14: 3, 3: 2, 8: 1, 12: 0}
        elif pr == 6: sched_p = {14: 1, 6: 0}
        for k, v in sched_p.items():
            hooks.setdefault((k, "pre"), []).append(lambda v=v: A(f"s_setprio {v}"))
    for n in range(16):
        emit_step(A, r, n, hooks)
    if OPT.get("tracer") is not None: OPT["tracer"].mark_dyn(8, r.s_it)
    if OPT.get("itstamp"):
        A("s_memtime s[54:55]\ns_memrealtime s[56:57]\ns_waitcnt lgkmcnt(0)")
        A(f"s_lshl_b32 s58, s{r.s_it}, 1")
        A(f"s_mov_b32 m0, s58")
        A(f"v_writelane_b32 v{r.t[5]}, s54, m0")
        A("s_add_u32 m0, m0, 1")
        A(f"v_writelane_b32 v{r.t[5]}, s56, m0")
    A(f"s_add_u32 s{r.s_it}, s{r.s_it}, 1")
    A(f"s_cmp_lt_u32 s{r.s_it}, {nseg}")
    A(f"s_cbranch_scc1 {name}_loop")
    OPT["inloop"] = False
    A("s_nop 1")
    mf_pv(A, r, 1, r.V2[1], r.S[3] + 8)
    A("s_nop 15")

def emit_attn_store(A, r, flags=""):
    t0, t1, t2, t3, t4, t5 = r.t
    st, st2 = r.s_t[:2]
    A(f"s_lshl_b32 s{st}, s{r.s_c}, 8")
    A(f"s_and_b32 s{st2}, s{r.s_w}, 3")
    A(f"s_lshl_b32 s{st2}, s{st2}, 6")
    A(f"s_add_u32 s{st}, s{st}, s{st2}")
    A(f"s_mul_i32 s{st}, s{st}, 1152")
    A(f"s_lshr_b32 s{st2}, s{r.s_w}, 2")
    A(f"s_lshl_b32 s{r.s_t[2]}, s{r.s_hp}, 1")
    A(f"s_add_u32 s{st2}, s{st2}, s{r.s_t[2]}")
    A(f"s_mul_i32 s{st2}, s{st2}, 36")
    A(f"s_add_u32 s{st}, s{st}, s{st2}")
    A(f"v_and_b32 v{t0}, 31, v{r.lane}")
    A(f"v_mul_u32_u24 v{t0}, 1152, v{t0}")
    A(f"v_lshrrev_b32 v{t1}, 5, v{r.lane}")
    A(f"v_lshl_add_u32 v{t0}, v{t1}, 4, v{t0}")
    for u in range(2):
        o = r.O[u]
        A(f"v_rcp_f32 v{t1}, v{o+10}")
        A("s_nop 0")
        for i in range(10):
            A(f"v_mul_f32 v{o+i}, v{o+i}, v{t1}")
        pk = r.S[u]
        for i in range(5):
            A(f"v_cvt_pk_bf16_f32 v{pk+i}, v{o+2*i}, v{o+2*i+1}")
        if u == 1:
            A(f"s_add_u32 s{st}, s{st}, {32*1152}")
        A(f"buffer_store_dwordx4 v[{pk}:{pk+3}], v{t0}, s[{r.s_osrd}:{r.s_osrd+3}], s{st} offen{flags}")
        A("s_mov_b64 s[36:37], exec")
        A("s_mov_b32 exec_hi, 0")
        A(f"buffer_store_dword v{pk+4}, v{t0}, s[{r.s_osrd}:{r.s_osrd+3}], s{st} offen offset:32{flags}")
        A("s_mov_b64 exec, s[36:37]")

def gen_attn_standalone(name="attn_kernel", stamp=False, rt=None):
    A = Asm(); r = R(); V = RegAlloc(1, 256, "v")
    alloc_attn_regs(V, r); alloc_sregs(r)
    A(f".globl {name}\n.p2align 8\n.type {name},@function")
    A.label(name)
    A(f"s_cmp_ge_u32 s2, 256\ns_cbranch_scc1 {name}_end")
    A(f"s_load_dwordx2 s[{r.s_ws}:{r.s_ws+1}], s[0:1], 64")
    if stamp:
        A("s_load_dwordx2 s[44:45], s[0:1], 48")
        A("s_memtime s[40:41]")
        A("s_memrealtime s[50:51]")
    S = Stamper(A, rt, enabled=rt is not None); S.start()
    emit_ids(A, r)
    A("s_waitcnt lgkmcnt(0)")
    emit_srds(A, r)
    emit_dma_setup(A, r, True)
    A(f"s_mov_b32 s{r.s_slotw}, 0")
    A(f"s_mov_b32 s{r.s_seg}, s{r.s_c}")
    emit_dma_segment(A, r)
    emit_dma_segment(A, r)
    emit_ones(A, r)
    emit_read_addrs(A, r)
    A("s_waitcnt vmcnt(5) lgkmcnt(0)")
    A("s_barrier")
    emit_q_frags(A, r)
    S.mark(2)
    emit_attn_prologue(A, r)
    S.mark(3)
    if stamp:
        A("s_memtime s[42:43]")
    emit_attn_loop(A, r, name)
    S.mark(4)
    if stamp:
        A("s_memtime s[46:47]")
    if OPT.get("tracer") is not None: OPT["tracer"].mark_dyn(8, r.s_it)
    if OPT.get("itstamp"):
        A(f"s_lshl_b32 s38, s2, 3\ns_add_u32 s38, s38, s{r.s_w}\ns_lshl_b32 s38, s38, 6\ns_add_u32 s38, s38, 65536")
        A(f"v_lshl_add_u32 v{r.t[0]}, v{r.lane}, 2, s38")
        A(f"v_cmp_gt_u32 vcc, 16, v{r.lane}")
        A("s_and_saveexec_b64 s[36:37], vcc")
        A(f"global_store_dword v{r.t[0]}, v{r.t[5]}, s[44:45]")
        A("s_mov_b64 exec, s[36:37]")
    emit_attn_store(A, r)
    if stamp:
        A("s_waitcnt vmcnt(0) lgkmcnt(0)")
        A("s_memtime s[48:49]")
        A("s_memrealtime s[52:53]")
        A("s_waitcnt lgkmcnt(0)")
        A("s_sub_u32 s52, s52, s50")
        A("s_sub_u32 s42, s42, s40\ns_sub_u32 s46, s46, s40\ns_sub_u32 s48, s48, s40")
        A(f"s_lshl_b32 s38, s2, 3\ns_add_u32 s38, s38, s{r.s_w}\ns_lshl_b32 s38, s38, 4")
        A(f"v_mov_b32 v{r.t[0]}, s38")
        A(f"v_mov_b32 v{r.S[0]}, s42\nv_mov_b32 v{r.S[0]+1}, s46\nv_mov_b32 v{r.S[0]+2}, s48\nv_mov_b32 v{r.S[0]+3}, s52")
        A(f"v_cmp_eq_u32 vcc, 0, v{r.lane}")
        A("s_and_saveexec_b64 s[36:37], vcc")
        A(f"global_store_dwordx4 v{r.t[0]}, v[{r.S[0]}:{r.S[0]+3}], s[44:45]")
    S.dump(r.s_ws, r.t[0], r.S[0])
    A.label(f"{name}_end")
    A("s_endpgm")
    return A.text(), V.next

if __name__ == "__main__":
    txt, nv = gen_attn_standalone(stamp=True)
    print("vgprs", nv)
    asm = '.amdgcn_target "amdgcn-amd-amdhsa--gfx950"\n.text\n' + txt + '.section .rodata,"a"\n' + kernel_desc("attn_kernel", nv)
    open("attn_test.s", "w").write(asm)
```

```python
from emit import *
import attn, qkv, tail
from attn import R, ROWB, BLK_BYTES, O_OFF, O_BLK, KPAIR, VPAIR, KBLK, VBLK, HEADSZ, ONES, ZEROS, SLOT, NSLOT, QOFF
from qkv import XST, WST, STAGE, NST, NCH, CSCALE, f32bits

OPT = {}
NONCE_LDS = max(qkv.LDS_GEMM, attn.LDS_ATTN, tail.LDS_END)
LDS_FUSED = NONCE_LDS + 256
FLAG_OFF = 0x2000000

def emit_loader_gemm_setup(A, r, g, L):
    t0, t1, t2, t3, t4, t5 = r.t
    st, st2, st3, st4 = r.s_t
    lane = r.lane
    A(f"v_lshrrev_b32 v{t0}, 3, v{lane}")
    A(f"v_and_b32 v{t1}, 7, v{lane}")
    A(f"v_lshrrev_b32 v{t2}, 4, v{lane}")
    A(f"v_and_b32 v{t2}, 1, v{t2}")
    A(f"s_lshl_b32 s{st}, s{r.s_c}, 8")
    A(f"s_lshl_b32 s{st2}, s{L.s_lw}, 6")
    A(f"s_add_u32 s{st}, s{st}, s{st2}")
    A(f"v_add_u32 v{t0}, s{st}, v{t0}")
    A(f"v_mul_u32_u24 v{t0}, 1152, v{t0}")
    for i in range(4):
        A(f"v_or_b32 v{t3}, {i<<1}, v{t2}")
        A(f"v_xor_b32 v{t3}, v{t3}, v{t1}")
        A(f"v_lshl_add_u32 v{L.vx[i]}, v{t3}, 4, v{t0}")
        if i: A(f"v_add_u32 v{L.vx[i]}, {i*8*1152}, v{L.vx[i]}")
    A(f"v_lshrrev_b32 v{t0}, 4, v{lane}")
    A(f"s_lshl_b32 s{st}, s{L.s_lw}, 4")
    A(f"v_add_u32 v{t5}, s{st}, v{t0}")
    A(f"v_mul_u32_u24 v{t5}, 3456, v{t5}")
    A(f"s_mul_i32 s{st}, s{r.s_hp}, 72")
    A(f"v_add_u32 v{t5}, s{st}, v{t5}")
    for var in range(2):
        A(f"v_or_b32 v{t1}, {4*var}, v{t0}")
        A(f"v_lshlrev_b32 v{t1}, 1, v{t1}")
        A(f"v_and_b32 v{t2}, 15, v{lane}")
        A(f"v_xor_b32 v{t2}, v{t2}, v{t1}")
        A(f"v_lshrrev_b32 v{t3}, 2, v{t2}")
        A(f"v_and_b32 v{t4}, 3, v{t2}")
        A(f"v_min_u32 v{t1}, 2, v{t4}")
        A(f"v_cmp_eq_u32 vcc, 3, v{t3}")
        A("s_nop 1")
        A(f"v_cndmask_b32 v{t3}, v{t3}, v{t1}, vcc")
        A(f"v_lshlrev_b32 v{t4}, 4, v{t4}")
        A(f"v_cndmask_b32 v{t4}, v{t4}, 56, vcc")
        A(f"v_mul_u32_u24 v{t3}, 1152, v{t3}")
        A(f"v_add3_u32 v{L.vw[var]}, v{t3}, v{t4}, v{t5}")
    A(f"s_lshl_b32 s{g.s_mx}, s{L.s_lw}, 13")
    A(f"s_lshl_b32 s{g.s_mw}, s{L.s_lw}, 12")
    A(f"s_add_u32 s{g.s_mw}, s{g.s_mw}, {XST}")

def emit_loader_gemm_dma(A, r, g, L):
    st, st2 = r.s_t[:2]
    A(f"s_lshl_b32 s{g.s_xoff}, s{g.s_kc}, 7")
    A(f"s_mul_i32 s{g.s_woff}, s{g.s_kc}, {64*3456}")
    for i in range(4):
        A(f"s_add_u32 s{st}, s{g.s_stw}, s{g.s_mw}")
        A(f"s_add_u32 m0, s{st}, {1024*i}")
        A(f"s_add_u32 s{st2}, s{g.s_woff}, {4*3456*i}")
        A(f"buffer_load_dwordx4 v{L.vw[i>>1]}, s[{g.s_wsrd}:{g.s_wsrd+3}], s{st2} offen lds")
    for i in range(8):
        A(f"s_add_u32 s{st}, s{g.s_stw}, s{g.s_mx}")
        A(f"s_add_u32 m0, s{st}, {1024*i}")
        A(f"s_add_u32 s{st2}, s{g.s_xoff}, {32*1152*(i>>2)}")
        A(f"buffer_load_dwordx4 v{L.vx[i&3]}, s[{g.s_xsrd}:{g.s_xsrd+3}], s{st2} offen lds")
    A(f"s_add_u32 s{g.s_kc}, s{g.s_kc}, 1")
    A(f"s_add_u32 s{g.s_stw}, s{g.s_stw}, {STAGE}")
    A(f"s_cmp_eq_u32 s{g.s_stw}, {NST*STAGE}")
    A(f"s_cselect_b32 s{g.s_stw}, 0, s{g.s_stw}")

def emit_compute_gemm_setup(A, r, g):
    t0, t1, t2, t3, t4, t5 = r.t
    st, st2, st3, st4 = r.s_t
    lane = r.lane
    A(f"v_and_b32 v{t0}, 15, v{lane}")
    A(f"v_lshrrev_b32 v{t1}, 2, v{t0}")
    A(f"v_and_b32 v{t2}, 3, v{t0}")
    A(f"v_lshl_add_u32 v{t2}, v{t1}, 3, v{t2}")
    A(f"v_lshrrev_b32 v{t3}, 1, v{t0}")
    A(f"v_and_b32 v{t3}, 1, v{t3}")
    A(f"v_lshl_or_b32 v{t3}, v{t1}, 1, v{t3}")
    A(f"v_lshrrev_b32 v{t4}, 4, v{lane}")
    A(f"v_xor_b32 v{t3}, v{t3}, v{t4}")
    A(f"s_and_b32 s{st}, s{r.s_w}, 3")
    A(f"s_lshl_b32 s{st}, s{st}, 13")
    A(f"v_lshlrev_b32 v{t2}, 7, v{t2}")
    A(f"v_add_u32 v{t2}, s{st}, v{t2}")
    A(f"v_lshl_add_u32 v{g.aA[0]}, v{t3}, 4, v{t2}")
    A(f"v_xor_b32 v{t3}, 4, v{t3}")
    A(f"v_lshl_add_u32 v{g.aA[1]}, v{t3}, 4, v{t2}")
    A(f"v_lshrrev_b32 v{t0}, 4, v{lane}")
    A(f"v_lshrrev_b32 v{t1}, 2, v{lane}")
    A(f"v_and_b32 v{t1}, 3, v{t1}")
    A(f"v_lshl_add_u32 v{t2}, v{t0}, 3, v{t1}")
    A(f"v_lshlrev_b32 v{t2}, 8, v{t2}")
    A(f"v_add_u32 v{t2}, {XST}, v{t2}")
    A(f"v_and_b32 v{t0}, 1, v{t0}")
    A(f"v_lshl_or_b32 v{t0}, v{t0}, 2, v{t1}")
    A(f"v_and_b32 v{t3}, 3, v{lane}")
    A(f"v_lshlrev_b32 v{t4}, 3, v{t3}")
    A(f"v_add_u32 v{t4}, v{t4}, v{t2}")
    A(f"s_lshr_b32 s{st}, s{r.s_w}, 2")
    A(f"s_lshl_b32 s{st}, s{st}, 2")
    for t in range(4):
        A(f"s_add_u32 s{st2}, s{st}, {t}")
        A(f"v_xor_b32 v{t5}, s{st2}, v{t0}")
        A(f"v_lshl_add_u32 v{g.aB[t]}, v{t5}, 5, v{t4}")
    A(f"v_add_u32 v{t3}, 12, v{t3}")
    A(f"v_lshlrev_b32 v{t0}, 1, v{t0}")
    A(f"v_xor_b32 v{t3}, v{t3}, v{t0}")
    A(f"v_lshl_add_u32 v{t3}, v{t3}, 4, v{t2}")
    A(f"v_add_u32 v{t3}, 8, v{t3}")
    A(f"s_cmp_ge_u32 s{r.s_w}, 4")
    A(f"s_cselect_b64 vcc, -1, 0")
    A("s_nop 1")
    A(f"v_cndmask_b32 v{g.aB[2]}, v{g.aB[2]}, v{t3}, vcc")

def g_read_list(g, s, ks, nt):
    out = []
    for i in range(4):
        p, T = i // 2, i % 2
        out.append(f"ds_read_b128 v[{g.FA[s][i]}:{g.FA[s][i]+3}], v{g.aA[ks]} offset:{4096*p+512*T}")
    for t in range(nt):
        out.append(f"ds_read_b64_tr_b16 v[{g.FB[s][t]}:{g.FB[s][t]+1}], v{g.aB[t]} offset:{8192*ks}")
        out.append(f"ds_read_b64_tr_b16 v[{g.FB[s][t]+2}:{g.FB[s][t]+3}], v{g.aB[t]} offset:{8192*ks+1024}")
    return out
def g_mfma_list(g, s, nt):
    out = []
    for t in range(nt):
        for i in range(4):
            out.append(f"v_mfma_f32_16x16x32_bf16 v[{g.acc[i][t]}:{g.acc[i][t]+3}], v[{g.FA[s][i]}:{g.FA[s][i]+3}], v[{g.FB[s][t]}:{g.FB[s][t]+3}], v[{g.acc[i][t]}:{g.acc[i][t]+3}]")
    return out
def interleave(A, mf, rd, pre=()):
    extra = list(pre) + list(rd)
    k = 0
    for m in mf:
        A(m)
        if k < len(extra):
            A(extra[k]); k += 1
    while k < len(extra):
        A(extra[k]); k += 1

def emit_compute_gemm(A, r, g, name, S):
    A(f"s_mov_b32 s{g.s_rst}, 0")
    for i in range(4):
        for t in range(4):
            for j in range(4): A(f"v_mov_b32 v{g.acc[i][t]+j}, 0")
    if getattr(g, "pf_pre", None): emit_prefetch_batch(A, r, g, g.pfreg, g.pf_pre)
    g.T.mark(1)
    A("s_barrier")
    S.mark(2)
    g.T.mark(2)
    if g.pf2: emit_prefetch_batch(A, r, g, g.pfreg, g.pf2)
    A(f"s_cmp_ge_u32 s{r.s_w}, 4")
    A(f"s_cbranch_scc1 {name}_g1")
    for nh in range(2):
        nt = 4 if nh == 0 else 3
        if nh == 1: A.label(f"{name}_g1")
        for x in g_read_list(g, 0, 0, nt): A(x)
        A(f"s_mov_b32 s{r.s_it}, 0")
        A("s_waitcnt lgkmcnt(0)")
        A.label(f"{name}_gl{nh}")
        interleave(A, g_mfma_list(g, 0, nt), g_read_list(g, 1, 1, nt))
        A(f"s_add_u32 s{g.s_rst}, s{g.s_rst}, 1")
        A(f"s_cmp_eq_u32 s{g.s_rst}, {NST}")
        A(f"s_mov_b32 s{g.s_gdelta}, {STAGE}\ns_cmov_b32 s{g.s_gdelta}, {-(NST-1)*STAGE & 0xffffffff}")
        A(f"s_cselect_b32 s{g.s_rst}, 0, s{g.s_rst}")
        A("s_waitcnt lgkmcnt(0)")
        A("s_barrier")
        upd = [f"v_add_u32 v{x}, s{g.s_gdelta}, v{x}" for x in [g.aA[0]] + g.aB[:nt] + [g.aA[1]]]
        mf = g_mfma_list(g, 1, nt)
        rd = g_read_list(g, 0, 0, nt)
        k = 0
        for x in upd[:2]: A(x)
        seq = upd[2:] + rd
        interleave(A, mf, seq)
        A(f"s_add_u32 s{r.s_it}, s{r.s_it}, 1")
        A(f"s_cmp_lt_u32 s{r.s_it}, {NCH}")
        A(f"s_waitcnt lgkmcnt(0)")
        A(f"s_cbranch_scc1 {name}_gl{nh}")
        emit_epi_lds(A, r, g, nh)
        if nh == 0: A(f"s_branch {name}_gdone")
    A.label(f"{name}_gdone")

def emit_epi_addr(A, r, g, nh):
    t0, t1, t2, t3, t4, t5 = r.t
    st, st2, st3, st4 = r.s_t
    lane = r.lane
    nt = 4 if nh == 0 else 3
    A(f"s_and_b32 s{st}, s{r.s_w}, 3")
    A(f"s_lshl_b32 s{st}, s{st}, 7")
    typ = g.FA[0][0]; col = g.FA[0][0] + 1; tmp = g.FA[0][0] + 2; v2 = g.FA[0][0] + 3
    for t in range(nt):
        Tf = 4 * nh + t
        ea = g.ea[t]; ed = g.ed[t]
        A(f"v_and_b32 v{t1}, 15, v{lane}")
        if Tf < 6:
            A(f"v_add_u32 v{col}, {16*(Tf & 1)}, v{t1}")
        else:
            A(f"v_lshrrev_b32 v{typ}, 2, v{t1}")
            A(f"v_and_b32 v{col}, 3, v{t1}")
            A(f"v_add_u32 v{col}, 32, v{col}")
        A(f"v_cmp_le_u32 vcc, 18, v{col}")
        A(f"v_subrev_u32 v{tmp}, 18, v{col}")
        A("s_nop 0")
        A(f"v_cndmask_b32 v{col}, v{col}, v{tmp}, vcc")
        A(f"v_cndmask_b32 v{t0}, 0, 1, vcc")
        A(f"v_and_b32 v{t2}, 1, v{col}")
        A(f"v_lshrrev_b32 v{t3}, 1, v{col}")
        A(f"v_lshrrev_b32 v{t4}, 4, v{lane}")
        isq = (Tf < 2); isk = (Tf in (2, 3)); isv = (Tf in (4, 5))
        def ktype(base_const, hstride):
            A(f"v_mul_u32_u24 v{ea}, {KPAIR}, v{t3}")
            A(f"v_mul_u32_u24 v{tmp}, {hstride}, v{t0}")
            A(f"v_add3_u32 v{ea}, v{ea}, v{tmp}, s{st}")
            A(f"v_mul_u32_u24 v{tmp}, {512+64}, v{t2}")
            A(f"v_lshl_add_u32 v{tmp}, v{t4}, 4, v{tmp}")
            A(f"v_add_u32 v{ea}, v{ea}, v{tmp}")
            if base_const: A(f"v_add_u32 v{ea}, {base_const}, v{ea}")
            A(f"v_lshlrev_b32 v{ed}, 7, v{t2}")
            A(f"v_sub_u32 v{ed}, 64, v{ed}")
        def vtype(dst, dd):
            A(f"v_mul_u32_u24 v{dst}, {VPAIR}, v{t3}")
            A(f"v_mul_u32_u24 v{tmp}, {HEADSZ}, v{t0}")
            A(f"v_add3_u32 v{dst}, v{dst}, v{tmp}, s{st}")
            A(f"v_xor_b32 v{tmp}, v{t4}, v{t2}")
            A(f"v_lshlrev_b32 v{tmp}, 4, v{tmp}")
            A(f"v_lshl_add_u32 v{tmp}, v{t2}, 9, v{tmp}")
            A(f"v_add_u32 v{dst}, v{dst}, v{tmp}")
            A(f"v_add_u32 v{dst}, {KBLK}, v{dst}")
            A(f"v_mov_b32 v{dd}, 64")
        if isq: ktype(QOFF, KBLK)
        elif isk: ktype(0, HEADSZ)
        elif isv: vtype(ea, ed)
        else:
            ktype(0, HEADSZ)
            A(f"v_mul_i32_i24 v{tmp}, {KBLK-HEADSZ}, v{t0}")
            A(f"v_add_u32 v{tmp}, {QOFF}, v{tmp}")
            A(f"v_cmp_eq_u32 vcc, 0, v{typ}")
            A("s_nop 1")
            A(f"v_cndmask_b32 v{tmp}, 0, v{tmp}, vcc")
            A(f"v_add_u32 v{ea}, v{ea}, v{tmp}")
            vtype(t5, v2)
            A(f"v_cmp_eq_u32 vcc, 2, v{typ}")
            A("s_nop 1")
            A(f"v_cndmask_b32 v{ea}, v{ea}, v{t5}, vcc")
            A(f"v_cndmask_b32 v{ed}, v{ed}, v{v2}, vcc")
            A(f"v_mov_b32 v{g.esc}, 1.0")
            A(f"v_mov_b32 v{tmp}, {f32bits(CSCALE):#x}")
            A(f"v_cmp_eq_u32 vcc, 0, v{typ}")
            A("s_nop 1")
            A(f"v_cndmask_b32 v{g.esc}, v{g.esc}, v{tmp}, vcc")
            A(f"v_cmp_gt_u32 s[54:55], 3, v{typ}")
        A(f"v_add_u32 v{ed}, v{ea}, v{ed}")

def emit_epi_lds(A, r, g, nh):
    st4 = r.s_t[3]
    nt = 4 if nh == 0 else 3
    A("s_nop 7")
    A(f"s_mov_b32 s{st4}, {f32bits(CSCALE):#x}")
    order = [2, 3, 0, 1] if nh == 0 else [0, 1, 2]
    for t in order:
        Tf = 4 * nh + t
        isq = Tf < 2
        if Tf == 6:
            A("s_mov_b64 s[36:37], exec")
            A("s_mov_b64 exec, s[54:55]")
        for p in range(2):
            a0 = g.acc[2 * p][t]; a1 = g.acc[2 * p + 1][t]
            if isq:
                for j in range(4):
                    A(f"v_mul_f32 v{a0+j}, s{st4}, v{a0+j}")
                    A(f"v_mul_f32 v{a1+j}, s{st4}, v{a1+j}")
            elif Tf == 6:
                for j in range(4):
                    A(f"v_mul_f32 v{a0+j}, v{g.esc}, v{a0+j}")
                    A(f"v_mul_f32 v{a1+j}, v{g.esc}, v{a1+j}")
            pk = g.FA[p][t]
            A(f"v_cvt_pk_bf16_f32 v{pk}, v{a0}, v{a0+1}")
            A(f"v_cvt_pk_bf16_f32 v{pk+1}, v{a0+2}, v{a0+3}")
            A(f"v_cvt_pk_bf16_f32 v{pk+2}, v{a1}, v{a1+1}")
            A(f"v_cvt_pk_bf16_f32 v{pk+3}, v{a1+2}, v{a1+3}")
            A(f"ds_write_b128 v{g.ea[t] if p == 0 else g.ed[t]}, v[{pk}:{pk+3}]")
        if Tf == 6:
            A("s_mov_b64 exec, s[36:37]")

def emit_prefetch(A, r, g, d0, kind, kca, kcb):
    t0, t1, t2, t3 = r.t[:4]
    st, st2, st3, st4 = r.s_t
    A(f"s_lshl_b32 s{st}, s{r.s_hp}, 1\ns_and_b32 s{st2}, s{r.s_c}, 1\ns_add_u32 s{st}, s{st}, s{st2}")
    if kind == "x":
        A(f"v_lshrrev_b32 v{t3}, 4, v{r.lane}")
        A(f"v_add_u32 v{t3}, {kca}, v{t3}")
        A(f"v_min_u32 v{t3}, {kcb}, v{t3}")
        A(f"v_and_b32 v{t0}, 15, v{r.lane}")
        A(f"s_lshr_b32 s{st2}, s{r.s_c}, 1\ns_lshl_b32 s{st2}, s{st2}, 9\ns_lshl_b32 s{st3}, s{st}, 4\ns_add_u32 s{st2}, s{st2}, s{st3}")
        A(f"v_add_u32 v{t0}, s{st2}, v{t0}")
        A(f"v_mul_u32_u24 v{t0}, 1152, v{t0}")
        A(f"v_lshl_add_u32 v{t0}, v{t3}, 7, v{t0}")
        A(f"buffer_load_dword v{d0}, v{t0}, s[{g.s_xsrd}:{g.s_xsrd+3}], 0 offen")
    elif kind == "w":
        A(f"v_min_u32 v{t0}, 53, v{r.lane}")
        A(f"s_mul_i32 s{st2}, s{st}, 54")
        A(f"v_add_u32 v{t0}, s{st2}, v{t0}")
        A(f"v_mul_u32_u24 v{t1}, 2428, v{t0}")
        A(f"v_lshrrev_b32 v{t1}, 16, v{t1}")
        A(f"v_mul_u32_u24 v{t2}, 27, v{t1}")
        A(f"v_sub_u32 v{t2}, v{t0}, v{t2}")
        A(f"v_add_u32 v{t1}, {64*kca}, v{t1}")
        A(f"v_mul_u32_u24 v{t1}, 3456, v{t1}")
        A(f"v_lshl_add_u32 v{t1}, v{t2}, 7, v{t1}")
        A(f"buffer_load_dword v{d0}, v{t1}, s[{g.s_wsrd}:{g.s_wsrd+3}], 0 offen")

def emit_prefetch_batch(A, r, g, d0, jobs):
    done = A.newlabel("Lpfd")
    for w, (kind, a, b) in jobs.items():
        lab = A.newlabel("Lpf")
        A(f"s_cmp_eq_u32 s{r.s_w}, {w}\ns_cbranch_scc0 {lab}")
        emit_prefetch(A, r, g, d0, kind, a, b)
        A(f"s_branch {done}")
        A.label(lab)
    A.label(done)

def emit_loader_kv_setup(A, r, L):
    t0, t1, t2, t3 = r.t[:4]
    st, st2, st3, st4 = r.s_t
    A(f"v_lshrrev_b32 v{t0}, 5, v{r.lane}")
    A(f"v_and_b32 v{t1}, 31, v{r.lane}")
    A(f"v_lshlrev_b32 v{t2}, 2, v{t0}")
    A(f"v_xor_b32 v{t2}, v{t2}, v{t1}")
    A(f"v_lshlrev_b32 v{t2}, 4, v{t2}")
    A(f"v_lshl_add_u32 v{t2}, v{t0}, 12, v{t2}")
    A(f"v_xor_b32 v{t3}, v{t0}, v{t1}")
    A(f"v_lshlrev_b32 v{t3}, 4, v{t3}")
    A(f"v_lshl_add_u32 v{t3}, v{t0}, 12, v{t3}")
    for i in range(9):
        sl = L.s_lds[i]
        A(f"s_add_u32 s{st}, s{L.s_lw}, {4*i}")
        A(f"s_cmp_ge_u32 s{st}, 18")
        A(f"s_cselect_b32 s{st2}, 18, 0")
        A(f"s_mov_b32 s{st3}, {KPAIR}\ns_cmov_b32 s{st3}, {VPAIR}")
        A(f"s_cselect_b32 s{st4}, {KBLK}, 0")
        A(f"s_mov_b32 s{sl}, 576\ns_cmov_b32 s{sl}, 1152")
        A(f"s_cselect_b64 vcc, -1, 0")
        A(f"s_sub_u32 s{st}, s{st}, s{st2}")
        A(f"s_mul_i32 s{st2}, s{r.s_hp}, 36")
        A(f"s_add_u32 s{sl}, s{sl}, s{st2}")
        A(f"s_lshl_b32 s{st2}, s{st}, 1")
        A(f"s_add_u32 s{sl}, s{sl}, s{st2}")
        A(f"s_lshl_b32 s{sl}, s{sl}, 12")
        A(f"v_cndmask_b32 v{L.vdma[i]}, v{t2}, v{t3}, vcc")
        A(f"v_add_u32 v{L.vdma[i]}, s{sl}, v{L.vdma[i]}")
        A(f"s_cmp_ge_u32 s{st}, 9")
        A(f"s_cselect_b32 s{st2}, 9, 0")
        A(f"s_cselect_b32 s{sl}, {HEADSZ}, 0")
        A(f"s_sub_u32 s{st}, s{st}, s{st2}")
        A(f"s_mul_i32 s{st}, s{st}, s{st3}")
        A(f"s_add_u32 s{sl}, s{sl}, s{st}")
        A(f"s_add_u32 s{sl}, s{sl}, s{st4}")

def emit_loader_ones(A, r, L):
    t0, t1, t2, t3 = r.t[:4]
    A(f"v_subrev_u32 v{t1}, 512, v0")
    A(f"v_cmp_gt_u32 vcc, 192, v{t1}")
    A(f"v_lshlrev_b32 v{t1}, 2, v{t1}")
    A(f"v_mov_b32 v{t0}, 0x3f803f80")
    A(f"v_mov_b32 v{t3}, 0")
    A("s_and_saveexec_b64 s[36:37], vcc")
    lab = A.newlabel("Lones")
    A(f"s_cbranch_execz {lab}")
    for s in range(NSLOT):
        A(f"v_add_u32 v{t2}, {s*SLOT+ONES}, v{t1}")
        A(f"ds_write_b32 v{t2}, v{t0}")
        A(f"ds_write_b32 v{t2}, v{t3} offset:768")
    A.label(lab)
    A("s_mov_b64 exec, s[36:37]")

def emit_poll(A, r, L, seg_sgpr):
    t0 = r.t[0]; st, st2 = r.s_t[:2]
    lab = A.newlabel("Lpoll"); done = A.newlabel("Lpolld")
    b = L.buf[0]
    A(f"s_lshl_b32 s{st}, s{seg_sgpr}, 7")
    A(f"v_add_u32 v{t0}, s{st}, v{L.vflag}")
    A(f"s_mov_b32 s{st2}, 0")
    A.label(lab)
    A(f"global_load_dwordx4 v[{b}:{b+3}], v{t0}, s[{r.s_ws}:{r.s_ws+1}] sc1")
    A("s_waitcnt vmcnt(0)")
    A(f"v_xor_b32 v{b}, s{L.s_nonce}, v{b}")
    A(f"v_xor_b32 v{b+1}, s{L.s_nonce}, v{b+1}")
    A(f"v_xor_b32 v{b+2}, s{L.s_nonce}, v{b+2}")
    A(f"v_xor_b32 v{b+3}, s{L.s_nonce}, v{b+3}")
    A(f"v_or_b32 v{b}, v{b}, v{b+1}")
    A(f"v_or3_b32 v{b}, v{b}, v{b+2}, v{b+3}")
    A("s_nop 0")
    A(f"v_readfirstlane_b32 s{st}, v{b}")
    A(f"s_cmp_eq_u32 s{st}, 0")
    A(f"s_cbranch_scc1 {done}")
    A("s_sleep 2")
    A(f"s_add_u32 s{st2}, s{st2}, 1")
    A(f"s_cmp_lt_u32 s{st2}, 0x4000")
    A(f"s_cbranch_scc1 {lab}")
    A.label(done)

def emit_loader_kv_dma(A, r, L):
    A(f"s_lshl_b32 s{r.s_chunk}, s{r.s_seg}, 9")
    for i in range(9):
        A(f"s_add_u32 m0, s{r.s_slotw}, s{L.s_lds[i]}")
        A("s_nop 0")
        A(f"buffer_load_dwordx4 v{L.vdma[i]}, s[{r.s_srd}:{r.s_srd+3}], s{r.s_chunk} offen{OPT.get('kvload', ' sc1')} lds")
    A(f"s_add_u32 s{r.s_seg}, s{r.s_seg}, 1")
    A(f"s_and_b32 s{r.s_seg}, s{r.s_seg}, 7")
    A(f"s_add_u32 s{r.s_slotw}, s{r.s_slotw}, {SLOT}")
    A(f"s_cmp_eq_u32 s{r.s_slotw}, {NSLOT*SLOT}")
    A(f"s_cselect_b32 s{r.s_slotw}, 0, s{r.s_slotw}")

def emit_check(A, r, name, part=1):
    t0, t1 = r.t[:2]
    A(f"s_mov_b32 s40, 0x30800000")
    A(f"s_mov_b32 s41, 0x71800000")
    for u in range(2):
        A(f"v_mul_f32 v{r.t[2+u]}, 0, v{r.O[u]}")
        for i in range(1, 10): A(f"v_fma_f32 v{r.t[2+u]}, v{r.O[u]+i}, 0, v{r.t[2+u]}")
    A(f"v_add_f32 v{r.t[2]}, v{r.t[2]}, v{r.t[3]}")
    A(f"v_cmp_gt_f32 vcc, v{r.O[0]+10}, s40")
    A(f"v_cmp_lt_f32 s[42:43], v{r.O[0]+10}, s41")
    A("s_nop 3")
    A(f"s_and_b64 s[44:45], vcc, s[42:43]")
    A(f"v_cmp_gt_f32 vcc, v{r.O[1]+10}, s40")
    A(f"v_cmp_lt_f32 s[42:43], v{r.O[1]+10}, s41")
    A("s_nop 3")
    A(f"s_and_b64 s[44:45], s[44:45], vcc")
    A(f"s_and_b64 s[44:45], s[44:45], s[42:43]")
    A(f"v_cmp_o_f32 vcc, v{r.t[2]}, v{r.t[2]}")
    A("s_nop 3")
    A(f"s_and_b64 s[44:45], s[44:45], vcc")
    if OPT.get("forceslow"): A("s_mov_b64 s[44:45], 0")
    lab = A.newlabel("Lok")
    A("s_cmp_eq_u64 s[44:45], -1")
    A(f"s_cbranch_scc1 {lab}")
    A(f"v_mov_b32 v{t0}, {NONCE_LDS + 4}")
    A(f"v_mov_b32 v{t1}, 1")
    A(f"ds_write_b32 v{t0}, v{t1}")
    A("s_waitcnt lgkmcnt(0)")
    A.label(lab)
    if part: emit_flag_read(A, r)

def emit_flag_read(A, r):
    t0 = r.t[0]
    A("s_barrier")
    A(f"v_mov_b32 v{t0}, {NONCE_LDS + 4}")
    A(f"ds_read_b32 v{t0}, v{t0}")
    A("s_waitcnt lgkmcnt(0)")
    A(f"v_readfirstlane_b32 s40, v{t0}")
    A("s_nop 3")
    A("s_cmp_lg_u32 s40, 0")

def emit_slow_compute(A, r, name):
    t = r.t
    m = [t[4], t[5]]
    addrs = [r.kE, r.kO, r.tE, r.tO, r.vA]
    back = (8 % NSLOT) * SLOT
    for x in addrs: A(f"v_subrev_u32 v{x}, {back}, v{x}")
    for u in range(2):
        A(f"v_mov_b32 v{r.Qt[u]+1}, 0")
        A(f"v_mov_b32 v{m[u]}, 0xff800000")
        for i in range(16): A(f"v_mov_b32 v{r.O[u]+i}, 0")
    for ps in range(2):
        A(f"s_mov_b32 s46, 0")
        A.label(f"{name}_sl{ps}")
        A("s_barrier")
        A(f"s_mov_b32 s47, 0")
        A.label(f"{name}_st{ps}")
        for par in range(2):
            attn.k_reads(A, r, par, 0)
            if ps == 1: attn.v_reads(A, r, par, 0)
            A("s_waitcnt lgkmcnt(0)")
            for u in range(2):
                S0 = r.S[u]
                attn.mf_main(A, r, S0, 0, u)
                attn.mf_tail(A, r, S0, 0, u)
            A("s_nop 15")
            for u in range(2):
                S0 = r.S[u]
                if ps == 0:
                    for k in range(0, 16, 2):
                        A(f"v_max3_f32 v{m[u]}, v{m[u]}, v{S0+k}, v{S0+k+1}")
                else:
                    for k in range(16): A(f"v_sub_f32 v{S0+k}, v{S0+k}, v{m[u]}")
                    for k in range(16): A(f"v_exp_f32 v{S0+k}, v{S0+k}")
                    A("s_nop 1")
                    attn.mf_pv(A, r, u, r.V1[0], S0)
                    attn.mf_pv(A, r, u, r.V2[0], S0 + 8)
            if ps == 1: A("s_nop 7")
        for x in addrs: A(f"v_add_u32 v{x}, 128, v{x}")
        A("s_add_u32 s47, s47, 1\ns_cmp_lt_u32 s47, 4")
        A(f"s_cbranch_scc1 {name}_st{ps}")
        for x in addrs: A(f"v_subrev_u32 v{x}, 512, v{x}")
        A("s_barrier")
        A("s_add_u32 s46, s46, 1\ns_cmp_lt_u32 s46, 8")
        A(f"s_cbranch_scc1 {name}_sl{ps}")
        if ps == 0:
            A(f"v_mov_b32 v{t[0]}, v{m[0]}\nv_mov_b32 v{t[1]}, v{m[1]}")
            A("s_nop 1")
            A(f"v_permlane32_swap_b32 v{m[0]}, v{t[0]}")
            A(f"v_permlane32_swap_b32 v{m[1]}, v{t[1]}")
            A("s_nop 1")
            A(f"v_max_f32 v{m[0]}, v{m[0]}, v{t[0]}")
            A(f"v_max_f32 v{m[1]}, v{m[1]}, v{t[1]}")
    A("s_nop 15")

def emit_slow_loader(A, r, L, name):
    A(f"s_mov_b32 s46, 0")
    A.label(f"{name}_lsl")
    A(f"s_and_b32 s{r.s_seg}, s46, 7")
    A(f"s_mov_b32 s{r.s_slotw}, 0")
    emit_loader_kv_dma(A, r, L)
    A("s_waitcnt vmcnt(0)")
    A("s_barrier")
    A("s_barrier")
    A("s_add_u32 s46, s46, 1\ns_cmp_lt_u32 s46, 16")
    A(f"s_cbranch_scc1 {name}_lsl")

def gen_fused(name="fused_kernel", rt=None):
    A = Asm(); r = R(); g = R(); L = R()
    V = RegAlloc(1, 168, "v")
    attn.alloc_sregs(r); qkv.alloc_gemm_sregs(g)
    lane = V.alloc("lane"); tt = [V.alloc(f"t{i}") for i in range(6)]
    r.lane = lane; r.t = tt
    r.kE = V.alloc("kE"); r.kO = V.alloc("kO"); r.tE = V.alloc("tE"); r.tO = V.alloc("tO"); r.vA = V.alloc("vA")
    r.qE = V.alloc("qE"); r.qO = V.alloc("qO")
    g.ea = [V.alloc(f"ea{i}") for i in range(4)]; g.ed = [V.alloc(f"ed{i}") for i in range(4)]; g.esc = V.alloc("esc")
    vTR = V.alloc("vTR") if OPT.get("trace") else 0
    base = V.next
    Va = RegAlloc(base, 168, "v")
    r.idx = Va.alloc("idx")
    r.Qm = [Va.alloc(f"Qm{u}", 4, 2) for u in range(2)]
    r.Qt = [Va.alloc(f"Qt{u}", 2, 2) for u in range(2)]
    r.Km = [Va.alloc(f"Km{p}", 4, 2) for p in range(2)]
    r.Kt = [Va.alloc(f"Kt{p}", 2, 2) for p in range(2)]
    r.V1 = [Va.alloc(f"V1{p}", 4, 2) for p in range(2)]
    r.V2 = [Va.alloc(f"V2{p}", 4, 2) for p in range(2)]
    r.S = [Va.alloc(f"S{i}", 16, 4) for i in range(4)]
    r.O = [Va.alloc(f"O{u}", 16, 4) for u in range(2)]
    Vg = RegAlloc(base, 168, "v")
    g.aA = [Vg.alloc(f"aA{k}") for k in range(2)]
    g.aB = [Vg.alloc(f"aB{t}") for t in range(4)]
    g.FA = [[Vg.alloc(f"FA{s}{i}", 4, 2) for i in range(4)] for s in range(2)]
    g.FB = [[Vg.alloc(f"FB{s}{t}", 4, 2) for t in range(4)] for s in range(2)]
    g.acc = [[Vg.alloc(f"acc{i}{t}", 4, 4) for t in range(4)] for i in range(4)]
    vN = Vg.alloc("vN"); vPF = Vg.alloc("vPF"); vT = Vg.alloc("vT", 2, 2)
    Vl = RegAlloc(base, 168, "v")
    L.vx = [Vl.alloc(f"vx{i}") for i in range(4)]
    L.vw = [Vl.alloc(f"vw{i}") for i in range(2)]
    L.vdma = [Vl.alloc(f"vd{i}") for i in range(9)]
    L.vflag = Vl.alloc("vflag"); L.vlds = Vl.alloc("vlds")
    L.buf = [Vl.alloc(f"buf{i}", 4, 4) for i in range(9)]
    L.s_lw = 38; L.s_lds = list(range(72, 81)); L.s_dbg = 82; L.s_sh = 39; L.s_nonce = 81
    nv = max(Va.next, Vg.next, Vl.next)

    A(f".globl {name}\n.p2align 8\n.type {name},@function")
    A.label(name)
    A(f"s_cmp_ge_u32 s2, 256\ns_cbranch_scc1 {name}_end")
    A(f"s_load_dwordx2 s[{r.s_ws}:{r.s_ws+1}], s[0:1], 64")
    A("s_load_dwordx4 s[72:75], s[0:1], 0")
    A("s_load_dwordx4 s[76:79], s[0:1], 24")
    A(f"s_load_dwordx2 s[{L.s_dbg}:{L.s_dbg+1}], s[0:1], 56")
    F3 = OPT.get("fuse3", 1)
    if F3:
        r.no_osrd = True
        A("s_load_dwordx2 s[12:13], s[0:1], 16")
        A("s_load_dwordx2 s[6:7], s[0:1], 40")
        A("s_load_dwordx2 s[14:15], s[0:1], 48")
    S = Stamper(A, rt, enabled=rt is not None); S.start()
    T = Tracer(A, vTR, enabled=bool(OPT.get("trace"))); T.init(); T.mark(0); g.T = T
    attn.emit_ids(A, r)
    A("s_waitcnt lgkmcnt(0)")
    T.mark(22)
    A(f"s_cmp_eq_u32 s{r.s_b}, 0")
    A(f"s_cselect_b32 s{g.s_xsrd}, s72, s76")
    A(f"s_cselect_b32 s{g.s_xsrd+1}, s73, s77")
    A(f"s_cselect_b32 s{g.s_wsrd}, s74, s78")
    A(f"s_cselect_b32 s{g.s_wsrd+1}, s75, s79")
    if F3: A("s_cselect_b32 s12, s12, s6\ns_cselect_b32 s13, s13, s7")
    A(f"s_mov_b32 s{g.s_xsrd+2}, {2048*1152}\ns_mov_b32 s{g.s_xsrd+3}, 0x20000")
    A(f"s_mov_b32 s{g.s_wsrd+2}, {576*3456}\ns_mov_b32 s{g.s_wsrd+3}, 0x20000")
    if OPT.get("tlb", 0):
        labt = A.newlabel("Ltlb")
        A(f"s_cmp_lg_u32 s{r.s_w}, 7\ns_cbranch_scc1 {labt}")
        A(f"s_load_dword s40, s[{g.s_wsrd}:{g.s_wsrd+1}], 0")
        A(f"s_lshl_b32 s46, s{r.s_c}, 8\ns_mul_i32 s46, s46, 1152")
        A(f"s_load_dword s41, s[{g.s_xsrd}:{g.s_xsrd+1}], s46")
        A(f"s_mul_i32 s46, s{r.s_b}, {BLK_BYTES}\ns_mul_i32 s47, s{r.s_hp}, {36*4096}\ns_add_u32 s46, s46, s47\ns_add_u32 s46, s46, {576*4096}")
        A(f"s_load_dword s42, s[{r.s_ws}:{r.s_ws+1}], s46")
        A(f"s_add_u32 s47, s46, {576*4096}")
        A(f"s_load_dword s43, s[{r.s_ws}:{r.s_ws+1}], s47")
        A(f"s_mov_b32 s48, {FLAG_OFF}")
        A(f"s_load_dword s44, s[{r.s_ws}:{r.s_ws+1}], s48")
        A(f"s_mul_i32 s49, s{r.s_b}, {O_BLK}\ns_add_u32 s49, s49, {O_OFF}")
        A(f"s_load_dword s45, s[{r.s_ws}:{r.s_ws+1}], s49")
        A.label(labt)
    A(f"s_cmp_ge_u32 s{r.s_w}, 8")
    A(f"s_cbranch_scc1 {name}_loader")
    pf = OPT.get("pf", 6)
    if pf == 1: emit_prefetch_batch(A, r, g, vPF, {0: ("x", 2, 3), 1: ("w", 2, 3)})
    if pf == 2: emit_prefetch_batch(A, r, g, vPF, {0: ("x", 2, 3), 1: ("w", 2, 3), 2: ("x", 4, 5), 3: ("w", 4, 5)})
    if pf == 3: emit_prefetch_batch(A, r, g, vPF, {0: ("x", 2, 3), 1: ("w", 2, 3), 2: ("x", 4, 5), 3: ("w", 4, 5), 4: ("x", 6, 7), 5: ("w", 6, 7), 6: ("x", 8, 8), 7: ("w", 8, 8)})
    g.pf2 = {1: {2: ("x", 4, 5), 3: ("w", 4, 5), 4: ("x", 6, 7), 5: ("w", 6, 7), 6: ("x", 8, 8), 7: ("w", 8, 8)}, 2: {4: ("x", 6, 7), 5: ("w", 6, 7), 6: ("x", 8, 8), 7: ("w", 8, 8)}}.get(pf, {})
    g.pfreg = vPF
    if pf == 6:
        emit_prefetch_batch(A, r, g, vPF, {0: ("x", 2, 5), 1: ("w", 2, 2), 2: ("w", 3, 3), 3: ("w", 4, 4)})
        g.pf2 = {0: ("x", 6, 8), 1: ("w", 5, 5), 2: ("w", 6, 6), 3: ("w", 7, 7), 4: ("w", 8, 8)}
    if pf == 7:
        emit_prefetch_batch(A, r, g, vPF, {0: ("x", 2, 5), 1: ("w", 2, 2), 2: ("w", 3, 3)})
        g.pf2 = {0: ("x", 6, 8), 1: ("w", 4, 4), 2: ("w", 5, 5), 3: ("w", 6, 6), 4: ("w", 7, 7), 5: ("w", 8, 8)}
    if pf == 8:
        emit_prefetch_batch(A, r, g, vPF, {1: ("w", 2, 2), 2: ("w", 3, 3)})
        g.pf2 = {0: ("x", 6, 8), 1: ("w", 4, 4), 2: ("w", 5, 5), 3: ("w", 6, 6), 4: ("w", 7, 7), 5: ("w", 8, 8)}
    if pf == 9:
        emit_prefetch_batch(A, r, g, vPF, {1: ("w", 3, 3), 0: ("x", 4, 7)})
        g.pf2 = {0: ("x", 8, 8), 1: ("w", 4, 4), 2: ("w", 5, 5), 3: ("w", 6, 6), 4: ("w", 7, 7), 5: ("w", 8, 8)}
    if pf == 4: g.pf2 = {2: ("x", 4, 5), 3: ("w", 4, 5), 4: ("x", 6, 7), 5: ("w", 6, 7), 6: ("x", 8, 8), 7: ("w", 8, 8)}
    if pf == 5: g.pf_pre = {2: ("x", 4, 5), 3: ("w", 4, 5), 4: ("x", 6, 7), 5: ("w", 6, 7), 6: ("x", 8, 8), 7: ("w", 8, 8)}
    attn.emit_srds(A, r)
    labn = A.newlabel("Lnonce")
    A(f"s_cmp_lg_u32 s{r.s_w}, 0\ns_cbranch_scc1 {labn}")
    A("s_memrealtime s[94:95]\ns_waitcnt lgkmcnt(0)")
    A("s_or_b32 s94, s94, 1")
    A(f"v_mov_b32 v{vT}, s94\nv_mov_b32 v{vT+1}, 0\nv_mov_b32 v{vN}, 0")
    A(f"v_cmp_eq_u32 vcc, 0, v{r.lane}")
    A("s_and_saveexec_b64 s[36:37], vcc")
    A(f"global_atomic_cmpswap v{vN}, v{vN}, v[{vT}:{vT+1}], s[{L.s_dbg}:{L.s_dbg+1}] sc0 sc1")
    A("s_mov_b64 exec, s[36:37]")
    A.label(labn)
    emit_compute_gemm_setup(A, r, g)
    attn.emit_read_addrs(A, r)
    A(f"v_mov_b32 v{r.qE}, v{r.t[4]}\nv_mov_b32 v{r.qO}, v{r.t[5]}")
    labe = A.newlabel("Lea"); labf = A.newlabel("Lea")
    A(f"s_cmp_ge_u32 s{r.s_w}, 4\ns_cbranch_scc1 {labe}")
    emit_epi_addr(A, r, g, 0)
    A(f"s_branch {labf}")
    A.label(labe)
    emit_epi_addr(A, r, g, 1)
    A.label(labf)
    emit_compute_gemm(A, r, g, name, S)
    S.mark(3)
    A("s_waitcnt vmcnt(0)")
    labn2 = A.newlabel("Lnonce")
    A(f"s_cmp_lg_u32 s{r.s_w}, 0\ns_cbranch_scc1 {labn2}")
    A("s_waitcnt vmcnt(0)")
    A(f"v_cmp_eq_u32 vcc, 0, v{vN}")
    A(f"v_mov_b32 v{r.t[0]}, {NONCE_LDS}")
    A("s_nop 0")
    A(f"v_cndmask_b32 v{vN}, v{vN}, v{vT}, vcc")
    A(f"v_cmp_eq_u32 vcc, 0, v{r.lane}")
    A("s_and_saveexec_b64 s[36:37], vcc")
    A(f"ds_write_b32 v{r.t[0]}, v{vN}")
    A(f"v_mov_b32 v{r.t[1]}, 0")
    A(f"ds_write_b32 v{r.t[0]}, v{r.t[1]} offset:4")
    A("s_mov_b64 exec, s[36:37]")
    A.label(labn2)
    A(f"v_mov_b32 v{r.idx}, 0xdddddddd")
    A("s_waitcnt lgkmcnt(0)")
    A("s_barrier")
    if OPT.get("fuse3", 1): tail.emit_srds(A, r)
    attn.emit_q_frags(A, r)
    attn.emit_attn_prologue(A, r)
    S.mark(4)
    T.mark(26)
    attn.OPT["nodma"] = 1
    attn.OPT["extdma"] = 1
    attn.OPT["tracer"] = T if OPT.get("itrace") else None
    attn.emit_attn_loop(A, r, name)
    S.mark(5)
    T.mark(27)
    if OPT.get("fuse3", 1):
        emit_check(A, r, name, part=0)
        tail.emit_stage_o(A, r)
        emit_flag_read(A, r)
        A(f"s_cbranch_scc0 {name}_go3")
        emit_slow_compute(A, r, name)
        tail.emit_stage_o(A, r)
        A("s_barrier")
        A.label(f"{name}_go3")
        nv3 = tail.emit_compute(A, r, name, base, T)
        assert nv3 <= nv
    else:
        emit_check(A, r, name)
        A(f"s_cbranch_scc0 {name}_store")
        emit_slow_compute(A, r, name)
        A.label(f"{name}_store")
        attn.emit_attn_store(A, r, OPT.get("oflags", ""))
    A(f"s_branch {name}_fin")
    A.label(f"{name}_loader")
    A("s_setprio 3")
    A(f"s_sub_u32 s{L.s_lw}, s{r.s_w}, 8")
    emit_loader_gemm_setup(A, r, g, L)
    A(f"s_mov_b32 s{g.s_kc}, 0\ns_mov_b32 s{g.s_stw}, 0")
    if OPT.get("pf", 6) in (4, 5):
        done4 = A.newlabel("Lpf4")
        for lw, job in {0: ("x", 0, 1), 1: ("w", 0, 1), 2: ("x", 2, 3), 3: ("w", 2, 3)}.items():
            lab4 = A.newlabel("Lpf4")
            A(f"s_cmp_eq_u32 s{L.s_lw}, {lw}\ns_cbranch_scc0 {lab4}")
            emit_prefetch(A, r, g, r.t[5], *job)
            A(f"s_branch {done4}")
            A.label(lab4)
        A.label(done4)
    if OPT.get("pf", 6) in (8, 9):
        done8 = A.newlabel("Lpf8")
        jobs8 = {0: ("x", 0, 1), 1: ("w", 0, 0), 2: ("w", 1, 1), 3: ("x", 2, 5)} if OPT["pf"] == 8 else {0: ("x", 0, 3), 1: ("w", 0, 0), 2: ("w", 1, 1), 3: ("w", 2, 2)}
        for lw, job in jobs8.items():
            lab8 = A.newlabel("Lpf8")
            A(f"s_cmp_eq_u32 s{L.s_lw}, {lw}\ns_cbranch_scc0 {lab8}")
            emit_prefetch(A, r, g, r.t[5], *job)
            A(f"s_branch {done8}")
            A.label(lab8)
        A.label(done8)
        A("s_waitcnt vmcnt(0)")
    T.mark(23)
    emit_loader_gemm_dma(A, r, g, L)
    T.mark(24)
    emit_loader_gemm_dma(A, r, g, L)
    npf = 0
    T.mark(1)
    A(f"s_waitcnt vmcnt({12 + npf})")
    T.mark(2)
    A("s_barrier")
    S.mark(2)
    emit_loader_gemm_dma(A, r, g, L)
    attn.emit_srds(A, r)
    emit_loader_kv_setup(A, r, L)
    for kc in range(NCH):
        rem = max(0, min(NCH - 1, kc + 2) - (kc + 1))
        A(f"s_waitcnt vmcnt({12*rem})")
        T.mark(3 + 2 * kc)
        A("s_barrier")
        T.mark(4 + 2 * kc)
        if kc + 3 < NCH: emit_loader_gemm_dma(A, r, g, L)
    S.mark(3)
    emit_loader_ones(A, r, L)
    A(f"s_lshl_b32 s{r.s_t[0]}, s{r.s_b}, 4")
    A(f"s_add_u32 s{r.s_t[0]}, s{r.s_t[0]}, s{r.s_hp}")
    A(f"s_lshl_b32 s{r.s_t[0]}, s{r.s_t[0]}, 10")
    A(f"s_add_u32 s{r.s_t[0]}, s{r.s_t[0]}, {FLAG_OFF}")
    A(f"v_mov_b32 v{L.vflag}, s{r.s_t[0]}")
    A(f"v_lshlrev_b32 v{L.vlds}, 4, v{r.lane}")
    A("s_waitcnt lgkmcnt(0)")
    A("s_barrier")
    A(f"v_mov_b32 v{r.t[0]}, {NONCE_LDS}")
    A(f"ds_read_b32 v{r.t[0]}, v{r.t[0]}")
    A("s_waitcnt lgkmcnt(0)")
    A(f"v_readfirstlane_b32 s{L.s_nonce}, v{r.t[0]}")
    for i in range(9):
        A(f"v_add_u32 v{r.t[1]}, s{L.s_lds[i]}, v{L.vlds}")
        A(f"ds_read_b128 v[{L.buf[i]}:{L.buf[i]+3}], v{r.t[1]}")
    A(f"s_lshl_b32 s{r.s_chunk}, s{r.s_c}, 9")
    for i in range(9):
        A(f"s_waitcnt lgkmcnt({8-i})")
        A(f"buffer_store_dwordx4 v[{L.buf[i]}:{L.buf[i]+3}], v{L.vdma[i]}, s[{r.s_srd}:{r.s_srd+3}], s{r.s_chunk} offen sc1")
    A("s_waitcnt vmcnt(0)")
    S.mark(4)
    A(f"s_lshl_b32 s{r.s_t[0]}, s{r.s_c}, 7")
    A(f"s_lshl_b32 s{r.s_t[1]}, s{L.s_lw}, 2")
    A(f"s_add_u32 s{r.s_t[0]}, s{r.s_t[0]}, s{r.s_t[1]}")
    A(f"v_add_u32 v{r.t[0]}, s{r.s_t[0]}, v{L.vflag}")
    A(f"v_mov_b32 v{r.t[1]}, s{L.s_nonce}")
    A(f"v_cmp_eq_u32 vcc, 0, v{r.lane}")
    A("s_and_saveexec_b64 s[36:37], vcc")
    A(f"global_store_dword v{r.t[0]}, v{r.t[1]}, s[{r.s_ws}:{r.s_ws+1}] sc1")
    A("s_mov_b64 exec, s[36:37]")
    A(f"s_add_u32 s{r.s_seg}, s{r.s_c}, 1\ns_and_b32 s{r.s_seg}, s{r.s_seg}, 7")
    A(f"s_mov_b32 s{r.s_slotw}, {SLOT}")
    emit_poll(A, r, L, r.s_seg)
    S.mark(5)
    emit_loader_kv_dma(A, r, L)
    if OPT.get("fuse3", 1):
        tail.emit_srds(A, r)
        P = tail.emit_loader_setup(A, r, L, Vl.next)
        assert P.top <= nv
    for i in range(8):
        A("s_waitcnt vmcnt(0)")
        if i == 0: S.mark(6)
        A("s_barrier")
        if i == 5 and OPT.get("pfwo", 1):
            if not F3:
                A("s_load_dwordx2 s[40:41], s[0:1], 16")
                A("s_load_dwordx2 s[42:43], s[0:1], 40")
            A(f"s_lshl_b32 s46, s{r.s_hp}, 1\ns_and_b32 s47, s{r.s_c}, 1\ns_add_u32 s46, s46, s47\ns_mul_i32 s46, s46, 162")
            A(f"s_lshl_b32 s47, s{L.s_lw}, 6")
            A(f"v_add_u32 v{r.t[1]}, s47, v{r.lane}")
            A(f"v_min_u32 v{r.t[1]}, 161, v{r.t[1]}")
            A(f"v_add_u32 v{r.t[1]}, s46, v{r.t[1]}")
            A(f"v_lshlrev_b32 v{r.t[1]}, 7, v{r.t[1]}")
            if not F3:
                A("s_waitcnt lgkmcnt(0)")
                A(f"s_cmp_eq_u32 s{r.s_b}, 0")
                A("s_cselect_b32 s44, s40, s42\ns_cselect_b32 s45, s41, s43")
                A(f"global_load_dword v{r.t[2]}, v{r.t[1]}, s[44:45]")
            else:
                A(f"global_load_dword v{r.t[2]}, v{r.t[1]}, s[12:13]")
        if i + 2 < 8:
            emit_poll(A, r, L, r.s_seg)
            emit_loader_kv_dma(A, r, L)
        if F3 and i == 6: tail.emit_w_chunks(A, r, L, P, range(0, 7))
        if F3 and i == 7: tail.emit_w_chunks(A, r, L, P, range(7, 9))
    emit_flag_read(A, r)
    A(f"s_cbranch_scc0 {name}_noslow")
    emit_slow_loader(A, r, L, name)
    if OPT.get("fuse3", 1):
        tail.emit_w_chunks(A, r, L, P, range(7, 9))
        A("s_barrier")
    A.label(f"{name}_noslow")
    if OPT.get("fuse3", 1):
        tail.emit_loader(A, r, L, P, name, T, S)
    A.label(f"{name}_fin")
    T.mark(30)
    T.dump(r.s_ws, r.t[0])
    S.dump(r.s_ws, r.t[0], r.S[0])
    A.label(f"{name}_end")
    A("s_endpgm")
    return A.text(), nv
```

```python
from emit import *

OX_OFF = 0x1000000
OXB = 18432
FL_REL = 0x900000
X_BYTES = 0xA00000
WCH = 64 * 144
WB1 = 83968
WB2 = 0
def wbase(j): return WB1 + j * WCH if j < 7 else WB2 + (j - 7) * WCH
OB = 2 * WCH
XST = 16384; NST = 4; NCH = 9
LDS_END = WB1 + 7 * WCH
assert OB + NST * XST <= WB1
STG = OB
TSTG = OB + XST
S_XSRD = 56; S_WSRD = 60; S_DSRD = 64
OPT = {}

def emit_srds(A, r):
    A(f"s_add_u32 s{S_XSRD}, s{r.s_ws}, {OX_OFF}\ns_addc_u32 s{S_XSRD+1}, s{r.s_ws+1}, 0")
    A(f"s_mov_b32 s{S_XSRD+2}, {X_BYTES}\ns_mov_b32 s{S_XSRD+3}, 0x20000")
    A(f"s_mov_b32 s{S_WSRD}, s12\ns_mov_b32 s{S_WSRD+1}, s13")
    A(f"s_mov_b32 s{S_WSRD+2}, {576*1152}\ns_mov_b32 s{S_WSRD+3}, 0x20000")
    A(f"s_mov_b32 s{S_DSRD}, s14\ns_mov_b32 s{S_DSRD+1}, s15\ns_mov_b32 s{S_DSRD+2}, {2048*2304}\ns_mov_b32 s{S_DSRD+3}, 0x20000")

def emit_stage_o(A, r):
    t0, t1, t2, t3 = r.t[:4]
    st, st2 = r.s_t[:2]
    A(f"s_and_b32 s{st}, s{r.s_w}, 3\ns_lshl_b32 s{st}, s{st}, 6")
    A(f"v_and_b32 v{t0}, 31, v{r.lane}")
    A(f"v_add_u32 v{t0}, s{st}, v{t0}")
    A(f"s_lshr_b32 s{st2}, s{r.s_w}, 2")
    A(f"v_lshrrev_b32 v{t1}, 5, v{r.lane}")
    A(f"v_lshlrev_b32 v{t2}, 6, v{t0}")
    A(f"v_lshl_add_u32 v{t2}, v{t1}, 5, v{t2}")
    A(f"s_lshl_b32 s{st}, s{st2}, 3\ns_add_u32 s{st}, s{st}, {STG}")
    A(f"v_add_u32 v{t2}, s{st}, v{t2}")
    A(f"v_lshlrev_b32 v{t3}, 3, v{t0}")
    A(f"s_lshl_b32 s{st}, s{st2}, 2\ns_add_u32 s{st}, s{st}, {TSTG}")
    A(f"v_add_u32 v{t3}, s{st}, v{t3}")
    for u in range(2):
        A(f"v_rcp_f32 v{r.t[4+u]}, v{r.O[u]+10}")
    for u in range(2):
        o = r.O[u]; rc = r.t[4 + u]
        for i in range(10):
            A(f"v_mul_f32 v{o+i}, v{o+i}, v{rc}")
        pk = r.S[u]
        for i in range(5):
            A(f"v_cvt_pk_bf16_f32 v{pk+i}, v{o+2*i}, v{o+2*i+1}")
        A(f"ds_write_b64 v{t2}, v[{pk}:{pk+1}] offset:{32*64*u}")
        A(f"ds_write_b64 v{t2}, v[{pk+2}:{pk+3}] offset:{32*64*u + 16}")
        A("s_mov_b64 s[36:37], exec")
        A("s_mov_b32 exec_hi, 0")
        A(f"ds_write_b32 v{t3}, v{pk+4} offset:{32*8*u}")
        A("s_mov_b64 exec, s[36:37]")
    A("s_waitcnt lgkmcnt(0)")

def emit_compute(A, r, name, base, T=None):
    V = RegAlloc(base, 168, "v")
    t0, t1, t2, t3, t4, t5 = r.t
    lane = r.lane
    aB = [V.alloc(f"aB{k}") for k in range(2)]
    aA = [V.alloc(f"aA{k}") for k in range(3)]
    aT = V.alloc("aT")
    FO = [[V.alloc(f"FO{s}{i}", 4, 2) for i in range(2)] for s in range(2)]
    FW = [[V.alloc(f"FW{s}{i}", 4, 2) for i in range(3)] for s in range(2)]
    acc = [[V.alloc(f"acc{i}{c}", 4, 4) for c in range(3)] for i in range(2)]
    st, st2, st3, st4 = r.s_t
    s_w = r.s_w; s_it = r.s_it; s_rst = 46; s_gd = 47
    A(f"s_and_b32 s{st3}, s{s_w}, 3")
    A(f"v_and_b32 v{t0}, 15, v{lane}")
    A(f"v_lshrrev_b32 v{t1}, 1, v{t0}")
    A(f"v_lshrrev_b32 v{t2}, 4, v{lane}")
    A(f"v_xor_b32 v{t1}, v{t1}, v{t2}")
    A(f"s_lshl_b32 s{st}, s{st3}, 12\ns_add_u32 s{st}, s{st}, {OB}")
    A(f"v_lshlrev_b32 v{t3}, 7, v{t0}")
    A(f"v_add_u32 v{t3}, s{st}, v{t3}")
    A(f"v_lshl_add_u32 v{aB[0]}, v{t1}, 4, v{t3}")
    A(f"v_xor_b32 v{t1}, 4, v{t1}")
    A(f"v_lshl_add_u32 v{aB[1]}, v{t1}, 4, v{t3}")
    A(f"v_lshlrev_b32 v{t2}, 11, v{t2}")
    A(f"v_lshl_add_u32 v{t2}, v{t0}, 3, v{t2}")
    A(f"s_lshl_b32 s{st}, s{st3}, 8\ns_add_u32 s{st}, s{st}, {OB + (8 % NST) * XST}")
    A(f"v_add_u32 v{aT}, s{st}, v{t2}")
    A(f"v_lshrrev_b32 v{t0}, 4, v{lane}")
    A(f"v_lshrrev_b32 v{t1}, 2, v{lane}")
    A(f"v_and_b32 v{t1}, 3, v{t1}")
    A(f"v_lshl_add_u32 v{t2}, v{t0}, 2, v{t1}")
    A(f"v_mul_u32_u24 v{t2}, 144, v{t2}")
    A(f"v_add_u32 v{t2}, {WB1}, v{t2}")
    A(f"v_and_b32 v{t3}, 3, v{lane}")
    def tile_addr(dst, ct):
        A(f"v_lshl_add_u32 v{dst}, v{t3}, 3, v{t2}")
        if ct: A(f"v_add_u32 v{dst}, {32*ct}, v{dst}")
    end = A.newlabel("Lt3e")
    for cg in range(2):
        tiles = [0, 1, 4] if cg == 0 else [2, 3]
        nt = len(tiles)
        nxt = A.newlabel("Lt3c")
        if cg == 0: A(f"s_cmp_ge_u32 s{s_w}, 4\ns_cbranch_scc1 {nxt}")
        for k, ct in enumerate(tiles): tile_addr(aA[k], ct)
        for i in range(2):
            for c in range(nt):
                for j in range(4): A(f"v_mov_b32 v{acc[i][c]+j}, 0")
        def rlist(s, ks, tailchunk=False):
            out = []
            if OPT.get("nord"): return out
            for i in range(2):
                if tailchunk:
                    out.append(f"ds_read_b64 v[{FO[s][i]}:{FO[s][i]+1}], v{aT} offset:{8192*ks + 128*i}")
                    out.append(f"ds_read_b64 v[{FO[s][i]+2}:{FO[s][i]+3}], v{aT} offset:{8192*ks + 128*i + 1024}")
                else:
                    out.append(f"ds_read_b128 v[{FO[s][i]}:{FO[s][i]+3}], v{aB[ks]} offset:{2048*i}")
            for c in range(nt):
                out.append(f"ds_read_b64_tr_b16 v[{FW[s][c]}:{FW[s][c]+1}], v{aA[c]} offset:{4608*ks}")
                out.append(f"ds_read_b64_tr_b16 v[{FW[s][c]+2}:{FW[s][c]+3}], v{aA[c]} offset:{4608*ks+16*144}")
            return out
        def mlist(s):
            out = []
            if OPT.get("nomf"): return ["s_nop 0"]
            for c in range(nt):
                for i in range(2):
                    out.append(f"v_mfma_f32_16x16x32_bf16 v[{acc[i][c]}:{acc[i][c]+3}], v[{FW[s][c]}:{FW[s][c]+3}], v[{FO[s][i]}:{FO[s][i]+3}], v[{acc[i][c]}:{acc[i][c]+3}]")
            return out
        def inter(mf, ex):
            per = max(1, -(-len(ex) // len(mf)))
            k = 0
            for m in mf:
                A(m)
                for _ in range(per):
                    if k < len(ex): A(ex[k]); k += 1
        A(f"s_mov_b32 s{s_rst}, 0\ns_mov_b32 s{s_it}, 0")
        A("s_barrier")
        if T and cg == 0: T.mark(28)
        for x in rlist(0, 0): A(x)
        A("s_waitcnt lgkmcnt(0)")
        lab = f"{name}_t3l{cg}"
        A.label(lab)
        inter(mlist(0), rlist(1, 1))
        A(f"s_add_u32 s{s_rst}, s{s_rst}, 1\ns_cmp_eq_u32 s{s_rst}, {NST}")
        A(f"s_mov_b32 s{s_gd}, {XST}\ns_cmov_b32 s{s_gd}, {-(NST-1)*XST & 0xffffffff}")
        A(f"s_cselect_b32 s{s_rst}, 0, s{s_rst}")
        A("s_waitcnt lgkmcnt(0)")
        A("s_barrier")
        for x in [aB[0], aB[1]]: A(f"v_add_u32 v{x}, s{s_gd}, v{x}")
        A(f"s_cmp_eq_u32 s{s_it}, 6")
        A(f"s_mov_b32 s{s_gd}, {WCH}\ns_cmov_b32 s{s_gd}, {(wbase(7) - wbase(6)) & 0xffffffff}")
        for x in aA[:nt]: A(f"v_add_u32 v{x}, s{s_gd}, v{x}")
        A(f"s_add_u32 s{s_it}, s{s_it}, 1\ns_cmp_lt_u32 s{s_it}, 8")
        labp = A.newlabel("Lt3p")
        A(f"s_cbranch_scc0 {labp}")
        inter(mlist(1), rlist(0, 0))
        A("s_waitcnt lgkmcnt(0)")
        A(f"s_branch {lab}")
        A.label(labp)
        inter(mlist(1), rlist(0, 0, True))
        A("s_waitcnt lgkmcnt(0)")
        inter(mlist(0), rlist(1, 1, True))
        A("s_waitcnt lgkmcnt(0)")
        A("s_barrier")
        for m in mlist(1): A(m)
        if T and cg == 0: T.mark(29)
        A("s_nop 7")
        A(f"v_and_b32 v{t0}, 15, v{lane}")
        A(f"s_lshl_b32 s{st}, s{r.s_c}, 8\ns_lshr_b32 s{st2}, s{r.s_hp}, 3\ns_lshl_b32 s{st2}, s{st2}, 7\ns_add_u32 s{st}, s{st}, s{st2}")
        A(f"s_and_b32 s{st2}, s{s_w}, 3\ns_lshl_b32 s{st2}, s{st2}, 5\ns_add_u32 s{st}, s{st}, s{st2}")
        A(f"v_add_u32 v{t0}, s{st}, v{t0}")
        A(f"v_mul_u32_u24 v{t0}, 2304, v{t0}")
        A(f"v_lshrrev_b32 v{t1}, 4, v{lane}")
        A(f"s_mul_i32 s{st}, s{r.s_b}, 1152\ns_and_b32 s{st2}, s{r.s_hp}, 7\ns_mul_i32 s{st2}, s{st2}, 144\ns_add_u32 s{st}, s{st}, s{st2}")
        A(f"v_and_b32 v{t2}, 1, v{t1}")
        A(f"v_lshlrev_b32 v{t2}, 5, v{t2}")
        A(f"v_lshrrev_b32 v{t3}, 1, v{t1}")
        A(f"v_lshl_add_u32 v{t2}, v{t3}, 4, v{t2}")
        A(f"v_add_u32 v{t2}, v{t2}, v{t0}")
        A(f"v_lshl_add_u32 v{t3}, v{t1}, 3, v{t0}")
        fl = OPT.get("stflags", "")
        for i in range(2):
            a0, a1 = acc[i][0], acc[i][1]
            pk = FW[0][i]
            A(f"v_cvt_pk_bf16_f32 v{pk}, v{a0}, v{a0+1}\nv_cvt_pk_bf16_f32 v{pk+1}, v{a0+2}, v{a0+3}")
            A(f"v_cvt_pk_bf16_f32 v{pk+2}, v{a1}, v{a1+1}\nv_cvt_pk_bf16_f32 v{pk+3}, v{a1+2}, v{a1+3}")
            if cg == 0:
                a2 = acc[i][2]; p2 = FW[1][i]
                A(f"v_cvt_pk_bf16_f32 v{p2}, v{a2}, v{a2+1}\nv_cvt_pk_bf16_f32 v{p2+1}, v{a2+2}, v{a2+3}")
        A("s_nop 1")
        for i in range(2):
            pk = FW[0][i]
            A(f"v_permlane16_swap_b32 v{pk}, v{pk+2}")
            A(f"v_permlane16_swap_b32 v{pk+1}, v{pk+3}")
        A("s_nop 1")
        for i in range(2):
            if i == 1: A(f"s_add_u32 s{st}, s{st}, {16*2304}")
            pk = FW[0][i]
            A(f"buffer_store_dwordx4 v[{pk}:{pk+3}], v{t2}, s[{S_DSRD}:{S_DSRD+3}], s{st} offen offset:{64*cg}{fl}")
            if cg == 0:
                p2 = FW[1][i]
                A(f"v_cmp_gt_u32 vcc, 2, v{t1}")
                A("s_and_saveexec_b64 s[36:37], vcc")
                A(f"buffer_store_dwordx2 v[{p2}:{p2+1}], v{t3}, s[{S_DSRD}:{S_DSRD+3}], s{st} offen offset:128{fl}")
                A("s_mov_b64 exec, s[36:37]")
        if cg == 0:
            A(f"s_branch {end}")
            A.label(nxt)
    A.label(end)
    return V.next

def emit_loader_setup(A, r, L, base):
    V = RegAlloc(base, 168, "v")
    t0, t1, t2, t3, t4, t5 = r.t
    lane = r.lane; st, st2, st3, st4 = r.s_t
    P = type("P", (), {})()
    P.vo = [V.alloc(f"vo{i}") for i in range(4)]
    P.vt = V.alloc("vt")
    P.vfl = V.alloc("vfl")
    P.vw = [V.alloc(f"vw{i}") for i in range(3)]
    P.vw8 = [V.alloc(f"vw8{i}") for i in range(3)]
    P.buf = [V.alloc(f"b{i}", 4, 4) for i in range(5)]
    P.top = V.next
    lw = L.s_lw
    A(f"v_lshrrev_b32 v{t0}, 3, v{lane}")
    A(f"s_lshr_b32 s{st}, s{r.s_hp}, 3\ns_lshl_b32 s{st3}, s{st}, 7\ns_lshl_b32 s{st2}, s{lw}, 5\ns_add_u32 s{st}, s{st3}, s{st2}")
    A(f"v_add_u32 v{t0}, s{st}, v{t0}")
    A(f"v_and_b32 v{t1}, 7, v{lane}")
    A(f"v_lshrrev_b32 v{t2}, 4, v{lane}")
    for i in range(4):
        A(f"v_or_b32 v{t3}, {4*(i&1)}, v{t2}")
        A(f"v_xor_b32 v{t3}, v{t3}, v{t1}")
        A(f"v_add_u32 v{t4}, {8*i}, v{t0}")
        A(f"v_lshrrev_b32 v{t5}, 2, v{t3}")
        A(f"v_mul_u32_u24 v{t5}, {OXB}, v{t5}")
        A(f"v_lshl_add_u32 v{t5}, v{t4}, 6, v{t5}")
        A(f"v_and_b32 v{P.vo[i]}, 3, v{t3}")
        A(f"v_lshl_add_u32 v{P.vo[i]}, v{P.vo[i]}, 4, v{t5}")
    A(f"s_lshl_b32 s{st3}, s{st3}, 3\ns_add_u32 s{st3}, s{st3}, 16384")
    A(f"v_lshlrev_b32 v{P.vt}, 4, v{lane}")
    A(f"v_add_u32 v{P.vt}, s{st3}, v{P.vt}")
    A(f"s_lshl_b32 s{st}, s{r.s_b}, 3\ns_add_u32 s{st}, s{st}, s{r.s_c}\ns_lshl_b32 s{st}, s{st}, 11\ns_add_u32 s{st}, s{st}, {FL_REL}")
    A(f"v_lshrrev_b32 v{t0}, 2, v{lane}")
    A(f"v_lshlrev_b32 v{t0}, 7, v{t0}")
    A(f"v_and_b32 v{t1}, 3, v{lane}")
    A(f"v_lshl_add_u32 v{t0}, v{t1}, 2, v{t0}")
    A(f"v_add_u32 v{P.vfl}, s{st}, v{t0}")
    A(f"s_and_b32 s{st3}, s{r.s_hp}, 7\ns_mul_i32 s{st3}, s{st3}, 144")
    for k in range(3):
        if k < 2: A(f"s_add_u32 s{st}, s{lw}, {4*k}\ns_lshl_b32 s{st}, s{st}, 6")
        else: A(f"s_movk_i32 s{st}, 512")
        A(f"v_add_u32 v{t3}, s{st}, v{lane}")
        A(f"v_mul_u32_u24 v{t4}, 7282, v{t3}")
        A(f"v_lshrrev_b32 v{t4}, 16, v{t4}")
        A(f"v_mul_u32_u24 v{t0}, 9, v{t4}")
        A(f"v_sub_u32 v{t3}, v{t3}, v{t0}")
        A(f"v_lshlrev_b32 v{t3}, 4, v{t3}")
        A(f"v_add_u32 v{t3}, s{st3}, v{t3}")
        A(f"v_lshrrev_b32 v{t0}, 5, v{t4}")
        A(f"v_mul_u32_u24 v{t0}, 36, v{t0}")
        A(f"v_bfe_u32 v{t1}, v{t4}, 4, 1")
        A(f"v_mul_u32_u24 v{t1}, 18, v{t1}")
        A(f"v_and_b32 v{t2}, 15, v{t4}")
        A(f"v_add3_u32 v{t0}, v{t0}, v{t1}, v{t2}")
        A(f"v_mul_u32_u24 v{t0}, 1152, v{t0}")
        A(f"v_add_u32 v{P.vw[k]}, v{t0}, v{t3}")
        A(f"v_lshrrev_b32 v{t0}, 5, v{t4}")
        A(f"v_lshlrev_b32 v{t0}, 3, v{t0}")
        A(f"v_bfe_u32 v{t1}, v{t4}, 2, 2")
        A(f"v_lshl_add_u32 v{t0}, v{t1}, 1, v{t0}")
        A(f"v_bfe_u32 v{t1}, v{t4}, 4, 1")
        A(f"v_add_u32 v{t0}, v{t0}, v{t1}")
        A(f"v_mul_u32_u24 v{t0}, 36, v{t0}")
        A(f"v_and_b32 v{t1}, 3, v{t4}")
        A(f"v_add3_u32 v{t0}, v{t0}, v{t1}, 16")
        A(f"v_lshrrev_b32 v{t1}, 1, v{t1}")
        A(f"v_lshl_add_u32 v{t0}, v{t1}, 4, v{t0}")
        A(f"v_mul_u32_u24 v{t0}, 1152, v{t0}")
        A(f"v_add_u32 v{P.vw8[k]}, v{t0}, v{t3}")
    A(f"s_lshl_b32 s51, s{r.s_b}, 3\ns_add_u32 s51, s51, s{r.s_c}\ns_mul_i32 s51, s51, {16*OXB}")
    A(f"s_mul_i32 s52, s{r.s_hp}, {OXB}\ns_add_u32 s52, s52, s51")
    A(f"s_lshl_b32 s53, s{r.s_b}, 3\ns_add_u32 s53, s53, s{r.s_c}\ns_lshl_b32 s53, s53, 4\ns_add_u32 s53, s53, s{r.s_hp}")
    A(f"s_lshl_b32 s53, s53, 7\ns_lshl_b32 s{st2}, s{lw}, 2\ns_add_u32 s53, s53, s{st2}\ns_add_u32 s53, s53, {FL_REL}")
    return P

def emit_w_chunks(A, r, L, P, chunks):
    st, st2 = r.s_t[:2]
    lw = L.s_lw
    for j in chunks:
        regs = P.vw if j < 8 else P.vw8
        so = 72 * j * 1152 if j < 8 else 0
        for k in range(3):
            lab = None
            if k == 2:
                lab = A.newlabel("Lw8")
                A(f"s_cmp_lg_u32 s{lw}, 0\ns_cbranch_scc1 {lab}")
                A(f"s_mov_b32 m0, {wbase(j) + 8192}")
            else:
                A(f"s_lshl_b32 s{st}, s{lw}, 10\ns_add_u32 m0, s{st}, {wbase(j) + 4096*k}")
            A(f"s_mov_b32 s{st2}, {so}")
            A(f"buffer_load_dwordx4 v{regs[k]}, s[{S_WSRD}:{S_WSRD+3}], s{st2} offen lds")
            if lab: A.label(lab)

def emit_loader(A, r, L, P, name, T=None, S=None):
    t0, t1, t2 = r.t[:3]
    lane = r.lane; st, st2, st3, st4 = r.s_t
    lw = L.s_lw
    A(f"v_lshlrev_b32 v{t2}, 4, v{lane}")
    A(f"s_lshl_b32 s{st}, s{lw}, 12\ns_add_u32 s{st}, s{st}, {STG}")
    A(f"v_add_u32 v{t0}, s{st}, v{t2}")
    for i in range(4):
        A(f"ds_read_b128 v[{P.buf[i]}:{P.buf[i]+3}], v{t0} offset:{1024*i}")
    A(f"s_lshl_b32 s{st}, s{lw}, 10\ns_add_u32 s{st}, s{st}, {TSTG}")
    A(f"v_add_u32 v{t1}, s{st}, v{t2}")
    A(f"ds_read_b128 v[{P.buf[4]}:{P.buf[4]+3}], v{t1}")
    A(f"s_lshl_b32 s{st2}, s{lw}, 12\ns_add_u32 s{st}, s52, s{st2}")
    for i in range(4):
        A(f"s_waitcnt lgkmcnt({4-i})")
        A(f"buffer_store_dwordx4 v[{P.buf[i]}:{P.buf[i]+3}], v{t2}, s[{S_XSRD}:{S_XSRD+3}], s{st} offen offset:{1024*i} sc1")
    labt = A.newlabel("Ltt")
    A(f"s_cmp_ge_u32 s{lw}, 2\ns_cbranch_scc1 {labt}")
    A(f"s_lshl_b32 s{st2}, s{lw}, 10\ns_add_u32 s{st}, s52, s{st2}\ns_add_u32 s{st}, s{st}, 16384")
    A("s_waitcnt lgkmcnt(0)")
    A(f"buffer_store_dwordx4 v[{P.buf[4]}:{P.buf[4]+3}], v{t2}, s[{S_XSRD}:{S_XSRD+3}], s{st} offen sc1")
    A.label(labt)
    def o_dma(j, stage):
        for i in range(4):
            A(f"s_lshl_b32 s{st}, s{lw}, 12\ns_add_u32 m0, s{st}, {OB + stage*XST + 1024*i}")
            if j < 8:
                A(f"s_add_u32 s{st2}, s51, {2*j*OXB}")
                A(f"buffer_load_dwordx4 v{P.vo[i]}, s[{S_XSRD}:{S_XSRD+3}], s{st2} offen{OPT.get('oload', ' sc1')} lds")
            else:
                A(f"s_lshl_b32 s{st2}, s{lw}, 2\ns_add_u32 s{st2}, s{st2}, {i}\ns_mul_i32 s{st2}, s{st2}, {OXB}\ns_add_u32 s{st2}, s{st2}, s51")
                A(f"buffer_load_dwordx4 v{P.vt}, s[{S_XSRD}:{S_XSRD+3}], s{st2} offen{OPT.get('oload', ' sc1')} lds")
    A("s_waitcnt lgkmcnt(0)")
    A("s_waitcnt vmcnt(0)")
    if S: S.mark(7)
    A(f"v_mov_b32 v{t0}, s53\nv_mov_b32 v{t1}, s{L.s_nonce}")
    A(f"v_cmp_eq_u32 vcc, 0, v{lane}")
    A("s_and_saveexec_b64 s[36:37], vcc")
    A(f"buffer_store_dword v{t1}, v{t0}, s[{S_XSRD}:{S_XSRD+3}], 0 offen sc1")
    A("s_mov_b64 exec, s[36:37]")
    lab = A.newlabel("Lp3"); done = A.newlabel("Lp3d")
    A(f"s_mov_b32 s{st3}, 0")
    A.label(lab)
    A(f"buffer_load_dword v{t0}, v{P.vfl}, s[{S_XSRD}:{S_XSRD+3}], 0 offen sc1")
    A("s_waitcnt vmcnt(0)")
    A(f"v_cmp_eq_u32 vcc, s{L.s_nonce}, v{t0}")
    A("s_nop 3")
    A("s_cmp_eq_u64 vcc, -1")
    A(f"s_cbranch_scc1 {done}")
    A(f"s_add_u32 s{st3}, s{st3}, 1\ns_cmp_lt_u32 s{st3}, 0x4000")
    A(f"s_cbranch_scc1 {lab}")
    A.label(done)
    if T: T.mark(28)
    q = []
    for j in range(NST):
        o_dma(j, j); q += [j] * 4
    if OPT.get("pfo", 1):
        labp = A.newlabel("Lpfo"); labq = A.newlabel("Lpfo")
        A(f"s_cmp_ge_u32 s{lw}, 2\ns_cbranch_scc1 {labp}")
        A(f"s_cmp_eq_u32 s{lw}, 0\ns_cbranch_scc0 {labq}")
        A(f"s_and_b32 s{st}, s{r.s_hp}, 7\ns_add_u32 s{st}, s{st}, 8\ns_mul_i32 s{st}, s{st}, {OXB}\ns_add_u32 s{st}, s{st}, s51")
        A(f"s_lshr_b32 s{st2}, s{r.s_hp}, 3\ns_lshl_b32 s{st2}, s{st2}, 13\ns_add_u32 s{st}, s{st}, s{st2}")
        A(f"v_lshlrev_b32 v{t1}, 7, v{lane}")
        A(f"buffer_load_dword v{t2}, v{t1}, s[{S_XSRD}:{S_XSRD+3}], s{st} offen{OPT.get('pfflag', ' sc1')}")
        A(f"s_branch {labp}")
        A.label(labq)
        A(f"s_and_b32 s{st}, s{r.s_hp}, 7\ns_lshl_b32 s{st}, s{st}, 1\ns_mul_i32 s{st}, s{st}, {OXB}\ns_add_u32 s{st}, s{st}, s51")
        A(f"s_lshr_b32 s{st2}, s{r.s_hp}, 3\ns_lshl_b32 s{st2}, s{st2}, 10\ns_add_u32 s{st}, s{st}, s{st2}\ns_add_u32 s{st}, s{st}, 16384")
        A(f"v_and_b32 v{t1}, 7, v{lane}")
        A(f"v_lshlrev_b32 v{t1}, 7, v{t1}")
        A(f"v_bfe_u32 v{t2}, v{lane}, 3, 1")
        A(f"v_mul_u32_u24 v{t2}, {OXB}, v{t2}")
        A(f"v_add_u32 v{t1}, v{t1}, v{t2}")
        A(f"buffer_load_dword v{t2}, v{t1}, s[{S_XSRD}:{S_XSRD+3}], s{st} offen{OPT.get('pfflag', ' sc1')}")
        A.label(labp)
        PFO = True
    else:
        PFO = False
    def wait_for(j):
        last = max(i for i, c in enumerate(q) if c <= j)
        A(f"s_waitcnt vmcnt({len(q) - 1 - last})")
    wait_for(0)
    A("s_barrier")
    for it in range(NCH):
        if it + 1 < NCH and not OPT.get("nowait"): wait_for(it + 1)
        A("s_barrier")
        j = it + NST
        if j < NCH:
            if not OPT.get("nodma"): o_dma(j, j % NST)
            q += [j] * 4
```

```python
import sys
sys.path.insert(0, "gen")
import attn, qkv, oproj, fused, tail
from emit import kernel_desc
attn.OPT.update(dict(zrows=1, pphase=1))
for a in sys.argv[2:]:
    k, _, v = a.partition("=")
    if k.startswith("a."): attn.OPT[k[2:]] = int(v) if v.lstrip("-").isdigit() else v
    elif k.startswith("f."): fused.OPT[k[2:]] = (int(v) if v.isdigit() else ("" if v == "none" else " " + v.replace("+", " ")))
    elif k.startswith("t."): tail.OPT[k[2:]] = (int(v) if v.isdigit() else ("" if v == "none" else " " + v.replace("+", " ")))
    elif k.startswith("o."): oproj.OPT[k[2:]] = (int(v) if v.isdigit() else ("" if v == "none" else " " + v.replace("+", " ")))
RT = "rt" in sys.argv
KN = "concat_heads__mha_block__mha_block__prompt_kernel" if fused.OPT.get("fuse3", 1) else "fused_kernel"
t1, n1 = fused.gen_fused(KN, rt=0 if RT else None)
F3 = fused.OPT.get("fuse3", 1)
t3, n3 = oproj.gen_oproj("oproj_kernel", rt=1 if RT else None) if not F3 else ("", 0)
ref = open("concat_heads__mha_block__mha_block__prompt.s.ref").read().splitlines()
hdr = [l for l in ref if l.startswith(";")][:10]
out = "\n".join(hdr) + "\n"
if F3:
    out += f"; @launch grid=(256,1,1) block=(768,1,1) lds={fused.LDS_FUSED}\n"
else:
    out += f"; @launch kernel=fused_kernel grid=(256,1,1) block=(768,1,1) lds={fused.LDS_FUSED}\n"
    out += f"; @launch kernel=oproj_kernel grid=(256,1,1) block=(512,1,1) lds={oproj.LDS_OP}\n"
out += '.amdgcn_target "amdgcn-amd-amdhsa--gfx950"\n.text\n' + t1 + t3
out += '.section .rodata,"a"\n' + kernel_desc(KN, n1) + (kernel_desc("oproj_kernel", n3) if not F3 else "")
dst = sys.argv[1]
open(dst, "w").write(out)
print("written", dst, len(out), "vgprs", n1, n3)
```

```python
from emit import *

ROWB = 4096
BLK_BYTES = 1728 * ROWB
O_OFF = 0x1000000
O_BLK = 2048 * 1152
KPAIR, VPAIR = 1152, 1056
KBLK, VBLK = 10496, 9728
HEADSZ = KBLK + VBLK
ONES = 2 * HEADSZ
ZEROS = ONES + 768
SLOT = ONES + 1536
NSLOT = 3
QOFF = NSLOT * SLOT
LDS_ATTN = QOFF + 2 * KBLK

OPT = {}

class R:
    pass

def alloc_attn_regs(V, r):
    r.lane = V.alloc("lane")
    r.t = [V.alloc(f"t{i}") for i in range(6)]
    r.vdma = [V.alloc(f"dma{i}") for i in range(5)]
    r.kE = V.alloc("kE"); r.kO = V.alloc("kO"); r.tE = V.alloc("tE"); r.tO = V.alloc("tO"); r.vA = V.alloc("vA")
    r.idx = V.alloc("idx")
    r.Qm = [V.alloc(f"Qm{u}", 4, 2) for u in range(2)]
    r.Qt = [V.alloc(f"Qt{u}", 2, 2) for u in range(2)]
    r.Km = [V.alloc(f"Km{p}", 4, 2) for p in range(2)]
    r.Kt = [V.alloc(f"Kt{p}", 2, 2) for p in range(2)]
    r.V1 = [V.alloc(f"V1{p}", 4, 2) for p in range(2)]
    r.V2 = [V.alloc(f"V2{p}", 4, 2) for p in range(2)]
    r.S = [V.alloc(f"S{i}", 16, 4) for i in range(4)]
    r.O = [V.alloc(f"O{u}", 16, 4) for u in range(2)]

def alloc_sregs(r):
    r.s_ws = 4; r.s_srd = 8; r.s_osrd = 12
    r.s_w = 16; r.s_b = 17; r.s_hp = 18; r.s_c = 19
    r.s_lds = [20, 21, 22, 23, 24]
    r.s_slotw = 25; r.s_chunk = 26; r.s_it = 27; r.s_delta = 28; r.s_rslot = 29
    r.s_t = [30, 31, 32, 33]
    r.s_seg = 34
    r.s_hbase = 35

def emit_ids(A, r):
    t0 = r.t[0]
    A(f"v_and_b32 v{r.lane}, 63, v0")
    A(f"v_lshrrev_b32 v{t0}, 6, v0")
    A("s_and_b32 s3, s2, 7")
    A(f"s_lshr_b32 s{r.s_t[0]}, s2, 3")
    A(f"v_readfirstlane_b32 s{r.s_w}, v{t0}")
    A(f"s_lshr_b32 s{r.s_b}, s3, 2")
    if OPT.get("map", 162) == 162:
        A(f"s_lshr_b32 s{r.s_hp}, s{r.s_t[0]}, 1")
        if OPT.get("hpperm", 0):
            A(f"s_and_b32 s{r.s_c}, s{r.s_hp}, 7")
            A(f"s_lshr_b32 s{r.s_t[1]}, s{r.s_hp}, 3")
            A(f"s_cmp_lt_u32 s{r.s_c}, 4\ns_cselect_b32 s{r.s_hp}, 1, 0")
            A(f"s_xor_b32 s{r.s_hp}, s{r.s_hp}, s{r.s_t[1]}")
            A(f"s_lshl_b32 s{r.s_c}, s{r.s_c}, 1\ns_add_u32 s{r.s_hp}, s{r.s_hp}, s{r.s_c}")
        A(f"s_and_b32 s3, s3, 3\ns_lshl_b32 s3, s3, 1")
        A(f"s_and_b32 s{r.s_c}, s{r.s_t[0]}, 1\ns_add_u32 s{r.s_c}, s{r.s_c}, s3")
    elif OPT.get("map") == 200:
        A(f"s_lshr_b32 s{r.s_b}, s3, 1\ns_and_b32 s{r.s_b}, s{r.s_b}, 1")
        A(f"s_lshr_b32 s{r.s_hp}, s{r.s_t[0]}, 2")
        A(f"s_cmp_lt_u32 s{r.s_hp}, 4\ns_cselect_b32 s{r.s_c}, 1, 0")
        A(f"s_lshr_b32 s{r.s_t[1]}, s3, 2")
        A(f"s_xor_b32 s{r.s_c}, s{r.s_c}, s{r.s_t[1]}")
        A(f"s_lshl_b32 s{r.s_hp}, s{r.s_hp}, 1\ns_add_u32 s{r.s_hp}, s{r.s_hp}, s{r.s_c}")
        A(f"s_and_b32 s3, s3, 1\ns_lshl_b32 s3, s3, 2")
        A(f"s_and_b32 s{r.s_c}, s{r.s_t[0]}, 3\ns_add_u32 s{r.s_c}, s{r.s_c}, s3")
    elif OPT.get("map") == 84:
        A(f"s_lshr_b32 s{r.s_hp}, s3, 1\ns_and_b32 s{r.s_hp}, s{r.s_hp}, 1\ns_lshl_b32 s{r.s_hp}, s{r.s_hp}, 3")
        A(f"s_lshr_b32 s{r.s_c}, s{r.s_t[0]}, 2\ns_add_u32 s{r.s_hp}, s{r.s_hp}, s{r.s_c}")
        A(f"s_and_b32 s3, s3, 1\ns_lshl_b32 s3, s3, 2")
        A(f"s_and_b32 s{r.s_c}, s{r.s_t[0]}, 3\ns_add_u32 s{r.s_c}, s{r.s_c}, s3")
    else:
        A(f"s_and_b32 s3, s3, 3")
        A(f"s_lshl_b32 s3, s3, 2")
        A(f"s_lshr_b32 s{r.s_hp}, s{r.s_t[0]}, 3")
        A(f"s_add_u32 s{r.s_hp}, s{r.s_hp}, s3")
        A(f"s_and_b32 s{r.s_c}, s{r.s_t[0]}, 7")

def emit_srds(A, r):
    t = r.s_t[0]
    A(f"s_mul_i32 s{t}, s{r.s_b}, {BLK_BYTES}")
    A(f"s_add_u32 s{r.s_srd}, s{r.s_ws}, s{t}")
    A(f"s_addc_u32 s{r.s_srd+1}, s{r.s_ws+1}, 0")
    A(f"s_mov_b32 s{r.s_srd+2}, {BLK_BYTES}")
    A(f"s_mov_b32 s{r.s_srd+3}, 0x20000")
    if getattr(r, "no_osrd", False): return
    A(f"s_mul_i32 s{t}, s{r.s_b}, {O_BLK}")
    A(f"s_add_u32 s{t}, s{t}, {O_OFF}")
    A(f"s_add_u32 s{r.s_osrd}, s{r.s_ws}, s{t}")
    A(f"s_addc_u32 s{r.s_osrd+1}, s{r.s_ws+1}, 0")
    A(f"s_mov_b32 s{r.s_osrd+2}, {O_BLK}")
    A(f"s_mov_b32 s{r.s_osrd+3}, 0x20000")

def emit_dma_setup(A, r, with_q):
    t0, t1, t2, t3 = r.t[:4]
    st, st2, st3, st4 = r.s_t
    A(f"v_lshrrev_b32 v{t0}, 5, v{r.lane}")
    A(f"v_and_b32 v{t1}, 31, v{r.lane}")
    A(f"v_lshlrev_b32 v{t2}, 2, v{t0}")
    A(f"v_xor_b32 v{t2}, v{t2}, v{t1}")
    A(f"v_lshlrev_b32 v{t2}, 4, v{t2}")
    A(f"v_lshl_add_u32 v{t2}, v{t0}, 12, v{t2}")
    A(f"v_xor_b32 v{t3}, v{t0}, v{t1}")
    A(f"v_lshlrev_b32 v{t3}, 4, v{t3}")
    A(f"v_lshl_add_u32 v{t3}, v{t0}, 12, v{t3}")
    if with_q:
        A(f"s_lshl_b32 s{r.s_chunk}, s{r.s_c}, 9")
        for i in range(3):
            lab = A.newlabel("Lq")
            A(f"s_add_u32 s{st}, s{r.s_w}, {8*i}")
            if i == 2:
                A(f"s_cmp_ge_u32 s{st}, 18\ns_cbranch_scc1 {lab}")
            A(f"s_cmp_ge_u32 s{st}, 9")
            A(f"s_cselect_b32 s{st2}, {KBLK - 9*KPAIR}, 0")
            A(f"s_mul_i32 s{st3}, s{st}, {KPAIR}")
            A(f"s_add_u32 s{st2}, s{st2}, s{st3}")
            A(f"s_add_u32 m0, s{st2}, {QOFF}")
            A(f"s_mul_i32 s{st3}, s{r.s_hp}, 36")
            A(f"s_lshl_b32 s{st}, s{st}, 1")
            A(f"s_add_u32 s{st3}, s{st3}, s{st}")
            A(f"s_lshl_b32 s{st3}, s{st3}, 12")
            A(f"s_add_u32 s{st3}, s{st3}, s{r.s_chunk}")
            A(f"buffer_load_dwordx4 v{t2}, s[{r.s_srd}:{r.s_srd+3}], s{st3} offen lds")
            A.label(lab)
    for i in range(5):
        if i < 4:
            A(f"s_add_u32 s{st}, s{r.s_w}, {8*i}")
        else:
            A(f"s_and_b32 s{st}, s{r.s_w}, 3\ns_add_u32 s{st}, s{st}, 32")
        A(f"s_cmp_ge_u32 s{st}, 18")
        A(f"s_cselect_b32 s{st2}, 18, 0")
        A(f"s_mov_b32 s{st3}, {KPAIR}\ns_cmov_b32 s{st3}, {VPAIR}")
        A(f"s_cselect_b32 s{st4}, {KBLK}, 0")
        A(f"s_mov_b32 s{r.s_lds[i]}, 576\ns_cmov_b32 s{r.s_lds[i]}, 1152")
        A(f"s_cselect_b64 vcc, -1, 0")
        A(f"s_sub_u32 s{st}, s{st}, s{st2}")
        A(f"s_mul_i32 s{st2}, s{r.s_hp}, 36")
        A(f"s_add_u32 s{r.s_lds[i]}, s{r.s_lds[i]}, s{st2}")
        A(f"s_lshl_b32 s{st2}, s{st}, 1")
        A(f"s_add_u32 s{r.s_lds[i]}, s{r.s_lds[i]}, s{st2}")
        A(f"s_lshl_b32 s{r.s_lds[i]}, s{r.s_lds[i]}, 12")
        A(f"v_cndmask_b32 v{r.vdma[i]}, v{t2}, v{t3}, vcc")
        A(f"v_add_u32 v{r.vdma[i]}, s{r.s_lds[i]}, v{r.vdma[i]}")
        A(f"s_cmp_ge_u32 s{st}, 9")
        A(f"s_cselect_b32 s{st2}, 9, 0")
        A(f"s_cselect_b32 s{r.s_lds[i]}, {HEADSZ}, 0")
        A(f"s_sub_u32 s{st}, s{st}, s{st2}")
        A(f"s_mul_i32 s{st}, s{st}, s{st3}")
        A(f"s_add_u32 s{r.s_lds[i]}, s{r.s_lds[i]}, s{st}")
        A(f"s_add_u32 s{r.s_lds[i]}, s{r.s_lds[i]}, s{st4}")

def emit_dma_segment(A, r, flags=""):
    A(f"s_lshl_b32 s{r.s_chunk}, s{r.s_seg}, 9")
    for i in range(5):
        A(f"s_add_u32 m0, s{r.s_slotw}, s{r.s_lds[i]}")
        A("s_nop 0")
        A(f"buffer_load_dwordx4 v{r.vdma[i]}, s[{r.s_srd}:{r.s_srd+3}], s{r.s_chunk} offen{flags} lds")
    A(f"s_add_u32 s{r.s_seg}, s{r.s_seg}, 1")
    A(f"s_and_b32 s{r.s_seg}, s{r.s_seg}, 7")
    A(f"s_add_u32 s{r.s_slotw}, s{r.s_slotw}, {SLOT}")
    A(f"s_cmp_eq_u32 s{r.s_slotw}, {NSLOT*SLOT}")
    A(f"s_cselect_b32 s{r.s_slotw}, 0, s{r.s_slotw}")

def emit_ones(A, r):
    t0, t1, t2 = r.t[:3]
    A(f"v_mov_b32 v{t0}, 0x3f803f80")
    A(f"v_lshlrev_b32 v{t1}, 2, v0")
    A(f"v_cmp_gt_u32 vcc, 192, v0")
    A("s_and_saveexec_b64 s[36:37], vcc")
    lab = A.newlabel("Lones")
    A(f"s_cbranch_execz {lab}")
    A(f"v_mov_b32 v{r.t[3]}, 0")
    for s in range(NSLOT):
        A(f"v_add_u32 v{t2}, {s*SLOT+ONES}, v{t1}")
        A(f"ds_write_b32 v{t2}, v{t0}")
        A(f"ds_write_b32 v{t2}, v{r.t[3]} offset:768")
    A.label(lab)
    A("s_mov_b64 exec, s[36:37]")

def emit_read_addrs(A, r):
    t0, t1, t2, t3, t4, t5 = r.t
    st = r.s_hbase
    lane = r.lane
    A(f"s_lshr_b32 s{st}, s{r.s_w}, 2")
    A(f"s_mul_i32 s{st}, s{st}, {HEADSZ}")
    A(f"v_lshrrev_b32 v{t0}, 2, v{lane}")
    A(f"v_and_b32 v{t0}, 3, v{t0}")
    A(f"v_lshrrev_b32 v{t1}, 5, v{lane}")
    A(f"v_lshl_add_u32 v{t1}, v{t1}, 3, v{t0}")
    A(f"v_lshrrev_b32 v{t2}, 1, v{t1}")
    A(f"v_mul_u32_u24 v{t2}, {KPAIR}, v{t2}")
    A(f"v_and_b32 v{t1}, 1, v{t1}")
    A(f"v_lshl_add_u32 v{t2}, v{t1}, 9, v{t2}")
    A(f"v_lshrrev_b32 v{t3}, 4, v{lane}")
    A(f"v_and_b32 v{t3}, 1, v{t3}")
    A(f"v_lshlrev_b32 v{t3}, 5, v{t3}")
    A(f"v_and_b32 v{t4}, 3, v{lane}")
    A(f"v_lshl_add_u32 v{t3}, v{t4}, 3, v{t3}")
    A(f"v_add_u32 v{t2}, v{t2}, v{t3}")
    A(f"v_lshlrev_b32 v{t1}, 6, v{t1}")
    A(f"v_add_u32 v{t2}, s{st}, v{t2}")
    A(f"v_add_u32 v{r.kE}, v{t2}, v{t1}")
    A(f"v_sub_u32 v{r.kO}, v{t2}, v{t1}")
    A(f"v_lshlrev_b32 v{t2}, 3, v{t1}")
    A(f"v_add_u32 v{t2}, {8*KPAIR}, v{t2}")
    A(f"v_add_u32 v{t2}, s{st}, v{t2}")
    A(f"v_add_u32 v{t2}, v{t2}, v{t3}")
    A(f"v_add_u32 v{t4}, v{t2}, v{t1}")
    A(f"v_sub_u32 v{t5}, v{t2}, v{t1}")
    A(f"v_add_u32 v{t3}, {ONES+128}, v{t3}")
    A(f"v_cmp_le_u32 vcc, 2, v{t0}")
    A("s_nop 1")
    A(f"v_cndmask_b32 v{r.tE}, v{t4}, v{t3}, vcc")
    A(f"v_cndmask_b32 v{r.tO}, v{t5}, v{t3}, vcc")
    if OPT.get("zrows"):
        A(f"v_lshlrev_b32 v{t2}, 6, v{t0}")
        A(f"v_add_u32 v{t3}, v{t3}, v{t2}")
        A(f"v_add_u32 v{t3}, {768-128-64*0}, v{t3}")
        A(f"v_cmp_eq_u32 vcc, 3, v{t0}")
        A(f"v_cmp_le_u32 s[38:39], 32, v{lane}")
        A("s_or_b64 vcc, vcc, s[38:39]")
        A("s_nop 1")
        A(f"v_cndmask_b32 v{r.tE}, v{r.tE}, v{t3}, vcc")
        A(f"v_cndmask_b32 v{r.tO}, v{r.tO}, v{t3}, vcc")
        A(f"v_lshrrev_b32 v{t2}, 2, v{lane}")
        A(f"v_lshrrev_b32 v{t3}, 5, v{lane}")
        A(f"v_lshlrev_b32 v{t3}, 2, v{t3}")
        A(f"v_and_b32 v{t2}, 3, v{t2}")
        A(f"v_or_b32 v{t2}, v{t2}, v{t3}")
        A(f"v_subrev_u32 v{t3}, 128, v{r.tO}")
        A(f"v_cmp_eq_u32 vcc, 3, v{t2}")
        A("s_nop 1")
        A(f"v_cndmask_b32 v{r.tO}, v{r.tO}, v{t3}, vcc")
    A(f"v_and_b32 v{t0}, 31, v{lane}")
    A(f"v_lshrrev_b32 v{t1}, 2, v{t0}")
    A(f"v_and_b32 v{t1}, 1, v{t1}")
    A(f"v_lshlrev_b32 v{t1}, 3, v{t1}")
    A(f"v_lshrrev_b32 v{t2}, 3, v{t0}")
    A(f"v_and_b32 v{t2}, 1, v{t2}")
    A(f"v_lshl_add_u32 v{t1}, v{t2}, 2, v{t1}")
    A(f"v_and_b32 v{t2}, 3, v{t0}")
    A(f"v_add_u32 v{t1}, v{t1}, v{t2}")
    A(f"v_cmp_gt_u32 vcc, 16, v{t0}")
    A("s_nop 1")
    A(f"v_cndmask_b32 v{t1}, v{t0}, v{t1}, vcc")
    A(f"v_lshrrev_b32 v{t2}, 1, v{t1}")
    A(f"v_mul_u32_u24 v{t2}, {VPAIR}, v{t2}")
    A(f"v_and_b32 v{t3}, 1, v{t1}")
    A(f"v_lshl_add_u32 v{t2}, v{t3}, 9, v{t2}")
    A(f"v_lshrrev_b32 v{t1}, 5, v{lane}")
    A(f"v_xor_b32 v{t3}, v{t3}, v{t1}")
    A(f"v_lshl_add_u32 v{t2}, v{t3}, 4, v{t2}")
    A(f"v_add_u32 v{t2}, {KBLK}, v{t2}")
    A(f"v_add_u32 v{r.vA}, s{st}, v{t2}")
    A(f"v_lshlrev_b32 v{t1}, 4, v{t1}")
    A(f"v_add_u32 v{t2}, {ONES+32}, v{t1}")
    A(f"v_cmp_le_u32 vcc, 18, v{t0}")
    A("s_nop 1")
    A(f"v_cndmask_b32 v{r.vA}, v{r.vA}, v{t2}, vcc")
    A(f"v_add_u32 v{t2}, 32, v{t2}")
    A(f"v_subrev_u32 v{t3}, 20, v{t0}")
    A(f"v_cmp_gt_u32 vcc, 8, v{t3}")
    A("s_nop 1")
    A(f"v_cndmask_b32 v{r.vA}, v{r.vA}, v{t2}, vcc")
    if OPT.get("zrows"):
        A(f"v_cmp_lt_u32 vcc, 18, v{t0}")
        A(f"v_cmp_ne_u32 s[38:39], 22, v{t0}")
        A("s_and_b64 vcc, vcc, s[38:39]")
        A(f"v_add_u32 v{t2}, {768+32}, v{r.vA}")
        A(f"v_add_u32 v{t1}, {768+160}, v{r.vA}")
        A(f"v_subrev_u32 v{t3}, 20, v{t0}")
        A(f"v_cmp_gt_u32 s[38:39], 8, v{t3}")
        A("s_nop 1")
        A(f"v_cndmask_b32 v{t2}, v{t1}, v{t2}, s[38:39]")
        A(f"v_cndmask_b32 v{r.vA}, v{r.vA}, v{t2}, vcc")
    if not hasattr(r, "qE"): A(f"v_mov_b32 v{r.idx}, 0xdddddddd")

def emit_q_frags(A, r):
    t0, t1, t2, t3, t4, t5 = r.t
    st, st2, st3, st4 = r.s_t
    A(f"s_lshr_b32 s{st2}, s{r.s_w}, 2")
    A(f"s_mul_i32 s{st2}, s{st2}, {KBLK}")
    A(f"s_add_u32 s{st2}, s{st2}, {QOFF}")
    A(f"s_sub_u32 s{st2}, s{st2}, s{r.s_hbase}")
    A(f"s_and_b32 s{st3}, s{r.s_w}, 3")
    A(f"s_lshl_b32 s{st3}, s{st3}, 7")
    A(f"s_add_u32 s{st2}, s{st2}, s{st3}")
    A(f"v_add_u32 v{t0}, s{st2}, v{r.kE}")
    A(f"v_add_u32 v{t1}, s{st2}, v{r.kO}")
    A(f"v_add_u32 v{t2}, s{st2}, v{getattr(r, 'qE', t4)}")
    A(f"v_add_u32 v{t3}, s{st2}, v{getattr(r, 'qO', t5)}")
    A(f"ds_read_b64_tr_b16 v[{r.Qm[0]}:{r.Qm[0]+1}], v{t0}")
    A(f"ds_read_b64_tr_b16 v[{r.Qm[0]+2}:{r.Qm[0]+3}], v{t0} offset:{2*KPAIR}")
    A(f"ds_read_b64_tr_b16 v[{r.Qm[1]}:{r.Qm[1]+1}], v{t1} offset:64")
    A(f"ds_read_b64_tr_b16 v[{r.Qm[1]+2}:{r.Qm[1]+3}], v{t1} offset:{64+2*KPAIR}")
    A(f"ds_read_b64_tr_b16 v[{r.Qt[0]}:{r.Qt[0]+1}], v{t2}")
    A(f"ds_read_b64_tr_b16 v[{r.Qt[1]}:{r.Qt[1]+1}], v{t3} offset:64")

def k_reads(A, r, t, p):
    if OPT.get("nolds") and OPT.get("inloop"): return
    km = r.kE if t % 2 == 0 else r.kO
    kt = r.tE if t % 2 == 0 else r.tO
    A(f"ds_read_b64_tr_b16 v[{r.Km[p]}:{r.Km[p]+1}], v{km} offset:{64*t}")
    A(f"ds_read_b64_tr_b16 v[{r.Km[p]+2}:{r.Km[p]+3}], v{km} offset:{64*t+2*KPAIR}")
    A(f"ds_read_b64_tr_b16 v[{r.Kt[p]}:{r.Kt[p]+1}], v{kt} offset:{64*t}")

def v_reads(A, r, t, p):
    if OPT.get("nolds") and OPT.get("inloop"): return
    A(f"ds_read_b128 v[{r.V1[p]}:{r.V1[p]+3}], v{r.vA} offset:{64*t}")
    A(f"ds_read_b128 v[{r.V2[p]}:{r.V2[p]+3}], v{r.vA} offset:{64*t+32}")

def mf_main(A, r, dst, p, u):
    A(f"v_mfma_f32_32x32x16_bf16 v[{dst}:{dst+15}], v[{r.Km[p]}:{r.Km[p]+3}], v[{r.Qm[u]}:{r.Qm[u]+3}], 0")
def mf_tail(A, r, dst, p, u):
    A(f"v_mfma_f32_32x32x8_bf16 v[{dst}:{dst+15}], v[{r.Kt[p]}:{r.Kt[p]+1}], v[{r.Qt[u]}:{r.Qt[u]+1}], v[{dst}:{dst+15}]")
def mf_pv(A, r, u, va, src):
    A(f"v_smfmac_f32_32x32x32_bf16 v[{r.O[u]}:{r.O[u]+15}], v[{va}:{va+3}], v[{src}:{src+7}], v{r.idx}")
def exps(A, base, n):
    for i in range(n):
        A(f"v_exp_f32 v{base+i}, v{base+i}")

def emit_first_max(A, r):
    t0, t1, t2, t3 = r.t[:4]
    for u in range(2):
        A(f"v_mov_b32 v{r.Qt[u]+1}, 0")
    A("s_mov_b64 s[36:37], exec")
    A("s_mov_b32 exec_lo, 0")
    for u in range(2):
        A(f"v_mov_b32 v{r.Qt[u]}, 0")
    A("s_mov_b64 exec, s[36:37]")
    A("s_nop 4")
    for u in range(2):
        mf_main(A, r, r.S[u], 0, u)
        mf_tail(A, r, r.S[u], 0, u)
    A("s_nop 15")
    for u in range(2):
        s = r.S[u]
        m = r.t[u]
        A(f"v_max3_f32 v{m}, v{s}, v{s+1}, v{s+2}")
        for k in range(3, 15, 2):
            A(f"v_max3_f32 v{m}, v{m}, v{s+k}, v{s+k+1}")
        A(f"v_max_f32 v{m}, v{m}, v{s+15}")
    A(f"v_mov_b32 v{t2}, v{t0}")
    A(f"v_mov_b32 v{t3}, v{t1}")
    A("s_nop 1")
    A(f"v_permlane32_swap_b32 v{t0}, v{t2}")
    A(f"v_permlane32_swap_b32 v{t1}, v{t3}")
    A("s_nop 1")
    A(f"v_max_f32 v{t0}, v{t0}, v{t2}")
    A(f"v_max_f32 v{t1}, v{t1}, v{t3}")
    A("s_mov_b64 s[36:37], exec")
    A("s_mov_b32 exec_hi, 0")
    A(f"v_cvt_pk_bf16_f32 v{r.Qt[0]+1}, -v{t0}, 0")
    A(f"v_cvt_pk_bf16_f32 v{r.Qt[1]+1}, -v{t1}, 0")
    A("s_mov_b64 exec, s[36:37]")

def emit_attn_prologue(A, r):
    k_reads(A, r, 0, 0)
    v_reads(A, r, 0, 0)
    for u in range(2):
        for i in range(16):
            A(f"v_mov_b32 v{r.O[u]+i}, 0")
    for i in range(8, 16):
        A(f"v_mov_b32 v{r.S[3]+i}, 0")
    for i in range(4):
        A(f"v_mov_b32 v{r.V2[1]+i}, 0")
    A("s_waitcnt lgkmcnt(0)")
    emit_first_max(A, r)
    A("s_nop 4")
    mf_main(A, r, r.S[0], 0, 0)
    mf_tail(A, r, r.S[0], 0, 0)
    A("s_nop 15")

def emit_step(A, r, n, hooks):
    t = n // 2; u = n % 2
    cur = r.S[n % 4]; nxt = r.S[(n + 1) % 4]; prv = r.S[(n - 1) % 4]
    pk = ((n + 1) // 2) % 2
    sched = OPT.get("sched", 0)
    for h in hooks.get((n, "pre"), []): h()
    def reads():
        if u == 0:
            if t == 7:
                for h in hooks.get((n, "kaddr"), []): h()
            k_reads(A, r, (t + 1) % 8, (t + 1) % 2)
        else:
            if t == 7:
                for h in hooks.get((n, "vaddr"), []): h()
            v_reads(A, r, (t + 1) % 8, (t + 1) % 2)
    nolds = OPT.get("nolds")
    def w0():
        if u == 1 and not nolds: A("s_waitcnt lgkmcnt(0)")
    def w4():
        if u == 0 and not nolds: A("s_waitcnt lgkmcnt(4)")
    def mid():
        for h in hooks.get((n, "mid"), []): h()
    M1 = lambda: mf_main(A, r, nxt, pk, (n + 1) % 2)
    M2 = lambda: mf_tail(A, r, nxt, pk, (n + 1) % 2)
    P2 = lambda: mf_pv(A, r, (n - 1) % 2, r.V2[((n - 1) // 2) % 2], prv + 8)
    P1 = lambda: mf_pv(A, r, u, r.V1[t % 2], cur)
    E = lambda a, k: exps(A, cur + a, k)
    if OPT.get("nomfma"):
        M1 = M2 = P1 = P2 = lambda: None
    if OPT.get("nomain"): M1 = lambda: None
    if OPT.get("notail"): M2 = lambda: None
    if OPT.get("nopv"): P1 = P2 = lambda: None
    if OPT.get("noexp"):
        E = lambda a, k: None
    if sched == 0:
        w0(); M1(); reads(); E(0, 4); M2(); E(4, 4); P2(); mid(); E(8, 4); w4(); P1(); E(12, 4)
    elif sched == 1:
        w0(); M1(); reads(); E(0, 3); M2(); E(3, 5); P2(); mid(); E(8, 4); w4(); P1(); E(12, 4)
    elif sched == 2:
        w0(); M1(); E(0, 4); M2(); reads(); E(4, 4); P2(); mid(); E(8, 4); P1() if u == 1 else (A("s_waitcnt lgkmcnt(3)") if not nolds else None, P1()); E(12, 4)
    elif sched == 3:
        w0(); M1(); P2(); reads(); E(0, 8); mid(); M2(); E(8, 2); w4(); P1(); E(10, 6)
    elif sched == 5:
        w0(); M1(); reads(); E(0, 4); P2(); mid(); E(4, 4); M2(); E(8, 4); w4(); P1(); E(12, 4)
    elif sched == 6:
        w0(); M1(); reads(); E(0, 4); mf_tail(A, r, r.S[(n + 2) % 4], pk, (n + 1) % 2); E(4, 4); P2(); mid(); E(8, 4); w4(); P1(); E(12, 4)
    elif sched == 4:
        w0(); M1(); reads(); E(0, 5); M2(); E(5, 3); P2(); mid(); E(8, 5); w4(); P1(); E(13, 3)

def emit_attn_loop(A, r, name, nseg=8, dma_flags=""):
    A(f"s_mov_b32 s{r.s_it}, 0")
    A(f"s_mov_b32 s{r.s_rslot}, 0")
    if OPT.get("prio"):
        A(f"s_cmp_ge_u32 s{r.s_w}, 4\ns_cbranch_scc0 {name}_np\ns_setprio 1\n{name}_np:")
    A(".p2align 6")
    A.label(f"{name}_loop")
    OPT["inloop"] = True
    hooks = {}
    def dma_part():
        lab = A.newlabel("Lnodma")
        A(f"s_cmp_ge_u32 s{r.s_it}, {nseg-2}")
        A(f"s_cbranch_scc1 {lab}")
        if not OPT.get("nodma"): emit_dma_segment(A, r, dma_flags)
        A.label(lab)
    def bar():
        if not OPT.get("extdma"): A("s_waitcnt vmcnt(0)")
        if not OPT.get("nobar"): A("s_barrier")
        if OPT.get("extdma"):
            pass
        elif OPT.get("stag"):
            lab = A.newlabel("Lstag")
            A(f"s_cmp_ge_u32 s{r.s_w}, 4")
            A(f"s_cbranch_scc1 {lab}")
            dma_part()
            A.label(lab)
        else:
            dma_part()
        A(f"s_add_u32 s{r.s_rslot}, s{r.s_rslot}, 1")
        A(f"s_cmp_eq_u32 s{r.s_rslot}, {NSLOT}")
        A(f"s_mov_b32 s{r.s_delta}, {SLOT}\ns_cmov_b32 s{r.s_delta}, {-(NSLOT-1)*SLOT & 0xffffffff}")
        A(f"s_cselect_b32 s{r.s_rslot}, 0, s{r.s_rslot}")
    def dma_late():
        lab = A.newlabel("Lstag2")
        A(f"s_cmp_lt_u32 s{r.s_w}, 4")
        A(f"s_cbranch_scc1 {lab}")
        dma_part()
        A.label(lab)
    def kaddr():
        for x in (r.kE, r.kO, r.tE, r.tO):
            A(f"v_add_u32 v{x}, s{r.s_delta}, v{x}")
    def vaddr():
        A(f"v_add_u32 v{r.vA}, s{r.s_delta}, v{r.vA}")
    bs = OPT.get("barstep", 12)
    if bs == 14: hooks[(14, "pre")] = [bar]
    else: hooks[(bs, "mid")] = [bar]
    if OPT.get("stag") and not OPT.get("extdma"):
        hooks[(12 + OPT["stag"], "mid")] = [dma_late]
    hooks[(14, "kaddr")] = [kaddr]
    hooks[(15, "vaddr")] = [vaddr]
    pr = OPT.get("pphase", 0)
    if pr:
        if pr == 1: sched_p = {13: 3, 1: 2, 5: 1, 9: 0}
        elif pr == 2: sched_p = {13: 3, 2: 2, 7: 1, 12: 0}
        elif pr == 3: sched_p = {13: 3, 3: 2, 8: 1, 11: 0}
        elif pr == 4: sched_p = {14: 3, 2: 2, 6: 1, 10: 0}
        elif pr == 5: sched_p = {14: 3, 3: 2, 8: 1, 12: 0}
        elif pr == 6: sched_p = {14: 1, 6: 0}
        for k, v in sched_p.items():
            hooks.setdefault((k, "pre"), []).append(lambda v=v: A(f"s_setprio {v}"))
    for n in range(16):
        emit_step(A, r, n, hooks)
    if OPT.get("tracer") is not None: OPT["tracer"].mark_dyn(8, r.s_it)
    if OPT.get("itstamp"):
        A("s_memtime s[54:55]\ns_memrealtime s[56:57]\ns_waitcnt lgkmcnt(0)")
        A(f"s_lshl_b32 s58, s{r.s_it}, 1")
        A(f"s_mov_b32 m0, s58")
        A(f"v_writelane_b32 v{r.t[5]}, s54, m0")
        A("s_add_u32 m0, m0, 1")
        A(f"v_writelane_b32 v{r.t[5]}, s56, m0")
    A(f"s_add_u32 s{r.s_it}, s{r.s_it}, 1")
    A(f"s_cmp_lt_u32 s{r.s_it}, {nseg}")
    A(f"s_cbranch_scc1 {name}_loop")
    OPT["inloop"] = False
    A("s_nop 1")
    mf_pv(A, r, 1, r.V2[1], r.S[3] + 8)
    A("s_nop 15")

def emit_attn_store(A, r, flags=""):
    t0, t1, t2, t3, t4, t5 = r.t
    st, st2 = r.s_t[:2]
    A(f"s_lshl_b32 s{st}, s{r.s_c}, 8")
    A(f"s_and_b32 s{st2}, s{r.s_w}, 3")
    A(f"s_lshl_b32 s{st2}, s{st2}, 6")
    A(f"s_add_u32 s{st}, s{st}, s{st2}")
    A(f"s_mul_i32 s{st}, s{st}, 1152")
    A(f"s_lshr_b32 s{st2}, s{r.s_w}, 2")
    A(f"s_lshl_b32 s{r.s_t[2]}, s{r.s_hp}, 1")
    A(f"s_add_u32 s{st2}, s{st2}, s{r.s_t[2]}")
    A(f"s_mul_i32 s{st2}, s{st2}, 36")
    A(f"s_add_u32 s{st}, s{st}, s{st2}")
    A(f"v_and_b32 v{t0}, 31, v{r.lane}")
    A(f"v_mul_u32_u24 v{t0}, 1152, v{t0}")
    A(f"v_lshrrev_b32 v{t1}, 5, v{r.lane}")
    A(f"v_lshl_add_u32 v{t0}, v{t1}, 4, v{t0}")
    for u in range(2):
        o = r.O[u]
        A(f"v_rcp_f32 v{t1}, v{o+10}")
        A("s_nop 0")
        for i in range(10):
            A(f"v_mul_f32 v{o+i}, v{o+i}, v{t1}")
        pk = r.S[u]
        for i in range(5):
            A(f"v_cvt_pk_bf16_f32 v{pk+i}, v{o+2*i}, v{o+2*i+1}")
        if u == 1:
            A(f"s_add_u32 s{st}, s{st}, {32*1152}")
        A(f"buffer_store_dwordx4 v[{pk}:{pk+3}], v{t0}, s[{r.s_osrd}:{r.s_osrd+3}], s{st} offen{flags}")
        A("s_mov_b64 s[36:37], exec")
        A("s_mov_b32 exec_hi, 0")
        A(f"buffer_store_dword v{pk+4}, v{t0}, s[{r.s_osrd}:{r.s_osrd+3}], s{st} offen offset:32{flags}")
        A("s_mov_b64 exec, s[36:37]")

def gen_attn_standalone(name="attn_kernel", stamp=False, rt=None):
    A = Asm(); r = R(); V = RegAlloc(1, 256, "v")
    alloc_attn_regs(V, r); alloc_sregs(r)
    A(f".globl {name}\n.p2align 8\n.type {name},@function")
    A.label(name)
    A(f"s_cmp_ge_u32 s2, 256\ns_cbranch_scc1 {name}_end")
    A(f"s_load_dwordx2 s[{r.s_ws}:{r.s_ws+1}], s[0:1], 64")
    if stamp:
        A("s_load_dwordx2 s[44:45], s[0:1], 48")
        A("s_memtime s[40:41]")
        A("s_memrealtime s[50:51]")
    S = Stamper(A, rt, enabled=rt is not None); S.start()
    emit_ids(A, r)
    A("s_waitcnt lgkmcnt(0)")
    emit_srds(A, r)
    emit_dma_setup(A, r, True)
    A(f"s_mov_b32 s{r.s_slotw}, 0")
    A(f"s_mov_b32 s{r.s_seg}, s{r.s_c}")
    emit_dma_segment(A, r)
    emit_dma_segment(A, r)
    emit_ones(A, r)
    emit_read_addrs(A, r)
    A("s_waitcnt vmcnt(5) lgkmcnt(0)")
    A("s_barrier")
    emit_q_frags(A, r)
    S.mark(2)
    emit_attn_prologue(A, r)
    S.mark(3)
    if stamp:
        A("s_memtime s[42:43]")
    emit_attn_loop(A, r, name)
    S.mark(4)
    if stamp:
        A("s_memtime s[46:47]")
    if OPT.get("tracer") is not None: OPT["tracer"].mark_dyn(8, r.s_it)
    if OPT.get("itstamp"):
        A(f"s_lshl_b32 s38, s2, 3\ns_add_u32 s38, s38, s{r.s_w}\ns_lshl_b32 s38, s38, 6\ns_add_u32 s38, s38, 65536")
        A(f"v_lshl_add_u32 v{r.t[0]}, v{r.lane}, 2, s38")
        A(f"v_cmp_gt_u32 vcc, 16, v{r.lane}")
        A("s_and_saveexec_b64 s[36:37], vcc")
        A(f"global_store_dword v{r.t[0]}, v{r.t[5]}, s[44:45]")
        A("s_mov_b64 exec, s[36:37]")
    emit_attn_store(A, r)
    if stamp:
        A("s_waitcnt vmcnt(0) lgkmcnt(0)")
        A("s_memtime s[48:49]")
        A("s_memrealtime s[52:53]")
        A("s_waitcnt lgkmcnt(0)")
        A("s_sub_u32 s52, s52, s50")
        A("s_sub_u32 s42, s42, s40\ns_sub_u32 s46, s46, s40\ns_sub_u32 s48, s48, s40")
        A(f"s_lshl_b32 s38, s2, 3\ns_add_u32 s38, s38, s{r.s_w}\ns_lshl_b32 s38, s38, 4")
        A(f"v_mov_b32 v{r.t[0]}, s38")
        A(f"v_mov_b32 v{r.S[0]}, s42\nv_mov_b32 v{r.S[0]+1}, s46\nv_mov_b32 v{r.S[0]+2}, s48\nv_mov_b32 v{r.S[0]+3}, s52")
        A(f"v_cmp_eq_u32 vcc, 0, v{r.lane}")
        A("s_and_saveexec_b64 s[36:37], vcc")
        A(f"global_store_dwordx4 v{r.t[0]}, v[{r.S[0]}:{r.S[0]+3}], s[44:45]")
    S.dump(r.s_ws, r.t[0], r.S[0])
    A.label(f"{name}_end")
    A("s_endpgm")
    return A.text(), V.next

if __name__ == "__main__":
    txt, nv = gen_attn_standalone(stamp=True)
    print("vgprs", nv)
    asm = '.amdgcn_target "amdgcn-amd-amdhsa--gfx950"\n.text\n' + txt + '.section .rodata,"a"\n' + kernel_desc("attn_kernel", nv)
    open("attn_test.s", "w").write(asm)
```

```python
from emit import *

ROWB = 4096
BLK_BYTES = 1728 * ROWB
O_OFF = 0x1000000
O_BLK = 2048 * 1152
KPAIR, VPAIR = 1152, 1056
KBLK, VBLK = 10496, 9728
HEADSZ = KBLK + VBLK
ONES = 2 * HEADSZ
ZEROS = ONES + 768
SLOT = ONES + 1536
NSLOT = 3
QOFF = NSLOT * SLOT
LDS_ATTN = QOFF + 2 * KBLK

OPT = {}

class R:
    pass

def alloc_attn_regs(V, r):
    r.lane = V.alloc("lane")
    r.t = [V.alloc(f"t{i}") for i in range(6)]
    r.vdma = [V.alloc(f"dma{i}") for i in range(5)]
    r.kE = V.alloc("kE"); r.kO = V.alloc("kO"); r.tE = V.alloc("tE"); r.tO = V.alloc("tO"); r.vA = V.alloc("vA")
    r.idx = V.alloc("idx")
    r.Qm = [V.alloc(f"Qm{u}", 4, 2) for u in range(2)]
    r.Qt = [V.alloc(f"Qt{u}", 2, 2) for u in range(2)]
    r.Km = [V.alloc(f"Km{p}", 4, 2) for p in range(2)]
    r.Kt = [V.alloc(f"Kt{p}", 2, 2) for p in range(2)]
    r.V1 = [V.alloc(f"V1{p}", 4, 2) for p in range(2)]
    r.V2 = [V.alloc(f"V2{p}", 4, 2) for p in range(2)]
    r.S = [V.alloc(f"S{i}", 16, 4) for i in range(4)]
    r.O = [V.alloc(f"O{u}", 16, 4) for u in range(2)]

def alloc_sregs(r):
    r.s_ws = 4; r.s_srd = 8; r.s_osrd = 12
    r.s_w = 16; r.s_b = 17; r.s_hp = 18; r.s_c = 19
    r.s_lds = [20, 21, 22, 23, 24]
    r.s_slotw = 25; r.s_chunk = 26; r.s_it = 27; r.s_delta = 28; r.s_rslot = 29
    r.s_t = [30, 31, 32, 33]
    r.s_seg = 34
    r.s_hbase = 35

def emit_ids(A, r):
    t0 = r.t[0]
    A(f"v_and_b32 v{r.lane}, 63, v0")
    A(f"v_lshrrev_b32 v{t0}, 6, v0")
    A("s_and_b32 s3, s2, 7")
    A(f"s_lshr_b32 s{r.s_t[0]}, s2, 3")
    A(f"v_readfirstlane_b32 s{r.s_w}, v{t0}")
    A(f"s_lshr_b32 s{r.s_b}, s3, 2")
    if OPT.get("map", 162) == 162:
        A(f"s_lshr_b32 s{r.s_hp}, s{r.s_t[0]}, 1")
        if OPT.get("hpperm", 0):
            A(f"s_and_b32 s{r.s_c}, s{r.s_hp}, 7")
            A(f"s_lshr_b32 s{r.s_t[1]}, s{r.s_hp}, 3")
            A(f"s_cmp_lt_u32 s{r.s_c}, 4\ns_cselect_b32 s{r.s_hp}, 1, 0")
            A(f"s_xor_b32 s{r.s_hp}, s{r.s_hp}, s{r.s_t[1]}")
            A(f"s_lshl_b32 s{r.s_c}, s{r.s_c}, 1\ns_add_u32 s{r.s_hp}, s{r.s_hp}, s{r.s_c}")
        A(f"s_and_b32 s3, s3, 3\ns_lshl_b32 s3, s3, 1")
        A(f"s_and_b32 s{r.s_c}, s{r.s_t[0]}, 1\ns_add_u32 s{r.s_c}, s{r.s_c}, s3")
    elif OPT.get("map") == 200:
        A(f"s_lshr_b32 s{r.s_b}, s3, 1\ns_and_b32 s{r.s_b}, s{r.s_b}, 1")
        A(f"s_lshr_b32 s{r.s_hp}, s{r.s_t[0]}, 2")
        A(f"s_cmp_lt_u32 s{r.s_hp}, 4\ns_cselect_b32 s{r.s_c}, 1, 0")
        A(f"s_lshr_b32 s{r.s_t[1]}, s3, 2")
        A(f"s_xor_b32 s{r.s_c}, s{r.s_c}, s{r.s_t[1]}")
        A(f"s_lshl_b32 s{r.s_hp}, s{r.s_hp}, 1\ns_add_u32 s{r.s_hp}, s{r.s_hp}, s{r.s_c}")
        A(f"s_and_b32 s3, s3, 1\ns_lshl_b32 s3, s3, 2")
        A(f"s_and_b32 s{r.s_c}, s{r.s_t[0]}, 3\ns_add_u32 s{r.s_c}, s{r.s_c}, s3")
    elif OPT.get("map") == 84:
        A(f"s_lshr_b32 s{r.s_hp}, s3, 1\ns_and_b32 s{r.s_hp}, s{r.s_hp}, 1\ns_lshl_b32 s{r.s_hp}, s{r.s_hp}, 3")
        A(f"s_lshr_b32 s{r.s_c}, s{r.s_t[0]}, 2\ns_add_u32 s{r.s_hp}, s{r.s_hp}, s{r.s_c}")
        A(f"s_and_b32 s3, s3, 1\ns_lshl_b32 s3, s3, 2")
        A(f"s_and_b32 s{r.s_c}, s{r.s_t[0]}, 3\ns_add_u32 s{r.s_c}, s{r.s_c}, s3")
    else:
        A(f"s_and_b32 s3, s3, 3")
        A(f"s_lshl_b32 s3, s3, 2")
        A(f"s_lshr_b32 s{r.s_hp}, s{r.s_t[0]}, 3")
        A(f"s_add_u32 s{r.s_hp}, s{r.s_hp}, s3")
        A(f"s_and_b32 s{r.s_c}, s{r.s_t[0]}, 7")

def emit_srds(A, r):
    t = r.s_t[0]
    A(f"s_mul_i32 s{t}, s{r.s_b}, {BLK_BYTES}")
    A(f"s_add_u32 s{r.s_srd}, s{r.s_ws}, s{t}")
    A(f"s_addc_u32 s{r.s_srd+1}, s{r.s_ws+1}, 0")
    A(f"s_mov_b32 s{r.s_srd+2}, {BLK_BYTES}")
    A(f"s_mov_b32 s{r.s_srd+3}, 0x20000")
    if getattr(r, "no_osrd", False): return
    A(f"s_mul_i32 s{t}, s{r.s_b}, {O_BLK}")
    A(f"s_add_u32 s{t}, s{t}, {O_OFF}")
    A(f"s_add_u32 s{r.s_osrd}, s{r.s_ws}, s{t}")
    A(f"s_addc_u32 s{r.s_osrd+1}, s{r.s_ws+1}, 0")
    A(f"s_mov_b32 s{r.s_osrd+2}, {O_BLK}")
    A(f"s_mov_b32 s{r.s_osrd+3}, 0x20000")

def emit_dma_setup(A, r, with_q):
    t0, t1, t2, t3 = r.t[:4]
    st, st2, st3, st4 = r.s_t
    A(f"v_lshrrev_b32 v{t0}, 5, v{r.lane}")
    A(f"v_and_b32 v{t1}, 31, v{r.lane}")
    A(f"v_lshlrev_b32 v{t2}, 2, v{t0}")
    A(f"v_xor_b32 v{t2}, v{t2}, v{t1}")
    A(f"v_lshlrev_b32 v{t2}, 4, v{t2}")
    A(f"v_lshl_add_u32 v{t2}, v{t0}, 12, v{t2}")
    A(f"v_xor_b32 v{t3}, v{t0}, v{t1}")
    A(f"v_lshlrev_b32 v{t3}, 4, v{t3}")
    A(f"v_lshl_add_u32 v{t3}, v{t0}, 12, v{t3}")
    if with_q:
        A(f"s_lshl_b32 s{r.s_chunk}, s{r.s_c}, 9")
        for i in range(3):
            lab = A.newlabel("Lq")
            A(f"s_add_u32 s{st}, s{r.s_w}, {8*i}")
            if i == 2:
                A(f"s_cmp_ge_u32 s{st}, 18\ns_cbranch_scc1 {lab}")
            A(f"s_cmp_ge_u32 s{st}, 9")
            A(f"s_cselect_b32 s{st2}, {KBLK - 9*KPAIR}, 0")
            A(f"s_mul_i32 s{st3}, s{st}, {KPAIR}")
            A(f"s_add_u32 s{st2}, s{st2}, s{st3}")
            A(f"s_add_u32 m0, s{st2}, {QOFF}")
            A(f"s_mul_i32 s{st3}, s{r.s_hp}, 36")
            A(f"s_lshl_b32 s{st}, s{st}, 1")
            A(f"s_add_u32 s{st3}, s{st3}, s{st}")
            A(f"s_lshl_b32 s{st3}, s{st3}, 12")
            A(f"s_add_u32 s{st3}, s{st3}, s{r.s_chunk}")
            A(f"buffer_load_dwordx4 v{t2}, s[{r.s_srd}:{r.s_srd+3}], s{st3} offen lds")
            A.label(lab)
    for i in range(5):
        if i < 4:
            A(f"s_add_u32 s{st}, s{r.s_w}, {8*i}")
        else:
            A(f"s_and_b32 s{st}, s{r.s_w}, 3\ns_add_u32 s{st}, s{st}, 32")
        A(f"s_cmp_ge_u32 s{st}, 18")
        A(f"s_cselect_b32 s{st2}, 18, 0")
        A(f"s_mov_b32 s{st3}, {KPAIR}\ns_cmov_b32 s{st3}, {VPAIR}")
        A(f"s_cselect_b32 s{st4}, {KBLK}, 0")
        A(f"s_mov_b32 s{r.s_lds[i]}, 576\ns_cmov_b32 s{r.s_lds[i]}, 1152")
        A(f"s_cselect_b64 vcc, -1, 0")
        A(f"s_sub_u32 s{st}, s{st}, s{st2}")
        A(f"s_mul_i32 s{st2}, s{r.s_hp}, 36")
        A(f"s_add_u32 s{r.s_lds[i]}, s{r.s_lds[i]}, s{st2}")
        A(f"s_lshl_b32 s{st2}, s{st}, 1")
        A(f"s_add_u32 s{r.s_lds[i]}, s{r.s_lds[i]}, s{st2}")
        A(f"s_lshl_b32 s{r.s_lds[i]}, s{r.s_lds[i]}, 12")
        A(f"v_cndmask_b32 v{r.vdma[i]}, v{t2}, v{t3}, vcc")
        A(f"v_add_u32 v{r.vdma[i]}, s{r.s_lds[i]}, v{r.vdma[i]}")
        A(f"s_cmp_ge_u32 s{st}, 9")
        A(f"s_cselect_b32 s{st2}, 9, 0")
        A(f"s_cselect_b32 s{r.s_lds[i]}, {HEADSZ}, 0")
        A(f"s_sub_u32 s{st}, s{st}, s{st2}")
        A(f"s_mul_i32 s{st}, s{st}, s{st3}")
        A(f"s_add_u32 s{r.s_lds[i]}, s{r.s_lds[i]}, s{st}")
        A(f"s_add_u32 s{r.s_lds[i]}, s{r.s_lds[i]}, s{st4}")

def emit_dma_segment(A, r, flags=""):
    A(f"s_lshl_b32 s{r.s_chunk}, s{r.s_seg}, 9")
    for i in range(5):
        A(f"s_add_u32 m0, s{r.s_slotw}, s{r.s_lds[i]}")
        A("s_nop 0")
        A(f"buffer_load_dwordx4 v{r.vdma[i]}, s[{r.s_srd}:{r.s_srd+3}], s{r.s_chunk} offen{flags} lds")
    A(f"s_add_u32 s{r.s_seg}, s{r.s_seg}, 1")
    A(f"s_and_b32 s{r.s_seg}, s{r.s_seg}, 7")
    A(f"s_add_u32 s{r.s_slotw}, s{r.s_slotw}, {SLOT}")
    A(f"s_cmp_eq_u32 s{r.s_slotw}, {NSLOT*SLOT}")
    A(f"s_cselect_b32 s{r.s_slotw}, 0, s{r.s_slotw}")

def emit_ones(A, r):
    t0, t1, t2 = r.t[:3]
    A(f"v_mov_b32 v{t0}, 0x3f803f80")
    A(f"v_lshlrev_b32 v{t1}, 2, v0")
    A(f"v_cmp_gt_u32 vcc, 192, v0")
    A("s_and_saveexec_b64 s[36:37], vcc")
    lab = A.newlabel("Lones")
    A(f"s_cbranch_execz {lab}")
    A(f"v_mov_b32 v{r.t[3]}, 0")
    for s in range(NSLOT):
        A(f"v_add_u32 v{t2}, {s*SLOT+ONES}, v{t1}")
        A(f"ds_write_b32 v{t2}, v{t0}")
        A(f"ds_write_b32 v{t2}, v{r.t[3]} offset:768")
    A.label(lab)
    A("s_mov_b64 exec, s[36:37]")

def emit_read_addrs(A, r):
    t0, t1, t2, t3, t4, t5 = r.t
    st = r.s_hbase
    lane = r.lane
    A(f"s_lshr_b32 s{st}, s{r.s_w}, 2")
    A(f"s_mul_i32 s{st}, s{st}, {HEADSZ}")
    A(f"v_lshrrev_b32 v{t0}, 2, v{lane}")
    A(f"v_and_b32 v{t0}, 3, v{t0}")
    A(f"v_lshrrev_b32 v{t1}, 5, v{lane}")
    A(f"v_lshl_add_u32 v{t1}, v{t1}, 3, v{t0}")
    A(f"v_lshrrev_b32 v{t2}, 1, v{t1}")
    A(f"v_mul_u32_u24 v{t2}, {KPAIR}, v{t2}")
    A(f"v_and_b32 v{t1}, 1, v{t1}")
    A(f"v_lshl_add_u32 v{t2}, v{t1}, 9, v{t2}")
    A(f"v_lshrrev_b32 v{t3}, 4, v{lane}")
    A(f"v_and_b32 v{t3}, 1, v{t3}")
    A(f"v_lshlrev_b32 v{t3}, 5, v{t3}")
    A(f"v_and_b32 v{t4}, 3, v{lane}")
    A(f"v_lshl_add_u32 v{t3}, v{t4}, 3, v{t3}")
    A(f"v_add_u32 v{t2}, v{t2}, v{t3}")
    A(f"v_lshlrev_b32 v{t1}, 6, v{t1}")
    A(f"v_add_u32 v{t2}, s{st}, v{t2}")
    A(f"v_add_u32 v{r.kE}, v{t2}, v{t1}")
    A(f"v_sub_u32 v{r.kO}, v{t2}, v{t1}")
    A(f"v_lshlrev_b32 v{t2}, 3, v{t1}")
    A(f"v_add_u32 v{t2}, {8*KPAIR}, v{t2}")
    A(f"v_add_u32 v{t2}, s{st}, v{t2}")
    A(f"v_add_u32 v{t2}, v{t2}, v{t3}")
    A(f"v_add_u32 v{t4}, v{t2}, v{t1}")
    A(f"v_sub_u32 v{t5}, v{t2}, v{t1}")
    A(f"v_add_u32 v{t3}, {ONES+128}, v{t3}")
    A(f"v_cmp_le_u32 vcc, 2, v{t0}")
    A("s_nop 1")
    A(f"v_cndmask_b32 v{r.tE}, v{t4}, v{t3}, vcc")
    A(f"v_cndmask_b32 v{r.tO}, v{t5}, v{t3}, vcc")
    if OPT.get("zrows"):
        A(f"v_lshlrev_b32 v{t2}, 6, v{t0}")
        A(f"v_add_u32 v{t3}, v{t3}, v{t2}")
        A(f"v_add_u32 v{t3}, {768-128-64*0}, v{t3}")
        A(f"v_cmp_eq_u32 vcc, 3, v{t0}")
        A(f"v_cmp_le_u32 s[38:39], 32, v{lane}")
        A("s_or_b64 vcc, vcc, s[38:39]")
        A("s_nop 1")
        A(f"v_cndmask_b32 v{r.tE}, v{r.tE}, v{t3}, vcc")
        A(f"v_cndmask_b32 v{r.tO}, v{r.tO}, v{t3}, vcc")
        A(f"v_lshrrev_b32 v{t2}, 2, v{lane}")
        A(f"v_lshrrev_b32 v{t3}, 5, v{lane}")
        A(f"v_lshlrev_b32 v{t3}, 2, v{t3}")
        A(f"v_and_b32 v{t2}, 3, v{t2}")
        A(f"v_or_b32 v{t2}, v{t2}, v{t3}")
        A(f"v_subrev_u32 v{t3}, 128, v{r.tO}")
        A(f"v_cmp_eq_u32 vcc, 3, v{t2}")
        A("s_nop 1")
        A(f"v_cndmask_b32 v{r.tO}, v{r.tO}, v{t3}, vcc")
    A(f"v_and_b32 v{t0}, 31, v{lane}")
    A(f"v_lshrrev_b32 v{t1}, 2, v{t0}")
    A(f"v_and_b32 v{t1}, 1, v{t1}")
    A(f"v_lshlrev_b32 v{t1}, 3, v{t1}")
    A(f"v_lshrrev_b32 v{t2}, 3, v{t0}")
    A(f"v_and_b32 v{t2}, 1, v{t2}")
    A(f"v_lshl_add_u32 v{t1}, v{t2}, 2, v{t1}")
    A(f"v_and_b32 v{t2}, 3, v{t0}")
    A(f"v_add_u32 v{t1}, v{t1}, v{t2}")
    A(f"v_cmp_gt_u32 vcc, 16, v{t0}")
    A("s_nop 1")
    A(f"v_cndmask_b32 v{t1}, v{t0}, v{t1}, vcc")
    A(f"v_lshrrev_b32 v{t2}, 1, v{t1}")
    A(f"v_mul_u32_u24 v{t2}, {VPAIR}, v{t2}")
    A(f"v_and_b32 v{t3}, 1, v{t1}")
    A(f"v_lshl_add_u32 v{t2}, v{t3}, 9, v{t2}")
    A(f"v_lshrrev_b32 v{t1}, 5, v{lane}")
    A(f"v_xor_b32 v{t3}, v{t3}, v{t1}")
    A(f"v_lshl_add_u32 v{t2}, v{t3}, 4, v{t2}")
    A(f"v_add_u32 v{t2}, {KBLK}, v{t2}")
    A(f"v_add_u32 v{r.vA}, s{st}, v{t2}")
    A(f"v_lshlrev_b32 v{t1}, 4, v{t1}")
    A(f"v_add_u32 v{t2}, {ONES+32}, v{t1}")
    A(f"v_cmp_le_u32 vcc, 18, v{t0}")
    A("s_nop 1")
    A(f"v_cndmask_b32 v{r.vA}, v{r.vA}, v{t2}, vcc")
    A(f"v_add_u32 v{t2}, 32, v{t2}")
    A(f"v_subrev_u32 v{t3}, 20, v{t0}")
    A(f"v_cmp_gt_u32 vcc, 8, v{t3}")
    A("s_nop 1")
    A(f"v_cndmask_b32 v{r.vA}, v{r.vA}, v{t2}, vcc")
    if OPT.get("zrows"):
        A(f"v_cmp_lt_u32 vcc, 18, v{t0}")
        A(f"v_cmp_ne_u32 s[38:39], 22, v{t0}")
        A("s_and_b64 vcc, vcc, s[38:39]")
        A(f"v_add_u32 v{t2}, {768+32}, v{r.vA}")
        A(f"v_add_u32 v{t1}, {768+160}, v{r.vA}")
        A(f"v_subrev_u32 v{t3}, 20, v{t0}")
        A(f"v_cmp_gt_u32 s[38:39], 8, v{t3}")
        A("s_nop 1")
        A(f"v_cndmask_b32 v{t2}, v{t1}, v{t2}, s[38:39]")
        A(f"v_cndmask_b32 v{r.vA}, v{r.vA}, v{t2}, vcc")
    if not hasattr(r, "qE"): A(f"v_mov_b32 v{r.idx}, 0xdddddddd")

def emit_q_frags(A, r):
    t0, t1, t2, t3, t4, t5 = r.t
    st, st2, st3, st4 = r.s_t
    A(f"s_lshr_b32 s{st2}, s{r.s_w}, 2")
    A(f"s_mul_i32 s{st2}, s{st2}, {KBLK}")
    A(f"s_add_u32 s{st2}, s{st2}, {QOFF}")
    A(f"s_sub_u32 s{st2}, s{st2}, s{r.s_hbase}")
    A(f"s_and_b32 s{st3}, s{r.s_w}, 3")
    A(f"s_lshl_b32 s{st3}, s{st3}, 7")
    A(f"s_add_u32 s{st2}, s{st2}, s{st3}")
    A(f"v_add_u32 v{t0}, s{st2}, v{r.kE}")
    A(f"v_add_u32 v{t1}, s{st2}, v{r.kO}")
    A(f"v_add_u32 v{t2}, s{st2}, v{getattr(r, 'qE', t4)}")
    A(f"v_add_u32 v{t3}, s{st2}, v{getattr(r, 'qO', t5)}")
    A(f"ds_read_b64_tr_b16 v[{r.Qm[0]}:{r.Qm[0]+1}], v{t0}")
    A(f"ds_read_b64_tr_b16 v[{r.Qm[0]+2}:{r.Qm[0]+3}], v{t0} offset:{2*KPAIR}")
    A(f"ds_read_b64_tr_b16 v[{r.Qm[1]}:{r.Qm[1]+1}], v{t1} offset:64")
    A(f"ds_read_b64_tr_b16 v[{r.Qm[1]+2}:{r.Qm[1]+3}], v{t1} offset:{64+2*KPAIR}")
    A(f"ds_read_b64_tr_b16 v[{r.Qt[0]}:{r.Qt[0]+1}], v{t2}")
    A(f"ds_read_b64_tr_b16 v[{r.Qt[1]}:{r.Qt[1]+1}], v{t3} offset:64")

def k_reads(A, r, t, p):
    if OPT.get("nolds") and OPT.get("inloop"): return
    km = r.kE if t % 2 == 0 else r.kO
    kt = r.tE if t % 2 == 0 else r.tO
    A(f"ds_read_b64_tr_b16 v[{r.Km[p]}:{r.Km[p]+1}], v{km} offset:{64*t}")
    A(f"ds_read_b64_tr_b16 v[{r.Km[p]+2}:{r.Km[p]+3}], v{km} offset:{64*t+2*KPAIR}")
    A(f"ds_read_b64_tr_b16 v[{r.Kt[p]}:{r.Kt[p]+1}], v{kt} offset:{64*t}")

def v_reads(A, r, t, p):
    if OPT.get("nolds") and OPT.get("inloop"): return
    A(f"ds_read_b128 v[{r.V1[p]}:{r.V1[p]+3}], v{r.vA} offset:{64*t}")
    A(f"ds_read_b128 v[{r.V2[p]}:{r.V2[p]+3}], v{r.vA} offset:{64*t+32}")

def mf_main(A, r, dst, p, u):
    A(f"v_mfma_f32_32x32x16_bf16 v[{dst}:{dst+15}], v[{r.Km[p]}:{r.Km[p]+3}], v[{r.Qm[u]}:{r.Qm[u]+3}], 0")
def mf_tail(A, r, dst, p, u):
    A(f"v_mfma_f32_32x32x8_bf16 v[{dst}:{dst+15}], v[{r.Kt[p]}:{r.Kt[p]+1}], v[{r.Qt[u]}:{r.Qt[u]+1}], v[{dst}:{dst+15}]")
def mf_pv(A, r, u, va, src):
    A(f"v_smfmac_f32_32x32x32_bf16 v[{r.O[u]}:{r.O[u]+15}], v[{va}:{va+3}], v[{src}:{src+7}], v{r.idx}")
def exps(A, base, n):
    for i in range(n):
        A(f"v_exp_f32 v{base+i}, v{base+i}")

def emit_first_max(A, r):
    t0, t1, t2, t3 = r.t[:4]
    for u in range(2):
        A(f"v_mov_b32 v{r.Qt[u]+1}, 0")
    A("s_mov_b64 s[36:37], exec")
    A("s_mov_b32 exec_lo, 0")
    for u in range(2):
        A(f"v_mov_b32 v{r.Qt[u]}, 0")
    A("s_mov_b64 exec, s[36:37]")
    A("s_nop 4")
    for u in range(2):
        mf_main(A, r, r.S[u], 0, u)
        mf_tail(A, r, r.S[u], 0, u)
    A("s_nop 15")
    for u in range(2):
        s = r.S[u]
        m = r.t[u]
        A(f"v_max3_f32 v{m}, v{s}, v{s+1}, v{s+2}")
        for k in range(3, 15, 2):
            A(f"v_max3_f32 v{m}, v{m}, v{s+k}, v{s+k+1}")
        A(f"v_max_f32 v{m}, v{m}, v{s+15}")
    A(f"v_mov_b32 v{t2}, v{t0}")
    A(f"v_mov_b32 v{t3}, v{t1}")
    A("s_nop 1")
    A(f"v_permlane32_swap_b32 v{t0}, v{t2}")
    A(f"v_permlane32_swap_b32 v{t1}, v{t3}")
    A("s_nop 1")
    A(f"v_max_f32 v{t0}, v{t0}, v{t2}")
    A(f"v_max_f32 v{t1}, v{t1}, v{t3}")
    A("s_mov_b64 s[36:37], exec")
    A("s_mov_b32 exec_hi, 0")
    A(f"v_cvt_pk_bf16_f32 v{r.Qt[0]+1}, -v{t0}, 0")
    A(f"v_cvt_pk_bf16_f32 v{r.Qt[1]+1}, -v{t1}, 0")
    A("s_mov_b64 exec, s[36:37]")

def emit_attn_prologue(A, r):
    k_reads(A, r, 0, 0)
    v_reads(A, r, 0, 0)
    for u in range(2):
        for i in range(16):
            A(f"v_mov_b32 v{r.O[u]+i}, 0")
    for i in range(8, 16):
        A(f"v_mov_b32 v{r.S[3]+i}, 0")
    for i in range(4):
        A(f"v_mov_b32 v{r.V2[1]+i}, 0")
    A("s_waitcnt lgkmcnt(0)")
    emit_first_max(A, r)
    A("s_nop 4")
    mf_main(A, r, r.S[0], 0, 0)
    mf_tail(A, r, r.S[0], 0, 0)
    A("s_nop 15")

def emit_step(A, r, n, hooks):
    t = n // 2; u = n % 2
    cur = r.S[n % 4]; nxt = r.S[(n + 1) % 4]; prv = r.S[(n - 1) % 4]
    pk = ((n + 1) // 2) % 2
    sched = OPT.get("sched", 0)
    for h in hooks.get((n, "pre"), []): h()
    def reads():
        if u == 0:
            if t == 7:
                for h in hooks.get((n, "kaddr"), []): h()
            k_reads(A, r, (t + 1) % 8, (t + 1) % 2)
        else:
            if t == 7:
                for h in hooks.get((n, "vaddr"), []): h()
            v_reads(A, r, (t + 1) % 8, (t + 1) % 2)
    nolds = OPT.get("nolds")
    def w0():
        if u == 1 and not nolds: A("s_waitcnt lgkmcnt(0)")
    def w4():
        if u == 0 and not nolds: A("s_waitcnt lgkmcnt(4)")
    def mid():
        for h in hooks.get((n, "mid"), []): h()
    M1 = lambda: mf_main(A, r, nxt, pk, (n + 1) % 2)
    M2 = lambda: mf_tail(A, r, nxt, pk, (n + 1) % 2)
    P2 = lambda: mf_pv(A, r, (n - 1) % 2, r.V2[((n - 1) // 2) % 2], prv + 8)
    P1 = lambda: mf_pv(A, r, u, r.V1[t % 2], cur)
    E = lambda a, k: exps(A, cur + a, k)
    if OPT.get("nomfma"):
        M1 = M2 = P1 = P2 = lambda: None
    if OPT.get("nomain"): M1 = lambda: None
    if OPT.get("notail"): M2 = lambda: None
    if OPT.get("nopv"): P1 = P2 = lambda: None
    if OPT.get("noexp"):
        E = lambda a, k: None
    if sched == 0:
        w0(); M1(); reads(); E(0, 4); M2(); E(4, 4); P2(); mid(); E(8, 4); w4(); P1(); E(12, 4)
    elif sched == 1:
        w0(); M1(); reads(); E(0, 3); M2(); E(3, 5); P2(); mid(); E(8, 4); w4(); P1(); E(12, 4)
    elif sched == 2:
        w0(); M1(); E(0, 4); M2(); reads(); E(4, 4); P2(); mid(); E(8, 4); P1() if u == 1 else (A("s_waitcnt lgkmcnt(3)") if not nolds else None, P1()); E(12, 4)
    elif sched == 3:
        w0(); M1(); P2(); reads(); E(0, 8); mid(); M2(); E(8, 2); w4(); P1(); E(10, 6)
    elif sched == 7:
        def kv1():
            if t == 7:
                for h in hooks.get((n, "kaddr"), []): h()
                for h in hooks.get((15, "vaddr"), []): h()
            k_reads(A, r, (t + 1) % 8, (t + 1) % 2)
            A(f"ds_read_b128 v[{r.V1[(t+1)%2]}:{r.V1[(t+1)%2]+3}], v{r.vA} offset:{64*((t+1)%8)}")
        def v2():
            A(f"ds_read_b128 v[{r.V2[(t+1)%2]}:{r.V2[(t+1)%2]+3}], v{r.vA} offset:{64*((t+1)%8)+32}")
        if u == 0:
            M1(); kv1(); E(0, 4); M2(); E(4, 4); P2(); v2(); mid(); E(8, 4); P1(); E(12, 4)
        else:
            w0(); M1(); E(0, 4); M2(); E(4, 4); P2(); mid(); E(8, 4); P1(); E(12, 4)
    elif sched == 5:
        w0(); M1(); reads(); E(0, 4); P2(); mid(); E(4, 4); M2(); E(8, 4); w4(); P1(); E(12, 4)
    elif sched == 6:
        w0(); M1(); reads(); E(0, 4); mf_tail(A, r, r.S[(n + 2) % 4], pk, (n + 1) % 2); E(4, 4); P2(); mid(); E(8, 4); w4(); P1(); E(12, 4)
    elif sched == 4:
        w0(); M1(); reads(); E(0, 5); M2(); E(5, 3); P2(); mid(); E(8, 5); w4(); P1(); E(13, 3)

def emit_attn_loop(A, r, name, nseg=8, dma_flags=""):
    A(f"s_mov_b32 s{r.s_it}, 0")
    A(f"s_mov_b32 s{r.s_rslot}, 0")
    if OPT.get("prio"):
        A(f"s_cmp_ge_u32 s{r.s_w}, 4\ns_cbranch_scc0 {name}_np\ns_setprio 1\n{name}_np:")
    A(".p2align 6")
    A.label(f"{name}_loop")
    OPT["inloop"] = True
    hooks = {}
    def dma_part():
        lab = A.newlabel("Lnodma")
        A(f"s_cmp_ge_u32 s{r.s_it}, {nseg-2}")
        A(f"s_cbranch_scc1 {lab}")
        if not OPT.get("nodma"): emit_dma_segment(A, r, dma_flags)
        A.label(lab)
    def bar():
        if not OPT.get("extdma"): A("s_waitcnt vmcnt(0)")
        if not OPT.get("nobar"): A("s_barrier")
        if OPT.get("extdma"):
            pass
        elif OPT.get("stag"):
            lab = A.newlabel("Lstag")
            A(f"s_cmp_ge_u32 s{r.s_w}, 4")
            A(f"s_cbranch_scc1 {lab}")
            dma_part()
            A.label(lab)
        else:
            dma_part()
        A(f"s_add_u32 s{r.s_rslot}, s{r.s_rslot}, 1")
        A(f"s_cmp_eq_u32 s{r.s_rslot}, {NSLOT}")
        A(f"s_mov_b32 s{r.s_delta}, {SLOT}\ns_cmov_b32 s{r.s_delta}, {-(NSLOT-1)*SLOT & 0xffffffff}")
        A(f"s_cselect_b32 s{r.s_rslot}, 0, s{r.s_rslot}")
    def dma_late():
        lab = A.newlabel("Lstag2")
        A(f"s_cmp_lt_u32 s{r.s_w}, 4")
        A(f"s_cbranch_scc1 {lab}")
        dma_part()
        A.label(lab)
    def kaddr():
        for x in (r.kE, r.kO, r.tE, r.tO):
            A(f"v_add_u32 v{x}, s{r.s_delta}, v{x}")
    def vaddr():
        A(f"v_add_u32 v{r.vA}, s{r.s_delta}, v{r.vA}")
    bs = OPT.get("barstep", 12)
    if bs == 14: hooks[(14, "pre")] = [bar]
    else: hooks[(bs, "mid")] = [bar]
    if OPT.get("stag") and not OPT.get("extdma"):
        hooks[(12 + OPT["stag"], "mid")] = [dma_late]
    hooks[(14, "kaddr")] = [kaddr]
    hooks[(15, "vaddr")] = [vaddr]
    pr = OPT.get("pphase", 0)
    if pr:
        if pr == 1: sched_p = {13: 3, 1: 2, 5: 1, 9: 0}
        elif pr == 2: sched_p = {13: 3, 2: 2, 7: 1, 12: 0}
        elif pr == 3: sched_p = {13: 3, 3: 2, 8: 1, 11: 0}
        elif pr == 4: sched_p = {14: 3, 2: 2, 6: 1, 10: 0}
        elif pr == 5: sched_p = {14: 3, 3: 2, 8: 1, 12: 0}
        elif pr == 6: sched_p = {14: 1, 6: 0}
        for k, v in sched_p.items():
            hooks.setdefault((k, "pre"), []).append(lambda v=v: A(f"s_setprio {v}"))
    for n in range(16):
        emit_step(A, r, n, hooks)
    if OPT.get("tracer") is not None: OPT["tracer"].mark_dyn(8, r.s_it)
    if OPT.get("itstamp"):
        A("s_memtime s[54:55]\ns_memrealtime s[56:57]\ns_waitcnt lgkmcnt(0)")
        A(f"s_lshl_b32 s58, s{r.s_it}, 1")
        A(f"s_mov_b32 m0, s58")
        A(f"v_writelane_b32 v{r.t[5]}, s54, m0")
        A("s_add_u32 m0, m0, 1")
        A(f"v_writelane_b32 v{r.t[5]}, s56, m0")
    A(f"s_add_u32 s{r.s_it}, s{r.s_it}, 1")
    A(f"s_cmp_lt_u32 s{r.s_it}, {nseg}")
    A(f"s_cbranch_scc1 {name}_loop")
    OPT["inloop"] = False
    A("s_nop 1")
    mf_pv(A, r, 1, r.V2[1], r.S[3] + 8)
    A("s_nop 15")

def emit_attn_store(A, r, flags=""):
    t0, t1, t2, t3, t4, t5 = r.t
    st, st2 = r.s_t[:2]
    A(f"s_lshl_b32 s{st}, s{r.s_c}, 8")
    A(f"s_and_b32 s{st2}, s{r.s_w}, 3")
    A(f"s_lshl_b32 s{st2}, s{st2}, 6")
    A(f"s_add_u32 s{st}, s{st}, s{st2}")
    A(f"s_mul_i32 s{st}, s{st}, 1152")
    A(f"s_lshr_b32 s{st2}, s{r.s_w}, 2")
    A(f"s_lshl_b32 s{r.s_t[2]}, s{r.s_hp}, 1")
    A(f"s_add_u32 s{st2}, s{st2}, s{r.s_t[2]}")
    A(f"s_mul_i32 s{st2}, s{st2}, 36")
    A(f"s_add_u32 s{st}, s{st}, s{st2}")
    A(f"v_and_b32 v{t0}, 31, v{r.lane}")
    A(f"v_mul_u32_u24 v{t0}, 1152, v{t0}")
    A(f"v_lshrrev_b32 v{t1}, 5, v{r.lane}")
    A(f"v_lshl_add_u32 v{t0}, v{t1}, 4, v{t0}")
    for u in range(2):
        o = r.O[u]
        A(f"v_rcp_f32 v{t1}, v{o+10}")
        A("s_nop 0")
        for i in range(10):
            A(f"v_mul_f32 v{o+i}, v{o+i}, v{t1}")
        pk = r.S[u]
        for i in range(5):
            A(f"v_cvt_pk_bf16_f32 v{pk+i}, v{o+2*i}, v{o+2*i+1}")
        if u == 1:
            A(f"s_add_u32 s{st}, s{st}, {32*1152}")
        A(f"buffer_store_dwordx4 v[{pk}:{pk+3}], v{t0}, s[{r.s_osrd}:{r.s_osrd+3}], s{st} offen{flags}")
        A("s_mov_b64 s[36:37], exec")
        A("s_mov_b32 exec_hi, 0")
        A(f"buffer_store_dword v{pk+4}, v{t0}, s[{r.s_osrd}:{r.s_osrd+3}], s{st} offen offset:32{flags}")
        A("s_mov_b64 exec, s[36:37]")

def gen_attn_standalone(name="attn_kernel", stamp=False, rt=None):
    A = Asm(); r = R(); V = RegAlloc(1, 256, "v")
    alloc_attn_regs(V, r); alloc_sregs(r)
    A(f".globl {name}\n.p2align 8\n.type {name},@function")
    A.label(name)
    A(f"s_cmp_ge_u32 s2, 256\ns_cbranch_scc1 {name}_end")
    A(f"s_load_dwordx2 s[{r.s_ws}:{r.s_ws+1}], s[0:1], 64")
    if stamp:
        A("s_load_dwordx2 s[44:45], s[0:1], 48")
        A("s_memtime s[40:41]")
        A("s_memrealtime s[50:51]")
    S = Stamper(A, rt, enabled=rt is not None); S.start()
    emit_ids(A, r)
    A("s_waitcnt lgkmcnt(0)")
    emit_srds(A, r)
    emit_dma_setup(A, r, True)
    A(f"s_mov_b32 s{r.s_slotw}, 0")
    A(f"s_mov_b32 s{r.s_seg}, s{r.s_c}")
    emit_dma_segment(A, r)
    emit_dma_segment(A, r)
    emit_ones(A, r)
    emit_read_addrs(A, r)
    A("s_waitcnt vmcnt(5) lgkmcnt(0)")
    A("s_barrier")
    emit_q_frags(A, r)
    S.mark(2)
    emit_attn_prologue(A, r)
    S.mark(3)
    if stamp:
        A("s_memtime s[42:43]")
    emit_attn_loop(A, r, name)
    S.mark(4)
    if stamp:
        A("s_memtime s[46:47]")
    if OPT.get("tracer") is not None: OPT["tracer"].mark_dyn(8, r.s_it)
    if OPT.get("itstamp"):
        A(f"s_lshl_b32 s38, s2, 3\ns_add_u32 s38, s38, s{r.s_w}\ns_lshl_b32 s38, s38, 6\ns_add_u32 s38, s38, 65536")
        A(f"v_lshl_add_u32 v{r.t[0]}, v{r.lane}, 2, s38")
        A(f"v_cmp_gt_u32 vcc, 16, v{r.lane}")
        A("s_and_saveexec_b64 s[36:37], vcc")
        A(f"global_store_dword v{r.t[0]}, v{r.t[5]}, s[44:45]")
        A("s_mov_b64 exec, s[36:37]")
    emit_attn_store(A, r)
    if stamp:
        A("s_waitcnt vmcnt(0) lgkmcnt(0)")
        A("s_memtime s[48:49]")
        A("s_memrealtime s[52:53]")
        A("s_waitcnt lgkmcnt(0)")
        A("s_sub_u32 s52, s52, s50")
        A("s_sub_u32 s42, s42, s40\ns_sub_u32 s46, s46, s40\ns_sub_u32 s48, s48, s40")
        A(f"s_lshl_b32 s38, s2, 3\ns_add_u32 s38, s38, s{r.s_w}\ns_lshl_b32 s38, s38, 4")
        A(f"v_mov_b32 v{r.t[0]}, s38")
        A(f"v_mov_b32 v{r.S[0]}, s42\nv_mov_b32 v{r.S[0]+1}, s46\nv_mov_b32 v{r.S[0]+2}, s48\nv_mov_b32 v{r.S[0]+3}, s52")
        A(f"v_cmp_eq_u32 vcc, 0, v{r.lane}")
        A("s_and_saveexec_b64 s[36:37], vcc")
        A(f"global_store_dwordx4 v{r.t[0]}, v[{r.S[0]}:{r.S[0]+3}], s[44:45]")
    S.dump(r.s_ws, r.t[0], r.S[0])
    A.label(f"{name}_end")
    A("s_endpgm")
    return A.text(), V.next

if __name__ == "__main__":
    txt, nv = gen_attn_standalone(stamp=True)
    print("vgprs", nv)
    asm = '.amdgcn_target "amdgcn-amd-amdhsa--gfx950"\n.text\n' + txt + '.section .rodata,"a"\n' + kernel_desc("attn_kernel", nv)
    open("attn_test.s", "w").write(asm)
```

```python
class Asm:
    def __init__(self):
        self.lines = []
        self.nlab = 0
    def __call__(self, s=""):
        for l in s.split("\n"):
            self.lines.append(l if (l.endswith(":") or l.startswith(".") or l.startswith(";")) else "  " + l.strip())
    def label(self, name):
        self.lines.append(name + ":")
    def newlabel(self, p="L"):
        self.nlab += 1
        return f"{p}_{self.nlab}"
    def comment(self, s):
        self.lines.append("  ; " + s)
    def text(self):
        return "\n".join(self.lines) + "\n"

def vr(base, n=1):
    return f"v{base}" if n == 1 else f"v[{base}:{base+n-1}]"
def sr(base, n=1):
    return f"s{base}" if n == 1 else f"s[{base}:{base+n-1}]"
def ar(base, n=1):
    return f"a{base}" if n == 1 else f"a[{base}:{base+n-1}]"

class RegAlloc:
    def __init__(self, start, limit, kind="v"):
        self.next = start; self.limit = limit; self.kind = kind; self.names = {}
    def alloc(self, name, n=1, align=1):
        if n > 1 and align == 1: align = 2
        b = (self.next + align - 1) // align * align
        self.next = b + n
        assert self.next <= self.limit, f"out of {self.kind} regs at {name}"
        self.names[name] = (b, n)
        return b

def kernel_desc(name, vgpr, sgpr=102, accum=None, lds=0):
    import attn
    if attn.OPT.get("agpr"):
        accum = attn.OPT["agpr"]; vgpr = accum + 32
    if accum is None: accum = (vgpr + 3) // 4 * 4
    return f""".p2align 6
.amdhsa_kernel {name}
  .amdhsa_next_free_vgpr {vgpr}
  .amdhsa_next_free_sgpr {sgpr}
  .amdhsa_accum_offset {accum}
  .amdhsa_group_segment_fixed_size 0
  .amdhsa_kernarg_size 72
  .amdhsa_user_sgpr_count 2
  .amdhsa_user_sgpr_kernarg_segment_ptr 1
  .amdhsa_system_sgpr_workgroup_id_x 1
  .amdhsa_float_denorm_mode_32 3
.end_amdhsa_kernel
"""

STAMP_OFF = 0x8000000
class Stamper:
    def __init__(self, A, kidx, sbase=84, stmp=92, enabled=True):
        self.A = A; self.k = kidx; self.sb = sbase; self.tmp = stmp; self.en = enabled
    def start(self):
        if not self.en: return
        A = self.A
        for i in range(8): A(f"s_mov_b32 s{self.sb+i}, 0")
        self.mark(0)
    def mark(self, i):
        if not self.en: return
        A = self.A
        A(f"s_memrealtime s[{self.tmp}:{self.tmp+1}]")
        A("s_waitcnt lgkmcnt(0)")
        A(f"s_mov_b32 s{self.sb+i}, s{self.tmp}")
    def dump(self, s_ws, vtmp, vdata8, wave_sgpr_expr_v0=True):
        if not self.en: return
        A = self.A
        A("s_waitcnt vmcnt(0)")
        self.mark(1)
        A(f"v_lshrrev_b32 v{vtmp}, 6, v0")
        A(f"s_lshl_b32 s{self.tmp}, s2, 4")
        A(f"v_add_u32 v{vtmp}, s{self.tmp}, v{vtmp}")
        A(f"v_lshlrev_b32 v{vtmp}, 5, v{vtmp}")
        A(f"v_add_u32 v{vtmp}, {STAMP_OFF + self.k * 256 * 16 * 32}, v{vtmp}")
        for i in range(8): A(f"v_mov_b32 v{vdata8+i}, s{self.sb+i}")
        A(f"v_and_b32 v{vdata8+8}, 63, v0")
        A(f"v_cmp_eq_u32 vcc, 0, v{vdata8+8}")
        A("s_and_saveexec_b64 s[36:37], vcc")
        A(f"global_store_dwordx4 v{vtmp}, v[{vdata8}:{vdata8+3}], s[{s_ws}:{s_ws+1}]")
        A(f"global_store_dwordx4 v{vtmp}, v[{vdata8+4}:{vdata8+7}], s[{s_ws}:{s_ws+1}] offset:16")
        A("s_mov_b64 exec, s[36:37]")

TRACE_OFF = 0x9000000
class Tracer:
    def __init__(self, A, vtr, tmp=96, enabled=True):
        self.A = A; self.v = vtr; self.tmp = tmp; self.en = enabled; self.n = 0; self.names = []
    def init(self):
        if self.en: self.A(f"v_mov_b32 v{self.v}, 0")
    def mark(self, idx, name=None):
        if not self.en: return
        A = self.A
        A(f"s_memrealtime s[{self.tmp}:{self.tmp+1}]")
        A(f"s_memtime s[{self.tmp+2}:{self.tmp+3}]")
        A("s_waitcnt lgkmcnt(0)")
        A(f"v_writelane_b32 v{self.v}, s{self.tmp}, {2*idx}")
        A(f"v_writelane_b32 v{self.v}, s{self.tmp+2}, {2*idx+1}")
    def mark_dyn(self, base, s_idx):
        if not self.en: return
        A = self.A
        A(f"s_memrealtime s[{self.tmp}:{self.tmp+1}]")
        A(f"s_memtime s[{self.tmp+2}:{self.tmp+3}]")
        A("s_waitcnt lgkmcnt(0)")
        A(f"s_lshl_b32 s{self.tmp+1}, s{s_idx}, 1")
        A(f"s_add_u32 s{self.tmp+1}, s{self.tmp+1}, {2*base}")
        A(f"s_mov_b32 m0, s{self.tmp+1}")
        A(f"v_writelane_b32 v{self.v}, s{self.tmp}, m0")
        A(f"s_add_u32 m0, m0, 1")
        A(f"v_writelane_b32 v{self.v}, s{self.tmp+2}, m0")
    def dump(self, s_ws, vtmp):
        if not self.en: return
        A = self.A
        A(f"v_lshrrev_b32 v{vtmp}, 6, v0")
        A(f"s_lshl_b32 s{self.tmp}, s2, 4")
        A(f"v_add_u32 v{vtmp}, s{self.tmp}, v{vtmp}")
        A(f"v_lshlrev_b32 v{vtmp}, 8, v{vtmp}")
        A(f"v_and_b32 v{vtmp+1}, 63, v0")
        A(f"v_lshl_add_u32 v{vtmp}, v{vtmp+1}, 2, v{vtmp}")
        A(f"v_add_u32 v{vtmp}, {TRACE_OFF}, v{vtmp}")
        A(f"global_store_dword v{vtmp}, v{self.v}, s[{s_ws}:{s_ws+1}]")

def emit_pipelined_poll(A, load_fmt, regs, s_nonce, s_cnt, depth=1, limit=0x4000):
    lab = A.newlabel("Lpp"); done = A.newlabel("Lppd")
    for k in range(depth - 1):
        A(load_fmt.format(d=f"v{regs[k]}"))
    A(f"s_mov_b32 s{s_cnt}, 0")
    A.label(lab)
    for k in range(depth):
        A(load_fmt.format(d=f"v{regs[(k + depth - 1) % depth]}"))
        A(f"s_waitcnt vmcnt({depth - 1})")
        A(f"v_cmp_eq_u32 vcc, s{s_nonce}, v{regs[k]}")
        A("s_nop 3")
        A("s_cmp_eq_u64 vcc, -1")
        A(f"s_cbranch_scc1 {done}")
    A(f"s_add_u32 s{s_cnt}, s{s_cnt}, 1\ns_cmp_lt_u32 s{s_cnt}, {limit}")
    A(f"s_cbranch_scc1 {lab}")
    A.label(done)
```

```python
from emit import *
import attn, qkv, tail
from attn import R, ROWB, BLK_BYTES, O_OFF, O_BLK, KPAIR, VPAIR, KBLK, VBLK, HEADSZ, ONES, ZEROS, SLOT, NSLOT, QOFF
from qkv import XST, WST, STAGE, NST, NCH, CSCALE, f32bits

OPT = {}
NONCE_LDS = max(qkv.LDS_GEMM, attn.LDS_ATTN, tail.LDS_END)
LDS_FUSED = NONCE_LDS + 256
FLAG_OFF = 0x2000000

def emit_loader_gemm_setup(A, r, g, L):
    t0, t1, t2, t3, t4, t5 = r.t
    st, st2, st3, st4 = r.s_t
    lane = r.lane
    A(f"v_lshrrev_b32 v{t0}, 3, v{lane}")
    A(f"v_and_b32 v{t1}, 7, v{lane}")
    A(f"v_lshrrev_b32 v{t2}, 4, v{lane}")
    A(f"v_and_b32 v{t2}, 1, v{t2}")
    A(f"s_lshl_b32 s{st}, s{r.s_c}, 8")
    A(f"s_lshl_b32 s{st2}, s{L.s_lw}, 6")
    A(f"s_add_u32 s{st}, s{st}, s{st2}")
    A(f"v_add_u32 v{t0}, s{st}, v{t0}")
    A(f"v_mul_u32_u24 v{t0}, 1152, v{t0}")
    for i in range(4):
        A(f"v_or_b32 v{t3}, {i<<1}, v{t2}")
        A(f"v_xor_b32 v{t3}, v{t3}, v{t1}")
        A(f"v_lshl_add_u32 v{L.vx[i]}, v{t3}, 4, v{t0}")
        if i: A(f"v_add_u32 v{L.vx[i]}, {i*8*1152}, v{L.vx[i]}")
    A(f"v_lshrrev_b32 v{t0}, 4, v{lane}")
    A(f"s_lshl_b32 s{st}, s{L.s_lw}, 4")
    A(f"v_add_u32 v{t5}, s{st}, v{t0}")
    A(f"v_mul_u32_u24 v{t5}, 3456, v{t5}")
    A(f"s_mul_i32 s{st}, s{r.s_hp}, 72")
    A(f"v_add_u32 v{t5}, s{st}, v{t5}")
    for var in range(2):
        A(f"v_or_b32 v{t1}, {4*var}, v{t0}")
        A(f"v_lshlrev_b32 v{t1}, 1, v{t1}")
        A(f"v_and_b32 v{t2}, 15, v{lane}")
        A(f"v_xor_b32 v{t2}, v{t2}, v{t1}")
        A(f"v_lshrrev_b32 v{t3}, 2, v{t2}")
        A(f"v_and_b32 v{t4}, 3, v{t2}")
        A(f"v_min_u32 v{t1}, 2, v{t4}")
        A(f"v_cmp_eq_u32 vcc, 3, v{t3}")
        A("s_nop 1")
        A(f"v_cndmask_b32 v{t3}, v{t3}, v{t1}, vcc")
        A(f"v_lshlrev_b32 v{t4}, 4, v{t4}")
        A(f"v_cndmask_b32 v{t4}, v{t4}, 56, vcc")
        A(f"v_mul_u32_u24 v{t3}, 1152, v{t3}")
        A(f"v_add3_u32 v{L.vw[var]}, v{t3}, v{t4}, v{t5}")
    A(f"s_lshl_b32 s{g.s_mx}, s{L.s_lw}, 13")
    A(f"s_lshl_b32 s{g.s_mw}, s{L.s_lw}, 12")
    A(f"s_add_u32 s{g.s_mw}, s{g.s_mw}, {XST}")

def emit_loader_gemm_dma(A, r, g, L):
    st, st2 = r.s_t[:2]
    A(f"s_lshl_b32 s{g.s_xoff}, s{g.s_kc}, 7")
    A(f"s_mul_i32 s{g.s_woff}, s{g.s_kc}, {64*3456}")
    for i in range(4):
        A(f"s_add_u32 s{st}, s{g.s_stw}, s{g.s_mw}")
        A(f"s_add_u32 m0, s{st}, {1024*i}")
        A(f"s_add_u32 s{st2}, s{g.s_woff}, {4*3456*i}")
        A(f"buffer_load_dwordx4 v{L.vw[i>>1]}, s[{g.s_wsrd}:{g.s_wsrd+3}], s{st2} offen lds")
    for i in range(8):
        A(f"s_add_u32 s{st}, s{g.s_stw}, s{g.s_mx}")
        A(f"s_add_u32 m0, s{st}, {1024*i}")
        A(f"s_add_u32 s{st2}, s{g.s_xoff}, {32*1152*(i>>2)}")
        A(f"buffer_load_dwordx4 v{L.vx[i&3]}, s[{g.s_xsrd}:{g.s_xsrd+3}], s{st2} offen lds")
    A(f"s_add_u32 s{g.s_kc}, s{g.s_kc}, 1")
    A(f"s_add_u32 s{g.s_stw}, s{g.s_stw}, {STAGE}")
    A(f"s_cmp_eq_u32 s{g.s_stw}, {NST*STAGE}")
    A(f"s_cselect_b32 s{g.s_stw}, 0, s{g.s_stw}")

def emit_compute_gemm_setup(A, r, g):
    t0, t1, t2, t3, t4, t5 = r.t
    st, st2, st3, st4 = r.s_t
    lane = r.lane
    A(f"v_and_b32 v{t0}, 15, v{lane}")
    A(f"v_lshrrev_b32 v{t1}, 2, v{t0}")
    A(f"v_and_b32 v{t2}, 3, v{t0}")
    A(f"v_lshl_add_u32 v{t2}, v{t1}, 3, v{t2}")
    A(f"v_lshrrev_b32 v{t3}, 1, v{t0}")
    A(f"v_and_b32 v{t3}, 1, v{t3}")
    A(f"v_lshl_or_b32 v{t3}, v{t1}, 1, v{t3}")
    A(f"v_lshrrev_b32 v{t4}, 4, v{lane}")
    A(f"v_xor_b32 v{t3}, v{t3}, v{t4}")
    A(f"s_and_b32 s{st}, s{r.s_w}, 3")
    A(f"s_lshl_b32 s{st}, s{st}, 13")
    A(f"v_lshlrev_b32 v{t2}, 7, v{t2}")
    A(f"v_add_u32 v{t2}, s{st}, v{t2}")
    A(f"v_lshl_add_u32 v{g.aA[0]}, v{t3}, 4, v{t2}")
    A(f"v_xor_b32 v{t3}, 4, v{t3}")
    A(f"v_lshl_add_u32 v{g.aA[1]}, v{t3}, 4, v{t2}")
    A(f"v_lshrrev_b32 v{t0}, 4, v{lane}")
    A(f"v_lshrrev_b32 v{t1}, 2, v{lane}")
    A(f"v_and_b32 v{t1}, 3, v{t1}")
    A(f"v_lshl_add_u32 v{t2}, v{t0}, 3, v{t1}")
    A(f"v_lshlrev_b32 v{t2}, 8, v{t2}")
    A(f"v_add_u32 v{t2}, {XST}, v{t2}")
    A(f"v_and_b32 v{t0}, 1, v{t0}")
    A(f"v_lshl_or_b32 v{t0}, v{t0}, 2, v{t1}")
    A(f"v_and_b32 v{t3}, 3, v{lane}")
    A(f"v_lshlrev_b32 v{t4}, 3, v{t3}")
    A(f"v_add_u32 v{t4}, v{t4}, v{t2}")
    A(f"s_lshr_b32 s{st}, s{r.s_w}, 2")
    A(f"s_lshl_b32 s{st}, s{st}, 2")
    for t in range(4):
        A(f"s_add_u32 s{st2}, s{st}, {t}")
        A(f"v_xor_b32 v{t5}, s{st2}, v{t0}")
        A(f"v_lshl_add_u32 v{g.aB[t]}, v{t5}, 5, v{t4}")
    A(f"v_add_u32 v{t3}, 12, v{t3}")
    A(f"v_lshlrev_b32 v{t0}, 1, v{t0}")
    A(f"v_xor_b32 v{t3}, v{t3}, v{t0}")
    A(f"v_lshl_add_u32 v{t3}, v{t3}, 4, v{t2}")
    A(f"v_add_u32 v{t3}, 8, v{t3}")
    A(f"s_cmp_ge_u32 s{r.s_w}, 4")
    A(f"s_cselect_b64 vcc, -1, 0")
    A("s_nop 1")
    A(f"v_cndmask_b32 v{g.aB[2]}, v{g.aB[2]}, v{t3}, vcc")

def g_read_list(g, s, ks, nt):
    out = []
    for i in range(4):
        p, T = i // 2, i % 2
        out.append(f"ds_read_b128 v[{g.FA[s][i]}:{g.FA[s][i]+3}], v{g.aA[ks]} offset:{4096*p+512*T}")
    for t in range(nt):
        out.append(f"ds_read_b64_tr_b16 v[{g.FB[s][t]}:{g.FB[s][t]+1}], v{g.aB[t]} offset:{8192*ks}")
        out.append(f"ds_read_b64_tr_b16 v[{g.FB[s][t]+2}:{g.FB[s][t]+3}], v{g.aB[t]} offset:{8192*ks+1024}")
    return out
def g_mfma_list(g, s, nt):
    out = []
    for t in range(nt):
        for i in range(4):
            out.append(f"v_mfma_f32_16x16x32_bf16 v[{g.acc[i][t]}:{g.acc[i][t]+3}], v[{g.FA[s][i]}:{g.FA[s][i]+3}], v[{g.FB[s][t]}:{g.FB[s][t]+3}], v[{g.acc[i][t]}:{g.acc[i][t]+3}]")
    return out
def interleave(A, mf, rd, pre=()):
    extra = list(pre) + list(rd)
    k = 0
    for m in mf:
        A(m)
        if k < len(extra):
            A(extra[k]); k += 1
    while k < len(extra):
        A(extra[k]); k += 1

def emit_compute_gemm(A, r, g, name, S):
    A(f"s_mov_b32 s{g.s_rst}, 0")
    for i in range(4):
        for t in range(4):
            for j in range(4): A(f"v_mov_b32 v{g.acc[i][t]+j}, 0")
    if getattr(g, "pf_pre", None): emit_prefetch_batch(A, r, g, g.pfreg, g.pf_pre)
    g.T.mark(1)
    A("s_barrier")
    S.mark(2)
    g.T.mark(2)
    if g.pf2: emit_prefetch_batch(A, r, g, g.pfreg, g.pf2)
    A(f"s_cmp_ge_u32 s{r.s_w}, 4")
    A(f"s_cbranch_scc1 {name}_g1")
    for nh in range(2):
        nt = 4 if nh == 0 else 3
        if nh == 1: A.label(f"{name}_g1")
        for x in g_read_list(g, 0, 0, nt): A(x)
        A(f"s_mov_b32 s{r.s_it}, 0")
        A("s_waitcnt lgkmcnt(0)")
        A.label(f"{name}_gl{nh}")
        interleave(A, g_mfma_list(g, 0, nt), g_read_list(g, 1, 1, nt))
        A(f"s_add_u32 s{g.s_rst}, s{g.s_rst}, 1")
        A(f"s_cmp_eq_u32 s{g.s_rst}, {NST}")
        A(f"s_mov_b32 s{g.s_gdelta}, {STAGE}\ns_cmov_b32 s{g.s_gdelta}, {-(NST-1)*STAGE & 0xffffffff}")
        A(f"s_cselect_b32 s{g.s_rst}, 0, s{g.s_rst}")
        A("s_waitcnt lgkmcnt(0)")
        A("s_barrier")
        upd = [f"v_add_u32 v{x}, s{g.s_gdelta}, v{x}" for x in [g.aA[0]] + g.aB[:nt] + [g.aA[1]]]
        mf = g_mfma_list(g, 1, nt)
        rd = g_read_list(g, 0, 0, nt)
        k = 0
        for x in upd[:2]: A(x)
        seq = upd[2:] + rd
        interleave(A, mf, seq)
        A(f"s_add_u32 s{r.s_it}, s{r.s_it}, 1")
        A(f"s_cmp_lt_u32 s{r.s_it}, {NCH}")
        A(f"s_waitcnt lgkmcnt(0)")
        A(f"s_cbranch_scc1 {name}_gl{nh}")
        emit_epi_lds(A, r, g, nh)
        if nh == 0: A(f"s_branch {name}_gdone")
    A.label(f"{name}_gdone")

def emit_epi_addr(A, r, g, nh):
    t0, t1, t2, t3, t4, t5 = r.t
    st, st2, st3, st4 = r.s_t
    lane = r.lane
    nt = 4 if nh == 0 else 3
    A(f"s_and_b32 s{st}, s{r.s_w}, 3")
    A(f"s_lshl_b32 s{st}, s{st}, 7")
    typ = g.FA[0][0]; col = g.FA[0][0] + 1; tmp = g.FA[0][0] + 2; v2 = g.FA[0][0] + 3
    for t in range(nt):
        Tf = 4 * nh + t
        ea = g.ea[t]; ed = g.ed[t]
        A(f"v_and_b32 v{t1}, 15, v{lane}")
        if Tf < 6:
            A(f"v_add_u32 v{col}, {16*(Tf & 1)}, v{t1}")
        else:
            A(f"v_lshrrev_b32 v{typ}, 2, v{t1}")
            A(f"v_and_b32 v{col}, 3, v{t1}")
            A(f"v_add_u32 v{col}, 32, v{col}")
        A(f"v_cmp_le_u32 vcc, 18, v{col}")
        A(f"v_subrev_u32 v{tmp}, 18, v{col}")
        A("s_nop 0")
        A(f"v_cndmask_b32 v{col}, v{col}, v{tmp}, vcc")
        A(f"v_cndmask_b32 v{t0}, 0, 1, vcc")
        A(f"v_and_b32 v{t2}, 1, v{col}")
        A(f"v_lshrrev_b32 v{t3}, 1, v{col}")
        A(f"v_lshrrev_b32 v{t4}, 4, v{lane}")
        isq = (Tf < 2); isk = (Tf in (2, 3)); isv = (Tf in (4, 5))
        def ktype(base_const, hstride):
            A(f"v_mul_u32_u24 v{ea}, {KPAIR}, v{t3}")
            A(f"v_mul_u32_u24 v{tmp}, {hstride}, v{t0}")
            A(f"v_add3_u32 v{ea}, v{ea}, v{tmp}, s{st}")
            A(f"v_mul_u32_u24 v{tmp}, {512+64}, v{t2}")
            A(f"v_lshl_add_u32 v{tmp}, v{t4}, 4, v{tmp}")
            A(f"v_add_u32 v{ea}, v{ea}, v{tmp}")
            if base_const: A(f"v_add_u32 v{ea}, {base_const}, v{ea}")
            A(f"v_lshlrev_b32 v{ed}, 7, v{t2}")
            A(f"v_sub_u32 v{ed}, 64, v{ed}")
        def vtype(dst, dd):
            A(f"v_mul_u32_u24 v{dst}, {VPAIR}, v{t3}")
            A(f"v_mul_u32_u24 v{tmp}, {HEADSZ}, v{t0}")
            A(f"v_add3_u32 v{dst}, v{dst}, v{tmp}, s{st}")
            A(f"v_xor_b32 v{tmp}, v{t4}, v{t2}")
            A(f"v_lshlrev_b32 v{tmp}, 4, v{tmp}")
            A(f"v_lshl_add_u32 v{tmp}, v{t2}, 9, v{tmp}")
            A(f"v_add_u32 v{dst}, v{dst}, v{tmp}")
            A(f"v_add_u32 v{dst}, {KBLK}, v{dst}")
            A(f"v_mov_b32 v{dd}, 64")
        if isq: ktype(QOFF, KBLK)
        elif isk: ktype(0, HEADSZ)
        elif isv: vtype(ea, ed)
        else:
            ktype(0, HEADSZ)
            A(f"v_mul_i32_i24 v{tmp}, {KBLK-HEADSZ}, v{t0}")
            A(f"v_add_u32 v{tmp}, {QOFF}, v{tmp}")
            A(f"v_cmp_eq_u32 vcc, 0, v{typ}")
            A("s_nop 1")
            A(f"v_cndmask_b32 v{tmp}, 0, v{tmp}, vcc")
            A(f"v_add_u32 v{ea}, v{ea}, v{tmp}")
            vtype(t5, v2)
            A(f"v_cmp_eq_u32 vcc, 2, v{typ}")
            A("s_nop 1")
            A(f"v_cndmask_b32 v{ea}, v{ea}, v{t5}, vcc")
            A(f"v_cndmask_b32 v{ed}, v{ed}, v{v2}, vcc")
            A(f"v_mov_b32 v{g.esc}, 1.0")
            A(f"v_mov_b32 v{tmp}, {f32bits(CSCALE):#x}")
            A(f"v_cmp_eq_u32 vcc, 0, v{typ}")
            A("s_nop 1")
            A(f"v_cndmask_b32 v{g.esc}, v{g.esc}, v{tmp}, vcc")
            A(f"v_cmp_gt_u32 s[54:55], 3, v{typ}")
        A(f"v_add_u32 v{ed}, v{ea}, v{ed}")

def emit_epi_lds(A, r, g, nh):
    st4 = r.s_t[3]
    nt = 4 if nh == 0 else 3
    A("s_nop 7")
    A(f"s_mov_b32 s{st4}, {f32bits(CSCALE):#x}")
    order = [2, 3, 0, 1] if nh == 0 else [0, 1, 2]
    for t in order:
        Tf = 4 * nh + t
        isq = Tf < 2
        if Tf == 6:
            A("s_mov_b64 s[36:37], exec")
            A("s_mov_b64 exec, s[54:55]")
        for p in range(2):
            a0 = g.acc[2 * p][t]; a1 = g.acc[2 * p + 1][t]
            if isq:
                for j in range(4):
                    A(f"v_mul_f32 v{a0+j}, s{st4}, v{a0+j}")
                    A(f"v_mul_f32 v{a1+j}, s{st4}, v{a1+j}")
            elif Tf == 6:
                for j in range(4):
                    A(f"v_mul_f32 v{a0+j}, v{g.esc}, v{a0+j}")
                    A(f"v_mul_f32 v{a1+j}, v{g.esc}, v{a1+j}")
            pk = g.FA[p][t]
            A(f"v_cvt_pk_bf16_f32 v{pk}, v{a0}, v{a0+1}")
            A(f"v_cvt_pk_bf16_f32 v{pk+1}, v{a0+2}, v{a0+3}")
            A(f"v_cvt_pk_bf16_f32 v{pk+2}, v{a1}, v{a1+1}")
            A(f"v_cvt_pk_bf16_f32 v{pk+3}, v{a1+2}, v{a1+3}")
            A(f"ds_write_b128 v{g.ea[t] if p == 0 else g.ed[t]}, v[{pk}:{pk+3}]")
        if Tf == 6:
            A("s_mov_b64 exec, s[36:37]")

def emit_prefetch(A, r, g, d0, kind, kca, kcb):
    t0, t1, t2, t3 = r.t[:4]
    st, st2, st3, st4 = r.s_t
    A(f"s_lshl_b32 s{st}, s{r.s_hp}, 1\ns_and_b32 s{st2}, s{r.s_c}, 1\ns_add_u32 s{st}, s{st}, s{st2}")
    if kind == "x":
        A(f"v_lshrrev_b32 v{t3}, 4, v{r.lane}")
        A(f"v_add_u32 v{t3}, {kca}, v{t3}")
        A(f"v_min_u32 v{t3}, {kcb}, v{t3}")
        A(f"v_and_b32 v{t0}, 15, v{r.lane}")
        A(f"s_lshr_b32 s{st2}, s{r.s_c}, 1\ns_lshl_b32 s{st2}, s{st2}, 9\ns_lshl_b32 s{st3}, s{st}, 4\ns_add_u32 s{st2}, s{st2}, s{st3}")
        A(f"v_add_u32 v{t0}, s{st2}, v{t0}")
        A(f"v_mul_u32_u24 v{t0}, 1152, v{t0}")
        A(f"v_lshl_add_u32 v{t0}, v{t3}, 7, v{t0}")
        A(f"buffer_load_dword v{d0}, v{t0}, s[{g.s_xsrd}:{g.s_xsrd+3}], 0 offen")
    elif kind == "w":
        A(f"v_min_u32 v{t0}, 53, v{r.lane}")
        A(f"s_mul_i32 s{st2}, s{st}, 54")
        A(f"v_add_u32 v{t0}, s{st2}, v{t0}")
        A(f"v_mul_u32_u24 v{t1}, 2428, v{t0}")
        A(f"v_lshrrev_b32 v{t1}, 16, v{t1}")
        A(f"v_mul_u32_u24 v{t2}, 27, v{t1}")
        A(f"v_sub_u32 v{t2}, v{t0}, v{t2}")
        A(f"v_add_u32 v{t1}, {64*kca}, v{t1}")
        A(f"v_mul_u32_u24 v{t1}, 3456, v{t1}")
        A(f"v_lshl_add_u32 v{t1}, v{t2}, 7, v{t1}")
        A(f"buffer_load_dword v{d0}, v{t1}, s[{g.s_wsrd}:{g.s_wsrd+3}], 0 offen")

def emit_prefetch_batch(A, r, g, d0, jobs):
    done = A.newlabel("Lpfd")
    for w, (kind, a, b) in jobs.items():
        lab = A.newlabel("Lpf")
        A(f"s_cmp_eq_u32 s{r.s_w}, {w}\ns_cbranch_scc0 {lab}")
        emit_prefetch(A, r, g, d0, kind, a, b)
        A(f"s_branch {done}")
        A.label(lab)
    A.label(done)

def emit_loader_kv_setup(A, r, L):
    t0, t1, t2, t3 = r.t[:4]
    st, st2, st3, st4 = r.s_t
    A(f"v_lshrrev_b32 v{t0}, 5, v{r.lane}")
    A(f"v_and_b32 v{t1}, 31, v{r.lane}")
    A(f"v_lshlrev_b32 v{t2}, 2, v{t0}")
    A(f"v_xor_b32 v{t2}, v{t2}, v{t1}")
    A(f"v_lshlrev_b32 v{t2}, 4, v{t2}")
    A(f"v_lshl_add_u32 v{t2}, v{t0}, 12, v{t2}")
    A(f"v_xor_b32 v{t3}, v{t0}, v{t1}")
    A(f"v_lshlrev_b32 v{t3}, 4, v{t3}")
    A(f"v_lshl_add_u32 v{t3}, v{t0}, 12, v{t3}")
    for i in range(9):
        sl = L.s_lds[i]
        A(f"s_add_u32 s{st}, s{L.s_lw}, {4*i}")
        A(f"s_cmp_ge_u32 s{st}, 18")
        A(f"s_cselect_b32 s{st2}, 18, 0")
        A(f"s_mov_b32 s{st3}, {KPAIR}\ns_cmov_b32 s{st3}, {VPAIR}")
        A(f"s_cselect_b32 s{st4}, {KBLK}, 0")
        A(f"s_mov_b32 s{sl}, 576\ns_cmov_b32 s{sl}, 1152")
        A(f"s_cselect_b64 vcc, -1, 0")
        A(f"s_sub_u32 s{st}, s{st}, s{st2}")
        A(f"s_mul_i32 s{st2}, s{r.s_hp}, 36")
        A(f"s_add_u32 s{sl}, s{sl}, s{st2}")
        A(f"s_lshl_b32 s{st2}, s{st}, 1")
        A(f"s_add_u32 s{sl}, s{sl}, s{st2}")
        A(f"s_lshl_b32 s{sl}, s{sl}, 12")
        A(f"v_cndmask_b32 v{L.vdma[i]}, v{t2}, v{t3}, vcc")
        A(f"v_add_u32 v{L.vdma[i]}, s{sl}, v{L.vdma[i]}")
        A(f"s_cmp_ge_u32 s{st}, 9")
        A(f"s_cselect_b32 s{st2}, 9, 0")
        A(f"s_cselect_b32 s{sl}, {HEADSZ}, 0")
        A(f"s_sub_u32 s{st}, s{st}, s{st2}")
        A(f"s_mul_i32 s{st}, s{st}, s{st3}")
        A(f"s_add_u32 s{sl}, s{sl}, s{st}")
        A(f"s_add_u32 s{sl}, s{sl}, s{st4}")

def emit_loader_ones(A, r, L):
    t0, t1, t2, t3 = r.t[:4]
    A(f"v_subrev_u32 v{t1}, 512, v0")
    A(f"v_cmp_gt_u32 vcc, 192, v{t1}")
    A(f"v_lshlrev_b32 v{t1}, 2, v{t1}")
    A(f"v_mov_b32 v{t0}, 0x3f803f80")
    A(f"v_mov_b32 v{t3}, 0")
    A("s_and_saveexec_b64 s[36:37], vcc")
    lab = A.newlabel("Lones")
    A(f"s_cbranch_execz {lab}")
    for s in range(NSLOT):
        A(f"v_add_u32 v{t2}, {s*SLOT+ONES}, v{t1}")
        A(f"ds_write_b32 v{t2}, v{t0}")
        A(f"ds_write_b32 v{t2}, v{t3} offset:768")
    A.label(lab)
    A("s_mov_b64 exec, s[36:37]")

def emit_poll(A, r, L, seg_sgpr):
    t0 = r.t[0]; st, st2 = r.s_t[:2]
    A(f"s_lshl_b32 s{st}, s{seg_sgpr}, 7")
    A(f"v_and_b32 v{t0}, 3, v{r.lane}")
    A(f"v_lshlrev_b32 v{t0}, 2, v{t0}")
    A(f"v_add3_u32 v{t0}, v{t0}, v{L.vflag}, s{st}")
    b = L.buf[0]
    emit_pipelined_poll(A, f"global_load_dword {{d}}, v{t0}, s[{r.s_ws}:{r.s_ws+1}] sc1", [b, b+1, b+2, b+3], L.s_nonce, st2, depth=OPT.get("pdepth", 1))

def emit_loader_kv_dma(A, r, L):
    A(f"s_lshl_b32 s{r.s_chunk}, s{r.s_seg}, 9")
    for i in range(9):
        A(f"s_add_u32 m0, s{r.s_slotw}, s{L.s_lds[i]}")
        A("s_nop 0")
        A(f"buffer_load_dwordx4 v{L.vdma[i]}, s[{r.s_srd}:{r.s_srd+3}], s{r.s_chunk} offen{OPT.get('kvload', ' sc1')} lds")
    A(f"s_add_u32 s{r.s_seg}, s{r.s_seg}, 1")
    A(f"s_and_b32 s{r.s_seg}, s{r.s_seg}, 7")
    A(f"s_add_u32 s{r.s_slotw}, s{r.s_slotw}, {SLOT}")
    A(f"s_cmp_eq_u32 s{r.s_slotw}, {NSLOT*SLOT}")
    A(f"s_cselect_b32 s{r.s_slotw}, 0, s{r.s_slotw}")

def emit_check(A, r, name, part=1):
    t0, t1 = r.t[:2]
    A(f"s_mov_b32 s40, 0x30800000")
    A(f"s_mov_b32 s41, 0x71800000")
    for u in range(2):
        A(f"v_mul_f32 v{r.t[2+u]}, 0, v{r.O[u]}")
        for i in range(1, 10): A(f"v_fma_f32 v{r.t[2+u]}, v{r.O[u]+i}, 0, v{r.t[2+u]}")
    A(f"v_add_f32 v{r.t[2]}, v{r.t[2]}, v{r.t[3]}")
    A(f"v_cmp_gt_f32 vcc, v{r.O[0]+10}, s40")
    A(f"v_cmp_lt_f32 s[42:43], v{r.O[0]+10}, s41")
    A("s_nop 3")
    A(f"s_and_b64 s[44:45], vcc, s[42:43]")
    A(f"v_cmp_gt_f32 vcc, v{r.O[1]+10}, s40")
    A(f"v_cmp_lt_f32 s[42:43], v{r.O[1]+10}, s41")
    A("s_nop 3")
    A(f"s_and_b64 s[44:45], s[44:45], vcc")
    A(f"s_and_b64 s[44:45], s[44:45], s[42:43]")
    A(f"v_cmp_o_f32 vcc, v{r.t[2]}, v{r.t[2]}")
    A("s_nop 3")
    A(f"s_and_b64 s[44:45], s[44:45], vcc")
    if OPT.get("forceslow"): A("s_mov_b64 s[44:45], 0")
    lab = A.newlabel("Lok")
    A("s_cmp_eq_u64 s[44:45], -1")
    A(f"s_cbranch_scc1 {lab}")
    A(f"v_mov_b32 v{t0}, {NONCE_LDS + 4}")
    A(f"v_mov_b32 v{t1}, 1")
    A(f"ds_write_b32 v{t0}, v{t1}")
    A("s_waitcnt lgkmcnt(0)")
    A.label(lab)
    if part: emit_flag_read(A, r)

def emit_flag_read(A, r):
    t0 = r.t[0]
    A("s_barrier")
    A(f"v_mov_b32 v{t0}, {NONCE_LDS + 4}")
    A(f"ds_read_b32 v{t0}, v{t0}")
    A("s_waitcnt lgkmcnt(0)")
    A(f"v_readfirstlane_b32 s40, v{t0}")
    A("s_nop 3")
    A("s_cmp_lg_u32 s40, 0")

def emit_slow_compute(A, r, name):
    t = r.t
    m = [t[4], t[5]]
    addrs = [r.kE, r.kO, r.tE, r.tO, r.vA]
    back = (8 % NSLOT) * SLOT
    for x in addrs: A(f"v_subrev_u32 v{x}, {back}, v{x}")
    for u in range(2):
        A(f"v_mov_b32 v{r.Qt[u]+1}, 0")
        A(f"v_mov_b32 v{m[u]}, 0xff800000")
        for i in range(16): A(f"v_mov_b32 v{r.O[u]+i}, 0")
    for ps in range(2):
        A(f"s_mov_b32 s46, 0")
        A.label(f"{name}_sl{ps}")
        A("s_barrier")
        A(f"s_mov_b32 s47, 0")
        A.label(f"{name}_st{ps}")
        for par in range(2):
            attn.k_reads(A, r, par, 0)
            if ps == 1: attn.v_reads(A, r, par, 0)
            A("s_waitcnt lgkmcnt(0)")
            for u in range(2):
                S0 = r.S[u]
                attn.mf_main(A, r, S0, 0, u)
                attn.mf_tail(A, r, S0, 0, u)
            A("s_nop 15")
            for u in range(2):
                S0 = r.S[u]
                if ps == 0:
                    for k in range(0, 16, 2):
                        A(f"v_max3_f32 v{m[u]}, v{m[u]}, v{S0+k}, v{S0+k+1}")
                else:
                    for k in range(16): A(f"v_sub_f32 v{S0+k}, v{S0+k}, v{m[u]}")
                    for k in range(16): A(f"v_exp_f32 v{S0+k}, v{S0+k}")
                    A("s_nop 1")
                    attn.mf_pv(A, r, u, r.V1[0], S0)
                    attn.mf_pv(A, r, u, r.V2[0], S0 + 8)
            if ps == 1: A("s_nop 7")
        for x in addrs: A(f"v_add_u32 v{x}, 128, v{x}")
        A("s_add_u32 s47, s47, 1\ns_cmp_lt_u32 s47, 4")
        A(f"s_cbranch_scc1 {name}_st{ps}")
        for x in addrs: A(f"v_subrev_u32 v{x}, 512, v{x}")
        A("s_barrier")
        A("s_add_u32 s46, s46, 1\ns_cmp_lt_u32 s46, 8")
        A(f"s_cbranch_scc1 {name}_sl{ps}")
        if ps == 0:
            A(f"v_mov_b32 v{t[0]}, v{m[0]}\nv_mov_b32 v{t[1]}, v{m[1]}")
            A("s_nop 1")
            A(f"v_permlane32_swap_b32 v{m[0]}, v{t[0]}")
            A(f"v_permlane32_swap_b32 v{m[1]}, v{t[1]}")
            A("s_nop 1")
            A(f"v_max_f32 v{m[0]}, v{m[0]}, v{t[0]}")
            A(f"v_max_f32 v{m[1]}, v{m[1]}, v{t[1]}")
    A("s_nop 15")

def emit_slow_loader(A, r, L, name):
    A(f"s_mov_b32 s46, 0")
    A.label(f"{name}_lsl")
    A(f"s_and_b32 s{r.s_seg}, s46, 7")
    A(f"s_mov_b32 s{r.s_slotw}, 0")
    emit_loader_kv_dma(A, r, L)
    A("s_waitcnt vmcnt(0)")
    A("s_barrier")
    A("s_barrier")
    A("s_add_u32 s46, s46, 1\ns_cmp_lt_u32 s46, 16")
    A(f"s_cbranch_scc1 {name}_lsl")

def gen_fused(name="fused_kernel", rt=None):
    A = Asm(); r = R(); g = R(); L = R()
    V = RegAlloc(1, 168, "v")
    attn.alloc_sregs(r); qkv.alloc_gemm_sregs(g)
    lane = V.alloc("lane"); tt = [V.alloc(f"t{i}") for i in range(6)]
    r.lane = lane; r.t = tt
    r.kE = V.alloc("kE"); r.kO = V.alloc("kO"); r.tE = V.alloc("tE"); r.tO = V.alloc("tO"); r.vA = V.alloc("vA")
    r.qE = V.alloc("qE"); r.qO = V.alloc("qO")
    g.ea = [V.alloc(f"ea{i}") for i in range(4)]; g.ed = [V.alloc(f"ed{i}") for i in range(4)]; g.esc = V.alloc("esc")
    vTR = V.alloc("vTR") if OPT.get("trace") else 0
    base = V.next
    Va = RegAlloc(base, 168, "v")
    r.idx = Va.alloc("idx")
    r.Qm = [Va.alloc(f"Qm{u}", 4, 2) for u in range(2)]
    r.Qt = [Va.alloc(f"Qt{u}", 2, 2) for u in range(2)]
    r.Km = [Va.alloc(f"Km{p}", 4, 2) for p in range(2)]
    r.Kt = [Va.alloc(f"Kt{p}", 2, 2) for p in range(2)]
    r.V1 = [Va.alloc(f"V1{p}", 4, 2) for p in range(2)]
    r.V2 = [Va.alloc(f"V2{p}", 4, 2) for p in range(2)]
    r.S = [Va.alloc(f"S{i}", 16, 4) for i in range(4)]
    r.O = [Va.alloc(f"O{u}", 16, 4) for u in range(2)]
    Vg = RegAlloc(base, 168, "v")
    g.aA = [Vg.alloc(f"aA{k}") for k in range(2)]
    g.aB = [Vg.alloc(f"aB{t}") for t in range(4)]
    g.FA = [[Vg.alloc(f"FA{s}{i}", 4, 2) for i in range(4)] for s in range(2)]
    g.FB = [[Vg.alloc(f"FB{s}{t}", 4, 2) for t in range(4)] for s in range(2)]
    g.acc = [[Vg.alloc(f"acc{i}{t}", 4, 4) for t in range(4)] for i in range(4)]
    vN = Vg.alloc("vN"); vPF = Vg.alloc("vPF"); vT = Vg.alloc("vT", 2, 2)
    Vl = RegAlloc(base, 168, "v")
    L.vx = [Vl.alloc(f"vx{i}") for i in range(4)]
    L.vw = [Vl.alloc(f"vw{i}") for i in range(2)]
    L.vdma = [Vl.alloc(f"vd{i}") for i in range(9)]
    L.vflag = Vl.alloc("vflag"); L.vlds = Vl.alloc("vlds")
    L.buf = [Vl.alloc(f"buf{i}", 4, 4) for i in range(9)]
    L.s_lw = 38; L.s_lds = list(range(72, 81)); L.s_dbg = 82; L.s_sh = 39; L.s_nonce = 81
    nv = max(Va.next, Vg.next, Vl.next)

    A(f".globl {name}\n.p2align 8\n.type {name},@function")
    A.label(name)
    A(f"s_cmp_ge_u32 s2, 256\ns_cbranch_scc1 {name}_end")
    A(f"s_load_dwordx2 s[{r.s_ws}:{r.s_ws+1}], s[0:1], 64")
    A("s_load_dwordx4 s[72:75], s[0:1], 0")
    A("s_load_dwordx4 s[76:79], s[0:1], 24")
    A(f"s_load_dwordx2 s[{L.s_dbg}:{L.s_dbg+1}], s[0:1], 56")
    F3 = OPT.get("fuse3", 1)
    if F3:
        r.no_osrd = True
        A("s_load_dwordx2 s[12:13], s[0:1], 16")
        A("s_load_dwordx2 s[6:7], s[0:1], 40")
        A("s_load_dwordx2 s[14:15], s[0:1], 48")
    S = Stamper(A, rt, enabled=rt is not None); S.start()
    T = Tracer(A, vTR, enabled=bool(OPT.get("trace"))); T.init(); T.mark(0); g.T = T
    attn.emit_ids(A, r)
    A("s_waitcnt lgkmcnt(0)")
    T.mark(22)
    A(f"s_cmp_eq_u32 s{r.s_b}, 0")
    A(f"s_cselect_b32 s{g.s_xsrd}, s72, s76")
    A(f"s_cselect_b32 s{g.s_xsrd+1}, s73, s77")
    A(f"s_cselect_b32 s{g.s_wsrd}, s74, s78")
    A(f"s_cselect_b32 s{g.s_wsrd+1}, s75, s79")
    if F3: A("s_cselect_b32 s12, s12, s6\ns_cselect_b32 s13, s13, s7")
    A(f"s_mov_b32 s{g.s_xsrd+2}, {2048*1152}\ns_mov_b32 s{g.s_xsrd+3}, 0x20000")
    A(f"s_mov_b32 s{g.s_wsrd+2}, {576*3456}\ns_mov_b32 s{g.s_wsrd+3}, 0x20000")
    if OPT.get("tlb", 0):
        labt = A.newlabel("Ltlb")
        A(f"s_cmp_lg_u32 s{r.s_w}, 7\ns_cbranch_scc1 {labt}")
        A(f"s_load_dword s40, s[{g.s_wsrd}:{g.s_wsrd+1}], 0")
        A(f"s_lshl_b32 s46, s{r.s_c}, 8\ns_mul_i32 s46, s46, 1152")
        A(f"s_load_dword s41, s[{g.s_xsrd}:{g.s_xsrd+1}], s46")
        A(f"s_mul_i32 s46, s{r.s_b}, {BLK_BYTES}\ns_mul_i32 s47, s{r.s_hp}, {36*4096}\ns_add_u32 s46, s46, s47\ns_add_u32 s46, s46, {576*4096}")
        A(f"s_load_dword s42, s[{r.s_ws}:{r.s_ws+1}], s46")
        A(f"s_add_u32 s47, s46, {576*4096}")
        A(f"s_load_dword s43, s[{r.s_ws}:{r.s_ws+1}], s47")
        A(f"s_mov_b32 s48, {FLAG_OFF}")
        A(f"s_load_dword s44, s[{r.s_ws}:{r.s_ws+1}], s48")
        A(f"s_mul_i32 s49, s{r.s_b}, {O_BLK}\ns_add_u32 s49, s49, {O_OFF}")
        A(f"s_load_dword s45, s[{r.s_ws}:{r.s_ws+1}], s49")
        A.label(labt)
    A(f"s_cmp_ge_u32 s{r.s_w}, 8")
    A(f"s_cbranch_scc1 {name}_loader")
    pf = OPT.get("pf", 6)
    if pf == 1: emit_prefetch_batch(A, r, g, vPF, {0: ("x", 2, 3), 1: ("w", 2, 3)})
    if pf == 2: emit_prefetch_batch(A, r, g, vPF, {0: ("x", 2, 3), 1: ("w", 2, 3), 2: ("x", 4, 5), 3: ("w", 4, 5)})
    if pf == 3: emit_prefetch_batch(A, r, g, vPF, {0: ("x", 2, 3), 1: ("w", 2, 3), 2: ("x", 4, 5), 3: ("w", 4, 5), 4: ("x", 6, 7), 5: ("w", 6, 7), 6: ("x", 8, 8), 7: ("w", 8, 8)})
    g.pf2 = {1: {2: ("x", 4, 5), 3: ("w", 4, 5), 4: ("x", 6, 7), 5: ("w", 6, 7), 6: ("x", 8, 8), 7: ("w", 8, 8)}, 2: {4: ("x", 6, 7), 5: ("w", 6, 7), 6: ("x", 8, 8), 7: ("w", 8, 8)}}.get(pf, {})
    g.pfreg = vPF
    if pf == 6:
        emit_prefetch_batch(A, r, g, vPF, {0: ("x", 2, 5), 1: ("w", 2, 2), 2: ("w", 3, 3), 3: ("w", 4, 4)})
        g.pf2 = {0: ("x", 6, 8), 1: ("w", 5, 5), 2: ("w", 6, 6), 3: ("w", 7, 7), 4: ("w", 8, 8)}
    if pf == 7:
        emit_prefetch_batch(A, r, g, vPF, {0: ("x", 2, 5), 1: ("w", 2, 2), 2: ("w", 3, 3)})
        g.pf2 = {0: ("x", 6, 8), 1: ("w", 4, 4), 2: ("w", 5, 5), 3: ("w", 6, 6), 4: ("w", 7, 7), 5: ("w", 8, 8)}
    if pf == 8:
        emit_prefetch_batch(A, r, g, vPF, {1: ("w", 2, 2), 2: ("w", 3, 3)})
        g.pf2 = {0: ("x", 6, 8), 1: ("w", 4, 4), 2: ("w", 5, 5), 3: ("w", 6, 6), 4: ("w", 7, 7), 5: ("w", 8, 8)}
    if pf == 9:
        emit_prefetch_batch(A, r, g, vPF, {1: ("w", 3, 3), 0: ("x", 4, 7)})
        g.pf2 = {0: ("x", 8, 8), 1: ("w", 4, 4), 2: ("w", 5, 5), 3: ("w", 6, 6), 4: ("w", 7, 7), 5: ("w", 8, 8)}
    if pf == 4: g.pf2 = {2: ("x", 4, 5), 3: ("w", 4, 5), 4: ("x", 6, 7), 5: ("w", 6, 7), 6: ("x", 8, 8), 7: ("w", 8, 8)}
    if pf == 5: g.pf_pre = {2: ("x", 4, 5), 3: ("w", 4, 5), 4: ("x", 6, 7), 5: ("w", 6, 7), 6: ("x", 8, 8), 7: ("w", 8, 8)}
    attn.emit_srds(A, r)
    labn = A.newlabel("Lnonce")
    A(f"s_cmp_lg_u32 s{r.s_w}, 0\ns_cbranch_scc1 {labn}")
    A("s_memrealtime s[94:95]\ns_waitcnt lgkmcnt(0)")
    A("s_or_b32 s94, s94, 1")
    A(f"v_mov_b32 v{vT}, s94\nv_mov_b32 v{vT+1}, 0\nv_mov_b32 v{vN}, 0")
    A(f"v_cmp_eq_u32 vcc, 0, v{r.lane}")
    A("s_and_saveexec_b64 s[36:37], vcc")
    A(f"global_atomic_cmpswap v{vN}, v{vN}, v[{vT}:{vT+1}], s[{L.s_dbg}:{L.s_dbg+1}] sc0 sc1")
    A("s_mov_b64 exec, s[36:37]")
    A.label(labn)
    emit_compute_gemm_setup(A, r, g)
    attn.emit_read_addrs(A, r)
    A(f"v_mov_b32 v{r.qE}, v{r.t[4]}\nv_mov_b32 v{r.qO}, v{r.t[5]}")
    labe = A.newlabel("Lea"); labf = A.newlabel("Lea")
    A(f"s_cmp_ge_u32 s{r.s_w}, 4\ns_cbranch_scc1 {labe}")
    emit_epi_addr(A, r, g, 0)
    A(f"s_branch {labf}")
    A.label(labe)
    emit_epi_addr(A, r, g, 1)
    A.label(labf)
    emit_compute_gemm(A, r, g, name, S)
    S.mark(3)
    A("s_waitcnt vmcnt(0)")
    labn2 = A.newlabel("Lnonce")
    A(f"s_cmp_lg_u32 s{r.s_w}, 0\ns_cbranch_scc1 {labn2}")
    A("s_waitcnt vmcnt(0)")
    A(f"v_cmp_eq_u32 vcc, 0, v{vN}")
    A(f"v_mov_b32 v{r.t[0]}, {NONCE_LDS}")
    A("s_nop 0")
    A(f"v_cndmask_b32 v{vN}, v{vN}, v{vT}, vcc")
    A(f"v_cmp_eq_u32 vcc, 0, v{r.lane}")
    A("s_and_saveexec_b64 s[36:37], vcc")
    A(f"ds_write_b32 v{r.t[0]}, v{vN}")
    A(f"v_mov_b32 v{r.t[1]}, 0")
    A(f"ds_write_b32 v{r.t[0]}, v{r.t[1]} offset:4")
    A("s_mov_b64 exec, s[36:37]")
    A.label(labn2)
    A(f"v_mov_b32 v{r.idx}, 0xdddddddd")
    A("s_waitcnt lgkmcnt(0)")
    A("s_barrier")
    if OPT.get("fuse3", 1): tail.emit_srds(A, r)
    attn.emit_q_frags(A, r)
    attn.emit_attn_prologue(A, r)
    S.mark(4)
    T.mark(26)
    attn.OPT["nodma"] = 1
    attn.OPT["extdma"] = 1
    attn.OPT["tracer"] = T if OPT.get("itrace") else None
    attn.emit_attn_loop(A, r, name)
    S.mark(5)
    T.mark(27)
    if OPT.get("fuse3", 1):
        emit_check(A, r, name, part=0)
        tail.emit_stage_o(A, r)
        emit_flag_read(A, r)
        A(f"s_cbranch_scc0 {name}_go3")
        emit_slow_compute(A, r, name)
        tail.emit_stage_o(A, r)
        A("s_barrier")
        A.label(f"{name}_go3")
        nv3 = tail.emit_compute(A, r, name, base, T)
        assert nv3 <= nv
    else:
        emit_check(A, r, name)
        A(f"s_cbranch_scc0 {name}_store")
        emit_slow_compute(A, r, name)
        A.label(f"{name}_store")
        attn.emit_attn_store(A, r, OPT.get("oflags", ""))
    A(f"s_branch {name}_fin")
    A.label(f"{name}_loader")
    A("s_setprio 3")
    A(f"s_sub_u32 s{L.s_lw}, s{r.s_w}, 8")
    emit_loader_gemm_setup(A, r, g, L)
    A(f"s_mov_b32 s{g.s_kc}, 0\ns_mov_b32 s{g.s_stw}, 0")
    if OPT.get("pf", 6) in (4, 5):
        done4 = A.newlabel("Lpf4")
        for lw, job in {0: ("x", 0, 1), 1: ("w", 0, 1), 2: ("x", 2, 3), 3: ("w", 2, 3)}.items():
            lab4 = A.newlabel("Lpf4")
            A(f"s_cmp_eq_u32 s{L.s_lw}, {lw}\ns_cbranch_scc0 {lab4}")
            emit_prefetch(A, r, g, r.t[5], *job)
            A(f"s_branch {done4}")
            A.label(lab4)
        A.label(done4)
    if OPT.get("pf", 6) in (8, 9):
        done8 = A.newlabel("Lpf8")
        jobs8 = {0: ("x", 0, 1), 1: ("w", 0, 0), 2: ("w", 1, 1), 3: ("x", 2, 5)} if OPT["pf"] == 8 else {0: ("x", 0, 3), 1: ("w", 0, 0), 2: ("w", 1, 1), 3: ("w", 2, 2)}
        for lw, job in jobs8.items():
            lab8 = A.newlabel("Lpf8")
            A(f"s_cmp_eq_u32 s{L.s_lw}, {lw}\ns_cbranch_scc0 {lab8}")
            emit_prefetch(A, r, g, r.t[5], *job)
            A(f"s_branch {done8}")
            A.label(lab8)
        A.label(done8)
        A("s_waitcnt vmcnt(0)")
    T.mark(23)
    emit_loader_gemm_dma(A, r, g, L)
    T.mark(24)
    emit_loader_gemm_dma(A, r, g, L)
    npf = 0
    T.mark(1)
    A(f"s_waitcnt vmcnt({12 + npf})")
    T.mark(2)
    A("s_barrier")
    S.mark(2)
    emit_loader_gemm_dma(A, r, g, L)
    for kc in range(NCH):
        rem = max(0, min(NCH - 1, kc + 2) - (kc + 1))
        A(f"s_waitcnt vmcnt({12*rem})")
        T.mark(3 + 2 * kc)
        A("s_barrier")
        T.mark(4 + 2 * kc)
        if kc + 3 < NCH: emit_loader_gemm_dma(A, r, g, L)
    S.mark(3)
    attn.emit_srds(A, r)
    emit_loader_kv_setup(A, r, L)
    emit_loader_ones(A, r, L)
    A(f"s_lshl_b32 s{r.s_t[0]}, s{r.s_b}, 4")
    A(f"s_add_u32 s{r.s_t[0]}, s{r.s_t[0]}, s{r.s_hp}")
    A(f"s_lshl_b32 s{r.s_t[0]}, s{r.s_t[0]}, 10")
    A(f"s_add_u32 s{r.s_t[0]}, s{r.s_t[0]}, {FLAG_OFF}")
    A(f"v_mov_b32 v{L.vflag}, s{r.s_t[0]}")
    A(f"v_lshlrev_b32 v{L.vlds}, 4, v{r.lane}")
    A("s_waitcnt lgkmcnt(0)")
    A("s_barrier")
    A(f"v_mov_b32 v{r.t[0]}, {NONCE_LDS}")
    A(f"ds_read_b32 v{r.t[0]}, v{r.t[0]}")
    A("s_waitcnt lgkmcnt(0)")
    A(f"v_readfirstlane_b32 s{L.s_nonce}, v{r.t[0]}")
    for i in range(9):
        A(f"v_add_u32 v{r.t[1]}, s{L.s_lds[i]}, v{L.vlds}")
        A(f"ds_read_b128 v[{L.buf[i]}:{L.buf[i]+3}], v{r.t[1]}")
    A(f"s_lshl_b32 s{r.s_chunk}, s{r.s_c}, 9")
    for i in range(9):
        A(f"s_waitcnt lgkmcnt({8-i})")
        A(f"buffer_store_dwordx4 v[{L.buf[i]}:{L.buf[i]+3}], v{L.vdma[i]}, s[{r.s_srd}:{r.s_srd+3}], s{r.s_chunk} offen sc1")
    A("s_waitcnt vmcnt(0)")
    S.mark(4)
    A(f"s_lshl_b32 s{r.s_t[0]}, s{r.s_c}, 7")
    A(f"s_lshl_b32 s{r.s_t[1]}, s{L.s_lw}, 2")
    A(f"s_add_u32 s{r.s_t[0]}, s{r.s_t[0]}, s{r.s_t[1]}")
    A(f"v_add_u32 v{r.t[0]}, s{r.s_t[0]}, v{L.vflag}")
    A(f"v_mov_b32 v{r.t[1]}, s{L.s_nonce}")
    A(f"v_cmp_eq_u32 vcc, 0, v{r.lane}")
    A("s_and_saveexec_b64 s[36:37], vcc")
    A(f"global_store_dword v{r.t[0]}, v{r.t[1]}, s[{r.s_ws}:{r.s_ws+1}] sc1")
    A("s_mov_b64 exec, s[36:37]")
    A(f"s_add_u32 s{r.s_seg}, s{r.s_c}, 1\ns_and_b32 s{r.s_seg}, s{r.s_seg}, 7")
    A(f"s_mov_b32 s{r.s_slotw}, {SLOT}")
    emit_poll(A, r, L, r.s_seg)
    S.mark(5)
    emit_loader_kv_dma(A, r, L)
    if OPT.get("fuse3", 1):
        tail.emit_srds(A, r)
        P = tail.emit_loader_setup(A, r, L, Vl.next)
        assert P.top <= nv
    for i in range(8):
        A("s_waitcnt vmcnt(0)")
        if i == 0: S.mark(6)
        A("s_barrier")
        if i == 5 and OPT.get("pfwo", 1):
            if not F3:
                A("s_load_dwordx2 s[40:41], s[0:1], 16")
                A("s_load_dwordx2 s[42:43], s[0:1], 40")
            A(f"s_lshl_b32 s46, s{r.s_hp}, 1\ns_and_b32 s47, s{r.s_c}, 1\ns_add_u32 s46, s46, s47\ns_mul_i32 s46, s46, 162")
            A(f"s_lshl_b32 s47, s{L.s_lw}, 6")
            A(f"v_add_u32 v{r.t[1]}, s47, v{r.lane}")
            A(f"v_min_u32 v{r.t[1]}, 161, v{r.t[1]}")
            A(f"v_add_u32 v{r.t[1]}, s46, v{r.t[1]}")
            A(f"v_lshlrev_b32 v{r.t[1]}, 7, v{r.t[1]}")
            if not F3:
                A("s_waitcnt lgkmcnt(0)")
                A(f"s_cmp_eq_u32 s{r.s_b}, 0")
                A("s_cselect_b32 s44, s40, s42\ns_cselect_b32 s45, s41, s43")
                A(f"global_load_dword v{r.t[2]}, v{r.t[1]}, s[44:45]")
            else:
                A(f"global_load_dword v{r.t[2]}, v{r.t[1]}, s[12:13]")
        if i + 2 < 8:
            emit_poll(A, r, L, r.s_seg)
            emit_loader_kv_dma(A, r, L)
        if F3 and i == 6: tail.emit_w_chunks(A, r, L, P, range(0, 7))
        if F3 and i == 7: tail.emit_w_chunks(A, r, L, P, range(7, 9))
    emit_flag_read(A, r)
    A(f"s_cbranch_scc0 {name}_noslow")
    emit_slow_loader(A, r, L, name)
    if OPT.get("fuse3", 1):
        tail.emit_w_chunks(A, r, L, P, range(7, 9))
        A("s_barrier")
    A.label(f"{name}_noslow")
    if OPT.get("fuse3", 1):
        tail.emit_loader(A, r, L, P, name, T, S)
    A.label(f"{name}_fin")
    T.mark(30)
    T.dump(r.s_ws, r.t[0])
    S.dump(r.s_ws, r.t[0], r.S[0])
    A.label(f"{name}_end")
    A("s_endpgm")
    return A.text(), nv
```

```python
from emit import *

OX_OFF = 0x1000000
OXB = 18432
FL_REL = 0x900000
X_BYTES = 0xA00000
WCH = 64 * 144
WB1 = 83968
WB2 = 0
def wbase(j): return WB1 + j * WCH if j < 7 else WB2 + (j - 7) * WCH
OB = 2 * WCH
XST = 16384; NST = 4; NCH = 9
LDS_END = WB1 + 7 * WCH
assert OB + NST * XST <= WB1
STG = OB
TSTG = OB + XST
S_XSRD = 56; S_WSRD = 60; S_DSRD = 64
OPT = {}

def emit_srds(A, r):
    A(f"s_add_u32 s{S_XSRD}, s{r.s_ws}, {OX_OFF}\ns_addc_u32 s{S_XSRD+1}, s{r.s_ws+1}, 0")
    A(f"s_mov_b32 s{S_XSRD+2}, {X_BYTES}\ns_mov_b32 s{S_XSRD+3}, 0x20000")
    A(f"s_mov_b32 s{S_WSRD}, s12\ns_mov_b32 s{S_WSRD+1}, s13")
    A(f"s_mov_b32 s{S_WSRD+2}, {576*1152}\ns_mov_b32 s{S_WSRD+3}, 0x20000")
    A(f"s_mov_b32 s{S_DSRD}, s14\ns_mov_b32 s{S_DSRD+1}, s15\ns_mov_b32 s{S_DSRD+2}, {2048*2304}\ns_mov_b32 s{S_DSRD+3}, 0x20000")

def emit_stage_o(A, r):
    t0, t1, t2, t3 = r.t[:4]
    st, st2 = r.s_t[:2]
    A(f"s_and_b32 s{st}, s{r.s_w}, 3\ns_lshl_b32 s{st}, s{st}, 6")
    A(f"v_and_b32 v{t0}, 31, v{r.lane}")
    A(f"v_add_u32 v{t0}, s{st}, v{t0}")
    A(f"s_lshr_b32 s{st2}, s{r.s_w}, 2")
    A(f"v_lshrrev_b32 v{t1}, 5, v{r.lane}")
    A(f"v_lshlrev_b32 v{t2}, 6, v{t0}")
    A(f"v_lshl_add_u32 v{t2}, v{t1}, 5, v{t2}")
    A(f"s_lshl_b32 s{st}, s{st2}, 3\ns_add_u32 s{st}, s{st}, {STG}")
    A(f"v_add_u32 v{t2}, s{st}, v{t2}")
    A(f"v_lshlrev_b32 v{t3}, 3, v{t0}")
    A(f"s_lshl_b32 s{st}, s{st2}, 2\ns_add_u32 s{st}, s{st}, {TSTG}")
    A(f"v_add_u32 v{t3}, s{st}, v{t3}")
    for u in range(2):
        A(f"v_rcp_f32 v{r.t[4+u]}, v{r.O[u]+10}")
    for u in range(2):
        o = r.O[u]; rc = r.t[4 + u]
        for i in range(10):
            A(f"v_mul_f32 v{o+i}, v{o+i}, v{rc}")
        pk = r.S[u]
        for i in range(5):
            A(f"v_cvt_pk_bf16_f32 v{pk+i}, v{o+2*i}, v{o+2*i+1}")
        A(f"ds_write_b64 v{t2}, v[{pk}:{pk+1}] offset:{32*64*u}")
        A(f"ds_write_b64 v{t2}, v[{pk+2}:{pk+3}] offset:{32*64*u + 16}")
        A("s_mov_b64 s[36:37], exec")
        A("s_mov_b32 exec_hi, 0")
        A(f"ds_write_b32 v{t3}, v{pk+4} offset:{32*8*u}")
        A("s_mov_b64 exec, s[36:37]")
    A("s_waitcnt lgkmcnt(0)")

def emit_compute(A, r, name, base, T=None):
    V = RegAlloc(base, 168, "v")
    t0, t1, t2, t3, t4, t5 = r.t
    lane = r.lane
    NT = 4
    aB = [V.alloc(f"aB{k}") for k in range(2)]
    aA = [V.alloc(f"aA{k}") for k in range(3)]
    aT = V.alloc("aT")
    FO = [[V.alloc(f"FO{s}{i}", 4, 2) for i in range(NT)] for s in range(2)]
    FW = [[V.alloc(f"FW{s}{i}", 4, 2) for i in range(3)] for s in range(2)]
    acc = [[V.alloc(f"acc{i}{c}", 4, 4) for c in range(3)] for i in range(NT)]
    st, st2, st3, st4 = r.s_t
    s_w = r.s_w; s_it = r.s_it; s_rst = 46; s_gd = 47
    A(f"s_cmp_ge_u32 s{s_w}, 4\ns_cbranch_scc1 {name}_fin")
    A(f"s_and_b32 s{st3}, s{s_w}, 1")
    A(f"v_and_b32 v{t0}, 15, v{lane}")
    A(f"v_lshrrev_b32 v{t1}, 1, v{t0}")
    A(f"v_lshrrev_b32 v{t2}, 4, v{lane}")
    A(f"v_xor_b32 v{t1}, v{t1}, v{t2}")
    A(f"s_lshl_b32 s{st}, s{st3}, 13\ns_add_u32 s{st}, s{st}, {OB}")
    A(f"v_lshlrev_b32 v{t3}, 7, v{t0}")
    A(f"v_add_u32 v{t3}, s{st}, v{t3}")
    A(f"v_lshl_add_u32 v{aB[0]}, v{t1}, 4, v{t3}")
    A(f"v_xor_b32 v{t1}, 4, v{t1}")
    A(f"v_lshl_add_u32 v{aB[1]}, v{t1}, 4, v{t3}")
    A(f"v_lshlrev_b32 v{t2}, 11, v{t2}")
    A(f"v_lshl_add_u32 v{t2}, v{t0}, 3, v{t2}")
    A(f"s_lshl_b32 s{st}, s{st3}, 9\ns_add_u32 s{st}, s{st}, {OB + (8 % NST) * XST}")
    A(f"v_add_u32 v{aT}, s{st}, v{t2}")
    A(f"v_lshrrev_b32 v{t0}, 4, v{lane}")
    A(f"v_lshrrev_b32 v{t1}, 2, v{lane}")
    A(f"v_and_b32 v{t1}, 3, v{t1}")
    A(f"v_lshl_add_u32 v{t2}, v{t0}, 2, v{t1}")
    A(f"v_mul_u32_u24 v{t2}, 144, v{t2}")
    A(f"v_add_u32 v{t2}, {WB1}, v{t2}")
    A(f"v_and_b32 v{t3}, 3, v{lane}")
    def tile_addr(dst, ct):
        A(f"v_lshl_add_u32 v{dst}, v{t3}, 3, v{t2}")
        if ct: A(f"v_add_u32 v{dst}, {32*ct}, v{dst}")
    end = A.newlabel("Lt3e")
    for cg in range(2):
        tiles = [0, 1, 4] if cg == 0 else [2, 3]
        nt = len(tiles)
        nxt = A.newlabel("Lt3c")
        if cg == 0: A(f"s_cmp_ge_u32 s{s_w}, 2\ns_cbranch_scc1 {nxt}")
        for k, ct in enumerate(tiles): tile_addr(aA[k], ct)
        for i in range(NT):
            for c in range(nt):
                for j in range(4): A(f"v_mov_b32 v{acc[i][c]+j}, 0")
        def rlist(s, ks, tailchunk=False):
            out = []
            if OPT.get("nord"): return out
            for c in range(nt):
                out.append(f"ds_read_b64_tr_b16 v[{FW[s][c]}:{FW[s][c]+1}], v{aA[c]} offset:{4608*ks}")
                out.append(f"ds_read_b64_tr_b16 v[{FW[s][c]+2}:{FW[s][c]+3}], v{aA[c]} offset:{4608*ks+16*144}")
            for i in range(NT):
                if tailchunk:
                    out.append(f"ds_read_b64 v[{FO[s][i]}:{FO[s][i]+1}], v{aT} offset:{8192*ks + 128*i}")
                    out.append(f"ds_read_b64 v[{FO[s][i]+2}:{FO[s][i]+3}], v{aT} offset:{8192*ks + 128*i + 1024}")
                else:
                    out.append(f"ds_read_b128 v[{FO[s][i]}:{FO[s][i]+3}], v{aB[ks]} offset:{2048*i}")
            return out
        def mlist(s):
            out = []
            if OPT.get("nomf"): return ["s_nop 0"]
            for c in range(nt):
                for i in range(NT):
                    out.append(f"v_mfma_f32_16x16x32_bf16 v[{acc[i][c]}:{acc[i][c]+3}], v[{FW[s][c]}:{FW[s][c]+3}], v[{FO[s][i]}:{FO[s][i]+3}], v[{acc[i][c]}:{acc[i][c]+3}]")
            return out
        def inter(mf, ex):
            per = max(1, -(-len(ex) // max(1, len(mf) // 2)))
            k = 0
            for m in mf:
                A(m)
                for _ in range(per):
                    if k < len(ex): A(ex[k]); k += 1
            while k < len(ex): A(ex[k]); k += 1
        A(f"s_mov_b32 s{s_rst}, 0\ns_mov_b32 s{s_it}, 0")
        A("s_barrier")
        if T and cg == 0: T.mark(28)
        for x in rlist(0, 0): A(x)
        A("s_waitcnt lgkmcnt(0)")
        lab = f"{name}_t3l{cg}"
        A.label(lab)
        inter(mlist(0), rlist(1, 1))
        A(f"s_add_u32 s{s_rst}, s{s_rst}, 1\ns_cmp_eq_u32 s{s_rst}, {NST}")
        A(f"s_mov_b32 s{s_gd}, {XST}\ns_cmov_b32 s{s_gd}, {-(NST-1)*XST & 0xffffffff}")
        A(f"s_cselect_b32 s{s_rst}, 0, s{s_rst}")
        A("s_waitcnt lgkmcnt(0)")
        A("s_barrier")
        for x in [aB[0], aB[1]]: A(f"v_add_u32 v{x}, s{s_gd}, v{x}")
        A(f"s_cmp_eq_u32 s{s_it}, 6")
        A(f"s_mov_b32 s{s_gd}, {WCH}\ns_cmov_b32 s{s_gd}, {(wbase(7) - wbase(6)) & 0xffffffff}")
        for x in aA[:nt]: A(f"v_add_u32 v{x}, s{s_gd}, v{x}")
        A(f"s_add_u32 s{s_it}, s{s_it}, 1\ns_cmp_lt_u32 s{s_it}, 8")
        labp = A.newlabel("Lt3p")
        A(f"s_cbranch_scc0 {labp}")
        inter(mlist(1), rlist(0, 0))
        A("s_waitcnt lgkmcnt(0)")
        A(f"s_branch {lab}")
        A.label(labp)
        inter(mlist(1), rlist(0, 0, True))
        A("s_waitcnt lgkmcnt(0)")
        inter(mlist(0), rlist(1, 1, True))
        A("s_waitcnt lgkmcnt(0)")
        A("s_barrier")
        for m in mlist(1): A(m)
        if T and cg == 0: T.mark(29)
        A("s_nop 7")
        A(f"v_and_b32 v{t0}, 15, v{lane}")
        A(f"s_lshl_b32 s{st}, s{r.s_c}, 8\ns_lshr_b32 s{st2}, s{r.s_hp}, 3\ns_lshl_b32 s{st2}, s{st2}, 7\ns_add_u32 s{st}, s{st}, s{st2}")
        A(f"s_and_b32 s{st2}, s{s_w}, 1\ns_lshl_b32 s{st2}, s{st2}, 6\ns_add_u32 s{st}, s{st}, s{st2}")
        A(f"v_add_u32 v{t0}, s{st}, v{t0}")
        A(f"v_mul_u32_u24 v{t0}, 2304, v{t0}")
        A(f"v_lshrrev_b32 v{t1}, 4, v{lane}")
        A(f"s_mul_i32 s{st}, s{r.s_b}, 1152\ns_and_b32 s{st2}, s{r.s_hp}, 7\ns_mul_i32 s{st2}, s{st2}, 144\ns_add_u32 s{st}, s{st}, s{st2}")
        A(f"v_and_b32 v{t2}, 1, v{t1}")
        A(f"v_lshlrev_b32 v{t2}, 5, v{t2}")
        A(f"v_lshrrev_b32 v{t3}, 1, v{t1}")
        A(f"v_lshl_add_u32 v{t2}, v{t3}, 4, v{t2}")
        A(f"v_add_u32 v{t2}, v{t2}, v{t0}")
        A(f"v_lshl_add_u32 v{t3}, v{t1}, 3, v{t0}")
        fl = OPT.get("stflags", "")
        pks = [FO[0][i] for i in range(NT)]; p2s = [FO[1][i] for i in range(NT)]
        for i in range(NT):
            a0, a1 = acc[i][0], acc[i][1]
            pk = pks[i]
            A(f"v_cvt_pk_bf16_f32 v{pk}, v{a0}, v{a0+1}\nv_cvt_pk_bf16_f32 v{pk+1}, v{a0+2}, v{a0+3}")
            A(f"v_cvt_pk_bf16_f32 v{pk+2}, v{a1}, v{a1+1}\nv_cvt_pk_bf16_f32 v{pk+3}, v{a1+2}, v{a1+3}")
            if cg == 0:
                a2 = acc[i][2]; p2 = p2s[i]
                A(f"v_cvt_pk_bf16_f32 v{p2}, v{a2}, v{a2+1}\nv_cvt_pk_bf16_f32 v{p2+1}, v{a2+2}, v{a2+3}")
        A("s_nop 1")
        for i in range(NT):
            pk = pks[i]
            A(f"v_permlane16_swap_b32 v{pk}, v{pk+2}")
            A(f"v_permlane16_swap_b32 v{pk+1}, v{pk+3}")
        A("s_nop 1")
        for i in range(NT):
            if i: A(f"s_add_u32 s{st}, s{st}, {16*2304}")
            pk = pks[i]
            A(f"buffer_store_dwordx4 v[{pk}:{pk+3}], v{t2}, s[{S_DSRD}:{S_DSRD+3}], s{st} offen offset:{64*cg}{fl}")
            if cg == 0:
                p2 = p2s[i]
                A(f"v_cmp_gt_u32 vcc, 2, v{t1}")
                A("s_and_saveexec_b64 s[36:37], vcc")
                A(f"buffer_store_dwordx2 v[{p2}:{p2+1}], v{t3}, s[{S_DSRD}:{S_DSRD+3}], s{st} offen offset:128{fl}")
                A("s_mov_b64 exec, s[36:37]")
        if cg == 0:
            A(f"s_branch {end}")
            A.label(nxt)
    A.label(end)
    return V.next

def emit_loader_setup(A, r, L, base):
    V = RegAlloc(base, 168, "v")
    t0, t1, t2, t3, t4, t5 = r.t
    lane = r.lane; st, st2, st3, st4 = r.s_t
    P = type("P", (), {})()
    P.vo = [V.alloc(f"vo{i}") for i in range(4)]
    P.vt = V.alloc("vt")
    P.vfl = V.alloc("vfl")
    P.vw = [V.alloc(f"vw{i}") for i in range(3)]
    P.vw8 = [V.alloc(f"vw8{i}") for i in range(3)]
    P.buf = [V.alloc(f"b{i}", 4, 4) for i in range(5)]
    P.top = V.next
    lw = L.s_lw
    A(f"v_lshrrev_b32 v{t0}, 3, v{lane}")
    A(f"s_lshr_b32 s{st}, s{r.s_hp}, 3\ns_lshl_b32 s{st3}, s{st}, 7\ns_lshl_b32 s{st2}, s{lw}, 5\ns_add_u32 s{st}, s{st3}, s{st2}")
    A(f"v_add_u32 v{t0}, s{st}, v{t0}")
    A(f"v_and_b32 v{t1}, 7, v{lane}")
    A(f"v_lshrrev_b32 v{t2}, 4, v{lane}")
    for i in range(4):
        A(f"v_or_b32 v{t3}, {4*(i&1)}, v{t2}")
        A(f"v_xor_b32 v{t3}, v{t3}, v{t1}")
        A(f"v_add_u32 v{t4}, {8*i}, v{t0}")
        A(f"v_lshrrev_b32 v{t5}, 2, v{t3}")
        A(f"v_mul_u32_u24 v{t5}, {OXB}, v{t5}")
        A(f"v_lshl_add_u32 v{t5}, v{t4}, 6, v{t5}")
        A(f"v_and_b32 v{P.vo[i]}, 3, v{t3}")
        A(f"v_lshl_add_u32 v{P.vo[i]}, v{P.vo[i]}, 4, v{t5}")
    A(f"s_lshl_b32 s{st3}, s{st3}, 3\ns_add_u32 s{st3}, s{st3}, 16384")
    A(f"v_lshlrev_b32 v{P.vt}, 4, v{lane}")
    A(f"v_add_u32 v{P.vt}, s{st3}, v{P.vt}")
    A(f"s_lshl_b32 s{st}, s{r.s_b}, 3\ns_add_u32 s{st}, s{st}, s{r.s_c}\ns_lshl_b32 s{st}, s{st}, 11\ns_add_u32 s{st}, s{st}, {FL_REL}")
    A(f"v_lshrrev_b32 v{t0}, 2, v{lane}")
    A(f"v_lshlrev_b32 v{t0}, 7, v{t0}")
    A(f"v_and_b32 v{t1}, 3, v{lane}")
    A(f"v_lshl_add_u32 v{t0}, v{t1}, 2, v{t0}")
    A(f"v_add_u32 v{P.vfl}, s{st}, v{t0}")
    A(f"s_and_b32 s{st3}, s{r.s_hp}, 7\ns_mul_i32 s{st3}, s{st3}, 144")
    for k in range(3):
        if k < 2: A(f"s_add_u32 s{st}, s{lw}, {4*k}\ns_lshl_b32 s{st}, s{st}, 6")
        else: A(f"s_movk_i32 s{st}, 512")
        A(f"v_add_u32 v{t3}, s{st}, v{lane}")
        A(f"v_mul_u32_u24 v{t4}, 7282, v{t3}")
        A(f"v_lshrrev_b32 v{t4}, 16, v{t4}")
        A(f"v_mul_u32_u24 v{t0}, 9, v{t4}")
        A(f"v_sub_u32 v{t3}, v{t3}, v{t0}")
        A(f"v_lshlrev_b32 v{t3}, 4, v{t3}")
        A(f"v_add_u32 v{t3}, s{st3}, v{t3}")
        A(f"v_lshrrev_b32 v{t0}, 5, v{t4}")
        A(f"v_mul_u32_u24 v{t0}, 36, v{t0}")
        A(f"v_bfe_u32 v{t1}, v{t4}, 4, 1")
        A(f"v_mul_u32_u24 v{t1}, 18, v{t1}")
        A(f"v_and_b32 v{t2}, 15, v{t4}")
        A(f"v_add3_u32 v{t0}, v{t0}, v{t1}, v{t2}")
        A(f"v_mul_u32_u24 v{t0}, 1152, v{t0}")
        A(f"v_add_u32 v{P.vw[k]}, v{t0}, v{t3}")
        A(f"v_lshrrev_b32 v{t0}, 5, v{t4}")
        A(f"v_lshlrev_b32 v{t0}, 3, v{t0}")
        A(f"v_bfe_u32 v{t1}, v{t4}, 2, 2")
        A(f"v_lshl_add_u32 v{t0}, v{t1}, 1, v{t0}")
        A(f"v_bfe_u32 v{t1}, v{t4}, 4, 1")
        A(f"v_add_u32 v{t0}, v{t0}, v{t1}")
        A(f"v_mul_u32_u24 v{t0}, 36, v{t0}")
        A(f"v_and_b32 v{t1}, 3, v{t4}")
        A(f"v_add3_u32 v{t0}, v{t0}, v{t1}, 16")
        A(f"v_lshrrev_b32 v{t1}, 1, v{t1}")
        A(f"v_lshl_add_u32 v{t0}, v{t1}, 4, v{t0}")
        A(f"v_mul_u32_u24 v{t0}, 1152, v{t0}")
        A(f"v_add_u32 v{P.vw8[k]}, v{t0}, v{t3}")
    A(f"s_lshl_b32 s51, s{r.s_b}, 3\ns_add_u32 s51, s51, s{r.s_c}\ns_mul_i32 s51, s51, {16*OXB}")
    A(f"s_mul_i32 s52, s{r.s_hp}, {OXB}\ns_add_u32 s52, s52, s51")
    A(f"s_lshl_b32 s53, s{r.s_b}, 3\ns_add_u32 s53, s53, s{r.s_c}\ns_lshl_b32 s53, s53, 4\ns_add_u32 s53, s53, s{r.s_hp}")
    A(f"s_lshl_b32 s53, s53, 7\ns_lshl_b32 s{st2}, s{lw}, 2\ns_add_u32 s53, s53, s{st2}\ns_add_u32 s53, s53, {FL_REL}")
    return P

def emit_w_chunks(A, r, L, P, chunks):
    st, st2 = r.s_t[:2]
    lw = L.s_lw
    for j in chunks:
        regs = P.vw if j < 8 else P.vw8
        so = 72 * j * 1152 if j < 8 else 0
        for k in range(3):
            lab = None
            if k == 2:
                lab = A.newlabel("Lw8")
                A(f"s_cmp_lg_u32 s{lw}, 0\ns_cbranch_scc1 {lab}")
                A(f"s_mov_b32 m0, {wbase(j) + 8192}")
            else:
                A(f"s_lshl_b32 s{st}, s{lw}, 10\ns_add_u32 m0, s{st}, {wbase(j) + 4096*k}")
            A(f"s_mov_b32 s{st2}, {so}")
            A(f"buffer_load_dwordx4 v{regs[k]}, s[{S_WSRD}:{S_WSRD+3}], s{st2} offen lds")
            if lab: A.label(lab)

def emit_loader(A, r, L, P, name, T=None, S=None):
    t0, t1, t2 = r.t[:3]
    lane = r.lane; st, st2, st3, st4 = r.s_t
    lw = L.s_lw
    A(f"v_lshlrev_b32 v{t2}, 4, v{lane}")
    A(f"s_lshl_b32 s{st}, s{lw}, 12\ns_add_u32 s{st}, s{st}, {STG}")
    A(f"v_add_u32 v{t0}, s{st}, v{t2}")
    for i in range(4):
        A(f"ds_read_b128 v[{P.buf[i]}:{P.buf[i]+3}], v{t0} offset:{1024*i}")
    A(f"s_lshl_b32 s{st}, s{lw}, 10\ns_add_u32 s{st}, s{st}, {TSTG}")
    A(f"v_add_u32 v{t1}, s{st}, v{t2}")
    A(f"ds_read_b128 v[{P.buf[4]}:{P.buf[4]+3}], v{t1}")
    A(f"s_lshl_b32 s{st2}, s{lw}, 12\ns_add_u32 s{st}, s52, s{st2}")
    for i in range(4):
        A(f"s_waitcnt lgkmcnt({4-i})")
        A(f"buffer_store_dwordx4 v[{P.buf[i]}:{P.buf[i]+3}], v{t2}, s[{S_XSRD}:{S_XSRD+3}], s{st} offen offset:{1024*i} sc1")
    labt = A.newlabel("Ltt")
    A(f"s_cmp_ge_u32 s{lw}, 2\ns_cbranch_scc1 {labt}")
    A(f"s_lshl_b32 s{st2}, s{lw}, 10\ns_add_u32 s{st}, s52, s{st2}\ns_add_u32 s{st}, s{st}, 16384")
    A("s_waitcnt lgkmcnt(0)")
    A(f"buffer_store_dwordx4 v[{P.buf[4]}:{P.buf[4]+3}], v{t2}, s[{S_XSRD}:{S_XSRD+3}], s{st} offen sc1")
    A.label(labt)
    def o_dma(j, stage):
        for i in range(4):
            A(f"s_lshl_b32 s{st}, s{lw}, 12\ns_add_u32 m0, s{st}, {OB + stage*XST + 1024*i}")
            if j < 8:
                A(f"s_add_u32 s{st2}, s51, {2*j*OXB}")
                A(f"buffer_load_dwordx4 v{P.vo[i]}, s[{S_XSRD}:{S_XSRD+3}], s{st2} offen{OPT.get('oload', ' sc1')} lds")
            else:
                A(f"s_lshl_b32 s{st2}, s{lw}, 2\ns_add_u32 s{st2}, s{st2}, {i}\ns_mul_i32 s{st2}, s{st2}, {OXB}\ns_add_u32 s{st2}, s{st2}, s51")
                A(f"buffer_load_dwordx4 v{P.vt}, s[{S_XSRD}:{S_XSRD+3}], s{st2} offen{OPT.get('oload', ' sc1')} lds")
    A("s_waitcnt lgkmcnt(0)")
    A("s_waitcnt vmcnt(0)")
    if S: S.mark(7)
    A(f"v_mov_b32 v{t0}, s53\nv_mov_b32 v{t1}, s{L.s_nonce}")
    A(f"v_cmp_eq_u32 vcc, 0, v{lane}")
    A("s_and_saveexec_b64 s[36:37], vcc")
    A(f"buffer_store_dword v{t1}, v{t0}, s[{S_XSRD}:{S_XSRD+3}], 0 offen sc1")
    A("s_mov_b64 exec, s[36:37]")
    b = P.buf[0]
    emit_pipelined_poll(A, f"buffer_load_dword {{d}}, v{P.vfl}, s[{S_XSRD}:{S_XSRD+3}], 0 offen sc1", [b, b+1, b+2, b+3], L.s_nonce, st3, depth=OPT.get("pdepth", 1))
    if T: T.mark(28)
    q = []
    for j in range(NST):
        o_dma(j, j); q += [j] * 4
    if OPT.get("pfo", 1):
        labp = A.newlabel("Lpfo"); labq = A.newlabel("Lpfo")
        A(f"s_cmp_ge_u32 s{lw}, 2\ns_cbranch_scc1 {labp}")
        A(f"s_cmp_eq_u32 s{lw}, 0\ns_cbranch_scc0 {labq}")
        A(f"s_and_b32 s{st}, s{r.s_hp}, 7\ns_add_u32 s{st}, s{st}, 8\ns_mul_i32 s{st}, s{st}, {OXB}\ns_add_u32 s{st}, s{st}, s51")
        A(f"s_lshr_b32 s{st2}, s{r.s_hp}, 3\ns_lshl_b32 s{st2}, s{st2}, 13\ns_add_u32 s{st}, s{st}, s{st2}")
        A(f"v_lshlrev_b32 v{t1}, 7, v{lane}")
        A(f"buffer_load_dword v{t2}, v{t1}, s[{S_XSRD}:{S_XSRD+3}], s{st} offen{OPT.get('pfflag', ' sc1')}")
        A(f"s_branch {labp}")
        A.label(labq)
        A(f"s_and_b32 s{st}, s{r.s_hp}, 7\ns_lshl_b32 s{st}, s{st}, 1\ns_mul_i32 s{st}, s{st}, {OXB}\ns_add_u32 s{st}, s{st}, s51")
        A(f"s_lshr_b32 s{st2}, s{r.s_hp}, 3\ns_lshl_b32 s{st2}, s{st2}, 10\ns_add_u32 s{st}, s{st}, s{st2}\ns_add_u32 s{st}, s{st}, 16384")
        A(f"v_and_b32 v{t1}, 7, v{lane}")
        A(f"v_lshlrev_b32 v{t1}, 7, v{t1}")
        A(f"v_bfe_u32 v{t2}, v{lane}, 3, 1")
        A(f"v_mul_u32_u24 v{t2}, {OXB}, v{t2}")
        A(f"v_add_u32 v{t1}, v{t1}, v{t2}")
        A(f"buffer_load_dword v{t2}, v{t1}, s[{S_XSRD}:{S_XSRD+3}], s{st} offen{OPT.get('pfflag', ' sc1')}")
        A.label(labp)
        PFO = True
    else:
        PFO = False
    def wait_for(j):
        last = max(i for i, c in enumerate(q) if c <= j)
        A(f"s_waitcnt vmcnt({len(q) - 1 - last})")
    wait_for(0)
    A("s_barrier")
    for it in range(NCH):
        if it + 1 < NCH and not OPT.get("nowait"): wait_for(it + 1)
        A("s_barrier")
        j = it + NST
        if j < NCH:
            if not OPT.get("nodma"): o_dma(j, j % NST)
            q += [j] * 4
```

```python
from emit import *
import attn, qkv, tail
from attn import R, ROWB, BLK_BYTES, O_OFF, O_BLK, KPAIR, VPAIR, KBLK, VBLK, HEADSZ, ONES, ZEROS, SLOT, NSLOT, QOFF
from qkv import XST, WST, STAGE, NST, NCH, CSCALE, f32bits

OPT = {}
NONCE_LDS = max(qkv.LDS_GEMM, attn.LDS_ATTN, tail.LDS_END)
LDS_FUSED = NONCE_LDS + 256
FLAG_OFF = 0x2000000

def emit_loader_gemm_setup(A, r, g, L):
    t0, t1, t2, t3, t4, t5 = r.t
    st, st2, st3, st4 = r.s_t
    lane = r.lane
    A(f"v_lshrrev_b32 v{t0}, 3, v{lane}")
    A(f"v_and_b32 v{t1}, 7, v{lane}")
    A(f"v_lshrrev_b32 v{t2}, 4, v{lane}")
    A(f"v_and_b32 v{t2}, 1, v{t2}")
    A(f"s_lshl_b32 s{st}, s{r.s_c}, 8")
    A(f"s_lshl_b32 s{st2}, s{L.s_lw}, 6")
    A(f"s_add_u32 s{st}, s{st}, s{st2}")
    A(f"v_add_u32 v{t0}, s{st}, v{t0}")
    A(f"v_mul_u32_u24 v{t0}, 1152, v{t0}")
    for i in range(4):
        A(f"v_or_b32 v{t3}, {i<<1}, v{t2}")
        A(f"v_xor_b32 v{t3}, v{t3}, v{t1}")
        A(f"v_lshl_add_u32 v{L.vx[i]}, v{t3}, 4, v{t0}")
        if i: A(f"v_add_u32 v{L.vx[i]}, {i*8*1152}, v{L.vx[i]}")
    A(f"v_lshrrev_b32 v{t0}, 4, v{lane}")
    A(f"s_lshl_b32 s{st}, s{L.s_lw}, 4")
    A(f"v_add_u32 v{t5}, s{st}, v{t0}")
    A(f"v_mul_u32_u24 v{t5}, 3456, v{t5}")
    A(f"s_mul_i32 s{st}, s{r.s_hp}, 72")
    A(f"v_add_u32 v{t5}, s{st}, v{t5}")
    for var in range(2):
        A(f"v_or_b32 v{t1}, {4*var}, v{t0}")
        A(f"v_lshlrev_b32 v{t1}, 1, v{t1}")
        A(f"v_and_b32 v{t2}, 15, v{lane}")
        A(f"v_xor_b32 v{t2}, v{t2}, v{t1}")
        A(f"v_lshrrev_b32 v{t3}, 2, v{t2}")
        A(f"v_and_b32 v{t4}, 3, v{t2}")
        A(f"v_min_u32 v{t1}, 2, v{t4}")
        A(f"v_cmp_eq_u32 vcc, 3, v{t3}")
        A("s_nop 1")
        A(f"v_cndmask_b32 v{t3}, v{t3}, v{t1}, vcc")
        A(f"v_lshlrev_b32 v{t4}, 4, v{t4}")
        A(f"v_cndmask_b32 v{t4}, v{t4}, 56, vcc")
        A(f"v_mul_u32_u24 v{t3}, 1152, v{t3}")
        A(f"v_add3_u32 v{L.vw[var]}, v{t3}, v{t4}, v{t5}")
    A(f"s_lshl_b32 s{g.s_mx}, s{L.s_lw}, 13")
    A(f"s_lshl_b32 s{g.s_mw}, s{L.s_lw}, 12")
    A(f"s_add_u32 s{g.s_mw}, s{g.s_mw}, {XST}")

def emit_loader_gemm_dma(A, r, g, L):
    st, st2 = r.s_t[:2]
    A(f"s_lshl_b32 s{g.s_xoff}, s{g.s_kc}, 7")
    A(f"s_mul_i32 s{g.s_woff}, s{g.s_kc}, {64*3456}")
    for i in range(4):
        A(f"s_add_u32 s{st}, s{g.s_stw}, s{g.s_mw}")
        A(f"s_add_u32 m0, s{st}, {1024*i}")
        A(f"s_add_u32 s{st2}, s{g.s_woff}, {4*3456*i}")
        A(f"buffer_load_dwordx4 v{L.vw[i>>1]}, s[{g.s_wsrd}:{g.s_wsrd+3}], s{st2} offen lds")
    for i in range(8):
        A(f"s_add_u32 s{st}, s{g.s_stw}, s{g.s_mx}")
        A(f"s_add_u32 m0, s{st}, {1024*i}")
        A(f"s_add_u32 s{st2}, s{g.s_xoff}, {32*1152*(i>>2)}")
        A(f"buffer_load_dwordx4 v{L.vx[i&3]}, s[{g.s_xsrd}:{g.s_xsrd+3}], s{st2} offen lds")
    A(f"s_add_u32 s{g.s_kc}, s{g.s_kc}, 1")
    A(f"s_add_u32 s{g.s_stw}, s{g.s_stw}, {STAGE}")
    A(f"s_cmp_eq_u32 s{g.s_stw}, {NST*STAGE}")
    A(f"s_cselect_b32 s{g.s_stw}, 0, s{g.s_stw}")

def emit_compute_gemm_setup(A, r, g):
    t0, t1, t2, t3, t4, t5 = r.t
    st, st2, st3, st4 = r.s_t
    lane = r.lane
    A(f"v_and_b32 v{t0}, 15, v{lane}")
    A(f"v_lshrrev_b32 v{t1}, 2, v{t0}")
    A(f"v_and_b32 v{t2}, 3, v{t0}")
    A(f"v_lshl_add_u32 v{t2}, v{t1}, 3, v{t2}")
    A(f"v_lshrrev_b32 v{t3}, 1, v{t0}")
    A(f"v_and_b32 v{t3}, 1, v{t3}")
    A(f"v_lshl_or_b32 v{t3}, v{t1}, 1, v{t3}")
    A(f"v_lshrrev_b32 v{t4}, 4, v{lane}")
    A(f"v_xor_b32 v{t3}, v{t3}, v{t4}")
    A(f"s_and_b32 s{st}, s{r.s_w}, 3")
    A(f"s_lshl_b32 s{st}, s{st}, 13")
    A(f"v_lshlrev_b32 v{t2}, 7, v{t2}")
    A(f"v_add_u32 v{t2}, s{st}, v{t2}")
    A(f"v_lshl_add_u32 v{g.aA[0]}, v{t3}, 4, v{t2}")
    A(f"v_xor_b32 v{t3}, 4, v{t3}")
    A(f"v_lshl_add_u32 v{g.aA[1]}, v{t3}, 4, v{t2}")
    A(f"v_lshrrev_b32 v{t0}, 4, v{lane}")
    A(f"v_lshrrev_b32 v{t1}, 2, v{lane}")
    A(f"v_and_b32 v{t1}, 3, v{t1}")
    A(f"v_lshl_add_u32 v{t2}, v{t0}, 3, v{t1}")
    A(f"v_lshlrev_b32 v{t2}, 8, v{t2}")
    A(f"v_add_u32 v{t2}, {XST}, v{t2}")
    A(f"v_and_b32 v{t0}, 1, v{t0}")
    A(f"v_lshl_or_b32 v{t0}, v{t0}, 2, v{t1}")
    A(f"v_and_b32 v{t3}, 3, v{lane}")
    A(f"v_lshlrev_b32 v{t4}, 3, v{t3}")
    A(f"v_add_u32 v{t4}, v{t4}, v{t2}")
    A(f"s_lshr_b32 s{st}, s{r.s_w}, 2")
    A(f"s_lshl_b32 s{st}, s{st}, 2")
    for t in range(4):
        A(f"s_add_u32 s{st2}, s{st}, {t}")
        A(f"v_xor_b32 v{t5}, s{st2}, v{t0}")
        A(f"v_lshl_add_u32 v{g.aB[t]}, v{t5}, 5, v{t4}")
    A(f"v_add_u32 v{t3}, 12, v{t3}")
    A(f"v_lshlrev_b32 v{t0}, 1, v{t0}")
    A(f"v_xor_b32 v{t3}, v{t3}, v{t0}")
    A(f"v_lshl_add_u32 v{t3}, v{t3}, 4, v{t2}")
    A(f"v_add_u32 v{t3}, 8, v{t3}")
    A(f"s_cmp_ge_u32 s{r.s_w}, 4")
    A(f"s_cselect_b64 vcc, -1, 0")
    A("s_nop 1")
    A(f"v_cndmask_b32 v{g.aB[2]}, v{g.aB[2]}, v{t3}, vcc")

def g_read_list(g, s, ks, nt):
    out = []
    for i in range(4):
        p, T = i // 2, i % 2
        out.append(f"ds_read_b128 v[{g.FA[s][i]}:{g.FA[s][i]+3}], v{g.aA[ks]} offset:{4096*p+512*T}")
    for t in range(nt):
        out.append(f"ds_read_b64_tr_b16 v[{g.FB[s][t]}:{g.FB[s][t]+1}], v{g.aB[t]} offset:{8192*ks}")
        out.append(f"ds_read_b64_tr_b16 v[{g.FB[s][t]+2}:{g.FB[s][t]+3}], v{g.aB[t]} offset:{8192*ks+1024}")
    return out
def g_mfma_list(g, s, nt):
    out = []
    for t in range(nt):
        for i in range(4):
            out.append(f"v_mfma_f32_16x16x32_bf16 v[{g.acc[i][t]}:{g.acc[i][t]+3}], v[{g.FA[s][i]}:{g.FA[s][i]+3}], v[{g.FB[s][t]}:{g.FB[s][t]+3}], v[{g.acc[i][t]}:{g.acc[i][t]+3}]")
    return out
def interleave(A, mf, rd, pre=()):
    extra = list(pre) + list(rd)
    k = 0
    for m in mf:
        A(m)
        if k < len(extra):
            A(extra[k]); k += 1
    while k < len(extra):
        A(extra[k]); k += 1

def emit_compute_gemm(A, r, g, name, S):
    A(f"s_mov_b32 s{g.s_rst}, 0")
    for i in range(4):
        for t in range(4):
            for j in range(4): A(f"v_mov_b32 v{g.acc[i][t]+j}, 0")
    if getattr(g, "pf_pre", None): emit_prefetch_batch(A, r, g, g.pfreg, g.pf_pre)
    g.T.mark(1)
    A("s_barrier")
    S.mark(2)
    g.T.mark(2)
    if g.pf2: emit_prefetch_batch(A, r, g, g.pfreg, g.pf2)
    A(f"s_cmp_ge_u32 s{r.s_w}, 4")
    A(f"s_cbranch_scc1 {name}_g1")
    for nh in range(2):
        nt = 4 if nh == 0 else 3
        if nh == 1:
            A.label(f"{name}_g1")
            if OPT.get("gprio"): A(f"s_setprio {OPT['gprio']}")
        for x in g_read_list(g, 0, 0, nt): A(x)
        A(f"s_mov_b32 s{r.s_it}, 0")
        if not OPT.get("gprog", 1): A("s_waitcnt lgkmcnt(0)")
        A.label(f"{name}_gl{nh}")
        burst = False
        mf = g_mfma_list(g, 0, nt); rd = g_read_list(g, 1, 1, nt)
        nold = 4 + 2 * nt
        k = 0
        for m_i, m in enumerate(mf):
            if OPT.get("gprog", 1) and m_i % 4 == 0:
                need = 4 + 2 * (m_i // 4 + 1)
                A(f"s_waitcnt lgkmcnt({min(15, nold - need + k)})")
            A(m)
            if k < len(rd): A(rd[k]); k += 1
        while k < len(rd): A(rd[k]); k += 1
        A(f"s_add_u32 s{g.s_rst}, s{g.s_rst}, 1")
        A(f"s_cmp_eq_u32 s{g.s_rst}, {NST}")
        A(f"s_mov_b32 s{g.s_gdelta}, {STAGE}\ns_cmov_b32 s{g.s_gdelta}, {-(NST-1)*STAGE & 0xffffffff}")
        A(f"s_cselect_b32 s{g.s_rst}, 0, s{g.s_rst}")
        A("s_waitcnt lgkmcnt(0)")
        A("s_barrier")
        upd = [f"v_add_u32 v{x}, s{g.s_gdelta}, v{x}" for x in [g.aA[0]] + g.aB[:nt] + [g.aA[1]]]
        mf = g_mfma_list(g, 1, nt)
        rd = g_read_list(g, 0, 0, nt)
        k = 0
        if burst:
            for x in upd + rd + mf: A(x)
        else:
            for x in upd[:2]: A(x)
            seq = upd[2:] + rd
            interleave(A, mf, seq)
        A(f"s_add_u32 s{r.s_it}, s{r.s_it}, 1")
        A(f"s_cmp_lt_u32 s{r.s_it}, {NCH}")
        if not OPT.get("gprog", 1): A(f"s_waitcnt lgkmcnt(0)")
        A(f"s_cbranch_scc1 {name}_gl{nh}")
        A("s_waitcnt lgkmcnt(0)")
        if nh == 1 and OPT.get("gprio"): A("s_setprio 0")
        emit_epi_lds(A, r, g, nh)
        if nh == 0: A(f"s_branch {name}_gdone")
    A.label(f"{name}_gdone")

def emit_epi_addr(A, r, g, nh):
    t0, t1, t2, t3, t4, t5 = r.t
    st, st2, st3, st4 = r.s_t
    lane = r.lane
    nt = 4 if nh == 0 else 3
    A(f"s_and_b32 s{st}, s{r.s_w}, 3")
    A(f"s_lshl_b32 s{st}, s{st}, 7")
    typ = g.FA[0][0]; col = g.FA[0][0] + 1; tmp = g.FA[0][0] + 2; v2 = g.FA[0][0] + 3
    for t in range(nt):
        Tf = 4 * nh + t
        ea = g.ea[t]; ed = g.ed[t]
        A(f"v_and_b32 v{t1}, 15, v{lane}")
        if Tf < 6:
            A(f"v_add_u32 v{col}, {16*(Tf & 1)}, v{t1}")
        else:
            A(f"v_lshrrev_b32 v{typ}, 2, v{t1}")
            A(f"v_and_b32 v{col}, 3, v{t1}")
            A(f"v_add_u32 v{col}, 32, v{col}")
        A(f"v_cmp_le_u32 vcc, 18, v{col}")
        A(f"v_subrev_u32 v{tmp}, 18, v{col}")
        A("s_nop 0")
        A(f"v_cndmask_b32 v{col}, v{col}, v{tmp}, vcc")
        A(f"v_cndmask_b32 v{t0}, 0, 1, vcc")
        A(f"v_and_b32 v{t2}, 1, v{col}")
        A(f"v_lshrrev_b32 v{t3}, 1, v{col}")
        A(f"v_lshrrev_b32 v{t4}, 4, v{lane}")
        isq = (Tf < 2); isk = (Tf in (2, 3)); isv = (Tf in (4, 5))
        def ktype(base_const, hstride):
            A(f"v_mul_u32_u24 v{ea}, {KPAIR}, v{t3}")
            A(f"v_mul_u32_u24 v{tmp}, {hstride}, v{t0}")
            A(f"v_add3_u32 v{ea}, v{ea}, v{tmp}, s{st}")
            A(f"v_mul_u32_u24 v{tmp}, {512+64}, v{t2}")
            A(f"v_lshl_add_u32 v{tmp}, v{t4}, 4, v{tmp}")
            A(f"v_add_u32 v{ea}, v{ea}, v{tmp}")
            if base_const: A(f"v_add_u32 v{ea}, {base_const}, v{ea}")
            A(f"v_lshlrev_b32 v{ed}, 7, v{t2}")
            A(f"v_sub_u32 v{ed}, 64, v{ed}")
        def vtype(dst, dd):
            A(f"v_mul_u32_u24 v{dst}, {VPAIR}, v{t3}")
            A(f"v_mul_u32_u24 v{tmp}, {HEADSZ}, v{t0}")
            A(f"v_add3_u32 v{dst}, v{dst}, v{tmp}, s{st}")
            A(f"v_xor_b32 v{tmp}, v{t4}, v{t2}")
            A(f"v_lshlrev_b32 v{tmp}, 4, v{tmp}")
            A(f"v_lshl_add_u32 v{tmp}, v{t2}, 9, v{tmp}")
            A(f"v_add_u32 v{dst}, v{dst}, v{tmp}")
            A(f"v_add_u32 v{dst}, {KBLK}, v{dst}")
            A(f"v_mov_b32 v{dd}, 64")
        if isq: ktype(QOFF, KBLK)
        elif isk: ktype(0, HEADSZ)
        elif isv: vtype(ea, ed)
        else:
            ktype(0, HEADSZ)
            A(f"v_mul_i32_i24 v{tmp}, {KBLK-HEADSZ}, v{t0}")
            A(f"v_add_u32 v{tmp}, {QOFF}, v{tmp}")
            A(f"v_cmp_eq_u32 vcc, 0, v{typ}")
            A("s_nop 1")
            A(f"v_cndmask_b32 v{tmp}, 0, v{tmp}, vcc")
            A(f"v_add_u32 v{ea}, v{ea}, v{tmp}")
            vtype(t5, v2)
            A(f"v_cmp_eq_u32 vcc, 2, v{typ}")
            A("s_nop 1")
            A(f"v_cndmask_b32 v{ea}, v{ea}, v{t5}, vcc")
            A(f"v_cndmask_b32 v{ed}, v{ed}, v{v2}, vcc")
            A(f"v_mov_b32 v{g.esc}, 1.0")
            A(f"v_mov_b32 v{tmp}, {f32bits(CSCALE):#x}")
            A(f"v_cmp_eq_u32 vcc, 0, v{typ}")
            A("s_nop 1")
            A(f"v_cndmask_b32 v{g.esc}, v{g.esc}, v{tmp}, vcc")
            A(f"v_cmp_gt_u32 s[54:55], 3, v{typ}")
        A(f"v_add_u32 v{ed}, v{ea}, v{ed}")

def emit_epi_lds(A, r, g, nh):
    st4 = r.s_t[3]
    nt = 4 if nh == 0 else 3
    A("s_nop 7")
    A(f"s_mov_b32 s{st4}, {f32bits(CSCALE):#x}")
    order = [2, 3, 0, 1] if nh == 0 else [0, 1, 2]
    for t in order:
        Tf = 4 * nh + t
        isq = Tf < 2
        if Tf == 6:
            A("s_mov_b64 s[36:37], exec")
            A("s_mov_b64 exec, s[54:55]")
        for p in range(2):
            a0 = g.acc[2 * p][t]; a1 = g.acc[2 * p + 1][t]
            if isq:
                for j in range(4):
                    A(f"v_mul_f32 v{a0+j}, s{st4}, v{a0+j}")
                    A(f"v_mul_f32 v{a1+j}, s{st4}, v{a1+j}")
            elif Tf == 6:
                for j in range(4):
                    A(f"v_mul_f32 v{a0+j}, v{g.esc}, v{a0+j}")
                    A(f"v_mul_f32 v{a1+j}, v{g.esc}, v{a1+j}")
            pk = g.FA[p][t]
            A(f"v_cvt_pk_bf16_f32 v{pk}, v{a0}, v{a0+1}")
            A(f"v_cvt_pk_bf16_f32 v{pk+1}, v{a0+2}, v{a0+3}")
            A(f"v_cvt_pk_bf16_f32 v{pk+2}, v{a1}, v{a1+1}")
            A(f"v_cvt_pk_bf16_f32 v{pk+3}, v{a1+2}, v{a1+3}")
            A(f"ds_write_b128 v{g.ea[t] if p == 0 else g.ed[t]}, v[{pk}:{pk+3}]")
        if Tf == 6:
            A("s_mov_b64 exec, s[36:37]")

def emit_prefetch(A, r, g, d0, kind, kca, kcb):
    t0, t1, t2, t3 = r.t[:4]
    st, st2, st3, st4 = r.s_t
    A(f"s_lshl_b32 s{st}, s{r.s_hp}, 1\ns_and_b32 s{st2}, s{r.s_c}, 1\ns_add_u32 s{st}, s{st}, s{st2}")
    if kind == "x":
        A(f"v_lshrrev_b32 v{t3}, 4, v{r.lane}")
        A(f"v_add_u32 v{t3}, {kca}, v{t3}")
        A(f"v_min_u32 v{t3}, {kcb}, v{t3}")
        A(f"v_and_b32 v{t0}, 15, v{r.lane}")
        A(f"s_lshr_b32 s{st2}, s{r.s_c}, 1\ns_lshl_b32 s{st2}, s{st2}, 9\ns_lshl_b32 s{st3}, s{st}, 4\ns_add_u32 s{st2}, s{st2}, s{st3}")
        A(f"v_add_u32 v{t0}, s{st2}, v{t0}")
        A(f"v_mul_u32_u24 v{t0}, 1152, v{t0}")
        A(f"v_lshl_add_u32 v{t0}, v{t3}, 7, v{t0}")
        A(f"buffer_load_dword v{d0}, v{t0}, s[{g.s_xsrd}:{g.s_xsrd+3}], 0 offen")
    elif kind == "w":
        A(f"v_min_u32 v{t0}, 53, v{r.lane}")
        A(f"s_mul_i32 s{st2}, s{st}, 54")
        A(f"v_add_u32 v{t0}, s{st2}, v{t0}")
        A(f"v_mul_u32_u24 v{t1}, 2428, v{t0}")
        A(f"v_lshrrev_b32 v{t1}, 16, v{t1}")
        A(f"v_mul_u32_u24 v{t2}, 27, v{t1}")
        A(f"v_sub_u32 v{t2}, v{t0}, v{t2}")
        A(f"v_add_u32 v{t1}, {64*kca}, v{t1}")
        A(f"v_mul_u32_u24 v{t1}, 3456, v{t1}")
        A(f"v_lshl_add_u32 v{t1}, v{t2}, 7, v{t1}")
        A(f"buffer_load_dword v{d0}, v{t1}, s[{g.s_wsrd}:{g.s_wsrd+3}], 0 offen")

def emit_prefetch_batch(A, r, g, d0, jobs):
    done = A.newlabel("Lpfd")
    for w, (kind, a, b) in jobs.items():
        lab = A.newlabel("Lpf")
        A(f"s_cmp_eq_u32 s{r.s_w}, {w}\ns_cbranch_scc0 {lab}")
        emit_prefetch(A, r, g, d0, kind, a, b)
        A(f"s_branch {done}")
        A.label(lab)
    A.label(done)

def emit_loader_kv_setup(A, r, L):
    t0, t1, t2, t3 = r.t[:4]
    st, st2, st3, st4 = r.s_t
    A(f"v_lshrrev_b32 v{t0}, 5, v{r.lane}")
    A(f"v_and_b32 v{t1}, 31, v{r.lane}")
    A(f"v_lshlrev_b32 v{t2}, 2, v{t0}")
    A(f"v_xor_b32 v{t2}, v{t2}, v{t1}")
    A(f"v_lshlrev_b32 v{t2}, 4, v{t2}")
    A(f"v_lshl_add_u32 v{t2}, v{t0}, 12, v{t2}")
    A(f"v_xor_b32 v{t3}, v{t0}, v{t1}")
    A(f"v_lshlrev_b32 v{t3}, 4, v{t3}")
    A(f"v_lshl_add_u32 v{t3}, v{t0}, 12, v{t3}")
    for i in range(9):
        sl = L.s_lds[i]
        A(f"s_add_u32 s{st}, s{L.s_lw}, {4*i}")
        A(f"s_cmp_ge_u32 s{st}, 18")
        A(f"s_cselect_b32 s{st2}, 18, 0")
        A(f"s_mov_b32 s{st3}, {KPAIR}\ns_cmov_b32 s{st3}, {VPAIR}")
        A(f"s_cselect_b32 s{st4}, {KBLK}, 0")
        A(f"s_mov_b32 s{sl}, 576\ns_cmov_b32 s{sl}, 1152")
        A(f"s_cselect_b64 vcc, -1, 0")
        A(f"s_sub_u32 s{st}, s{st}, s{st2}")
        A(f"s_mul_i32 s{st2}, s{r.s_hp}, 36")
        A(f"s_add_u32 s{sl}, s{sl}, s{st2}")
        A(f"s_lshl_b32 s{st2}, s{st}, 1")
        A(f"s_add_u32 s{sl}, s{sl}, s{st2}")
        A(f"s_lshl_b32 s{sl}, s{sl}, 12")
        A(f"v_cndmask_b32 v{L.vdma[i]}, v{t2}, v{t3}, vcc")
        A(f"v_add_u32 v{L.vdma[i]}, s{sl}, v{L.vdma[i]}")
        A(f"s_cmp_ge_u32 s{st}, 9")
        A(f"s_cselect_b32 s{st2}, 9, 0")
        A(f"s_cselect_b32 s{sl}, {HEADSZ}, 0")
        A(f"s_sub_u32 s{st}, s{st}, s{st2}")
        A(f"s_mul_i32 s{st}, s{st}, s{st3}")
        A(f"s_add_u32 s{sl}, s{sl}, s{st}")
        A(f"s_add_u32 s{sl}, s{sl}, s{st4}")

def emit_loader_ones(A, r, L):
    t0, t1, t2, t3 = r.t[:4]
    A(f"v_subrev_u32 v{t1}, 512, v0")
    A(f"v_cmp_gt_u32 vcc, 192, v{t1}")
    A(f"v_lshlrev_b32 v{t1}, 2, v{t1}")
    A(f"v_mov_b32 v{t0}, 0x3f803f80")
    A(f"v_mov_b32 v{t3}, 0")
    A("s_and_saveexec_b64 s[36:37], vcc")
    lab = A.newlabel("Lones")
    A(f"s_cbranch_execz {lab}")
    for s in range(NSLOT):
        A(f"v_add_u32 v{t2}, {s*SLOT+ONES}, v{t1}")
        A(f"ds_write_b32 v{t2}, v{t0}")
        A(f"ds_write_b32 v{t2}, v{t3} offset:768")
    A.label(lab)
    A("s_mov_b64 exec, s[36:37]")

def emit_poll(A, r, L, seg_sgpr):
    t0 = r.t[0]; st, st2 = r.s_t[:2]
    A(f"s_lshl_b32 s{st}, s{seg_sgpr}, 7")
    A(f"v_and_b32 v{t0}, 3, v{r.lane}")
    A(f"v_lshlrev_b32 v{t0}, 2, v{t0}")
    A(f"v_add3_u32 v{t0}, v{t0}, v{L.vflag}, s{st}")
    b = L.buf[0]
    emit_pipelined_poll(A, f"global_load_dword {{d}}, v{t0}, s[{r.s_ws}:{r.s_ws+1}] sc1", [b, b+1, b+2, b+3], L.s_nonce, st2, depth=OPT.get("pdepth", 1))

def emit_loader_kv_dma(A, r, L):
    A(f"s_lshl_b32 s{r.s_chunk}, s{r.s_seg}, 9")
    for i in range(9):
        A(f"s_add_u32 m0, s{r.s_slotw}, s{L.s_lds[i]}")
        A("s_nop 0")
        A(f"buffer_load_dwordx4 v{L.vdma[i]}, s[{r.s_srd}:{r.s_srd+3}], s{r.s_chunk} offen{OPT.get('kvload', ' sc1')} lds")
    A(f"s_add_u32 s{r.s_seg}, s{r.s_seg}, 1")
    A(f"s_and_b32 s{r.s_seg}, s{r.s_seg}, 7")
    A(f"s_add_u32 s{r.s_slotw}, s{r.s_slotw}, {SLOT}")
    A(f"s_cmp_eq_u32 s{r.s_slotw}, {NSLOT*SLOT}")
    A(f"s_cselect_b32 s{r.s_slotw}, 0, s{r.s_slotw}")

def emit_check(A, r, name, part=1):
    t0, t1 = r.t[:2]
    A(f"s_mov_b32 s40, 0x30800000")
    A(f"s_mov_b32 s41, 0x71800000")
    for u in range(2):
        A(f"v_mul_f32 v{r.t[2+u]}, 0, v{r.O[u]}")
        for i in range(1, 10): A(f"v_fma_f32 v{r.t[2+u]}, v{r.O[u]+i}, 0, v{r.t[2+u]}")
    A(f"v_add_f32 v{r.t[2]}, v{r.t[2]}, v{r.t[3]}")
    A(f"v_cmp_gt_f32 vcc, v{r.O[0]+10}, s40")
    A(f"v_cmp_lt_f32 s[42:43], v{r.O[0]+10}, s41")
    A("s_nop 3")
    A(f"s_and_b64 s[44:45], vcc, s[42:43]")
    A(f"v_cmp_gt_f32 vcc, v{r.O[1]+10}, s40")
    A(f"v_cmp_lt_f32 s[42:43], v{r.O[1]+10}, s41")
    A("s_nop 3")
    A(f"s_and_b64 s[44:45], s[44:45], vcc")
    A(f"s_and_b64 s[44:45], s[44:45], s[42:43]")
    A(f"v_cmp_o_f32 vcc, v{r.t[2]}, v{r.t[2]}")
    A("s_nop 3")
    A(f"s_and_b64 s[44:45], s[44:45], vcc")
    if OPT.get("forceslow"): A("s_mov_b64 s[44:45], 0")
    lab = A.newlabel("Lok")
    A("s_cmp_eq_u64 s[44:45], -1")
    A(f"s_cbranch_scc1 {lab}")
    A(f"v_mov_b32 v{t0}, {NONCE_LDS + 4}")
    A(f"v_mov_b32 v{t1}, 1")
    A(f"ds_write_b32 v{t0}, v{t1}")
    A("s_waitcnt lgkmcnt(0)")
    A.label(lab)
    if part: emit_flag_read(A, r)

def emit_flag_read(A, r):
    t0 = r.t[0]
    A("s_barrier")
    A(f"v_mov_b32 v{t0}, {NONCE_LDS + 4}")
    A(f"ds_read_b32 v{t0}, v{t0}")
    A("s_waitcnt lgkmcnt(0)")
    A(f"v_readfirstlane_b32 s40, v{t0}")
    A("s_nop 3")
    A("s_cmp_lg_u32 s40, 0")

def emit_slow_compute(A, r, name):
    t = r.t
    m = [t[4], t[5]]
    addrs = [r.kE, r.kO, r.tE, r.tO, r.vA]
    back = (8 % NSLOT) * SLOT
    for x in addrs: A(f"v_subrev_u32 v{x}, {back}, v{x}")
    for u in range(2):
        A(f"v_mov_b32 v{r.Qt[u]+1}, 0")
        A(f"v_mov_b32 v{m[u]}, 0xff800000")
        for i in range(16): A(f"v_mov_b32 v{r.O[u]+i}, 0")
    for ps in range(2):
        A(f"s_mov_b32 s46, 0")
        A.label(f"{name}_sl{ps}")
        A("s_barrier")
        A(f"s_mov_b32 s47, 0")
        A.label(f"{name}_st{ps}")
        for par in range(2):
            attn.k_reads(A, r, par, 0)
            if ps == 1: attn.v_reads(A, r, par, 0)
            A("s_waitcnt lgkmcnt(0)")
            for u in range(2):
                S0 = r.S[u]
                attn.mf_main(A, r, S0, 0, u)
                attn.mf_tail(A, r, S0, 0, u)
            A("s_nop 15")
            for u in range(2):
                S0 = r.S[u]
                if ps == 0:
                    for k in range(0, 16, 2):
                        A(f"v_max3_f32 v{m[u]}, v{m[u]}, v{S0+k}, v{S0+k+1}")
                else:
                    for k in range(16): A(f"v_sub_f32 v{S0+k}, v{S0+k}, v{m[u]}")
                    for k in range(16): A(f"v_exp_f32 v{S0+k}, v{S0+k}")
                    A("s_nop 1")
                    attn.mf_pv(A, r, u, r.V1[0], S0)
                    attn.mf_pv(A, r, u, r.V2[0], S0 + 8)
            if ps == 1: A("s_nop 7")
        for x in addrs: A(f"v_add_u32 v{x}, 128, v{x}")
        A("s_add_u32 s47, s47, 1\ns_cmp_lt_u32 s47, 4")
        A(f"s_cbranch_scc1 {name}_st{ps}")
        for x in addrs: A(f"v_subrev_u32 v{x}, 512, v{x}")
        A("s_barrier")
        A("s_add_u32 s46, s46, 1\ns_cmp_lt_u32 s46, 8")
        A(f"s_cbranch_scc1 {name}_sl{ps}")
        if ps == 0:
            A(f"v_mov_b32 v{t[0]}, v{m[0]}\nv_mov_b32 v{t[1]}, v{m[1]}")
            A("s_nop 1")
            A(f"v_permlane32_swap_b32 v{m[0]}, v{t[0]}")
            A(f"v_permlane32_swap_b32 v{m[1]}, v{t[1]}")
            A("s_nop 1")
            A(f"v_max_f32 v{m[0]}, v{m[0]}, v{t[0]}")
            A(f"v_max_f32 v{m[1]}, v{m[1]}, v{t[1]}")
    A("s_nop 15")

def emit_slow_loader(A, r, L, name):
    A(f"s_mov_b32 s46, 0")
    A.label(f"{name}_lsl")
    A(f"s_and_b32 s{r.s_seg}, s46, 7")
    A(f"s_mov_b32 s{r.s_slotw}, 0")
    emit_loader_kv_dma(A, r, L)
    A("s_waitcnt vmcnt(0)")
    A("s_barrier")
    A("s_barrier")
    A("s_add_u32 s46, s46, 1\ns_cmp_lt_u32 s46, 16")
    A(f"s_cbranch_scc1 {name}_lsl")

def gen_fused(name="fused_kernel", rt=None):
    A = Asm(); r = R(); g = R(); L = R()
    V = RegAlloc(1, 168, "v")
    attn.alloc_sregs(r); qkv.alloc_gemm_sregs(g)
    lane = V.alloc("lane"); tt = [V.alloc(f"t{i}") for i in range(6)]
    r.lane = lane; r.t = tt
    r.kE = V.alloc("kE"); r.kO = V.alloc("kO"); r.tE = V.alloc("tE"); r.tO = V.alloc("tO"); r.vA = V.alloc("vA")
    r.qE = V.alloc("qE"); r.qO = V.alloc("qO")
    g.ea = [V.alloc(f"ea{i}") for i in range(4)]; g.ed = [V.alloc(f"ed{i}") for i in range(4)]; g.esc = V.alloc("esc")
    vTR = V.alloc("vTR") if OPT.get("trace") else 0
    base = V.next
    Va = RegAlloc(base, 168, "v")
    r.idx = Va.alloc("idx")
    r.Qm = [Va.alloc(f"Qm{u}", 4, 2) for u in range(2)]
    r.Qt = [Va.alloc(f"Qt{u}", 2, 2) for u in range(2)]
    r.Km = [Va.alloc(f"Km{p}", 4, 2) for p in range(2)]
    r.Kt = [Va.alloc(f"Kt{p}", 2, 2) for p in range(2)]
    r.V1 = [Va.alloc(f"V1{p}", 4, 2) for p in range(2)]
    r.V2 = [Va.alloc(f"V2{p}", 4, 2) for p in range(2)]
    r.S = [Va.alloc(f"S{i}", 16, 4) for i in range(4)]
    r.O = [Va.alloc(f"O{u}", 16, 4) for u in range(2)]
    Vg = RegAlloc(base, 168, "v")
    g.aA = [Vg.alloc(f"aA{k}") for k in range(2)]
    g.aB = [Vg.alloc(f"aB{t}") for t in range(4)]
    g.FA = [[Vg.alloc(f"FA{s}{i}", 4, 2) for i in range(4)] for s in range(2)]
    g.FB = [[Vg.alloc(f"FB{s}{t}", 4, 2) for t in range(4)] for s in range(2)]
    g.acc = [[Vg.alloc(f"acc{i}{t}", 4, 4) for t in range(4)] for i in range(4)]
    vN = Vg.alloc("vN"); vPF = Vg.alloc("vPF"); vT = Vg.alloc("vT", 2, 2)
    Vl = RegAlloc(base, 168, "v")
    L.vx = [Vl.alloc(f"vx{i}") for i in range(4)]
    L.vw = [Vl.alloc(f"vw{i}") for i in range(2)]
    L.vdma = [Vl.alloc(f"vd{i}") for i in range(9)]
    L.vflag = Vl.alloc("vflag"); L.vlds = Vl.alloc("vlds")
    L.buf = [Vl.alloc(f"buf{i}", 4, 4) for i in range(9)]
    L.s_lw = 38; L.s_lds = list(range(72, 81)); L.s_dbg = 82; L.s_sh = 39; L.s_nonce = 81
    nv = max(Va.next, Vg.next, Vl.next)

    A(f".globl {name}\n.p2align 8\n.type {name},@function")
    A.label(name)
    A(f"s_cmp_ge_u32 s2, 256\ns_cbranch_scc1 {name}_end")
    A(f"s_load_dwordx2 s[{r.s_ws}:{r.s_ws+1}], s[0:1], 64")
    A("s_load_dwordx4 s[72:75], s[0:1], 0")
    A("s_load_dwordx4 s[76:79], s[0:1], 24")
    A(f"s_load_dwordx2 s[{L.s_dbg}:{L.s_dbg+1}], s[0:1], 56")
    F3 = OPT.get("fuse3", 1)
    if F3:
        r.no_osrd = True
        A("s_load_dwordx2 s[12:13], s[0:1], 16")
        A("s_load_dwordx2 s[6:7], s[0:1], 40")
        A("s_load_dwordx2 s[14:15], s[0:1], 48")
    S = Stamper(A, rt, enabled=rt is not None); S.start()
    T = Tracer(A, vTR, enabled=bool(OPT.get("trace"))); T.init(); T.mark(0); g.T = T
    attn.emit_ids(A, r)
    A("s_waitcnt lgkmcnt(0)")
    T.mark(22)
    A(f"s_cmp_eq_u32 s{r.s_b}, 0")
    A(f"s_cselect_b32 s{g.s_xsrd}, s72, s76")
    A(f"s_cselect_b32 s{g.s_xsrd+1}, s73, s77")
    A(f"s_cselect_b32 s{g.s_wsrd}, s74, s78")
    A(f"s_cselect_b32 s{g.s_wsrd+1}, s75, s79")
    if F3: A("s_cselect_b32 s12, s12, s6\ns_cselect_b32 s13, s13, s7")
    A(f"s_mov_b32 s{g.s_xsrd+2}, {2048*1152}\ns_mov_b32 s{g.s_xsrd+3}, 0x20000")
    A(f"s_mov_b32 s{g.s_wsrd+2}, {576*3456}\ns_mov_b32 s{g.s_wsrd+3}, 0x20000")
    if OPT.get("tlb", 0):
        labt = A.newlabel("Ltlb")
        A(f"s_cmp_lg_u32 s{r.s_w}, 7\ns_cbranch_scc1 {labt}")
        A(f"s_load_dword s40, s[{g.s_wsrd}:{g.s_wsrd+1}], 0")
        A(f"s_lshl_b32 s46, s{r.s_c}, 8\ns_mul_i32 s46, s46, 1152")
        A(f"s_load_dword s41, s[{g.s_xsrd}:{g.s_xsrd+1}], s46")
        A(f"s_mul_i32 s46, s{r.s_b}, {BLK_BYTES}\ns_mul_i32 s47, s{r.s_hp}, {36*4096}\ns_add_u32 s46, s46, s47\ns_add_u32 s46, s46, {576*4096}")
        A(f"s_load_dword s42, s[{r.s_ws}:{r.s_ws+1}], s46")
        A(f"s_add_u32 s47, s46, {576*4096}")
        A(f"s_load_dword s43, s[{r.s_ws}:{r.s_ws+1}], s47")
        A(f"s_mov_b32 s48, {FLAG_OFF}")
        A(f"s_load_dword s44, s[{r.s_ws}:{r.s_ws+1}], s48")
        A(f"s_mul_i32 s49, s{r.s_b}, {O_BLK}\ns_add_u32 s49, s49, {O_OFF}")
        A(f"s_load_dword s45, s[{r.s_ws}:{r.s_ws+1}], s49")
        A.label(labt)
    A(f"s_cmp_ge_u32 s{r.s_w}, 8")
    A(f"s_cbranch_scc1 {name}_loader")
    pf = OPT.get("pf", 6)
    if pf == 1: emit_prefetch_batch(A, r, g, vPF, {0: ("x", 2, 3), 1: ("w", 2, 3)})
    if pf == 2: emit_prefetch_batch(A, r, g, vPF, {0: ("x", 2, 3), 1: ("w", 2, 3), 2: ("x", 4, 5), 3: ("w", 4, 5)})
    if pf == 3: emit_prefetch_batch(A, r, g, vPF, {0: ("x", 2, 3), 1: ("w", 2, 3), 2: ("x", 4, 5), 3: ("w", 4, 5), 4: ("x", 6, 7), 5: ("w", 6, 7), 6: ("x", 8, 8), 7: ("w", 8, 8)})
    g.pf2 = {1: {2: ("x", 4, 5), 3: ("w", 4, 5), 4: ("x", 6, 7), 5: ("w", 6, 7), 6: ("x", 8, 8), 7: ("w", 8, 8)}, 2: {4: ("x", 6, 7), 5: ("w", 6, 7), 6: ("x", 8, 8), 7: ("w", 8, 8)}}.get(pf, {})
    g.pfreg = vPF
    if pf == 6:
        emit_prefetch_batch(A, r, g, vPF, {0: ("x", 2, 5), 1: ("w", 2, 2), 2: ("w", 3, 3), 3: ("w", 4, 4)})
        g.pf2 = {0: ("x", 6, 8), 1: ("w", 5, 5), 2: ("w", 6, 6), 3: ("w", 7, 7), 4: ("w", 8, 8)}
    if pf == 7:
        emit_prefetch_batch(A, r, g, vPF, {0: ("x", 2, 5), 1: ("w", 2, 2), 2: ("w", 3, 3)})
        g.pf2 = {0: ("x", 6, 8), 1: ("w", 4, 4), 2: ("w", 5, 5), 3: ("w", 6, 6), 4: ("w", 7, 7), 5: ("w", 8, 8)}
    if pf == 8:
        emit_prefetch_batch(A, r, g, vPF, {1: ("w", 2, 2), 2: ("w", 3, 3)})
        g.pf2 = {0: ("x", 6, 8), 1: ("w", 4, 4), 2: ("w", 5, 5), 3: ("w", 6, 6), 4: ("w", 7, 7), 5: ("w", 8, 8)}
    if pf == 9:
        emit_prefetch_batch(A, r, g, vPF, {1: ("w", 3, 3), 0: ("x", 4, 7)})
        g.pf2 = {0: ("x", 8, 8), 1: ("w", 4, 4), 2: ("w", 5, 5), 3: ("w", 6, 6), 4: ("w", 7, 7), 5: ("w", 8, 8)}
    if pf == 4: g.pf2 = {2: ("x", 4, 5), 3: ("w", 4, 5), 4: ("x", 6, 7), 5: ("w", 6, 7), 6: ("x", 8, 8), 7: ("w", 8, 8)}
    if pf == 5: g.pf_pre = {2: ("x", 4, 5), 3: ("w", 4, 5), 4: ("x", 6, 7), 5: ("w", 6, 7), 6: ("x", 8, 8), 7: ("w", 8, 8)}
    attn.emit_srds(A, r)
    labn = A.newlabel("Lnonce")
    A(f"s_cmp_lg_u32 s{r.s_w}, 0\ns_cbranch_scc1 {labn}")
    A("s_memrealtime s[94:95]\ns_waitcnt lgkmcnt(0)")
    A("s_or_b32 s94, s94, 1")
    A(f"v_mov_b32 v{vT}, s94\nv_mov_b32 v{vT+1}, 0\nv_mov_b32 v{vN}, 0")
    A(f"v_cmp_eq_u32 vcc, 0, v{r.lane}")
    A("s_and_saveexec_b64 s[36:37], vcc")
    A(f"global_atomic_cmpswap v{vN}, v{vN}, v[{vT}:{vT+1}], s[{L.s_dbg}:{L.s_dbg+1}] sc0 sc1")
    A("s_mov_b64 exec, s[36:37]")
    A.label(labn)
    emit_compute_gemm_setup(A, r, g)
    attn.emit_read_addrs(A, r)
    A(f"v_mov_b32 v{r.qE}, v{r.t[4]}\nv_mov_b32 v{r.qO}, v{r.t[5]}")
    labe = A.newlabel("Lea"); labf = A.newlabel("Lea")
    A(f"s_cmp_ge_u32 s{r.s_w}, 4\ns_cbranch_scc1 {labe}")
    emit_epi_addr(A, r, g, 0)
    A(f"s_branch {labf}")
    A.label(labe)
    emit_epi_addr(A, r, g, 1)
    A.label(labf)
    emit_compute_gemm(A, r, g, name, S)
    S.mark(3)
    A("s_waitcnt vmcnt(0)")
    labn2 = A.newlabel("Lnonce")
    A(f"s_cmp_lg_u32 s{r.s_w}, 0\ns_cbranch_scc1 {labn2}")
    A("s_waitcnt vmcnt(0)")
    A(f"v_cmp_eq_u32 vcc, 0, v{vN}")
    A(f"v_mov_b32 v{r.t[0]}, {NONCE_LDS}")
    A("s_nop 0")
    A(f"v_cndmask_b32 v{vN}, v{vN}, v{vT}, vcc")
    A(f"v_cmp_eq_u32 vcc, 0, v{r.lane}")
    A("s_and_saveexec_b64 s[36:37], vcc")
    A(f"ds_write_b32 v{r.t[0]}, v{vN}")
    A(f"v_mov_b32 v{r.t[1]}, 0")
    A(f"ds_write_b32 v{r.t[0]}, v{r.t[1]} offset:4")
    A("s_mov_b64 exec, s[36:37]")
    A.label(labn2)
    A(f"v_mov_b32 v{r.idx}, 0xdddddddd")
    A("s_waitcnt lgkmcnt(0)")
    A("s_barrier")
    if OPT.get("fuse3", 1): tail.emit_srds(A, r)
    attn.emit_q_frags(A, r)
    attn.emit_attn_prologue(A, r)
    S.mark(4)
    T.mark(26)
    attn.OPT["nodma"] = 1
    attn.OPT["extdma"] = 1
    attn.OPT["tracer"] = T if OPT.get("itrace") else None
    attn.emit_attn_loop(A, r, name)
    S.mark(5)
    T.mark(27)
    if OPT.get("fuse3", 1):
        emit_check(A, r, name, part=0)
        tail.emit_stage_o(A, r)
        emit_flag_read(A, r)
        A(f"s_cbranch_scc0 {name}_go3")
        emit_slow_compute(A, r, name)
        tail.emit_stage_o(A, r)
        A("s_barrier")
        A.label(f"{name}_go3")
        labc = A.newlabel("Lc3")
        A(f"s_cmp_lt_u32 s{r.s_w}, 4\ns_cbranch_scc1 {labc}")
        nvp = tail.emit_publish(A, r, base, NONCE_LDS, name, S)
        assert nvp <= nv
        A.label(labc)
        nv3 = tail.emit_compute(A, r, name, base, T)
        assert nv3 <= nv
    else:
        emit_check(A, r, name)
        A(f"s_cbranch_scc0 {name}_store")
        emit_slow_compute(A, r, name)
        A.label(f"{name}_store")
        attn.emit_attn_store(A, r, OPT.get("oflags", ""))
    A(f"s_branch {name}_fin")
    A.label(f"{name}_loader")
    A("s_setprio 3")
    A(f"s_sub_u32 s{L.s_lw}, s{r.s_w}, 8")
    emit_loader_gemm_setup(A, r, g, L)
    A(f"s_mov_b32 s{g.s_kc}, 0\ns_mov_b32 s{g.s_stw}, 0")
    if OPT.get("pf", 6) in (4, 5):
        done4 = A.newlabel("Lpf4")
        for lw, job in {0: ("x", 0, 1), 1: ("w", 0, 1), 2: ("x", 2, 3), 3: ("w", 2, 3)}.items():
            lab4 = A.newlabel("Lpf4")
            A(f"s_cmp_eq_u32 s{L.s_lw}, {lw}\ns_cbranch_scc0 {lab4}")
            emit_prefetch(A, r, g, r.t[5], *job)
            A(f"s_branch {done4}")
            A.label(lab4)
        A.label(done4)
    if OPT.get("pf", 6) in (8, 9):
        done8 = A.newlabel("Lpf8")
        jobs8 = {0: ("x", 0, 1), 1: ("w", 0, 0), 2: ("w", 1, 1), 3: ("x", 2, 5)} if OPT["pf"] == 8 else {0: ("x", 0, 3), 1: ("w", 0, 0), 2: ("w", 1, 1), 3: ("w", 2, 2)}
        for lw, job in jobs8.items():
            lab8 = A.newlabel("Lpf8")
            A(f"s_cmp_eq_u32 s{L.s_lw}, {lw}\ns_cbranch_scc0 {lab8}")
            emit_prefetch(A, r, g, r.t[5], *job)
            A(f"s_branch {done8}")
            A.label(lab8)
        A.label(done8)
        A("s_waitcnt vmcnt(0)")
    T.mark(23)
    emit_loader_gemm_dma(A, r, g, L)
    T.mark(24)
    emit_loader_gemm_dma(A, r, g, L)
    npf = 0
    T.mark(1)
    A(f"s_waitcnt vmcnt({12 + npf})")
    T.mark(2)
    A("s_barrier")
    S.mark(2)
    emit_loader_gemm_dma(A, r, g, L)
    for kc in range(NCH):
        rem = max(0, min(NCH - 1, kc + 2) - (kc + 1))
        A(f"s_waitcnt vmcnt({12*rem})")
        T.mark(3 + 2 * kc)
        A("s_barrier")
        T.mark(4 + 2 * kc)
        if kc + 3 < NCH: emit_loader_gemm_dma(A, r, g, L)
    S.mark(3)
    attn.emit_srds(A, r)
    emit_loader_kv_setup(A, r, L)
    emit_loader_ones(A, r, L)
    A(f"s_lshl_b32 s{r.s_t[0]}, s{r.s_b}, 4")
    A(f"s_add_u32 s{r.s_t[0]}, s{r.s_t[0]}, s{r.s_hp}")
    A(f"s_lshl_b32 s{r.s_t[0]}, s{r.s_t[0]}, 10")
    A(f"s_add_u32 s{r.s_t[0]}, s{r.s_t[0]}, {FLAG_OFF}")
    A(f"v_mov_b32 v{L.vflag}, s{r.s_t[0]}")
    A(f"v_lshlrev_b32 v{L.vlds}, 4, v{r.lane}")
    A("s_waitcnt lgkmcnt(0)")
    A("s_barrier")
    A(f"v_mov_b32 v{r.t[0]}, {NONCE_LDS}")
    A(f"ds_read_b32 v{r.t[0]}, v{r.t[0]}")
    A("s_waitcnt lgkmcnt(0)")
    A(f"v_readfirstlane_b32 s{L.s_nonce}, v{r.t[0]}")
    for i in range(9):
        A(f"v_add_u32 v{r.t[1]}, s{L.s_lds[i]}, v{L.vlds}")
        A(f"ds_read_b128 v[{L.buf[i]}:{L.buf[i]+3}], v{r.t[1]}")
    A(f"s_lshl_b32 s{r.s_chunk}, s{r.s_c}, 9")
    for i in range(9):
        A(f"s_waitcnt lgkmcnt({8-i})")
        A(f"buffer_store_dwordx4 v[{L.buf[i]}:{L.buf[i]+3}], v{L.vdma[i]}, s[{r.s_srd}:{r.s_srd+3}], s{r.s_chunk} offen sc1")
    A("s_waitcnt vmcnt(0)")
    S.mark(4)
    A(f"s_lshl_b32 s{r.s_t[0]}, s{r.s_c}, 7")
    A(f"s_lshl_b32 s{r.s_t[1]}, s{L.s_lw}, 2")
    A(f"s_add_u32 s{r.s_t[0]}, s{r.s_t[0]}, s{r.s_t[1]}")
    A(f"v_add_u32 v{r.t[0]}, s{r.s_t[0]}, v{L.vflag}")
    A(f"v_mov_b32 v{r.t[1]}, s{L.s_nonce}")
    A(f"v_cmp_eq_u32 vcc, 0, v{r.lane}")
    A("s_and_saveexec_b64 s[36:37], vcc")
    A(f"global_store_dword v{r.t[0]}, v{r.t[1]}, s[{r.s_ws}:{r.s_ws+1}] sc1")
    A("s_mov_b64 exec, s[36:37]")
    A(f"s_add_u32 s{r.s_seg}, s{r.s_c}, 1\ns_and_b32 s{r.s_seg}, s{r.s_seg}, 7")
    A(f"s_mov_b32 s{r.s_slotw}, {SLOT}")
    emit_poll(A, r, L, r.s_seg)
    S.mark(5)
    emit_loader_kv_dma(A, r, L)
    if OPT.get("fuse3", 1):
        tail.emit_srds(A, r)
        P = tail.emit_loader_setup(A, r, L, Vl.next)
        assert P.top <= nv
    for i in range(8):
        A("s_waitcnt vmcnt(0)")
        if i == 0: S.mark(6)
        A("s_barrier")
        if i == 5 and OPT.get("pfwo", 1):
            if not F3:
                A("s_load_dwordx2 s[40:41], s[0:1], 16")
                A("s_load_dwordx2 s[42:43], s[0:1], 40")
            A(f"s_lshl_b32 s46, s{r.s_hp}, 1\ns_and_b32 s47, s{r.s_c}, 1\ns_add_u32 s46, s46, s47\ns_mul_i32 s46, s46, 162")
            A(f"s_lshl_b32 s47, s{L.s_lw}, 6")
            A(f"v_add_u32 v{r.t[1]}, s47, v{r.lane}")
            A(f"v_min_u32 v{r.t[1]}, 161, v{r.t[1]}")
            A(f"v_add_u32 v{r.t[1]}, s46, v{r.t[1]}")
            A(f"v_lshlrev_b32 v{r.t[1]}, 7, v{r.t[1]}")
            if not F3:
                A("s_waitcnt lgkmcnt(0)")
                A(f"s_cmp_eq_u32 s{r.s_b}, 0")
                A("s_cselect_b32 s44, s40, s42\ns_cselect_b32 s45, s41, s43")
                A(f"global_load_dword v{r.t[2]}, v{r.t[1]}, s[44:45]")
            else:
                A(f"global_load_dword v{r.t[2]}, v{r.t[1]}, s[12:13]")
        if i + 2 < 8:
            emit_poll(A, r, L, r.s_seg)
            emit_loader_kv_dma(A, r, L)
        if F3 and i == 6: tail.emit_w_chunks(A, r, L, P, range(0, 7))
        if F3 and i == 7: tail.emit_w_chunks(A, r, L, P, range(7, 9))
    emit_flag_read(A, r)
    A(f"s_cbranch_scc0 {name}_noslow")
    emit_slow_loader(A, r, L, name)
    if OPT.get("fuse3", 1):
        tail.emit_w_chunks(A, r, L, P, range(7, 9))
        A("s_barrier")
    A.label(f"{name}_noslow")
    if OPT.get("fuse3", 1):
        tail.emit_loader(A, r, L, P, name, T, S)
    A.label(f"{name}_fin")
    T.mark(30)
    T.dump(r.s_ws, r.t[0])
    S.dump(r.s_ws, r.t[0], r.S[0])
    A.label(f"{name}_end")
    A("s_endpgm")
    return A.text(), nv
```

```python
from emit import *

OX_OFF = 0x1000000
OXB = 18432
FL_REL = 0x900000
X_BYTES = 0xA00000
WCH = 64 * 144
WB1 = 83968
WB2 = 0
def wbase(j): return WB1 + j * WCH if j < 7 else WB2 + (j - 7) * WCH
OB = 2 * WCH
XST = 16384; NST = 4; NCH = 9
LDS_END = WB1 + 7 * WCH
assert OB + NST * XST <= WB1
STG = OB
TSTG = OB + XST
S_XSRD = 56; S_WSRD = 60; S_DSRD = 64
OPT = {}
PERM = [0, 2, 4, 6, 9, 11, 13, 15, 1, 3, 5, 7, 8, 10, 12, 14]

def emit_srds(A, r):
    A(f"s_add_u32 s{S_XSRD}, s{r.s_ws}, {OX_OFF}\ns_addc_u32 s{S_XSRD+1}, s{r.s_ws+1}, 0")
    A(f"s_mov_b32 s{S_XSRD+2}, {X_BYTES}\ns_mov_b32 s{S_XSRD+3}, 0x20000")
    A(f"s_mov_b32 s{S_WSRD}, s12\ns_mov_b32 s{S_WSRD+1}, s13")
    A(f"s_mov_b32 s{S_WSRD+2}, {576*1152}\ns_mov_b32 s{S_WSRD+3}, 0x20000")
    A(f"s_mov_b32 s{S_DSRD}, s14\ns_mov_b32 s{S_DSRD+1}, s15\ns_mov_b32 s{S_DSRD+2}, {2048*2304}\ns_mov_b32 s{S_DSRD+3}, 0x20000")

def emit_stage_o(A, r):
    t0, t1, t2, t3 = r.t[:4]
    st, st2 = r.s_t[:2]
    A(f"s_and_b32 s{st}, s{r.s_w}, 3\ns_lshl_b32 s{st}, s{st}, 6")
    A(f"v_and_b32 v{t0}, 31, v{r.lane}")
    A(f"v_add_u32 v{t0}, s{st}, v{t0}")
    A(f"s_lshr_b32 s{st2}, s{r.s_w}, 2")
    A(f"v_lshrrev_b32 v{t1}, 5, v{r.lane}")
    A(f"v_lshlrev_b32 v{t2}, 6, v{t0}")
    A(f"v_lshl_add_u32 v{t2}, v{t1}, 5, v{t2}")
    A(f"s_lshl_b32 s{st}, s{st2}, 3\ns_add_u32 s{st}, s{st}, {STG}")
    A(f"v_add_u32 v{t2}, s{st}, v{t2}")
    A(f"v_lshlrev_b32 v{t3}, 3, v{t0}")
    A(f"s_lshl_b32 s{st}, s{st2}, 2\ns_add_u32 s{st}, s{st}, {TSTG}")
    A(f"v_add_u32 v{t3}, s{st}, v{t3}")
    for u in range(2):
        A(f"v_rcp_f32 v{r.t[4+u]}, v{r.O[u]+10}")
    for u in range(2):
        o = r.O[u]; rc = r.t[4 + u]
        for i in range(10):
            A(f"v_mul_f32 v{o+i}, v{o+i}, v{rc}")
        pk = r.S[u]
        for i in range(5):
            A(f"v_cvt_pk_bf16_f32 v{pk+i}, v{o+2*i}, v{o+2*i+1}")
        A(f"ds_write_b64 v{t2}, v[{pk}:{pk+1}] offset:{32*64*u}")
        A(f"ds_write_b64 v{t2}, v[{pk+2}:{pk+3}] offset:{32*64*u + 16}")
        A("s_mov_b64 s[36:37], exec")
        A("s_mov_b32 exec_hi, 0")
        A(f"ds_write_b32 v{t3}, v{pk+4} offset:{32*8*u}")
        A("s_mov_b64 exec, s[36:37]")
    A("s_waitcnt lgkmcnt(0)")

def emit_publish(A, r, base, s_nonce_lds, name, S=None):
    V = RegAlloc(base, 168, "v")
    buf = [V.alloc(f"pb{i}", 4, 4) for i in range(5)]
    t0, t1, t2, t3 = r.t[:4]
    lane = r.lane; st, st2, st3, st4 = r.s_t
    A(f"s_sub_u32 s{st4}, s{r.s_w}, 4")
    A(f"v_lshlrev_b32 v{t2}, 4, v{lane}")
    A(f"s_lshl_b32 s{st}, s{st4}, 12\ns_add_u32 s{st}, s{st}, {STG}")
    A(f"v_add_u32 v{t0}, s{st}, v{t2}")
    for i in range(4):
        A(f"ds_read_b128 v[{buf[i]}:{buf[i]+3}], v{t0} offset:{1024*i}")
    A(f"s_lshl_b32 s{st}, s{st4}, 10\ns_add_u32 s{st}, s{st}, {TSTG}")
    A(f"v_add_u32 v{t1}, s{st}, v{t2}")
    A(f"ds_read_b128 v[{buf[4]}:{buf[4]+3}], v{t1}")
    A(f"v_mov_b32 v{t3}, {s_nonce_lds}")
    A(f"ds_read_b32 v{t3}, v{t3}")
    A(f"s_lshl_b32 s{st}, s{r.s_b}, 3\ns_add_u32 s{st}, s{st}, s{r.s_c}\ns_lshl_b32 s{st}, s{st}, 4\ns_add_u32 s{st}, s{st}, s{r.s_hp}")
    A(f"s_lshl_b32 s{st3}, s{st}, 7\ns_lshl_b32 s{st2}, s{st4}, 2\ns_add_u32 s{st3}, s{st3}, s{st2}\ns_add_u32 s{st3}, s{st3}, {FL_REL}")
    A(f"s_mul_i32 s{st}, s{st}, {OXB}")
    A(f"s_lshl_b32 s{st2}, s{st4}, 12\ns_add_u32 s48, s{st}, s{st2}")
    A(f"s_lshl_b32 s{st2}, s{st4}, 10\ns_add_u32 s49, s{st}, s{st2}\ns_add_u32 s49, s49, 16384")
    A("s_waitcnt lgkmcnt(0)")
    A("s_barrier")
    for i in range(4):
        A(f"buffer_store_dwordx4 v[{buf[i]}:{buf[i]+3}], v{t2}, s[{S_XSRD}:{S_XSRD+3}], s48 offen offset:{1024*i} sc1")
    lab = A.newlabel("Lpt")
    A(f"s_cmp_ge_u32 s{st4}, 2\ns_cbranch_scc1 {lab}")
    A(f"buffer_store_dwordx4 v[{buf[4]}:{buf[4]+3}], v{t2}, s[{S_XSRD}:{S_XSRD+3}], s49 offen sc1")
    A.label(lab)
    A("s_waitcnt vmcnt(0)")
    if S: S.mark(7)
    A(f"v_mov_b32 v{t0}, s{st3}")
    A(f"v_cmp_eq_u32 vcc, 0, v{lane}")
    A("s_and_saveexec_b64 s[36:37], vcc")
    A(f"buffer_store_dword v{t3}, v{t0}, s[{S_XSRD}:{S_XSRD+3}], 0 offen sc1")
    A("s_mov_b64 exec, s[36:37]")
    A(f"s_branch {name}_fin")
    return V.next

def emit_compute(A, r, name, base, T=None):
    V = RegAlloc(base, 168, "v")
    t0, t1, t2, t3, t4, t5 = r.t
    lane = r.lane
    NT = 4
    aB = [V.alloc(f"aB{k}") for k in range(2)]
    aA = [V.alloc(f"aA{k}") for k in range(3)]
    aT = V.alloc("aT")
    FO = [[V.alloc(f"FO{s}{i}", 4, 2) for i in range(NT)] for s in range(2)]
    FW = [[V.alloc(f"FW{s}{i}", 4, 2) for i in range(3)] for s in range(2)]
    acc = [[V.alloc(f"acc{i}{c}", 4, 4) for c in range(3)] for i in range(NT)]
    st, st2, st3, st4 = r.s_t
    s_w = r.s_w; s_it = r.s_it; s_rst = 46; s_gd = 47
    A(f"s_and_b32 s{st3}, s{s_w}, 1")
    A(f"v_and_b32 v{t0}, 15, v{lane}")
    A(f"v_lshrrev_b32 v{t1}, 1, v{t0}")
    A(f"v_lshrrev_b32 v{t2}, 4, v{lane}")
    A(f"v_xor_b32 v{t1}, v{t1}, v{t2}")
    A(f"s_lshl_b32 s{st}, s{st3}, 13\ns_add_u32 s{st}, s{st}, {OB}")
    A(f"v_lshlrev_b32 v{t3}, 7, v{t0}")
    A(f"v_add_u32 v{t3}, s{st}, v{t3}")
    A(f"v_lshl_add_u32 v{aB[0]}, v{t1}, 4, v{t3}")
    A(f"v_xor_b32 v{t1}, 4, v{t1}")
    A(f"v_lshl_add_u32 v{aB[1]}, v{t1}, 4, v{t3}")
    A(f"v_lshlrev_b32 v{t2}, 11, v{t2}")
    A(f"v_lshl_add_u32 v{t2}, v{t0}, 3, v{t2}")
    A(f"s_lshl_b32 s{st}, s{st3}, 9\ns_add_u32 s{st}, s{st}, {OB + (8 % NST) * XST}")
    A(f"v_add_u32 v{aT}, s{st}, v{t2}")
    A(f"v_lshrrev_b32 v{t0}, 4, v{lane}")
    A(f"v_lshrrev_b32 v{t1}, 2, v{lane}")
    A(f"v_and_b32 v{t1}, 3, v{t1}")
    A(f"v_lshl_add_u32 v{t2}, v{t0}, 2, v{t1}")
    A(f"v_mul_u32_u24 v{t2}, 144, v{t2}")
    A(f"v_add_u32 v{t2}, {WB1}, v{t2}")
    A(f"v_and_b32 v{t3}, 3, v{lane}")
    def tile_addr(dst, ct):
        A(f"v_lshl_add_u32 v{dst}, v{t3}, 3, v{t2}")
        if ct: A(f"v_add_u32 v{dst}, {32*ct}, v{dst}")
    end = A.newlabel("Lt3e")
    for cg in range(2):
        tiles = [0, 1, 4] if cg == 0 else [2, 3]
        nt = len(tiles)
        nxt = A.newlabel("Lt3c")
        if cg == 0: A(f"s_cmp_ge_u32 s{s_w}, 2\ns_cbranch_scc1 {nxt}")
        for k, ct in enumerate(tiles): tile_addr(aA[k], ct)
        for i in range(NT):
            for c in range(nt):
                for j in range(4): A(f"v_mov_b32 v{acc[i][c]+j}, 0")
        def rlist(s, ks, tailchunk=False):
            out = []
            if OPT.get("nord"): return out
            def wr(c):
                out.append(f"ds_read_b64_tr_b16 v[{FW[s][c]}:{FW[s][c]+1}], v{aA[c]} offset:{4608*ks}")
                out.append(f"ds_read_b64_tr_b16 v[{FW[s][c]+2}:{FW[s][c]+3}], v{aA[c]} offset:{4608*ks+16*144}")
            wr(0)
            for i in range(NT):
                if tailchunk:
                    out.append(f"ds_read_b64 v[{FO[s][i]}:{FO[s][i]+1}], v{aT} offset:{8192*ks + 128*i}")
                    out.append(f"ds_read_b64 v[{FO[s][i]+2}:{FO[s][i]+3}], v{aT} offset:{8192*ks + 128*i + 1024}")
                else:
                    out.append(f"ds_read_b128 v[{FO[s][i]}:{FO[s][i]+3}], v{aB[ks]} offset:{2048*i}")
            for c in range(1, nt): wr(c)
            return out
        def mlist(s):
            out = []
            if OPT.get("nomf"): return ["s_nop 0"]
            for c in range(nt):
                for i in range(NT):
                    out.append(f"v_mfma_f32_16x16x32_bf16 v[{acc[i][c]}:{acc[i][c]+3}], v[{FW[s][c]}:{FW[s][c]+3}], v[{FO[s][i]}:{FO[s][i]+3}], v[{acc[i][c]}:{acc[i][c]+3}]")
            return out
        def inter(mf, ex, pending=None):
            per = max(1, -(-len(ex) // max(1, len(mf) // 2)))
            k = 0
            for mi, m in enumerate(mf):
                if pending is not None and mi % NT == 0 and not OPT.get("nord"):
                    first = len(pending) - 2 * (nt - 1)
                    need = first + 2 * (mi // NT)
                    A(f"s_waitcnt lgkmcnt({min(15, len(pending) - need + k)})")
                A(m)
                for _ in range(per):
                    if k < len(ex): A(ex[k]); k += 1
            while k < len(ex): A(ex[k]); k += 1
        A(f"s_mov_b32 s{s_rst}, 0\ns_mov_b32 s{s_it}, 0")
        A("s_barrier")
        A("s_barrier")
        if T and cg == 0: T.mark(28)
        for x in rlist(0, 0): A(x)
        lab = f"{name}_t3l{cg}"
        A.label(lab)
        inter(mlist(0), rlist(1, 1), rlist(0, 0))
        A(f"s_add_u32 s{s_rst}, s{s_rst}, 1\ns_cmp_eq_u32 s{s_rst}, {NST}")
        A(f"s_mov_b32 s{s_gd}, {XST}\ns_cmov_b32 s{s_gd}, {-(NST-1)*XST & 0xffffffff}")
        A(f"s_cselect_b32 s{s_rst}, 0, s{s_rst}")
        A("s_waitcnt lgkmcnt(0)")
        A("s_barrier")
        for x in [aB[0], aB[1]]: A(f"v_add_u32 v{x}, s{s_gd}, v{x}")
        A(f"s_cmp_eq_u32 s{s_it}, 6")
        A(f"s_mov_b32 s{s_gd}, {WCH}\ns_cmov_b32 s{s_gd}, {(wbase(7) - wbase(6)) & 0xffffffff}")
        for x in aA[:nt]: A(f"v_add_u32 v{x}, s{s_gd}, v{x}")
        A(f"s_add_u32 s{s_it}, s{s_it}, 1\ns_cmp_lt_u32 s{s_it}, 8")
        labp = A.newlabel("Lt3p")
        A(f"s_cbranch_scc0 {labp}")
        inter(mlist(1), rlist(0, 0))
        A(f"s_branch {lab}")
        A.label(labp)
        inter(mlist(1), rlist(0, 0, True))
        inter(mlist(0), rlist(1, 1, True), rlist(0, 0, True))
        A("s_waitcnt lgkmcnt(0)")
        A("s_barrier")
        for m in mlist(1): A(m)
        if T and cg == 0: T.mark(29)
        A("s_nop 7")
        A(f"v_and_b32 v{t0}, 15, v{lane}")
        A(f"s_lshl_b32 s{st}, s{r.s_c}, 8\ns_lshr_b32 s{st2}, s{r.s_hp}, 3\ns_lshl_b32 s{st2}, s{st2}, 7\ns_add_u32 s{st}, s{st}, s{st2}")
        A(f"s_and_b32 s{st2}, s{s_w}, 1\ns_lshl_b32 s{st2}, s{st2}, 6\ns_add_u32 s{st}, s{st}, s{st2}")
        A(f"v_add_u32 v{t0}, s{st}, v{t0}")
        A(f"v_mul_u32_u24 v{t0}, 2304, v{t0}")
        A(f"v_lshrrev_b32 v{t1}, 4, v{lane}")
        A(f"s_mul_i32 s{st}, s{r.s_b}, 1152\ns_and_b32 s{st2}, s{r.s_hp}, 7\ns_mul_i32 s{st2}, s{st2}, 144\ns_add_u32 s{st}, s{st}, s{st2}")
        A(f"v_and_b32 v{t2}, 1, v{t1}")
        A(f"v_lshlrev_b32 v{t2}, 5, v{t2}")
        A(f"v_lshrrev_b32 v{t3}, 1, v{t1}")
        A(f"v_lshl_add_u32 v{t2}, v{t3}, 4, v{t2}")
        A(f"v_add_u32 v{t2}, v{t2}, v{t0}")
        A(f"v_lshl_add_u32 v{t3}, v{t1}, 3, v{t0}")
        fl = OPT.get("stflags", "")
        pks = [FO[0][i] for i in range(NT)]; p2s = [FO[1][i] for i in range(NT)]
        for i in range(NT):
            a0, a1 = acc[i][0], acc[i][1]
            pk = pks[i]
            A(f"v_cvt_pk_bf16_f32 v{pk}, v{a0}, v{a0+1}\nv_cvt_pk_bf16_f32 v{pk+1}, v{a0+2}, v{a0+3}")
            A(f"v_cvt_pk_bf16_f32 v{pk+2}, v{a1}, v{a1+1}\nv_cvt_pk_bf16_f32 v{pk+3}, v{a1+2}, v{a1+3}")
            if cg == 0:
                a2 = acc[i][2]; p2 = p2s[i]
                A(f"v_cvt_pk_bf16_f32 v{p2}, v{a2}, v{a2+1}\nv_cvt_pk_bf16_f32 v{p2+1}, v{a2+2}, v{a2+3}")
        A("s_nop 1")
        for i in range(NT):
            pk = pks[i]
            A(f"v_permlane16_swap_b32 v{pk}, v{pk+2}")
            A(f"v_permlane16_swap_b32 v{pk+1}, v{pk+3}")
        A("s_nop 1")
        for i in range(NT):
            if i: A(f"s_add_u32 s{st}, s{st}, {16*2304}")
            pk = pks[i]
            A(f"buffer_store_dwordx4 v[{pk}:{pk+3}], v{t2}, s[{S_DSRD}:{S_DSRD+3}], s{st} offen offset:{64*cg}{fl}")
            if cg == 0:
                p2 = p2s[i]
                A(f"v_cmp_gt_u32 vcc, 2, v{t1}")
                A("s_and_saveexec_b64 s[36:37], vcc")
                A(f"buffer_store_dwordx2 v[{p2}:{p2+1}], v{t3}, s[{S_DSRD}:{S_DSRD+3}], s{st} offen offset:128{fl}")
                A("s_mov_b64 exec, s[36:37]")
        if cg == 0:
            A(f"s_branch {end}")
            A.label(nxt)
    A.label(end)
    return V.next

def emit_loader_setup(A, r, L, base):
    V = RegAlloc(base, 168, "v")
    t0, t1, t2, t3, t4, t5 = r.t
    lane = r.lane; st, st2, st3, st4 = r.s_t
    P = type("P", (), {})()
    P.vo = [V.alloc(f"vo{i}") for i in range(4)]
    P.vt = V.alloc("vt")
    P.vfl = V.alloc("vfl"); P.vfl2 = V.alloc("vfl2")
    P.vw = [V.alloc(f"vw{i}") for i in range(3)]
    P.vw8 = [V.alloc(f"vw8{i}") for i in range(3)]
    P.buf = [V.alloc(f"b{i}", 4, 4) for i in range(5)]
    P.top = V.next
    lw = L.s_lw
    A(f"v_lshrrev_b32 v{t0}, 3, v{lane}")
    A(f"s_lshr_b32 s{st}, s{r.s_hp}, 3\ns_lshl_b32 s{st3}, s{st}, 7\ns_lshl_b32 s{st2}, s{lw}, 5\ns_add_u32 s{st}, s{st3}, s{st2}")
    A(f"v_add_u32 v{t0}, s{st}, v{t0}")
    A(f"v_and_b32 v{t1}, 7, v{lane}")
    A(f"v_lshrrev_b32 v{t2}, 4, v{lane}")
    for i in range(4):
        A(f"v_or_b32 v{t3}, {4*(i&1)}, v{t2}")
        A(f"v_xor_b32 v{t3}, v{t3}, v{t1}")
        A(f"v_add_u32 v{t4}, {8*i}, v{t0}")
        A(f"v_lshrrev_b32 v{t5}, 2, v{t3}")
        A(f"v_mul_u32_u24 v{t5}, {2*OXB}, v{t5}")
        A(f"v_lshl_add_u32 v{t5}, v{t4}, 6, v{t5}")
        A(f"v_and_b32 v{P.vo[i]}, 3, v{t3}")
        A(f"v_lshl_add_u32 v{P.vo[i]}, v{P.vo[i]}, 4, v{t5}")
    A(f"s_lshl_b32 s{st3}, s{st3}, 3\ns_add_u32 s{st3}, s{st3}, 16384")
    A(f"v_lshlrev_b32 v{P.vt}, 4, v{lane}")
    A(f"v_add_u32 v{P.vt}, s{st3}, v{P.vt}")
    A(f"s_lshl_b32 s{st}, s{r.s_b}, 3\ns_add_u32 s{st}, s{st}, s{r.s_c}\ns_lshl_b32 s{st}, s{st}, 11\ns_add_u32 s{st}, s{st}, {FL_REL}")
    A(f"v_bfe_u32 v{t0}, v{lane}, 2, 3")
    A(f"v_lshrrev_b32 v{t1}, 2, v{t0}")
    A(f"v_lshl_add_u32 v{t2}, v{t0}, 1, v{t1}")
    A(f"v_xor_b32 v{t1}, 1, v{t1}")
    A(f"v_lshl_add_u32 v{t3}, v{t0}, 1, v{t1}")
    A(f"v_and_b32 v{t1}, 3, v{lane}")
    A(f"v_lshlrev_b32 v{t1}, 2, v{t1}")
    A(f"v_lshl_add_u32 v{t2}, v{t2}, 7, v{t1}")
    A(f"v_lshl_add_u32 v{t3}, v{t3}, 7, v{t1}")
    A(f"v_add_u32 v{P.vfl}, s{st}, v{t2}")
    A(f"v_add_u32 v{P.vfl2}, s{st}, v{t3}")
    A(f"s_and_b32 s{st3}, s{r.s_hp}, 7\ns_mul_i32 s{st3}, s{st3}, 144")
    for k in range(3):
        if k < 2: A(f"s_add_u32 s{st}, s{lw}, {4*k}\ns_lshl_b32 s{st}, s{st}, 6")
        else: A(f"s_movk_i32 s{st}, 512")
        A(f"v_add_u32 v{t3}, s{st}, v{lane}")
        A(f"v_mul_u32_u24 v{t4}, 7282, v{t3}")
        A(f"v_lshrrev_b32 v{t4}, 16, v{t4}")
        A(f"v_mul_u32_u24 v{t0}, 9, v{t4}")
        A(f"v_sub_u32 v{t3}, v{t3}, v{t0}")
        A(f"v_lshlrev_b32 v{t3}, 4, v{t3}")
        A(f"v_add_u32 v{t3}, s{st3}, v{t3}")
        A(f"v_lshrrev_b32 v{t0}, 5, v{t4}")
        A(f"v_mul_u32_u24 v{t0}, 72, v{t0}")
        A(f"v_bfe_u32 v{t1}, v{t4}, 4, 1")
        A(f"v_mul_u32_u24 v{t1}, 18, v{t1}")
        A(f"v_and_b32 v{t2}, 15, v{t4}")
        A(f"v_add3_u32 v{t0}, v{t0}, v{t1}, v{t2}")
        A(f"v_mul_u32_u24 v{t0}, 1152, v{t0}")
        A(f"v_add_u32 v{P.vw[k]}, v{t0}, v{t3}")
        A(f"v_lshrrev_b32 v{t0}, 5, v{t4}")
        A(f"v_lshlrev_b32 v{t0}, 3, v{t0}")
        A(f"v_bfe_u32 v{t1}, v{t4}, 2, 2")
        A(f"v_lshl_add_u32 v{t0}, v{t1}, 1, v{t0}")
        A(f"v_bfe_u32 v{t1}, v{t4}, 4, 1")
        A(f"v_add_u32 v{t0}, v{t0}, v{t1}")
        A(f"v_mul_u32_u24 v{t0}, 36, v{t0}")
        A(f"v_and_b32 v{t1}, 3, v{t4}")
        A(f"v_add3_u32 v{t0}, v{t0}, v{t1}, 16")
        A(f"v_lshrrev_b32 v{t1}, 1, v{t1}")
        A(f"v_lshl_add_u32 v{t0}, v{t1}, 4, v{t0}")
        A(f"v_mul_u32_u24 v{t0}, 1152, v{t0}")
        A(f"v_add_u32 v{P.vw8[k]}, v{t0}, v{t3}")
    A(f"s_lshl_b32 s51, s{r.s_b}, 3\ns_add_u32 s51, s51, s{r.s_c}\ns_mul_i32 s51, s51, {16*OXB}")
    A(f"s_mul_i32 s52, s{r.s_hp}, {OXB}\ns_add_u32 s52, s52, s51")
    A(f"s_lshl_b32 s53, s{r.s_b}, 3\ns_add_u32 s53, s53, s{r.s_c}\ns_lshl_b32 s53, s53, 4\ns_add_u32 s53, s53, s{r.s_hp}")
    A(f"s_lshl_b32 s53, s53, 7\ns_lshl_b32 s{st2}, s{lw}, 2\ns_add_u32 s53, s53, s{st2}\ns_add_u32 s53, s53, {FL_REL}")
    return P

def emit_w_chunks(A, r, L, P, chunks):
    st, st2 = r.s_t[:2]
    lw = L.s_lw
    for j in chunks:
        regs = P.vw if j < 8 else P.vw8
        so = 36 * PERM[2 * j] * 1152 if j < 8 else 0
        for k in range(3):
            lab = None
            if k == 2:
                lab = A.newlabel("Lw8")
                A(f"s_cmp_lg_u32 s{lw}, 0\ns_cbranch_scc1 {lab}")
                A(f"s_mov_b32 m0, {wbase(j) + 8192}")
            else:
                A(f"s_lshl_b32 s{st}, s{lw}, 10\ns_add_u32 m0, s{st}, {wbase(j) + 4096*k}")
            A(f"s_mov_b32 s{st2}, {so}")
            A(f"buffer_load_dwordx4 v{regs[k]}, s[{S_WSRD}:{S_WSRD+3}], s{st2} offen lds")
            if lab: A.label(lab)

def emit_loader(A, r, L, P, name, T=None, S=None):
    t0, t1, t2 = r.t[:3]
    lane = r.lane; st, st2, st3, st4 = r.s_t
    lw = L.s_lw
    def o_dma(j, stage):
        for i in range(4):
            A(f"s_lshl_b32 s{st}, s{lw}, 12\ns_add_u32 m0, s{st}, {OB + stage*XST + 1024*i}")
            if j < 8:
                A(f"s_add_u32 s{st2}, s51, {PERM[2*j]*OXB}")
                A(f"buffer_load_dwordx4 v{P.vo[i]}, s[{S_XSRD}:{S_XSRD+3}], s{st2} offen{OPT.get('oload', ' sc1')} lds")
            else:
                A(f"s_lshl_b32 s{st2}, s{lw}, 2\ns_add_u32 s{st2}, s{st2}, {i}\ns_mul_i32 s{st2}, s{st2}, {OXB}\ns_add_u32 s{st2}, s{st2}, s51")
                A(f"buffer_load_dwordx4 v{P.vt}, s[{S_XSRD}:{S_XSRD+3}], s{st2} offen{OPT.get('oload', ' sc1')} lds")
    b = P.buf[0]
    A("s_barrier")
    emit_pipelined_poll(A, f"buffer_load_dword {{d}}, v{P.vfl}, s[{S_XSRD}:{S_XSRD+3}], 0 offen sc1", [b, b+1, b+2, b+3], L.s_nonce, st3, depth=1)
    if T: T.mark(28)
    q = []
    for j in range(NST):
        o_dma(j, j); q += [j] * 4
    def wait_for(j):
        last = max(i for i, c in enumerate(q) if c <= j)
        A(f"s_waitcnt vmcnt({len(q) - 1 - last})")
    wait_for(0)
    A("s_barrier")
    for it in range(NCH):
        if it + 1 < NCH and not OPT.get("nowait"): wait_for(it + 1)
        A("s_barrier")
        j = it + NST
        if j == NST:
            emit_pipelined_poll(A, f"buffer_load_dword {{d}}, v{P.vfl2}, s[{S_XSRD}:{S_XSRD+3}], 0 offen sc1", [b, b+1, b+2, b+3], L.s_nonce, st3, depth=1)
            if T: T.mark(29)
        if j < NCH:
            if not OPT.get("nodma"): o_dma(j, j % NST)
            q += [j] * 4
```

```python
from emit import *
import attn, qkv, tail
from attn import R, ROWB, BLK_BYTES, O_OFF, O_BLK, KPAIR, VPAIR, KBLK, VBLK, HEADSZ, ONES, ZEROS, SLOT, NSLOT, QOFF
from qkv import XST, WST, STAGE, NST, NCH, CSCALE, f32bits

OPT = {}
NONCE_LDS = max(qkv.LDS_GEMM, attn.LDS_ATTN, tail.LDS_END)
LDS_FUSED = NONCE_LDS + 256
FLAG_OFF = 0x2000000

def emit_loader_gemm_setup(A, r, g, L):
    t0, t1, t2, t3, t4, t5 = r.t
    st, st2, st3, st4 = r.s_t
    lane = r.lane
    A(f"v_lshrrev_b32 v{t0}, 3, v{lane}")
    A(f"v_and_b32 v{t1}, 7, v{lane}")
    A(f"v_lshrrev_b32 v{t2}, 4, v{lane}")
    A(f"v_and_b32 v{t2}, 1, v{t2}")
    A(f"s_lshl_b32 s{st}, s{r.s_c}, 8")
    A(f"s_lshl_b32 s{st2}, s{L.s_lw}, 6")
    A(f"s_add_u32 s{st}, s{st}, s{st2}")
    A(f"v_add_u32 v{t0}, s{st}, v{t0}")
    A(f"v_mul_u32_u24 v{t0}, 1152, v{t0}")
    for i in range(4):
        A(f"v_or_b32 v{t3}, {i<<1}, v{t2}")
        A(f"v_xor_b32 v{t3}, v{t3}, v{t1}")
        A(f"v_lshl_add_u32 v{L.vx[i]}, v{t3}, 4, v{t0}")
        if i: A(f"v_add_u32 v{L.vx[i]}, {i*8*1152}, v{L.vx[i]}")
    A(f"v_lshrrev_b32 v{t0}, 4, v{lane}")
    A(f"s_lshl_b32 s{st}, s{L.s_lw}, 4")
    A(f"v_add_u32 v{t5}, s{st}, v{t0}")
    A(f"v_mul_u32_u24 v{t5}, 3456, v{t5}")
    A(f"s_mul_i32 s{st}, s{r.s_hp}, 72")
    A(f"v_add_u32 v{t5}, s{st}, v{t5}")
    for var in range(2):
        A(f"v_or_b32 v{t1}, {4*var}, v{t0}")
        A(f"v_lshlrev_b32 v{t1}, 1, v{t1}")
        A(f"v_and_b32 v{t2}, 15, v{lane}")
        A(f"v_xor_b32 v{t2}, v{t2}, v{t1}")
        A(f"v_lshrrev_b32 v{t3}, 2, v{t2}")
        A(f"v_and_b32 v{t4}, 3, v{t2}")
        A(f"v_min_u32 v{t1}, 2, v{t4}")
        A(f"v_cmp_eq_u32 vcc, 3, v{t3}")
        A("s_nop 1")
        A(f"v_cndmask_b32 v{t3}, v{t3}, v{t1}, vcc")
        A(f"v_lshlrev_b32 v{t4}, 4, v{t4}")
        A(f"v_cndmask_b32 v{t4}, v{t4}, 56, vcc")
        A(f"v_mul_u32_u24 v{t3}, 1152, v{t3}")
        A(f"v_add3_u32 v{L.vw[var]}, v{t3}, v{t4}, v{t5}")
    A(f"s_lshl_b32 s{g.s_mx}, s{L.s_lw}, 13")
    A(f"s_lshl_b32 s{g.s_mw}, s{L.s_lw}, 12")
    A(f"s_add_u32 s{g.s_mw}, s{g.s_mw}, {XST}")

def emit_loader_gemm_dma(A, r, g, L):
    st, st2 = r.s_t[:2]
    A(f"s_lshl_b32 s{g.s_xoff}, s{g.s_kc}, 7")
    A(f"s_mul_i32 s{g.s_woff}, s{g.s_kc}, {64*3456}")
    for i in range(4):
        A(f"s_add_u32 s{st}, s{g.s_stw}, s{g.s_mw}")
        A(f"s_add_u32 m0, s{st}, {1024*i}")
        A(f"s_add_u32 s{st2}, s{g.s_woff}, {4*3456*i}")
        A(f"buffer_load_dwordx4 v{L.vw[i>>1]}, s[{g.s_wsrd}:{g.s_wsrd+3}], s{st2} offen lds")
    for i in range(8):
        A(f"s_add_u32 s{st}, s{g.s_stw}, s{g.s_mx}")
        A(f"s_add_u32 m0, s{st}, {1024*i}")
        A(f"s_add_u32 s{st2}, s{g.s_xoff}, {32*1152*(i>>2)}")
        A(f"buffer_load_dwordx4 v{L.vx[i&3]}, s[{g.s_xsrd}:{g.s_xsrd+3}], s{st2} offen lds")
    A(f"s_add_u32 s{g.s_kc}, s{g.s_kc}, 1")
    A(f"s_add_u32 s{g.s_stw}, s{g.s_stw}, {STAGE}")
    A(f"s_cmp_eq_u32 s{g.s_stw}, {NST*STAGE}")
    A(f"s_cselect_b32 s{g.s_stw}, 0, s{g.s_stw}")

def emit_compute_gemm_setup(A, r, g):
    t0, t1, t2, t3, t4, t5 = r.t
    st, st2, st3, st4 = r.s_t
    lane = r.lane
    A(f"v_and_b32 v{t0}, 15, v{lane}")
    A(f"v_lshrrev_b32 v{t1}, 2, v{t0}")
    A(f"v_and_b32 v{t2}, 3, v{t0}")
    A(f"v_lshl_add_u32 v{t2}, v{t1}, 3, v{t2}")
    A(f"v_lshrrev_b32 v{t3}, 1, v{t0}")
    A(f"v_and_b32 v{t3}, 1, v{t3}")
    A(f"v_lshl_or_b32 v{t3}, v{t1}, 1, v{t3}")
    A(f"v_lshrrev_b32 v{t4}, 4, v{lane}")
    A(f"v_xor_b32 v{t3}, v{t3}, v{t4}")
    A(f"s_and_b32 s{st}, s{r.s_w}, 3")
    A(f"s_lshl_b32 s{st}, s{st}, 13")
    A(f"v_lshlrev_b32 v{t2}, 7, v{t2}")
    A(f"v_add_u32 v{t2}, s{st}, v{t2}")
    A(f"v_lshl_add_u32 v{g.aA[0]}, v{t3}, 4, v{t2}")
    A(f"v_xor_b32 v{t3}, 4, v{t3}")
    A(f"v_lshl_add_u32 v{g.aA[1]}, v{t3}, 4, v{t2}")
    A(f"v_lshrrev_b32 v{t0}, 4, v{lane}")
    A(f"v_lshrrev_b32 v{t1}, 2, v{lane}")
    A(f"v_and_b32 v{t1}, 3, v{t1}")
    A(f"v_lshl_add_u32 v{t2}, v{t0}, 3, v{t1}")
    A(f"v_lshlrev_b32 v{t2}, 8, v{t2}")
    A(f"v_add_u32 v{t2}, {XST}, v{t2}")
    A(f"v_and_b32 v{t0}, 1, v{t0}")
    A(f"v_lshl_or_b32 v{t0}, v{t0}, 2, v{t1}")
    A(f"v_and_b32 v{t3}, 3, v{lane}")
    A(f"v_lshlrev_b32 v{t4}, 3, v{t3}")
    A(f"v_add_u32 v{t4}, v{t4}, v{t2}")
    A(f"s_lshr_b32 s{st}, s{r.s_w}, 2")
    A(f"s_lshl_b32 s{st}, s{st}, 2")
    for t in range(4):
        A(f"s_add_u32 s{st2}, s{st}, {t}")
        A(f"v_xor_b32 v{t5}, s{st2}, v{t0}")
        A(f"v_lshl_add_u32 v{g.aB[t]}, v{t5}, 5, v{t4}")
    A(f"v_add_u32 v{t3}, 12, v{t3}")
    A(f"v_lshlrev_b32 v{t0}, 1, v{t0}")
    A(f"v_xor_b32 v{t3}, v{t3}, v{t0}")
    A(f"v_lshl_add_u32 v{t3}, v{t3}, 4, v{t2}")
    A(f"v_add_u32 v{t3}, 8, v{t3}")
    A(f"s_cmp_ge_u32 s{r.s_w}, 4")
    A(f"s_cselect_b64 vcc, -1, 0")
    A("s_nop 1")
    A(f"v_cndmask_b32 v{g.aB[2]}, v{g.aB[2]}, v{t3}, vcc")

def g_read_list(g, s, ks, nt):
    out = []
    for i in range(4):
        p, T = i // 2, i % 2
        out.append(f"ds_read_b128 v[{g.FA[s][i]}:{g.FA[s][i]+3}], v{g.aA[ks]} offset:{4096*p+512*T}")
    for t in range(nt):
        out.append(f"ds_read_b64_tr_b16 v[{g.FB[s][t]}:{g.FB[s][t]+1}], v{g.aB[t]} offset:{8192*ks}")
        out.append(f"ds_read_b64_tr_b16 v[{g.FB[s][t]+2}:{g.FB[s][t]+3}], v{g.aB[t]} offset:{8192*ks+1024}")
    return out
def g_mfma_list(g, s, nt):
    out = []
    for t in range(nt):
        for i in range(4):
            out.append(f"v_mfma_f32_16x16x32_bf16 v[{g.acc[i][t]}:{g.acc[i][t]+3}], v[{g.FA[s][i]}:{g.FA[s][i]+3}], v[{g.FB[s][t]}:{g.FB[s][t]+3}], v[{g.acc[i][t]}:{g.acc[i][t]+3}]")
    return out
def interleave(A, mf, rd, pre=()):
    extra = list(pre) + list(rd)
    k = 0
    for m in mf:
        A(m)
        if k < len(extra):
            A(extra[k]); k += 1
    while k < len(extra):
        A(extra[k]); k += 1

def emit_compute_gemm(A, r, g, name, S):
    A(f"s_mov_b32 s{g.s_rst}, 0")
    for i in range(4):
        for t in range(4):
            for j in range(4): A(f"v_mov_b32 v{g.acc[i][t]+j}, 0")
    if getattr(g, "pf_pre", None): emit_prefetch_batch(A, r, g, g.pfreg, g.pf_pre)
    g.T.mark(1)
    A("s_barrier")
    S.mark(2)
    g.T.mark(2)
    if g.pf2: emit_prefetch_batch(A, r, g, g.pfreg, g.pf2)
    A(f"s_cmp_ge_u32 s{r.s_w}, 4")
    A(f"s_cbranch_scc1 {name}_g1")
    for nh in range(2):
        nt = 4 if nh == 0 else 3
        if nh == 1:
            A.label(f"{name}_g1")
            if OPT.get("gprio"): A(f"s_setprio {OPT['gprio']}")
        for x in g_read_list(g, 0, 0, nt): A(x)
        A(f"s_mov_b32 s{r.s_it}, 0")
        if not OPT.get("gprog", 1): A("s_waitcnt lgkmcnt(0)")
        A.label(f"{name}_gl{nh}")
        burst = False
        mf = g_mfma_list(g, 0, nt); rd = g_read_list(g, 1, 1, nt)
        nold = 4 + 2 * nt
        k = 0
        for m_i, m in enumerate(mf):
            if OPT.get("gprog", 1) and m_i % 4 == 0:
                need = 4 + 2 * (m_i // 4 + 1)
                A(f"s_waitcnt lgkmcnt({min(15, nold - need + k)})")
            A(m)
            if k < len(rd): A(rd[k]); k += 1
        while k < len(rd): A(rd[k]); k += 1
        A(f"s_add_u32 s{g.s_rst}, s{g.s_rst}, 1")
        A(f"s_cmp_eq_u32 s{g.s_rst}, {NST}")
        A(f"s_mov_b32 s{g.s_gdelta}, {STAGE}\ns_cmov_b32 s{g.s_gdelta}, {-(NST-1)*STAGE & 0xffffffff}")
        A(f"s_cselect_b32 s{g.s_rst}, 0, s{g.s_rst}")
        A("s_waitcnt lgkmcnt(0)")
        A("s_barrier")
        upd = [f"v_add_u32 v{x}, s{g.s_gdelta}, v{x}" for x in [g.aA[0]] + g.aB[:nt] + [g.aA[1]]]
        mf = g_mfma_list(g, 1, nt)
        rd = g_read_list(g, 0, 0, nt)
        k = 0
        if burst:
            for x in upd + rd + mf: A(x)
        else:
            for x in upd[:2]: A(x)
            seq = upd[2:] + rd
            interleave(A, mf, seq)
        A(f"s_add_u32 s{r.s_it}, s{r.s_it}, 1")
        A(f"s_cmp_lt_u32 s{r.s_it}, {NCH}")
        if not OPT.get("gprog", 1): A(f"s_waitcnt lgkmcnt(0)")
        A(f"s_cbranch_scc1 {name}_gl{nh}")
        A("s_waitcnt lgkmcnt(0)")
        if nh == 1 and OPT.get("gprio"): A("s_setprio 0")
        emit_epi_lds(A, r, g, nh)
        if nh == 0: A(f"s_branch {name}_gdone")
    A.label(f"{name}_gdone")

def emit_epi_addr(A, r, g, nh):
    t0, t1, t2, t3, t4, t5 = r.t
    st, st2, st3, st4 = r.s_t
    lane = r.lane
    nt = 4 if nh == 0 else 3
    A(f"s_and_b32 s{st}, s{r.s_w}, 3")
    A(f"s_lshl_b32 s{st}, s{st}, 7")
    typ = g.FA[0][0]; col = g.FA[0][0] + 1; tmp = g.FA[0][0] + 2; v2 = g.FA[0][0] + 3
    for t in range(nt):
        Tf = 4 * nh + t
        ea = g.ea[t]; ed = g.ed[t]
        A(f"v_and_b32 v{t1}, 15, v{lane}")
        if Tf < 6:
            A(f"v_add_u32 v{col}, {16*(Tf & 1)}, v{t1}")
        else:
            A(f"v_lshrrev_b32 v{typ}, 2, v{t1}")
            A(f"v_and_b32 v{col}, 3, v{t1}")
            A(f"v_add_u32 v{col}, 32, v{col}")
        A(f"v_cmp_le_u32 vcc, 18, v{col}")
        A(f"v_subrev_u32 v{tmp}, 18, v{col}")
        A("s_nop 0")
        A(f"v_cndmask_b32 v{col}, v{col}, v{tmp}, vcc")
        A(f"v_cndmask_b32 v{t0}, 0, 1, vcc")
        A(f"v_and_b32 v{t2}, 1, v{col}")
        A(f"v_lshrrev_b32 v{t3}, 1, v{col}")
        A(f"v_lshrrev_b32 v{t4}, 4, v{lane}")
        isq = (Tf < 2); isk = (Tf in (2, 3)); isv = (Tf in (4, 5))
        def ktype(base_const, hstride):
            A(f"v_mul_u32_u24 v{ea}, {KPAIR}, v{t3}")
            A(f"v_mul_u32_u24 v{tmp}, {hstride}, v{t0}")
            A(f"v_add3_u32 v{ea}, v{ea}, v{tmp}, s{st}")
            A(f"v_mul_u32_u24 v{tmp}, {512+64}, v{t2}")
            A(f"v_lshl_add_u32 v{tmp}, v{t4}, 4, v{tmp}")
            A(f"v_add_u32 v{ea}, v{ea}, v{tmp}")
            if base_const: A(f"v_add_u32 v{ea}, {base_const}, v{ea}")
            A(f"v_lshlrev_b32 v{ed}, 7, v{t2}")
            A(f"v_sub_u32 v{ed}, 64, v{ed}")
        def vtype(dst, dd):
            A(f"v_mul_u32_u24 v{dst}, {VPAIR}, v{t3}")
            A(f"v_mul_u32_u24 v{tmp}, {HEADSZ}, v{t0}")
            A(f"v_add3_u32 v{dst}, v{dst}, v{tmp}, s{st}")
            A(f"v_xor_b32 v{tmp}, v{t4}, v{t2}")
            A(f"v_lshlrev_b32 v{tmp}, 4, v{tmp}")
            A(f"v_lshl_add_u32 v{tmp}, v{t2}, 9, v{tmp}")
            A(f"v_add_u32 v{dst}, v{dst}, v{tmp}")
            A(f"v_add_u32 v{dst}, {KBLK}, v{dst}")
            A(f"v_mov_b32 v{dd}, 64")
        if isq: ktype(QOFF, KBLK)
        elif isk: ktype(0, HEADSZ)
        elif isv: vtype(ea, ed)
        else:
            ktype(0, HEADSZ)
            A(f"v_mul_i32_i24 v{tmp}, {KBLK-HEADSZ}, v{t0}")
            A(f"v_add_u32 v{tmp}, {QOFF}, v{tmp}")
            A(f"v_cmp_eq_u32 vcc, 0, v{typ}")
            A("s_nop 1")
            A(f"v_cndmask_b32 v{tmp}, 0, v{tmp}, vcc")
            A(f"v_add_u32 v{ea}, v{ea}, v{tmp}")
            vtype(t5, v2)
            A(f"v_cmp_eq_u32 vcc, 2, v{typ}")
            A("s_nop 1")
            A(f"v_cndmask_b32 v{ea}, v{ea}, v{t5}, vcc")
            A(f"v_cndmask_b32 v{ed}, v{ed}, v{v2}, vcc")
            A(f"v_mov_b32 v{g.esc}, 1.0")
            A(f"v_mov_b32 v{tmp}, {f32bits(CSCALE):#x}")
            A(f"v_cmp_eq_u32 vcc, 0, v{typ}")
            A("s_nop 1")
            A(f"v_cndmask_b32 v{g.esc}, v{g.esc}, v{tmp}, vcc")
            A(f"v_cmp_gt_u32 s[54:55], 3, v{typ}")
        A(f"v_add_u32 v{ed}, v{ea}, v{ed}")

def emit_epi_lds(A, r, g, nh):
    st4 = r.s_t[3]
    nt = 4 if nh == 0 else 3
    A("s_nop 7")
    A(f"s_mov_b32 s{st4}, {f32bits(CSCALE):#x}")
    order = [2, 3, 0, 1] if nh == 0 else [0, 1, 2]
    for t in order:
        Tf = 4 * nh + t
        isq = Tf < 2
        if Tf == 6:
            A("s_mov_b64 s[36:37], exec")
            A("s_mov_b64 exec, s[54:55]")
        for p in range(2):
            a0 = g.acc[2 * p][t]; a1 = g.acc[2 * p + 1][t]
            if isq:
                for j in range(4):
                    A(f"v_mul_f32 v{a0+j}, s{st4}, v{a0+j}")
                    A(f"v_mul_f32 v{a1+j}, s{st4}, v{a1+j}")
            elif Tf == 6:
                for j in range(4):
                    A(f"v_mul_f32 v{a0+j}, v{g.esc}, v{a0+j}")
                    A(f"v_mul_f32 v{a1+j}, v{g.esc}, v{a1+j}")
            pk = g.FA[p][t]
            A(f"v_cvt_pk_bf16_f32 v{pk}, v{a0}, v{a0+1}")
            A(f"v_cvt_pk_bf16_f32 v{pk+1}, v{a0+2}, v{a0+3}")
            A(f"v_cvt_pk_bf16_f32 v{pk+2}, v{a1}, v{a1+1}")
            A(f"v_cvt_pk_bf16_f32 v{pk+3}, v{a1+2}, v{a1+3}")
            A(f"ds_write_b128 v{g.ea[t] if p == 0 else g.ed[t]}, v[{pk}:{pk+3}]")
        if Tf == 6:
            A("s_mov_b64 exec, s[36:37]")

def emit_prefetch(A, r, g, d0, kind, kca, kcb):
    t0, t1, t2, t3 = r.t[:4]
    st, st2, st3, st4 = r.s_t
    A(f"s_lshl_b32 s{st}, s{r.s_hp}, 1\ns_and_b32 s{st2}, s{r.s_c}, 1\ns_add_u32 s{st}, s{st}, s{st2}")
    if kind == "x":
        A(f"v_lshrrev_b32 v{t3}, 4, v{r.lane}")
        A(f"v_add_u32 v{t3}, {kca}, v{t3}")
        A(f"v_min_u32 v{t3}, {kcb}, v{t3}")
        A(f"v_and_b32 v{t0}, 15, v{r.lane}")
        A(f"s_lshr_b32 s{st2}, s{r.s_c}, 1\ns_lshl_b32 s{st2}, s{st2}, 9\ns_lshl_b32 s{st3}, s{st}, 4\ns_add_u32 s{st2}, s{st2}, s{st3}")
        A(f"v_add_u32 v{t0}, s{st2}, v{t0}")
        A(f"v_mul_u32_u24 v{t0}, 1152, v{t0}")
        A(f"v_lshl_add_u32 v{t0}, v{t3}, 7, v{t0}")
        A(f"buffer_load_dword v{d0}, v{t0}, s[{g.s_xsrd}:{g.s_xsrd+3}], 0 offen")
    elif kind == "w":
        A(f"v_min_u32 v{t0}, 53, v{r.lane}")
        A(f"s_mul_i32 s{st2}, s{st}, 54")
        A(f"v_add_u32 v{t0}, s{st2}, v{t0}")
        A(f"v_mul_u32_u24 v{t1}, 2428, v{t0}")
        A(f"v_lshrrev_b32 v{t1}, 16, v{t1}")
        A(f"v_mul_u32_u24 v{t2}, 27, v{t1}")
        A(f"v_sub_u32 v{t2}, v{t0}, v{t2}")
        A(f"v_add_u32 v{t1}, {64*kca}, v{t1}")
        A(f"v_mul_u32_u24 v{t1}, 3456, v{t1}")
        A(f"v_lshl_add_u32 v{t1}, v{t2}, 7, v{t1}")
        A(f"buffer_load_dword v{d0}, v{t1}, s[{g.s_wsrd}:{g.s_wsrd+3}], 0 offen")

def emit_prefetch_batch(A, r, g, d0, jobs):
    done = A.newlabel("Lpfd")
    for w, (kind, a, b) in jobs.items():
        lab = A.newlabel("Lpf")
        A(f"s_cmp_eq_u32 s{r.s_w}, {w}\ns_cbranch_scc0 {lab}")
        emit_prefetch(A, r, g, d0, kind, a, b)
        A(f"s_branch {done}")
        A.label(lab)
    A.label(done)

def emit_loader_kv_setup(A, r, L):
    t0, t1, t2, t3 = r.t[:4]
    st, st2, st3, st4 = r.s_t
    A(f"v_lshrrev_b32 v{t0}, 5, v{r.lane}")
    A(f"v_and_b32 v{t1}, 31, v{r.lane}")
    A(f"v_lshlrev_b32 v{t2}, 2, v{t0}")
    A(f"v_xor_b32 v{t2}, v{t2}, v{t1}")
    A(f"v_lshlrev_b32 v{t2}, 4, v{t2}")
    A(f"v_lshl_add_u32 v{t2}, v{t0}, 12, v{t2}")
    A(f"v_xor_b32 v{t3}, v{t0}, v{t1}")
    A(f"v_lshlrev_b32 v{t3}, 4, v{t3}")
    A(f"v_lshl_add_u32 v{t3}, v{t0}, 12, v{t3}")
    for i in range(9):
        sl = L.s_lds[i]
        A(f"s_add_u32 s{st}, s{L.s_lw}, {4*i}")
        A(f"s_cmp_ge_u32 s{st}, 18")
        A(f"s_cselect_b32 s{st2}, 18, 0")
        A(f"s_mov_b32 s{st3}, {KPAIR}\ns_cmov_b32 s{st3}, {VPAIR}")
        A(f"s_cselect_b32 s{st4}, {KBLK}, 0")
        A(f"s_mov_b32 s{sl}, 576\ns_cmov_b32 s{sl}, 1152")
        A(f"s_cselect_b64 vcc, -1, 0")
        A(f"s_sub_u32 s{st}, s{st}, s{st2}")
        A(f"s_mul_i32 s{st2}, s{r.s_hp}, 36")
        A(f"s_add_u32 s{sl}, s{sl}, s{st2}")
        A(f"s_lshl_b32 s{st2}, s{st}, 1")
        A(f"s_add_u32 s{sl}, s{sl}, s{st2}")
        A(f"s_lshl_b32 s{sl}, s{sl}, 12")
        A(f"v_cndmask_b32 v{L.vdma[i]}, v{t2}, v{t3}, vcc")
        A(f"v_add_u32 v{L.vdma[i]}, s{sl}, v{L.vdma[i]}")
        A(f"s_cmp_ge_u32 s{st}, 9")
        A(f"s_cselect_b32 s{st2}, 9, 0")
        A(f"s_cselect_b32 s{sl}, {HEADSZ}, 0")
        A(f"s_sub_u32 s{st}, s{st}, s{st2}")
        A(f"s_mul_i32 s{st}, s{st}, s{st3}")
        A(f"s_add_u32 s{sl}, s{sl}, s{st}")
        A(f"s_add_u32 s{sl}, s{sl}, s{st4}")

def emit_loader_ones(A, r, L):
    t0, t1, t2, t3 = r.t[:4]
    A(f"v_subrev_u32 v{t1}, 512, v0")
    A(f"v_cmp_gt_u32 vcc, 192, v{t1}")
    A(f"v_lshlrev_b32 v{t1}, 2, v{t1}")
    A(f"v_mov_b32 v{t0}, 0x3f803f80")
    A(f"v_mov_b32 v{t3}, 0")
    A("s_and_saveexec_b64 s[36:37], vcc")
    lab = A.newlabel("Lones")
    A(f"s_cbranch_execz {lab}")
    for s in range(NSLOT):
        A(f"v_add_u32 v{t2}, {s*SLOT+ONES}, v{t1}")
        A(f"ds_write_b32 v{t2}, v{t0}")
        A(f"ds_write_b32 v{t2}, v{t3} offset:768")
    A.label(lab)
    A("s_mov_b64 exec, s[36:37]")

def emit_poll(A, r, L, seg_sgpr):
    t0 = r.t[0]; st, st2 = r.s_t[:2]
    A(f"s_lshl_b32 s{st}, s{seg_sgpr}, 7")
    A(f"v_and_b32 v{t0}, 3, v{r.lane}")
    A(f"v_lshlrev_b32 v{t0}, 2, v{t0}")
    A(f"v_add3_u32 v{t0}, v{t0}, v{L.vflag}, s{st}")
    b = L.buf[0]
    emit_pipelined_poll(A, f"global_load_dword {{d}}, v{t0}, s[{r.s_ws}:{r.s_ws+1}] sc1", [b, b+1, b+2, b+3], L.s_nonce, st2, depth=OPT.get("pdepth", 1))

def emit_loader_kv_dma(A, r, L):
    A(f"s_lshl_b32 s{r.s_chunk}, s{r.s_seg}, 9")
    for i in range(9):
        A(f"s_add_u32 m0, s{r.s_slotw}, s{L.s_lds[i]}")
        A("s_nop 0")
        A(f"buffer_load_dwordx4 v{L.vdma[i]}, s[{r.s_srd}:{r.s_srd+3}], s{r.s_chunk} offen{OPT.get('kvload', ' sc1')} lds")
    A(f"s_add_u32 s{r.s_seg}, s{r.s_seg}, 1")
    A(f"s_and_b32 s{r.s_seg}, s{r.s_seg}, 7")
    A(f"s_add_u32 s{r.s_slotw}, s{r.s_slotw}, {SLOT}")
    A(f"s_cmp_eq_u32 s{r.s_slotw}, {NSLOT*SLOT}")
    A(f"s_cselect_b32 s{r.s_slotw}, 0, s{r.s_slotw}")

def emit_check(A, r, name, part=1):
    t0, t1 = r.t[:2]
    A(f"s_mov_b32 s40, 0x30800000")
    A(f"s_mov_b32 s41, 0x71800000")
    for u in range(2):
        A(f"v_mul_f32 v{r.t[2+u]}, 0, v{r.O[u]}")
        for i in range(1, 10): A(f"v_fma_f32 v{r.t[2+u]}, v{r.O[u]+i}, 0, v{r.t[2+u]}")
    A(f"v_add_f32 v{r.t[2]}, v{r.t[2]}, v{r.t[3]}")
    A(f"v_cmp_gt_f32 vcc, v{r.O[0]+10}, s40")
    A(f"v_cmp_lt_f32 s[42:43], v{r.O[0]+10}, s41")
    A("s_nop 3")
    A(f"s_and_b64 s[44:45], vcc, s[42:43]")
    A(f"v_cmp_gt_f32 vcc, v{r.O[1]+10}, s40")
    A(f"v_cmp_lt_f32 s[42:43], v{r.O[1]+10}, s41")
    A("s_nop 3")
    A(f"s_and_b64 s[44:45], s[44:45], vcc")
    A(f"s_and_b64 s[44:45], s[44:45], s[42:43]")
    A(f"v_cmp_o_f32 vcc, v{r.t[2]}, v{r.t[2]}")
    A("s_nop 3")
    A(f"s_and_b64 s[44:45], s[44:45], vcc")
    if OPT.get("forceslow"): A("s_mov_b64 s[44:45], 0")
    lab = A.newlabel("Lok")
    A("s_cmp_eq_u64 s[44:45], -1")
    A(f"s_cbranch_scc1 {lab}")
    A(f"v_mov_b32 v{t0}, {NONCE_LDS + 4}")
    A(f"v_mov_b32 v{t1}, 1")
    A(f"ds_write_b32 v{t0}, v{t1}")
    A("s_waitcnt lgkmcnt(0)")
    A.label(lab)
    if part: emit_flag_read(A, r)

def emit_flag_read(A, r):
    t0 = r.t[0]
    A("s_barrier")
    A(f"v_mov_b32 v{t0}, {NONCE_LDS + 4}")
    A(f"ds_read_b32 v{t0}, v{t0}")
    A("s_waitcnt lgkmcnt(0)")
    A(f"v_readfirstlane_b32 s40, v{t0}")
    A("s_nop 3")
    A("s_cmp_lg_u32 s40, 0")

def emit_slow_compute(A, r, name):
    t = r.t
    m = [t[4], t[5]]
    addrs = [r.kE, r.kO, r.tE, r.tO, r.vA]
    back = (8 % NSLOT) * SLOT
    for x in addrs: A(f"v_subrev_u32 v{x}, {back}, v{x}")
    for u in range(2):
        A(f"v_mov_b32 v{r.Qt[u]+1}, 0")
        A(f"v_mov_b32 v{m[u]}, 0xff800000")
        for i in range(16): A(f"v_mov_b32 v{r.O[u]+i}, 0")
    for ps in range(2):
        A(f"s_mov_b32 s46, 0")
        A.label(f"{name}_sl{ps}")
        A("s_barrier")
        A(f"s_mov_b32 s47, 0")
        A.label(f"{name}_st{ps}")
        for par in range(2):
            attn.k_reads(A, r, par, 0)
            if ps == 1: attn.v_reads(A, r, par, 0)
            A("s_waitcnt lgkmcnt(0)")
            for u in range(2):
                S0 = r.S[u]
                attn.mf_main(A, r, S0, 0, u)
                attn.mf_tail(A, r, S0, 0, u)
            A("s_nop 15")
            for u in range(2):
                S0 = r.S[u]
                if ps == 0:
                    for k in range(0, 16, 2):
                        A(f"v_max3_f32 v{m[u]}, v{m[u]}, v{S0+k}, v{S0+k+1}")
                else:
                    for k in range(16): A(f"v_sub_f32 v{S0+k}, v{S0+k}, v{m[u]}")
                    for k in range(16): A(f"v_exp_f32 v{S0+k}, v{S0+k}")
                    A("s_nop 1")
                    attn.mf_pv(A, r, u, r.V1[0], S0)
                    attn.mf_pv(A, r, u, r.V2[0], S0 + 8)
            if ps == 1: A("s_nop 7")
        for x in addrs: A(f"v_add_u32 v{x}, 128, v{x}")
        A("s_add_u32 s47, s47, 1\ns_cmp_lt_u32 s47, 4")
        A(f"s_cbranch_scc1 {name}_st{ps}")
        for x in addrs: A(f"v_subrev_u32 v{x}, 512, v{x}")
        A("s_barrier")
        A("s_add_u32 s46, s46, 1\ns_cmp_lt_u32 s46, 8")
        A(f"s_cbranch_scc1 {name}_sl{ps}")
        if ps == 0:
            A(f"v_mov_b32 v{t[0]}, v{m[0]}\nv_mov_b32 v{t[1]}, v{m[1]}")
            A("s_nop 1")
            A(f"v_permlane32_swap_b32 v{m[0]}, v{t[0]}")
            A(f"v_permlane32_swap_b32 v{m[1]}, v{t[1]}")
            A("s_nop 1")
            A(f"v_max_f32 v{m[0]}, v{m[0]}, v{t[0]}")
            A(f"v_max_f32 v{m[1]}, v{m[1]}, v{t[1]}")
    A("s_nop 15")

def emit_slow_loader(A, r, L, name):
    A(f"s_mov_b32 s46, 0")
    A.label(f"{name}_lsl")
    A(f"s_and_b32 s{r.s_seg}, s46, 7")
    A(f"s_mov_b32 s{r.s_slotw}, 0")
    emit_loader_kv_dma(A, r, L)
    A("s_waitcnt vmcnt(0)")
    A("s_barrier")
    A("s_barrier")
    A("s_add_u32 s46, s46, 1\ns_cmp_lt_u32 s46, 16")
    A(f"s_cbranch_scc1 {name}_lsl")

def gen_fused(name="fused_kernel", rt=None):
    A = Asm(); r = R(); g = R(); L = R()
    V = RegAlloc(1, 168, "v")
    attn.alloc_sregs(r); qkv.alloc_gemm_sregs(g)
    lane = V.alloc("lane"); tt = [V.alloc(f"t{i}") for i in range(6)]
    r.lane = lane; r.t = tt
    r.kE = V.alloc("kE"); r.kO = V.alloc("kO"); r.tE = V.alloc("tE"); r.tO = V.alloc("tO"); r.vA = V.alloc("vA")
    r.qE = V.alloc("qE"); r.qO = V.alloc("qO")
    g.ea = [V.alloc(f"ea{i}") for i in range(4)]; g.ed = [V.alloc(f"ed{i}") for i in range(4)]; g.esc = V.alloc("esc")
    vTR = V.alloc("vTR") if OPT.get("trace") else 0
    base = V.next
    Va = RegAlloc(base, 168, "v")
    r.idx = Va.alloc("idx")
    r.Qm = [Va.alloc(f"Qm{u}", 4, 2) for u in range(2)]
    r.Qt = [Va.alloc(f"Qt{u}", 2, 2) for u in range(2)]
    r.Km = [Va.alloc(f"Km{p}", 4, 2) for p in range(2)]
    r.Kt = [Va.alloc(f"Kt{p}", 2, 2) for p in range(2)]
    r.V1 = [Va.alloc(f"V1{p}", 4, 2) for p in range(2)]
    r.V2 = [Va.alloc(f"V2{p}", 4, 2) for p in range(2)]
    r.S = [Va.alloc(f"S{i}", 16, 4) for i in range(4)]
    r.O = [Va.alloc(f"O{u}", 16, 4) for u in range(2)]
    Vg = RegAlloc(base, 168, "v")
    g.aA = [Vg.alloc(f"aA{k}") for k in range(2)]
    g.aB = [Vg.alloc(f"aB{t}") for t in range(4)]
    g.FA = [[Vg.alloc(f"FA{s}{i}", 4, 2) for i in range(4)] for s in range(2)]
    g.FB = [[Vg.alloc(f"FB{s}{t}", 4, 2) for t in range(4)] for s in range(2)]
    g.acc = [[Vg.alloc(f"acc{i}{t}", 4, 4) for t in range(4)] for i in range(4)]
    vN = Vg.alloc("vN"); vPF = Vg.alloc("vPF"); vT = Vg.alloc("vT", 2, 2)
    Vl = RegAlloc(base, 168, "v")
    L.vx = [Vl.alloc(f"vx{i}") for i in range(4)]
    L.vw = [Vl.alloc(f"vw{i}") for i in range(2)]
    L.vdma = [Vl.alloc(f"vd{i}") for i in range(9)]
    L.vflag = Vl.alloc("vflag"); L.vlds = Vl.alloc("vlds")
    L.buf = [Vl.alloc(f"buf{i}", 4, 4) for i in range(9)]
    L.s_lw = 38; L.s_lds = list(range(72, 81)); L.s_dbg = 82; L.s_sh = 39; L.s_nonce = 81
    nv = max(Va.next, Vg.next, Vl.next)

    A(f".globl {name}\n.p2align 8\n.type {name},@function")
    A.label(name)
    A(f"s_cmp_ge_u32 s2, 256\ns_cbranch_scc1 {name}_end")
    A(f"s_load_dwordx2 s[{r.s_ws}:{r.s_ws+1}], s[0:1], 64")
    A("s_load_dwordx4 s[72:75], s[0:1], 0")
    A("s_load_dwordx4 s[76:79], s[0:1], 24")
    A(f"s_load_dwordx2 s[{L.s_dbg}:{L.s_dbg+1}], s[0:1], 56")
    F3 = OPT.get("fuse3", 1)
    if F3:
        r.no_osrd = True
        A("s_load_dwordx2 s[12:13], s[0:1], 16")
        A("s_load_dwordx2 s[6:7], s[0:1], 40")
        A("s_load_dwordx2 s[14:15], s[0:1], 48")
    S = Stamper(A, rt, enabled=rt is not None); S.start()
    T = Tracer(A, vTR, enabled=bool(OPT.get("trace"))); T.init(); T.mark(0); g.T = T
    attn.emit_ids(A, r)
    A("s_waitcnt lgkmcnt(0)")
    T.mark(22)
    A(f"s_cmp_eq_u32 s{r.s_b}, 0")
    A(f"s_cselect_b32 s{g.s_xsrd}, s72, s76")
    A(f"s_cselect_b32 s{g.s_xsrd+1}, s73, s77")
    A(f"s_cselect_b32 s{g.s_wsrd}, s74, s78")
    A(f"s_cselect_b32 s{g.s_wsrd+1}, s75, s79")
    if F3: A("s_cselect_b32 s12, s12, s6\ns_cselect_b32 s13, s13, s7")
    A(f"s_mov_b32 s{g.s_xsrd+2}, {2048*1152}\ns_mov_b32 s{g.s_xsrd+3}, 0x20000")
    A(f"s_mov_b32 s{g.s_wsrd+2}, {576*3456}\ns_mov_b32 s{g.s_wsrd+3}, 0x20000")
    if OPT.get("tlb", 0):
        labt = A.newlabel("Ltlb")
        A(f"s_cmp_lg_u32 s{r.s_w}, 7\ns_cbranch_scc1 {labt}")
        A(f"s_load_dword s40, s[{g.s_wsrd}:{g.s_wsrd+1}], 0")
        A(f"s_lshl_b32 s46, s{r.s_c}, 8\ns_mul_i32 s46, s46, 1152")
        A(f"s_load_dword s41, s[{g.s_xsrd}:{g.s_xsrd+1}], s46")
        A(f"s_mul_i32 s46, s{r.s_b}, {BLK_BYTES}\ns_mul_i32 s47, s{r.s_hp}, {36*4096}\ns_add_u32 s46, s46, s47\ns_add_u32 s46, s46, {576*4096}")
        A(f"s_load_dword s42, s[{r.s_ws}:{r.s_ws+1}], s46")
        A(f"s_add_u32 s47, s46, {576*4096}")
        A(f"s_load_dword s43, s[{r.s_ws}:{r.s_ws+1}], s47")
        A(f"s_mov_b32 s48, {FLAG_OFF}")
        A(f"s_load_dword s44, s[{r.s_ws}:{r.s_ws+1}], s48")
        A(f"s_mul_i32 s49, s{r.s_b}, {O_BLK}\ns_add_u32 s49, s49, {O_OFF}")
        A(f"s_load_dword s45, s[{r.s_ws}:{r.s_ws+1}], s49")
        A.label(labt)
    A(f"s_cmp_ge_u32 s{r.s_w}, 8")
    A(f"s_cbranch_scc1 {name}_loader")
    pf = OPT.get("pf", 6)
    if pf == 1: emit_prefetch_batch(A, r, g, vPF, {0: ("x", 2, 3), 1: ("w", 2, 3)})
    if pf == 2: emit_prefetch_batch(A, r, g, vPF, {0: ("x", 2, 3), 1: ("w", 2, 3), 2: ("x", 4, 5), 3: ("w", 4, 5)})
    if pf == 3: emit_prefetch_batch(A, r, g, vPF, {0: ("x", 2, 3), 1: ("w", 2, 3), 2: ("x", 4, 5), 3: ("w", 4, 5), 4: ("x", 6, 7), 5: ("w", 6, 7), 6: ("x", 8, 8), 7: ("w", 8, 8)})
    g.pf2 = {1: {2: ("x", 4, 5), 3: ("w", 4, 5), 4: ("x", 6, 7), 5: ("w", 6, 7), 6: ("x", 8, 8), 7: ("w", 8, 8)}, 2: {4: ("x", 6, 7), 5: ("w", 6, 7), 6: ("x", 8, 8), 7: ("w", 8, 8)}}.get(pf, {})
    g.pfreg = vPF
    if pf == 6:
        emit_prefetch_batch(A, r, g, vPF, {0: ("x", 2, 5), 1: ("w", 2, 2), 2: ("w", 3, 3), 3: ("w", 4, 4)})
        g.pf2 = {0: ("x", 6, 8), 1: ("w", 5, 5), 2: ("w", 6, 6), 3: ("w", 7, 7), 4: ("w", 8, 8)}
    if pf == 7:
        emit_prefetch_batch(A, r, g, vPF, {0: ("x", 2, 5), 1: ("w", 2, 2), 2: ("w", 3, 3)})
        g.pf2 = {0: ("x", 6, 8), 1: ("w", 4, 4), 2: ("w", 5, 5), 3: ("w", 6, 6), 4: ("w", 7, 7), 5: ("w", 8, 8)}
    if pf == 8:
        emit_prefetch_batch(A, r, g, vPF, {1: ("w", 2, 2), 2: ("w", 3, 3)})
        g.pf2 = {0: ("x", 6, 8), 1: ("w", 4, 4), 2: ("w", 5, 5), 3: ("w", 6, 6), 4: ("w", 7, 7), 5: ("w", 8, 8)}
    if pf == 9:
        emit_prefetch_batch(A, r, g, vPF, {1: ("w", 3, 3), 0: ("x", 4, 7)})
        g.pf2 = {0: ("x", 8, 8), 1: ("w", 4, 4), 2: ("w", 5, 5), 3: ("w", 6, 6), 4: ("w", 7, 7), 5: ("w", 8, 8)}
    if pf == 4: g.pf2 = {2: ("x", 4, 5), 3: ("w", 4, 5), 4: ("x", 6, 7), 5: ("w", 6, 7), 6: ("x", 8, 8), 7: ("w", 8, 8)}
    if pf == 5: g.pf_pre = {2: ("x", 4, 5), 3: ("w", 4, 5), 4: ("x", 6, 7), 5: ("w", 6, 7), 6: ("x", 8, 8), 7: ("w", 8, 8)}
    attn.emit_srds(A, r)
    labn = A.newlabel("Lnonce")
    A(f"s_cmp_lg_u32 s{r.s_w}, 0\ns_cbranch_scc1 {labn}")
    A("s_memrealtime s[94:95]\ns_waitcnt lgkmcnt(0)")
    A("s_or_b32 s94, s94, 1")
    A(f"v_mov_b32 v{vT}, s94\nv_mov_b32 v{vT+1}, 0\nv_mov_b32 v{vN}, 0")
    A(f"v_cmp_eq_u32 vcc, 0, v{r.lane}")
    A("s_and_saveexec_b64 s[36:37], vcc")
    A(f"global_atomic_cmpswap v{vN}, v{vN}, v[{vT}:{vT+1}], s[{L.s_dbg}:{L.s_dbg+1}] sc0 sc1")
    A("s_mov_b64 exec, s[36:37]")
    A.label(labn)
    emit_compute_gemm_setup(A, r, g)
    attn.emit_read_addrs(A, r)
    A(f"v_mov_b32 v{r.qE}, v{r.t[4]}\nv_mov_b32 v{r.qO}, v{r.t[5]}")
    labe = A.newlabel("Lea"); labf = A.newlabel("Lea")
    A(f"s_cmp_ge_u32 s{r.s_w}, 4\ns_cbranch_scc1 {labe}")
    emit_epi_addr(A, r, g, 0)
    A(f"s_branch {labf}")
    A.label(labe)
    emit_epi_addr(A, r, g, 1)
    A.label(labf)
    emit_compute_gemm(A, r, g, name, S)
    S.mark(3)
    A("s_waitcnt vmcnt(0)")
    labn2 = A.newlabel("Lnonce")
    A(f"s_cmp_lg_u32 s{r.s_w}, 0\ns_cbranch_scc1 {labn2}")
    A("s_waitcnt vmcnt(0)")
    A(f"v_cmp_eq_u32 vcc, 0, v{vN}")
    A(f"v_mov_b32 v{r.t[0]}, {NONCE_LDS}")
    A("s_nop 0")
    A(f"v_cndmask_b32 v{vN}, v{vN}, v{vT}, vcc")
    A(f"v_cmp_eq_u32 vcc, 0, v{r.lane}")
    A("s_and_saveexec_b64 s[36:37], vcc")
    A(f"ds_write_b32 v{r.t[0]}, v{vN}")
    A(f"v_mov_b32 v{r.t[1]}, 0")
    A(f"ds_write_b32 v{r.t[0]}, v{r.t[1]} offset:4")
    A("s_mov_b64 exec, s[36:37]")
    A.label(labn2)
    A(f"v_mov_b32 v{r.idx}, 0xdddddddd")
    A("s_waitcnt lgkmcnt(0)")
    A("s_barrier")
    if OPT.get("fuse3", 1): tail.emit_srds(A, r)
    attn.emit_q_frags(A, r)
    attn.emit_attn_prologue(A, r)
    S.mark(4)
    T.mark(26)
    attn.OPT["nodma"] = 1
    attn.OPT["extdma"] = 1
    attn.OPT["tracer"] = T if OPT.get("itrace") else None
    attn.emit_attn_loop(A, r, name)
    S.mark(5)
    T.mark(27)
    if OPT.get("fuse3", 1):
        emit_check(A, r, name, part=0)
        tail.emit_stage_o(A, r)
        emit_flag_read(A, r)
        A(f"s_cbranch_scc0 {name}_go3")
        emit_slow_compute(A, r, name)
        tail.emit_stage_o(A, r)
        A("s_barrier")
        A.label(f"{name}_go3")
        labc = A.newlabel("Lc3")
        A(f"s_cmp_lt_u32 s{r.s_w}, 4\ns_cbranch_scc1 {labc}")
        nvp = tail.emit_publish(A, r, base, NONCE_LDS, name, S)
        assert nvp <= nv
        A.label(labc)
        nv3 = tail.emit_compute(A, r, name, base, T)
        assert nv3 <= nv
    else:
        emit_check(A, r, name)
        A(f"s_cbranch_scc0 {name}_store")
        emit_slow_compute(A, r, name)
        A.label(f"{name}_store")
        attn.emit_attn_store(A, r, OPT.get("oflags", ""))
    A(f"s_branch {name}_fin")
    A.label(f"{name}_loader")
    A("s_setprio 3")
    A(f"s_sub_u32 s{L.s_lw}, s{r.s_w}, 8")
    emit_loader_gemm_setup(A, r, g, L)
    A(f"s_mov_b32 s{g.s_kc}, 0\ns_mov_b32 s{g.s_stw}, 0")
    if OPT.get("pf", 6) in (4, 5):
        done4 = A.newlabel("Lpf4")
        for lw, job in {0: ("x", 0, 1), 1: ("w", 0, 1), 2: ("x", 2, 3), 3: ("w", 2, 3)}.items():
            lab4 = A.newlabel("Lpf4")
            A(f"s_cmp_eq_u32 s{L.s_lw}, {lw}\ns_cbranch_scc0 {lab4}")
            emit_prefetch(A, r, g, r.t[5], *job)
            A(f"s_branch {done4}")
            A.label(lab4)
        A.label(done4)
    if OPT.get("pf", 6) in (8, 9):
        done8 = A.newlabel("Lpf8")
        jobs8 = {0: ("x", 0, 1), 1: ("w", 0, 0), 2: ("w", 1, 1), 3: ("x", 2, 5)} if OPT["pf"] == 8 else {0: ("x", 0, 3), 1: ("w", 0, 0), 2: ("w", 1, 1), 3: ("w", 2, 2)}
        for lw, job in jobs8.items():
            lab8 = A.newlabel("Lpf8")
            A(f"s_cmp_eq_u32 s{L.s_lw}, {lw}\ns_cbranch_scc0 {lab8}")
            emit_prefetch(A, r, g, r.t[5], *job)
            A(f"s_branch {done8}")
            A.label(lab8)
        A.label(done8)
        A("s_waitcnt vmcnt(0)")
    T.mark(23)
    emit_loader_gemm_dma(A, r, g, L)
    T.mark(24)
    emit_loader_gemm_dma(A, r, g, L)
    npf = 0
    T.mark(1)
    A(f"s_waitcnt vmcnt({12 + npf})")
    T.mark(2)
    A("s_barrier")
    S.mark(2)
    emit_loader_gemm_dma(A, r, g, L)
    for kc in range(NCH):
        rem = max(0, min(NCH - 1, kc + 2) - (kc + 1))
        A(f"s_waitcnt vmcnt({12*rem})")
        T.mark(3 + 2 * kc)
        A("s_barrier")
        T.mark(4 + 2 * kc)
        if kc + 3 < NCH: emit_loader_gemm_dma(A, r, g, L)
    S.mark(3)
    attn.emit_srds(A, r)
    emit_loader_kv_setup(A, r, L)
    emit_loader_ones(A, r, L)
    A(f"s_lshl_b32 s{r.s_t[0]}, s{r.s_b}, 4")
    A(f"s_add_u32 s{r.s_t[0]}, s{r.s_t[0]}, s{r.s_hp}")
    A(f"s_lshl_b32 s{r.s_t[0]}, s{r.s_t[0]}, 10")
    A(f"s_add_u32 s{r.s_t[0]}, s{r.s_t[0]}, {FLAG_OFF}")
    A(f"v_mov_b32 v{L.vflag}, s{r.s_t[0]}")
    A(f"v_lshlrev_b32 v{L.vlds}, 4, v{r.lane}")
    for i in range(9):
        A(f"v_add_u32 v{L.buf[i]+3}, s{L.s_lds[i]}, v{L.vlds}")
    A(f"s_lshl_b32 s{r.s_chunk}, s{r.s_c}, 9")
    A(f"v_mov_b32 v{r.t[2]}, {NONCE_LDS}")
    A("s_waitcnt lgkmcnt(0)")
    A("s_barrier")
    for i in range(9):
        A(f"ds_read_b128 v[{L.buf[i]}:{L.buf[i]+3}], v{L.buf[i]+3}")
    A(f"ds_read_b32 v{r.t[2]}, v{r.t[2]}")
    for i in range(9):
        A(f"s_waitcnt lgkmcnt({9-i})")
        A(f"buffer_store_dwordx4 v[{L.buf[i]}:{L.buf[i]+3}], v{L.vdma[i]}, s[{r.s_srd}:{r.s_srd+3}], s{r.s_chunk} offen sc1")
    A("s_waitcnt lgkmcnt(0)")
    A(f"v_readfirstlane_b32 s{L.s_nonce}, v{r.t[2]}")
    A("s_waitcnt vmcnt(0)")
    S.mark(4)
    A(f"s_lshl_b32 s{r.s_t[0]}, s{r.s_c}, 7")
    A(f"s_lshl_b32 s{r.s_t[1]}, s{L.s_lw}, 2")
    A(f"s_add_u32 s{r.s_t[0]}, s{r.s_t[0]}, s{r.s_t[1]}")
    A(f"v_add_u32 v{r.t[0]}, s{r.s_t[0]}, v{L.vflag}")
    A(f"v_mov_b32 v{r.t[1]}, s{L.s_nonce}")
    A(f"v_cmp_eq_u32 vcc, 0, v{r.lane}")
    A("s_and_saveexec_b64 s[36:37], vcc")
    A(f"global_store_dword v{r.t[0]}, v{r.t[1]}, s[{r.s_ws}:{r.s_ws+1}] sc1")
    A("s_mov_b64 exec, s[36:37]")
    A(f"s_add_u32 s{r.s_seg}, s{r.s_c}, 1\ns_and_b32 s{r.s_seg}, s{r.s_seg}, 7")
    A(f"s_mov_b32 s{r.s_slotw}, {SLOT}")
    emit_poll(A, r, L, r.s_seg)
    S.mark(5)
    emit_loader_kv_dma(A, r, L)
    if OPT.get("fuse3", 1):
        tail.emit_srds(A, r)
        P = tail.emit_loader_setup(A, r, L, Vl.next)
        assert P.top <= nv
    for i in range(8):
        A("s_waitcnt vmcnt(0)")
        if i == 0: S.mark(6)
        A("s_barrier")
        if i == 5 and OPT.get("pfwo", 1):
            if not F3:
                A("s_load_dwordx2 s[40:41], s[0:1], 16")
                A("s_load_dwordx2 s[42:43], s[0:1], 40")
            A(f"s_lshl_b32 s46, s{r.s_hp}, 1\ns_and_b32 s47, s{r.s_c}, 1\ns_add_u32 s46, s46, s47\ns_mul_i32 s46, s46, 162")
            A(f"s_lshl_b32 s47, s{L.s_lw}, 6")
            A(f"v_add_u32 v{r.t[1]}, s47, v{r.lane}")
            A(f"v_min_u32 v{r.t[1]}, 161, v{r.t[1]}")
            A(f"v_add_u32 v{r.t[1]}, s46, v{r.t[1]}")
            A(f"v_lshlrev_b32 v{r.t[1]}, 7, v{r.t[1]}")
            if not F3:
                A("s_waitcnt lgkmcnt(0)")
                A(f"s_cmp_eq_u32 s{r.s_b}, 0")
                A("s_cselect_b32 s44, s40, s42\ns_cselect_b32 s45, s41, s43")
                A(f"global_load_dword v{r.t[2]}, v{r.t[1]}, s[44:45]")
            else:
                A(f"global_load_dword v{r.t[2]}, v{r.t[1]}, s[12:13]")
        if i + 2 < 8:
            emit_poll(A, r, L, r.s_seg)
            emit_loader_kv_dma(A, r, L)
        if F3 and i == 6: tail.emit_w_chunks(A, r, L, P, range(0, 7))
        if F3 and i == 7: tail.emit_w_chunks(A, r, L, P, range(7, 9))
    emit_flag_read(A, r)
    A(f"s_cbranch_scc0 {name}_noslow")
    emit_slow_loader(A, r, L, name)
    if OPT.get("fuse3", 1):
        tail.emit_w_chunks(A, r, L, P, range(7, 9))
        A("s_barrier")
    A.label(f"{name}_noslow")
    if OPT.get("fuse3", 1):
        tail.emit_loader(A, r, L, P, name, T, S)
    A.label(f"{name}_fin")
    T.mark(30)
    T.dump(r.s_ws, r.t[0])
    S.dump(r.s_ws, r.t[0], r.S[0])
    A.label(f"{name}_end")
    A("s_endpgm")
    return A.text(), nv
```

```python
from emit import *

ROWB = 4096
BLK_BYTES = 1728 * ROWB
O_OFF = 0x1000000
O_BLK = 2048 * 1152
KPAIR, VPAIR = 1152, 1056
KBLK, VBLK = 10496, 9728
HEADSZ = KBLK + VBLK
ONES = 2 * HEADSZ
ZEROS = ONES + 768
SLOT = ONES + 1536
NSLOT = 3
QOFF = NSLOT * SLOT
LDS_ATTN = QOFF + 2 * KBLK

OPT = {}

class R:
    pass

def alloc_attn_regs(V, r):
    r.lane = V.alloc("lane")
    r.t = [V.alloc(f"t{i}") for i in range(6)]
    r.vdma = [V.alloc(f"dma{i}") for i in range(5)]
    r.kE = V.alloc("kE"); r.kO = V.alloc("kO"); r.tE = V.alloc("tE"); r.tO = V.alloc("tO"); r.vA = V.alloc("vA")
    r.idx = V.alloc("idx")
    r.Qm = [V.alloc(f"Qm{u}", 4, 2) for u in range(2)]
    r.Qt = [V.alloc(f"Qt{u}", 2, 2) for u in range(2)]
    r.Km = [V.alloc(f"Km{p}", 4, 2) for p in range(2)]
    r.Kt = [V.alloc(f"Kt{p}", 2, 2) for p in range(2)]
    r.V1 = [V.alloc(f"V1{p}", 4, 2) for p in range(2)]
    r.V2 = [V.alloc(f"V2{p}", 4, 2) for p in range(2)]
    r.S = [V.alloc(f"S{i}", 16, 4) for i in range(4)]
    r.O = [V.alloc(f"O{u}", 16, 4) for u in range(2)]

def alloc_sregs(r):
    r.s_ws = 4; r.s_srd = 8; r.s_osrd = 12
    r.s_w = 16; r.s_b = 17; r.s_hp = 18; r.s_c = 19
    r.s_lds = [20, 21, 22, 23, 24]
    r.s_slotw = 25; r.s_chunk = 26; r.s_it = 27; r.s_delta = 28; r.s_rslot = 29
    r.s_t = [30, 31, 32, 33]
    r.s_seg = 34
    r.s_hbase = 35

def emit_ids(A, r):
    t0 = r.t[0]
    A(f"v_and_b32 v{r.lane}, 63, v0")
    A(f"v_lshrrev_b32 v{t0}, 6, v0")
    A("s_and_b32 s3, s2, 7")
    A(f"s_lshr_b32 s{r.s_t[0]}, s2, 3")
    A(f"v_readfirstlane_b32 s{r.s_w}, v{t0}")
    A(f"s_lshr_b32 s{r.s_b}, s3, 2")
    if OPT.get("map", 162) == 162:
        A(f"s_lshr_b32 s{r.s_hp}, s{r.s_t[0]}, 1")
        if OPT.get("hpperm", 0):
            A(f"s_and_b32 s{r.s_c}, s{r.s_hp}, 7")
            A(f"s_lshr_b32 s{r.s_t[1]}, s{r.s_hp}, 3")
            A(f"s_cmp_lt_u32 s{r.s_c}, 4\ns_cselect_b32 s{r.s_hp}, 1, 0")
            A(f"s_xor_b32 s{r.s_hp}, s{r.s_hp}, s{r.s_t[1]}")
            A(f"s_lshl_b32 s{r.s_c}, s{r.s_c}, 1\ns_add_u32 s{r.s_hp}, s{r.s_hp}, s{r.s_c}")
        A(f"s_and_b32 s3, s3, 3\ns_lshl_b32 s3, s3, 1")
        A(f"s_and_b32 s{r.s_c}, s{r.s_t[0]}, 1\ns_add_u32 s{r.s_c}, s{r.s_c}, s3")
    elif OPT.get("map") == 200:
        A(f"s_lshr_b32 s{r.s_b}, s3, 1\ns_and_b32 s{r.s_b}, s{r.s_b}, 1")
        A(f"s_lshr_b32 s{r.s_hp}, s{r.s_t[0]}, 2")
        A(f"s_cmp_lt_u32 s{r.s_hp}, 4\ns_cselect_b32 s{r.s_c}, 1, 0")
        A(f"s_lshr_b32 s{r.s_t[1]}, s3, 2")
        A(f"s_xor_b32 s{r.s_c}, s{r.s_c}, s{r.s_t[1]}")
        A(f"s_lshl_b32 s{r.s_hp}, s{r.s_hp}, 1\ns_add_u32 s{r.s_hp}, s{r.s_hp}, s{r.s_c}")
        A(f"s_and_b32 s3, s3, 1\ns_lshl_b32 s3, s3, 2")
        A(f"s_and_b32 s{r.s_c}, s{r.s_t[0]}, 3\ns_add_u32 s{r.s_c}, s{r.s_c}, s3")
    elif OPT.get("map") == 84:
        A(f"s_lshr_b32 s{r.s_hp}, s3, 1\ns_and_b32 s{r.s_hp}, s{r.s_hp}, 1\ns_lshl_b32 s{r.s_hp}, s{r.s_hp}, 3")
        A(f"s_lshr_b32 s{r.s_c}, s{r.s_t[0]}, 2\ns_add_u32 s{r.s_hp}, s{r.s_hp}, s{r.s_c}")
        A(f"s_and_b32 s3, s3, 1\ns_lshl_b32 s3, s3, 2")
        A(f"s_and_b32 s{r.s_c}, s{r.s_t[0]}, 3\ns_add_u32 s{r.s_c}, s{r.s_c}, s3")
    else:
        A(f"s_and_b32 s3, s3, 3")
        A(f"s_lshl_b32 s3, s3, 2")
        A(f"s_lshr_b32 s{r.s_hp}, s{r.s_t[0]}, 3")
        A(f"s_add_u32 s{r.s_hp}, s{r.s_hp}, s3")
        A(f"s_and_b32 s{r.s_c}, s{r.s_t[0]}, 7")

def emit_srds(A, r):
    t = r.s_t[0]
    A(f"s_mul_i32 s{t}, s{r.s_b}, {BLK_BYTES}")
    A(f"s_add_u32 s{r.s_srd}, s{r.s_ws}, s{t}")
    A(f"s_addc_u32 s{r.s_srd+1}, s{r.s_ws+1}, 0")
    A(f"s_mov_b32 s{r.s_srd+2}, {BLK_BYTES}")
    A(f"s_mov_b32 s{r.s_srd+3}, 0x20000")
    if getattr(r, "no_osrd", False): return
    A(f"s_mul_i32 s{t}, s{r.s_b}, {O_BLK}")
    A(f"s_add_u32 s{t}, s{t}, {O_OFF}")
    A(f"s_add_u32 s{r.s_osrd}, s{r.s_ws}, s{t}")
    A(f"s_addc_u32 s{r.s_osrd+1}, s{r.s_ws+1}, 0")
    A(f"s_mov_b32 s{r.s_osrd+2}, {O_BLK}")
    A(f"s_mov_b32 s{r.s_osrd+3}, 0x20000")

def emit_dma_setup(A, r, with_q):
    t0, t1, t2, t3 = r.t[:4]
    st, st2, st3, st4 = r.s_t
    A(f"v_lshrrev_b32 v{t0}, 5, v{r.lane}")
    A(f"v_and_b32 v{t1}, 31, v{r.lane}")
    A(f"v_lshlrev_b32 v{t2}, 2, v{t0}")
    A(f"v_xor_b32 v{t2}, v{t2}, v{t1}")
    A(f"v_lshlrev_b32 v{t2}, 4, v{t2}")
    A(f"v_lshl_add_u32 v{t2}, v{t0}, 12, v{t2}")
    A(f"v_xor_b32 v{t3}, v{t0}, v{t1}")
    A(f"v_lshlrev_b32 v{t3}, 4, v{t3}")
    A(f"v_lshl_add_u32 v{t3}, v{t0}, 12, v{t3}")
    if with_q:
        A(f"s_lshl_b32 s{r.s_chunk}, s{r.s_c}, 9")
        for i in range(3):
            lab = A.newlabel("Lq")
            A(f"s_add_u32 s{st}, s{r.s_w}, {8*i}")
            if i == 2:
                A(f"s_cmp_ge_u32 s{st}, 18\ns_cbranch_scc1 {lab}")
            A(f"s_cmp_ge_u32 s{st}, 9")
            A(f"s_cselect_b32 s{st2}, {KBLK - 9*KPAIR}, 0")
            A(f"s_mul_i32 s{st3}, s{st}, {KPAIR}")
            A(f"s_add_u32 s{st2}, s{st2}, s{st3}")
            A(f"s_add_u32 m0, s{st2}, {QOFF}")
            A(f"s_mul_i32 s{st3}, s{r.s_hp}, 36")
            A(f"s_lshl_b32 s{st}, s{st}, 1")
            A(f"s_add_u32 s{st3}, s{st3}, s{st}")
            A(f"s_lshl_b32 s{st3}, s{st3}, 12")
            A(f"s_add_u32 s{st3}, s{st3}, s{r.s_chunk}")
            A(f"buffer_load_dwordx4 v{t2}, s[{r.s_srd}:{r.s_srd+3}], s{st3} offen lds")
            A.label(lab)
    for i in range(5):
        if i < 4:
            A(f"s_add_u32 s{st}, s{r.s_w}, {8*i}")
        else:
            A(f"s_and_b32 s{st}, s{r.s_w}, 3\ns_add_u32 s{st}, s{st}, 32")
        A(f"s_cmp_ge_u32 s{st}, 18")
        A(f"s_cselect_b32 s{st2}, 18, 0")
        A(f"s_mov_b32 s{st3}, {KPAIR}\ns_cmov_b32 s{st3}, {VPAIR}")
        A(f"s_cselect_b32 s{st4}, {KBLK}, 0")
        A(f"s_mov_b32 s{r.s_lds[i]}, 576\ns_cmov_b32 s{r.s_lds[i]}, 1152")
        A(f"s_cselect_b64 vcc, -1, 0")
        A(f"s_sub_u32 s{st}, s{st}, s{st2}")
        A(f"s_mul_i32 s{st2}, s{r.s_hp}, 36")
        A(f"s_add_u32 s{r.s_lds[i]}, s{r.s_lds[i]}, s{st2}")
        A(f"s_lshl_b32 s{st2}, s{st}, 1")
        A(f"s_add_u32 s{r.s_lds[i]}, s{r.s_lds[i]}, s{st2}")
        A(f"s_lshl_b32 s{r.s_lds[i]}, s{r.s_lds[i]}, 12")
        A(f"v_cndmask_b32 v{r.vdma[i]}, v{t2}, v{t3}, vcc")
        A(f"v_add_u32 v{r.vdma[i]}, s{r.s_lds[i]}, v{r.vdma[i]}")
        A(f"s_cmp_ge_u32 s{st}, 9")
        A(f"s_cselect_b32 s{st2}, 9, 0")
        A(f"s_cselect_b32 s{r.s_lds[i]}, {HEADSZ}, 0")
        A(f"s_sub_u32 s{st}, s{st}, s{st2}")
        A(f"s_mul_i32 s{st}, s{st}, s{st3}")
        A(f"s_add_u32 s{r.s_lds[i]}, s{r.s_lds[i]}, s{st}")
        A(f"s_add_u32 s{r.s_lds[i]}, s{r.s_lds[i]}, s{st4}")

def emit_dma_segment(A, r, flags=""):
    A(f"s_lshl_b32 s{r.s_chunk}, s{r.s_seg}, 9")
    for i in range(5):
        A(f"s_add_u32 m0, s{r.s_slotw}, s{r.s_lds[i]}")
        A("s_nop 0")
        A(f"buffer_load_dwordx4 v{r.vdma[i]}, s[{r.s_srd}:{r.s_srd+3}], s{r.s_chunk} offen{flags} lds")
    A(f"s_add_u32 s{r.s_seg}, s{r.s_seg}, 1")
    A(f"s_and_b32 s{r.s_seg}, s{r.s_seg}, 7")
    A(f"s_add_u32 s{r.s_slotw}, s{r.s_slotw}, {SLOT}")
    A(f"s_cmp_eq_u32 s{r.s_slotw}, {NSLOT*SLOT}")
    A(f"s_cselect_b32 s{r.s_slotw}, 0, s{r.s_slotw}")

def emit_ones(A, r):
    t0, t1, t2 = r.t[:3]
    A(f"v_mov_b32 v{t0}, 0x3f803f80")
    A(f"v_lshlrev_b32 v{t1}, 2, v0")
    A(f"v_cmp_gt_u32 vcc, 192, v0")
    A("s_and_saveexec_b64 s[36:37], vcc")
    lab = A.newlabel("Lones")
    A(f"s_cbranch_execz {lab}")
    A(f"v_mov_b32 v{r.t[3]}, 0")
    for s in range(NSLOT):
        A(f"v_add_u32 v{t2}, {s*SLOT+ONES}, v{t1}")
        A(f"ds_write_b32 v{t2}, v{t0}")
        A(f"ds_write_b32 v{t2}, v{r.t[3]} offset:768")
    A.label(lab)
    A("s_mov_b64 exec, s[36:37]")

def emit_read_addrs(A, r):
    t0, t1, t2, t3, t4, t5 = r.t
    st = r.s_hbase
    lane = r.lane
    A(f"s_lshr_b32 s{st}, s{r.s_w}, 2")
    A(f"s_mul_i32 s{st}, s{st}, {HEADSZ}")
    A(f"v_lshrrev_b32 v{t0}, 2, v{lane}")
    A(f"v_and_b32 v{t0}, 3, v{t0}")
    A(f"v_lshrrev_b32 v{t1}, 5, v{lane}")
    A(f"v_lshl_add_u32 v{t1}, v{t1}, 3, v{t0}")
    A(f"v_lshrrev_b32 v{t2}, 1, v{t1}")
    A(f"v_mul_u32_u24 v{t2}, {KPAIR}, v{t2}")
    A(f"v_and_b32 v{t1}, 1, v{t1}")
    A(f"v_lshl_add_u32 v{t2}, v{t1}, 9, v{t2}")
    A(f"v_lshrrev_b32 v{t3}, 4, v{lane}")
    A(f"v_and_b32 v{t3}, 1, v{t3}")
    A(f"v_lshlrev_b32 v{t3}, 5, v{t3}")
    A(f"v_and_b32 v{t4}, 3, v{lane}")
    A(f"v_lshl_add_u32 v{t3}, v{t4}, 3, v{t3}")
    A(f"v_add_u32 v{t2}, v{t2}, v{t3}")
    A(f"v_lshlrev_b32 v{t1}, 6, v{t1}")
    A(f"v_add_u32 v{t2}, s{st}, v{t2}")
    A(f"v_add_u32 v{r.kE}, v{t2}, v{t1}")
    A(f"v_sub_u32 v{r.kO}, v{t2}, v{t1}")
    A(f"v_lshlrev_b32 v{t2}, 3, v{t1}")
    A(f"v_add_u32 v{t2}, {8*KPAIR}, v{t2}")
    A(f"v_add_u32 v{t2}, s{st}, v{t2}")
    A(f"v_add_u32 v{t2}, v{t2}, v{t3}")
    A(f"v_add_u32 v{t4}, v{t2}, v{t1}")
    A(f"v_sub_u32 v{t5}, v{t2}, v{t1}")
    A(f"v_add_u32 v{t3}, {ONES+128}, v{t3}")
    A(f"v_cmp_le_u32 vcc, 2, v{t0}")
    A("s_nop 1")
    A(f"v_cndmask_b32 v{r.tE}, v{t4}, v{t3}, vcc")
    A(f"v_cndmask_b32 v{r.tO}, v{t5}, v{t3}, vcc")
    if OPT.get("zrows"):
        A(f"v_lshlrev_b32 v{t2}, 6, v{t0}")
        A(f"v_add_u32 v{t3}, v{t3}, v{t2}")
        A(f"v_add_u32 v{t3}, {768-128-64*0}, v{t3}")
        A(f"v_cmp_eq_u32 vcc, 3, v{t0}")
        A(f"v_cmp_le_u32 s[38:39], 32, v{lane}")
        A("s_or_b64 vcc, vcc, s[38:39]")
        A("s_nop 1")
        A(f"v_cndmask_b32 v{r.tE}, v{r.tE}, v{t3}, vcc")
        A(f"v_cndmask_b32 v{r.tO}, v{r.tO}, v{t3}, vcc")
        A(f"v_lshrrev_b32 v{t2}, 2, v{lane}")
        A(f"v_lshrrev_b32 v{t3}, 5, v{lane}")
        A(f"v_lshlrev_b32 v{t3}, 2, v{t3}")
        A(f"v_and_b32 v{t2}, 3, v{t2}")
        A(f"v_or_b32 v{t2}, v{t2}, v{t3}")
        A(f"v_subrev_u32 v{t3}, 128, v{r.tO}")
        A(f"v_cmp_eq_u32 vcc, 3, v{t2}")
        A("s_nop 1")
        A(f"v_cndmask_b32 v{r.tO}, v{r.tO}, v{t3}, vcc")
    A(f"v_and_b32 v{t0}, 31, v{lane}")
    A(f"v_lshrrev_b32 v{t1}, 2, v{t0}")
    A(f"v_and_b32 v{t1}, 1, v{t1}")
    A(f"v_lshlrev_b32 v{t1}, 3, v{t1}")
    A(f"v_lshrrev_b32 v{t2}, 3, v{t0}")
    A(f"v_and_b32 v{t2}, 1, v{t2}")
    A(f"v_lshl_add_u32 v{t1}, v{t2}, 2, v{t1}")
    A(f"v_and_b32 v{t2}, 3, v{t0}")
    A(f"v_add_u32 v{t1}, v{t1}, v{t2}")
    A(f"v_cmp_gt_u32 vcc, 16, v{t0}")
    A("s_nop 1")
    A(f"v_cndmask_b32 v{t1}, v{t0}, v{t1}, vcc")
    A(f"v_lshrrev_b32 v{t2}, 1, v{t1}")
    A(f"v_mul_u32_u24 v{t2}, {VPAIR}, v{t2}")
    A(f"v_and_b32 v{t3}, 1, v{t1}")
    A(f"v_lshl_add_u32 v{t2}, v{t3}, 9, v{t2}")
    A(f"v_lshrrev_b32 v{t1}, 5, v{lane}")
    A(f"v_xor_b32 v{t3}, v{t3}, v{t1}")
    A(f"v_lshl_add_u32 v{t2}, v{t3}, 4, v{t2}")
    A(f"v_add_u32 v{t2}, {KBLK}, v{t2}")
    A(f"v_add_u32 v{r.vA}, s{st}, v{t2}")
    A(f"v_lshlrev_b32 v{t1}, 4, v{t1}")
    A(f"v_add_u32 v{t2}, {ONES+32}, v{t1}")
    A(f"v_cmp_le_u32 vcc, 18, v{t0}")
    A("s_nop 1")
    A(f"v_cndmask_b32 v{r.vA}, v{r.vA}, v{t2}, vcc")
    A(f"v_add_u32 v{t2}, 32, v{t2}")
    A(f"v_subrev_u32 v{t3}, 20, v{t0}")
    A(f"v_cmp_gt_u32 vcc, 8, v{t3}")
    A("s_nop 1")
    A(f"v_cndmask_b32 v{r.vA}, v{r.vA}, v{t2}, vcc")
    if OPT.get("zrows"):
        A(f"v_cmp_lt_u32 vcc, 18, v{t0}")
        A(f"v_cmp_ne_u32 s[38:39], 22, v{t0}")
        A("s_and_b64 vcc, vcc, s[38:39]")
        A(f"v_add_u32 v{t2}, {768+32}, v{r.vA}")
        A(f"v_add_u32 v{t1}, {768+160}, v{r.vA}")
        A(f"v_subrev_u32 v{t3}, 20, v{t0}")
        A(f"v_cmp_gt_u32 s[38:39], 8, v{t3}")
        A("s_nop 1")
        A(f"v_cndmask_b32 v{t2}, v{t1}, v{t2}, s[38:39]")
        A(f"v_cndmask_b32 v{r.vA}, v{r.vA}, v{t2}, vcc")
    if not hasattr(r, "qE"): A(f"v_mov_b32 v{r.idx}, 0xdddddddd")

def emit_q_frags(A, r):
    t0, t1, t2, t3, t4, t5 = r.t
    st, st2, st3, st4 = r.s_t
    A(f"s_lshr_b32 s{st2}, s{r.s_w}, 2")
    A(f"s_mul_i32 s{st2}, s{st2}, {KBLK}")
    A(f"s_add_u32 s{st2}, s{st2}, {QOFF}")
    A(f"s_sub_u32 s{st2}, s{st2}, s{r.s_hbase}")
    A(f"s_and_b32 s{st3}, s{r.s_w}, 3")
    A(f"s_lshl_b32 s{st3}, s{st3}, 7")
    A(f"s_add_u32 s{st2}, s{st2}, s{st3}")
    A(f"v_add_u32 v{t0}, s{st2}, v{r.kE}")
    A(f"v_add_u32 v{t1}, s{st2}, v{r.kO}")
    A(f"v_add_u32 v{t2}, s{st2}, v{getattr(r, 'qE', t4)}")
    A(f"v_add_u32 v{t3}, s{st2}, v{getattr(r, 'qO', t5)}")
    A(f"ds_read_b64_tr_b16 v[{r.Qm[0]}:{r.Qm[0]+1}], v{t0}")
    A(f"ds_read_b64_tr_b16 v[{r.Qm[0]+2}:{r.Qm[0]+3}], v{t0} offset:{2*KPAIR}")
    A(f"ds_read_b64_tr_b16 v[{r.Qm[1]}:{r.Qm[1]+1}], v{t1} offset:64")
    A(f"ds_read_b64_tr_b16 v[{r.Qm[1]+2}:{r.Qm[1]+3}], v{t1} offset:{64+2*KPAIR}")
    A(f"ds_read_b64_tr_b16 v[{r.Qt[0]}:{r.Qt[0]+1}], v{t2}")
    A(f"ds_read_b64_tr_b16 v[{r.Qt[1]}:{r.Qt[1]+1}], v{t3} offset:64")

def k_reads(A, r, t, p):
    if OPT.get("nolds") and OPT.get("inloop"): return
    if OPT.get("halflds") and OPT.get("inloop") and t % 2: return
    km = r.kE if t % 2 == 0 else r.kO
    kt = r.tE if t % 2 == 0 else r.tO
    A(f"ds_read_b64_tr_b16 v[{r.Km[p]}:{r.Km[p]+1}], v{km} offset:{64*t}")
    A(f"ds_read_b64_tr_b16 v[{r.Km[p]+2}:{r.Km[p]+3}], v{km} offset:{64*t+2*KPAIR}")
    A(f"ds_read_b64_tr_b16 v[{r.Kt[p]}:{r.Kt[p]+1}], v{kt} offset:{64*t}")

def v_reads(A, r, t, p):
    if OPT.get("nolds") and OPT.get("inloop"): return
    if OPT.get("halflds") and OPT.get("inloop") and t % 2: return
    A(f"ds_read_b128 v[{r.V1[p]}:{r.V1[p]+3}], v{r.vA} offset:{64*t}")
    A(f"ds_read_b128 v[{r.V2[p]}:{r.V2[p]+3}], v{r.vA} offset:{64*t+32}")

def mf_main(A, r, dst, p, u):
    A(f"v_mfma_f32_32x32x16_bf16 v[{dst}:{dst+15}], v[{r.Km[p]}:{r.Km[p]+3}], v[{r.Qm[u]}:{r.Qm[u]+3}], 0")
def mf_tail(A, r, dst, p, u):
    A(f"v_mfma_f32_32x32x8_bf16 v[{dst}:{dst+15}], v[{r.Kt[p]}:{r.Kt[p]+1}], v[{r.Qt[u]}:{r.Qt[u]+1}], v[{dst}:{dst+15}]")
def mf_pv(A, r, u, va, src):
    if OPT.get("agpr") and OPT.get("inloop"):
        A(f"v_smfmac_f32_32x32x32_bf16 a[{16*u}:{16*u+15}], v[{va}:{va+3}], v[{src}:{src+7}], v{r.idx}")
        return
    A(f"v_smfmac_f32_32x32x32_bf16 v[{r.O[u]}:{r.O[u]+15}], v[{va}:{va+3}], v[{src}:{src+7}], v{r.idx}")
def exps(A, base, n):
    for i in range(n):
        A(f"v_exp_f32 v{base+i}, v{base+i}")

def emit_first_max(A, r):
    t0, t1, t2, t3 = r.t[:4]
    for u in range(2):
        A(f"v_mov_b32 v{r.Qt[u]+1}, 0")
    A("s_mov_b64 s[36:37], exec")
    A("s_mov_b32 exec_lo, 0")
    for u in range(2):
        A(f"v_mov_b32 v{r.Qt[u]}, 0")
    A("s_mov_b64 exec, s[36:37]")
    A("s_nop 4")
    for u in range(2):
        mf_main(A, r, r.S[u], 0, u)
        mf_tail(A, r, r.S[u], 0, u)
    A("s_nop 15")
    for u in range(2):
        s = r.S[u]
        m = r.t[u]
        A(f"v_max3_f32 v{m}, v{s}, v{s+1}, v{s+2}")
        for k in range(3, 15, 2):
            A(f"v_max3_f32 v{m}, v{m}, v{s+k}, v{s+k+1}")
        A(f"v_max_f32 v{m}, v{m}, v{s+15}")
    A(f"v_mov_b32 v{t2}, v{t0}")
    A(f"v_mov_b32 v{t3}, v{t1}")
    A("s_nop 1")
    A(f"v_permlane32_swap_b32 v{t0}, v{t2}")
    A(f"v_permlane32_swap_b32 v{t1}, v{t3}")
    A("s_nop 1")
    A(f"v_max_f32 v{t0}, v{t0}, v{t2}")
    A(f"v_max_f32 v{t1}, v{t1}, v{t3}")
    A("s_mov_b64 s[36:37], exec")
    A("s_mov_b32 exec_hi, 0")
    A(f"v_cvt_pk_bf16_f32 v{r.Qt[0]+1}, -v{t0}, 0")
    A(f"v_cvt_pk_bf16_f32 v{r.Qt[1]+1}, -v{t1}, 0")
    A("s_mov_b64 exec, s[36:37]")

def emit_attn_prologue(A, r):
    k_reads(A, r, 0, 0)
    v_reads(A, r, 0, 0)
    for u in range(2):
        for i in range(16):
            A(f"v_mov_b32 v{r.O[u]+i}, 0")
    for i in range(8, 16):
        A(f"v_mov_b32 v{r.S[3]+i}, 0")
    for i in range(4):
        A(f"v_mov_b32 v{r.V2[1]+i}, 0")
    A("s_waitcnt lgkmcnt(0)")
    emit_first_max(A, r)
    A("s_nop 4")
    mf_main(A, r, r.S[0], 0, 0)
    mf_tail(A, r, r.S[0], 0, 0)
    A("s_nop 15")

def emit_step(A, r, n, hooks):
    t = n // 2; u = n % 2
    cur = r.S[n % 4]; nxt = r.S[(n + 1) % 4]; prv = r.S[(n - 1) % 4]
    pk = ((n + 1) // 2) % 2
    sched = OPT.get("sched", 0)
    for h in hooks.get((n, "pre"), []): h()
    def reads():
        if u == 0:
            if t == 7:
                for h in hooks.get((n, "kaddr"), []): h()
            k_reads(A, r, (t + 1) % 8, (t + 1) % 2)
        else:
            if t == 7:
                for h in hooks.get((n, "vaddr"), []): h()
            v_reads(A, r, (t + 1) % 8, (t + 1) % 2)
    nolds = OPT.get("nolds")
    def w0():
        if u == 1 and not nolds: A("s_waitcnt lgkmcnt(0)")
    def w4():
        if u == 0 and not nolds: A("s_waitcnt lgkmcnt(4)" if not OPT.get("halflds") else "s_waitcnt lgkmcnt(0)")
    def mid():
        for h in hooks.get((n, "mid"), []): h()
    M1 = lambda: mf_main(A, r, nxt, pk, (n + 1) % 2)
    M2 = lambda: mf_tail(A, r, nxt, pk, (n + 1) % 2)
    P2 = lambda: mf_pv(A, r, (n - 1) % 2, r.V2[((n - 1) // 2) % 2], prv + 8)
    P1 = lambda: mf_pv(A, r, u, r.V1[t % 2], cur)
    E = lambda a, k: exps(A, cur + a, k)
    if OPT.get("nomfma"):
        M1 = M2 = P1 = P2 = lambda: None
    if OPT.get("nomain"): M1 = lambda: None
    if OPT.get("notail"): M2 = lambda: None
    if OPT.get("nopv"): P1 = P2 = lambda: None
    if OPT.get("noexp"):
        E = lambda a, k: None
    if sched == 0:
        w0(); M1(); reads(); E(0, 4); M2(); E(4, 4); P2(); mid(); E(8, 4); w4(); P1(); E(12, 4)
    elif sched == 1:
        w0(); M1(); reads(); E(0, 3); M2(); E(3, 5); P2(); mid(); E(8, 4); w4(); P1(); E(12, 4)
    elif sched == 2:
        w0(); M1(); E(0, 4); M2(); reads(); E(4, 4); P2(); mid(); E(8, 4); P1() if u == 1 else (A("s_waitcnt lgkmcnt(3)") if not nolds else None, P1()); E(12, 4)
    elif sched == 3:
        w0(); M1(); P2(); reads(); E(0, 8); mid(); M2(); E(8, 2); w4(); P1(); E(10, 6)
    elif sched == 7:
        def kv1():
            if t == 7:
                for h in hooks.get((n, "kaddr"), []): h()
                for h in hooks.get((15, "vaddr"), []): h()
            k_reads(A, r, (t + 1) % 8, (t + 1) % 2)
            A(f"ds_read_b128 v[{r.V1[(t+1)%2]}:{r.V1[(t+1)%2]+3}], v{r.vA} offset:{64*((t+1)%8)}")
        def v2():
            A(f"ds_read_b128 v[{r.V2[(t+1)%2]}:{r.V2[(t+1)%2]+3}], v{r.vA} offset:{64*((t+1)%8)+32}")
        if u == 0:
            M1(); kv1(); E(0, 4); M2(); E(4, 4); P2(); v2(); mid(); E(8, 4); P1(); E(12, 4)
        else:
            w0(); M1(); E(0, 4); M2(); E(4, 4); P2(); mid(); E(8, 4); P1(); E(12, 4)
    elif sched == 5:
        w0(); M1(); reads(); E(0, 4); P2(); mid(); E(4, 4); M2(); E(8, 4); w4(); P1(); E(12, 4)
    elif sched == 6:
        w0(); M1(); reads(); E(0, 4); mf_tail(A, r, r.S[(n + 2) % 4], pk, (n + 1) % 2); E(4, 4); P2(); mid(); E(8, 4); w4(); P1(); E(12, 4)
    elif sched == 4:
        w0(); M1(); reads(); E(0, 5); M2(); E(5, 3); P2(); mid(); E(8, 5); w4(); P1(); E(13, 3)

def emit_attn_loop(A, r, name, nseg=8, dma_flags=""):
    A(f"s_mov_b32 s{r.s_it}, 0")
    A(f"s_mov_b32 s{r.s_rslot}, 0")
    if OPT.get("prio"):
        A(f"s_cmp_ge_u32 s{r.s_w}, 4\ns_cbranch_scc0 {name}_np\ns_setprio 1\n{name}_np:")
    A(".p2align 6")
    A.label(f"{name}_loop")
    OPT["inloop"] = True
    hooks = {}
    def dma_part():
        lab = A.newlabel("Lnodma")
        A(f"s_cmp_ge_u32 s{r.s_it}, {nseg-2}")
        A(f"s_cbranch_scc1 {lab}")
        if not OPT.get("nodma"): emit_dma_segment(A, r, dma_flags)
        A.label(lab)
    def bar():
        if not OPT.get("extdma"): A("s_waitcnt vmcnt(0)")
        if not OPT.get("nobar"): A("s_barrier")
        if OPT.get("extdma"):
            pass
        elif OPT.get("stag"):
            lab = A.newlabel("Lstag")
            A(f"s_cmp_ge_u32 s{r.s_w}, 4")
            A(f"s_cbranch_scc1 {lab}")
            dma_part()
            A.label(lab)
        else:
            dma_part()
        A(f"s_add_u32 s{r.s_rslot}, s{r.s_rslot}, 1")
        A(f"s_cmp_eq_u32 s{r.s_rslot}, {NSLOT}")
        A(f"s_mov_b32 s{r.s_delta}, {SLOT}\ns_cmov_b32 s{r.s_delta}, {-(NSLOT-1)*SLOT & 0xffffffff}")
        A(f"s_cselect_b32 s{r.s_rslot}, 0, s{r.s_rslot}")
    def dma_late():
        lab = A.newlabel("Lstag2")
        A(f"s_cmp_lt_u32 s{r.s_w}, 4")
        A(f"s_cbranch_scc1 {lab}")
        dma_part()
        A.label(lab)
    def kaddr():
        for x in (r.kE, r.kO, r.tE, r.tO):
            A(f"v_add_u32 v{x}, s{r.s_delta}, v{x}")
    def vaddr():
        A(f"v_add_u32 v{r.vA}, s{r.s_delta}, v{r.vA}")
    bs = OPT.get("barstep", 12)
    if bs == 14: hooks[(14, "pre")] = [bar]
    else: hooks[(bs, "mid")] = [bar]
    if OPT.get("stag") and not OPT.get("extdma"):
        hooks[(12 + OPT["stag"], "mid")] = [dma_late]
    hooks[(14, "kaddr")] = [kaddr]
    hooks[(15, "vaddr")] = [vaddr]
    if OPT.get("hook_kv"):
        hooks.setdefault((OPT["hook_kv"][0], "mid"), []).append(OPT["hook_kv"][1])
    pr = OPT.get("pphase", 0)
    if pr:
        if pr == 1: sched_p = {13: 3, 1: 2, 5: 1, 9: 0}
        elif pr == 2: sched_p = {13: 3, 2: 2, 7: 1, 12: 0}
        elif pr == 3: sched_p = {13: 3, 3: 2, 8: 1, 11: 0}
        elif pr == 4: sched_p = {14: 3, 2: 2, 6: 1, 10: 0}
        elif pr == 5: sched_p = {14: 3, 3: 2, 8: 1, 12: 0}
        elif pr == 6: sched_p = {14: 1, 6: 0}
        for k, v in sched_p.items():
            hooks.setdefault((k, "pre"), []).append(lambda v=v: A(f"s_setprio {v}"))
    for n in range(16):
        emit_step(A, r, n, hooks)
    if OPT.get("tracer") is not None: OPT["tracer"].mark_dyn(8, r.s_it)
    if OPT.get("itstamp"):
        A("s_memtime s[54:55]\ns_memrealtime s[56:57]\ns_waitcnt lgkmcnt(0)")
        A(f"s_lshl_b32 s58, s{r.s_it}, 1")
        A(f"s_mov_b32 m0, s58")
        A(f"v_writelane_b32 v{r.t[5]}, s54, m0")
        A("s_add_u32 m0, m0, 1")
        A(f"v_writelane_b32 v{r.t[5]}, s56, m0")
    A(f"s_add_u32 s{r.s_it}, s{r.s_it}, 1")
    A(f"s_cmp_lt_u32 s{r.s_it}, {nseg}")
    A(f"s_cbranch_scc1 {name}_loop")
    OPT["inloop"] = False
    A("s_nop 1")
    mf_pv(A, r, 1, r.V2[1], r.S[3] + 8)
    A("s_nop 15")

def emit_attn_store(A, r, flags=""):
    t0, t1, t2, t3, t4, t5 = r.t
    st, st2 = r.s_t[:2]
    A(f"s_lshl_b32 s{st}, s{r.s_c}, 8")
    A(f"s_and_b32 s{st2}, s{r.s_w}, 3")
    A(f"s_lshl_b32 s{st2}, s{st2}, 6")
    A(f"s_add_u32 s{st}, s{st}, s{st2}")
    A(f"s_mul_i32 s{st}, s{st}, 1152")
    A(f"s_lshr_b32 s{st2}, s{r.s_w}, 2")
    A(f"s_lshl_b32 s{r.s_t[2]}, s{r.s_hp}, 1")
    A(f"s_add_u32 s{st2}, s{st2}, s{r.s_t[2]}")
    A(f"s_mul_i32 s{st2}, s{st2}, 36")
    A(f"s_add_u32 s{st}, s{st}, s{st2}")
    A(f"v_and_b32 v{t0}, 31, v{r.lane}")
    A(f"v_mul_u32_u24 v{t0}, 1152, v{t0}")
    A(f"v_lshrrev_b32 v{t1}, 5, v{r.lane}")
    A(f"v_lshl_add_u32 v{t0}, v{t1}, 4, v{t0}")
    for u in range(2):
        o = r.O[u]
        A(f"v_rcp_f32 v{t1}, v{o+10}")
        A("s_nop 0")
        for i in range(10):
            A(f"v_mul_f32 v{o+i}, v{o+i}, v{t1}")
        pk = r.S[u]
        for i in range(5):
            A(f"v_cvt_pk_bf16_f32 v{pk+i}, v{o+2*i}, v{o+2*i+1}")
        if u == 1:
            A(f"s_add_u32 s{st}, s{st}, {32*1152}")
        A(f"buffer_store_dwordx4 v[{pk}:{pk+3}], v{t0}, s[{r.s_osrd}:{r.s_osrd+3}], s{st} offen{flags}")
        A("s_mov_b64 s[36:37], exec")
        A("s_mov_b32 exec_hi, 0")
        A(f"buffer_store_dword v{pk+4}, v{t0}, s[{r.s_osrd}:{r.s_osrd+3}], s{st} offen offset:32{flags}")
        A("s_mov_b64 exec, s[36:37]")

def gen_attn_standalone(name="attn_kernel", stamp=False, rt=None):
    A = Asm(); r = R(); V = RegAlloc(1, 256, "v")
    alloc_attn_regs(V, r); alloc_sregs(r)
    A(f".globl {name}\n.p2align 8\n.type {name},@function")
    A.label(name)
    A(f"s_cmp_ge_u32 s2, 256\ns_cbranch_scc1 {name}_end")
    A(f"s_load_dwordx2 s[{r.s_ws}:{r.s_ws+1}], s[0:1], 64")
    if stamp:
        A("s_load_dwordx2 s[44:45], s[0:1], 48")
        A("s_memtime s[40:41]")
        A("s_memrealtime s[50:51]")
    S = Stamper(A, rt, enabled=rt is not None); S.start()
    emit_ids(A, r)
    A("s_waitcnt lgkmcnt(0)")
    emit_srds(A, r)
    emit_dma_setup(A, r, True)
    A(f"s_mov_b32 s{r.s_slotw}, 0")
    A(f"s_mov_b32 s{r.s_seg}, s{r.s_c}")
    emit_dma_segment(A, r)
    emit_dma_segment(A, r)
    emit_ones(A, r)
    emit_read_addrs(A, r)
    A("s_waitcnt vmcnt(5) lgkmcnt(0)")
    A("s_barrier")
    emit_q_frags(A, r)
    S.mark(2)
    emit_attn_prologue(A, r)
    S.mark(3)
    if stamp:
        A("s_memtime s[42:43]")
    emit_attn_loop(A, r, name)
    S.mark(4)
    if stamp:
        A("s_memtime s[46:47]")
    if OPT.get("tracer") is not None: OPT["tracer"].mark_dyn(8, r.s_it)
    if OPT.get("itstamp"):
        A(f"s_lshl_b32 s38, s2, 3\ns_add_u32 s38, s38, s{r.s_w}\ns_lshl_b32 s38, s38, 6\ns_add_u32 s38, s38, 65536")
        A(f"v_lshl_add_u32 v{r.t[0]}, v{r.lane}, 2, s38")
        A(f"v_cmp_gt_u32 vcc, 16, v{r.lane}")
        A("s_and_saveexec_b64 s[36:37], vcc")
        A(f"global_store_dword v{r.t[0]}, v{r.t[5]}, s[44:45]")
        A("s_mov_b64 exec, s[36:37]")
    emit_attn_store(A, r)
    if stamp:
        A("s_waitcnt vmcnt(0) lgkmcnt(0)")
        A("s_memtime s[48:49]")
        A("s_memrealtime s[52:53]")
        A("s_waitcnt lgkmcnt(0)")
        A("s_sub_u32 s52, s52, s50")
        A("s_sub_u32 s42, s42, s40\ns_sub_u32 s46, s46, s40\ns_sub_u32 s48, s48, s40")
        A(f"s_lshl_b32 s38, s2, 3\ns_add_u32 s38, s38, s{r.s_w}\ns_lshl_b32 s38, s38, 4")
        A(f"v_mov_b32 v{r.t[0]}, s38")
        A(f"v_mov_b32 v{r.S[0]}, s42\nv_mov_b32 v{r.S[0]+1}, s46\nv_mov_b32 v{r.S[0]+2}, s48\nv_mov_b32 v{r.S[0]+3}, s52")
        A(f"v_cmp_eq_u32 vcc, 0, v{r.lane}")
        A("s_and_saveexec_b64 s[36:37], vcc")
        A(f"global_store_dwordx4 v{r.t[0]}, v[{r.S[0]}:{r.S[0]+3}], s[44:45]")
    S.dump(r.s_ws, r.t[0], r.S[0])
    A.label(f"{name}_end")
    A("s_endpgm")
    return A.text(), V.next

if __name__ == "__main__":
    txt, nv = gen_attn_standalone(stamp=True)
    print("vgprs", nv)
    asm = '.amdgcn_target "amdgcn-amd-amdhsa--gfx950"\n.text\n' + txt + '.section .rodata,"a"\n' + kernel_desc("attn_kernel", nv)
    open("attn_test.s", "w").write(asm)
```

```python
from emit import *
import attn, qkv, tail
from attn import R, ROWB, BLK_BYTES, O_OFF, O_BLK, KPAIR, VPAIR, KBLK, VBLK, HEADSZ, ONES, ZEROS, SLOT, NSLOT, QOFF
from qkv import XST, WST, STAGE, NST, NCH, CSCALE, f32bits

OPT = {}
NONCE_LDS = max(qkv.LDS_GEMM, attn.LDS_ATTN, tail.LDS_END)
LDS_FUSED = NONCE_LDS + 256
FLAG_OFF = 0x2000000

def emit_loader_gemm_setup(A, r, g, L):
    t0, t1, t2, t3, t4, t5 = r.t
    st, st2, st3, st4 = r.s_t
    lane = r.lane
    A(f"v_lshrrev_b32 v{t0}, 3, v{lane}")
    A(f"v_and_b32 v{t1}, 7, v{lane}")
    A(f"v_lshrrev_b32 v{t2}, 4, v{lane}")
    A(f"v_and_b32 v{t2}, 1, v{t2}")
    A(f"s_lshl_b32 s{st}, s{r.s_c}, 8")
    A(f"s_lshl_b32 s{st2}, s{L.s_lw}, 6")
    A(f"s_add_u32 s{st}, s{st}, s{st2}")
    A(f"v_add_u32 v{t0}, s{st}, v{t0}")
    A(f"v_mul_u32_u24 v{t0}, 1152, v{t0}")
    for i in range(4):
        A(f"v_or_b32 v{t3}, {i<<1}, v{t2}")
        A(f"v_xor_b32 v{t3}, v{t3}, v{t1}")
        A(f"v_lshl_add_u32 v{L.vx[i]}, v{t3}, 4, v{t0}")
        if i: A(f"v_add_u32 v{L.vx[i]}, {i*8*1152}, v{L.vx[i]}")
    A(f"v_lshrrev_b32 v{t0}, 4, v{lane}")
    A(f"s_lshl_b32 s{st}, s{L.s_lw}, 4")
    A(f"v_add_u32 v{t5}, s{st}, v{t0}")
    A(f"v_mul_u32_u24 v{t5}, 3456, v{t5}")
    A(f"s_mul_i32 s{st}, s{r.s_hp}, 72")
    A(f"v_add_u32 v{t5}, s{st}, v{t5}")
    for var in range(2):
        A(f"v_or_b32 v{t1}, {4*var}, v{t0}")
        A(f"v_lshlrev_b32 v{t1}, 1, v{t1}")
        A(f"v_and_b32 v{t2}, 15, v{lane}")
        A(f"v_xor_b32 v{t2}, v{t2}, v{t1}")
        A(f"v_lshrrev_b32 v{t3}, 2, v{t2}")
        A(f"v_and_b32 v{t4}, 3, v{t2}")
        A(f"v_min_u32 v{t1}, 2, v{t4}")
        A(f"v_cmp_eq_u32 vcc, 3, v{t3}")
        A("s_nop 1")
        A(f"v_cndmask_b32 v{t3}, v{t3}, v{t1}, vcc")
        A(f"v_lshlrev_b32 v{t4}, 4, v{t4}")
        A(f"v_cndmask_b32 v{t4}, v{t4}, 56, vcc")
        A(f"v_mul_u32_u24 v{t3}, 1152, v{t3}")
        A(f"v_add3_u32 v{L.vw[var]}, v{t3}, v{t4}, v{t5}")
    A(f"s_lshl_b32 s{g.s_mx}, s{L.s_lw}, 13")
    A(f"s_lshl_b32 s{g.s_mw}, s{L.s_lw}, 12")
    A(f"s_add_u32 s{g.s_mw}, s{g.s_mw}, {XST}")

def emit_loader_gemm_dma(A, r, g, L):
    st, st2 = r.s_t[:2]
    A(f"s_lshl_b32 s{g.s_xoff}, s{g.s_kc}, 7")
    A(f"s_mul_i32 s{g.s_woff}, s{g.s_kc}, {64*3456}")
    for i in range(4):
        A(f"s_add_u32 s{st}, s{g.s_stw}, s{g.s_mw}")
        A(f"s_add_u32 m0, s{st}, {1024*i}")
        A(f"s_add_u32 s{st2}, s{g.s_woff}, {4*3456*i}")
        A(f"buffer_load_dwordx4 v{L.vw[i>>1]}, s[{g.s_wsrd}:{g.s_wsrd+3}], s{st2} offen lds")
    for i in range(8):
        A(f"s_add_u32 s{st}, s{g.s_stw}, s{g.s_mx}")
        A(f"s_add_u32 m0, s{st}, {1024*i}")
        A(f"s_add_u32 s{st2}, s{g.s_xoff}, {32*1152*(i>>2)}")
        A(f"buffer_load_dwordx4 v{L.vx[i&3]}, s[{g.s_xsrd}:{g.s_xsrd+3}], s{st2} offen lds")
    A(f"s_add_u32 s{g.s_kc}, s{g.s_kc}, 1")
    A(f"s_add_u32 s{g.s_stw}, s{g.s_stw}, {STAGE}")
    A(f"s_cmp_eq_u32 s{g.s_stw}, {NST*STAGE}")
    A(f"s_cselect_b32 s{g.s_stw}, 0, s{g.s_stw}")

def emit_compute_gemm_setup(A, r, g):
    t0, t1, t2, t3, t4, t5 = r.t
    st, st2, st3, st4 = r.s_t
    lane = r.lane
    A(f"v_and_b32 v{t0}, 15, v{lane}")
    A(f"v_lshrrev_b32 v{t1}, 2, v{t0}")
    A(f"v_and_b32 v{t2}, 3, v{t0}")
    A(f"v_lshl_add_u32 v{t2}, v{t1}, 3, v{t2}")
    A(f"v_lshrrev_b32 v{t3}, 1, v{t0}")
    A(f"v_and_b32 v{t3}, 1, v{t3}")
    A(f"v_lshl_or_b32 v{t3}, v{t1}, 1, v{t3}")
    A(f"v_lshrrev_b32 v{t4}, 4, v{lane}")
    A(f"v_xor_b32 v{t3}, v{t3}, v{t4}")
    A(f"s_and_b32 s{st}, s{r.s_w}, 3")
    A(f"s_lshl_b32 s{st}, s{st}, 13")
    A(f"v_lshlrev_b32 v{t2}, 7, v{t2}")
    A(f"v_add_u32 v{t2}, s{st}, v{t2}")
    A(f"v_lshl_add_u32 v{g.aA[0]}, v{t3}, 4, v{t2}")
    A(f"v_xor_b32 v{t3}, 4, v{t3}")
    A(f"v_lshl_add_u32 v{g.aA[1]}, v{t3}, 4, v{t2}")
    A(f"v_lshrrev_b32 v{t0}, 4, v{lane}")
    A(f"v_lshrrev_b32 v{t1}, 2, v{lane}")
    A(f"v_and_b32 v{t1}, 3, v{t1}")
    A(f"v_lshl_add_u32 v{t2}, v{t0}, 3, v{t1}")
    A(f"v_lshlrev_b32 v{t2}, 8, v{t2}")
    A(f"v_add_u32 v{t2}, {XST}, v{t2}")
    A(f"v_and_b32 v{t0}, 1, v{t0}")
    A(f"v_lshl_or_b32 v{t0}, v{t0}, 2, v{t1}")
    A(f"v_and_b32 v{t3}, 3, v{lane}")
    A(f"v_lshlrev_b32 v{t4}, 3, v{t3}")
    A(f"v_add_u32 v{t4}, v{t4}, v{t2}")
    A(f"s_lshr_b32 s{st}, s{r.s_w}, 2")
    A(f"s_lshl_b32 s{st}, s{st}, 2")
    for t in range(4):
        A(f"s_add_u32 s{st2}, s{st}, {t}")
        A(f"v_xor_b32 v{t5}, s{st2}, v{t0}")
        A(f"v_lshl_add_u32 v{g.aB[t]}, v{t5}, 5, v{t4}")
    A(f"v_add_u32 v{t3}, 12, v{t3}")
    A(f"v_lshlrev_b32 v{t0}, 1, v{t0}")
    A(f"v_xor_b32 v{t3}, v{t3}, v{t0}")
    A(f"v_lshl_add_u32 v{t3}, v{t3}, 4, v{t2}")
    A(f"v_add_u32 v{t3}, 8, v{t3}")
    A(f"s_cmp_ge_u32 s{r.s_w}, 4")
    A(f"s_cselect_b64 vcc, -1, 0")
    A("s_nop 1")
    A(f"v_cndmask_b32 v{g.aB[2]}, v{g.aB[2]}, v{t3}, vcc")

def g_read_list(g, s, ks, nt):
    out = []
    for i in range(4):
        p, T = i // 2, i % 2
        out.append(f"ds_read_b128 v[{g.FA[s][i]}:{g.FA[s][i]+3}], v{g.aA[ks]} offset:{4096*p+512*T}")
    for t in range(nt):
        out.append(f"ds_read_b64_tr_b16 v[{g.FB[s][t]}:{g.FB[s][t]+1}], v{g.aB[t]} offset:{8192*ks}")
        out.append(f"ds_read_b64_tr_b16 v[{g.FB[s][t]+2}:{g.FB[s][t]+3}], v{g.aB[t]} offset:{8192*ks+1024}")
    return out
def g_mfma_list(g, s, nt):
    out = []
    for t in range(nt):
        for i in range(4):
            out.append(f"v_mfma_f32_16x16x32_bf16 v[{g.acc[i][t]}:{g.acc[i][t]+3}], v[{g.FA[s][i]}:{g.FA[s][i]+3}], v[{g.FB[s][t]}:{g.FB[s][t]+3}], v[{g.acc[i][t]}:{g.acc[i][t]+3}]")
    return out
def interleave(A, mf, rd, pre=()):
    extra = list(pre) + list(rd)
    k = 0
    for m in mf:
        A(m)
        if k < len(extra):
            A(extra[k]); k += 1
    while k < len(extra):
        A(extra[k]); k += 1

def emit_compute_gemm(A, r, g, name, S):
    A(f"s_mov_b32 s{g.s_rst}, 0")
    for i in range(4):
        for t in range(4):
            for j in range(4): A(f"v_mov_b32 v{g.acc[i][t]+j}, 0")
    if getattr(g, "pf_pre", None): emit_prefetch_batch(A, r, g, g.pfreg, g.pf_pre)
    g.T.mark(1)
    A("s_barrier")
    S.mark(2)
    g.T.mark(2)
    if g.pf2: emit_prefetch_batch(A, r, g, g.pfreg, g.pf2)
    A(f"s_cmp_ge_u32 s{r.s_w}, 4")
    A(f"s_cbranch_scc1 {name}_g1")
    for nh in range(2):
        nt = 4 if nh == 0 else 3
        if nh == 1:
            A.label(f"{name}_g1")
            if OPT.get("gprio"): A(f"s_setprio {OPT['gprio']}")
        for x in g_read_list(g, 0, 0, nt): A(x)
        A(f"s_mov_b32 s{r.s_it}, 0")
        if not OPT.get("gprog", 1): A("s_waitcnt lgkmcnt(0)")
        A.label(f"{name}_gl{nh}")
        burst = False
        mf = g_mfma_list(g, 0, nt); rd = g_read_list(g, 1, 1, nt)
        nold = 4 + 2 * nt
        k = 0
        for m_i, m in enumerate(mf):
            if OPT.get("gprog", 1) and m_i % 4 == 0:
                need = 4 + 2 * (m_i // 4 + 1)
                A(f"s_waitcnt lgkmcnt({min(15, nold - need + k)})")
            A(m)
            if k < len(rd): A(rd[k]); k += 1
        while k < len(rd): A(rd[k]); k += 1
        A(f"s_add_u32 s{g.s_rst}, s{g.s_rst}, 1")
        A(f"s_cmp_eq_u32 s{g.s_rst}, {NST}")
        A(f"s_mov_b32 s{g.s_gdelta}, {STAGE}\ns_cmov_b32 s{g.s_gdelta}, {-(NST-1)*STAGE & 0xffffffff}")
        A(f"s_cselect_b32 s{g.s_rst}, 0, s{g.s_rst}")
        A("s_waitcnt lgkmcnt(0)")
        A("s_barrier")
        upd = [f"v_add_u32 v{x}, s{g.s_gdelta}, v{x}" for x in [g.aA[0]] + g.aB[:nt] + [g.aA[1]]]
        mf = g_mfma_list(g, 1, nt)
        rd = g_read_list(g, 0, 0, nt)
        k = 0
        if burst:
            for x in upd + rd + mf: A(x)
        else:
            for x in upd[:2]: A(x)
            seq = upd[2:] + rd
            interleave(A, mf, seq)
        A(f"s_add_u32 s{r.s_it}, s{r.s_it}, 1")
        A(f"s_cmp_lt_u32 s{r.s_it}, {NCH}")
        if not OPT.get("gprog", 1): A(f"s_waitcnt lgkmcnt(0)")
        A(f"s_cbranch_scc1 {name}_gl{nh}")
        A("s_waitcnt lgkmcnt(0)")
        if nh == 1 and OPT.get("gprio"): A("s_setprio 0")
        emit_epi_lds(A, r, g, nh)
        if nh == 0: A(f"s_branch {name}_gdone")
    A.label(f"{name}_gdone")

def emit_epi_addr(A, r, g, nh):
    t0, t1, t2, t3, t4, t5 = r.t
    st, st2, st3, st4 = r.s_t
    lane = r.lane
    nt = 4 if nh == 0 else 3
    A(f"s_and_b32 s{st}, s{r.s_w}, 3")
    A(f"s_lshl_b32 s{st}, s{st}, 7")
    typ = g.FA[0][0]; col = g.FA[0][0] + 1; tmp = g.FA[0][0] + 2; v2 = g.FA[0][0] + 3
    for t in range(nt):
        Tf = 4 * nh + t
        ea = g.ea[t]; ed = g.ed[t]
        A(f"v_and_b32 v{t1}, 15, v{lane}")
        if Tf < 6:
            A(f"v_add_u32 v{col}, {16*(Tf & 1)}, v{t1}")
        else:
            A(f"v_lshrrev_b32 v{typ}, 2, v{t1}")
            A(f"v_and_b32 v{col}, 3, v{t1}")
            A(f"v_add_u32 v{col}, 32, v{col}")
        A(f"v_cmp_le_u32 vcc, 18, v{col}")
        A(f"v_subrev_u32 v{tmp}, 18, v{col}")
        A("s_nop 0")
        A(f"v_cndmask_b32 v{col}, v{col}, v{tmp}, vcc")
        A(f"v_cndmask_b32 v{t0}, 0, 1, vcc")
        A(f"v_and_b32 v{t2}, 1, v{col}")
        A(f"v_lshrrev_b32 v{t3}, 1, v{col}")
        A(f"v_lshrrev_b32 v{t4}, 4, v{lane}")
        isq = (Tf < 2); isk = (Tf in (2, 3)); isv = (Tf in (4, 5))
        def ktype(base_const, hstride):
            A(f"v_mul_u32_u24 v{ea}, {KPAIR}, v{t3}")
            A(f"v_mul_u32_u24 v{tmp}, {hstride}, v{t0}")
            A(f"v_add3_u32 v{ea}, v{ea}, v{tmp}, s{st}")
            A(f"v_mul_u32_u24 v{tmp}, {512+64}, v{t2}")
            A(f"v_lshl_add_u32 v{tmp}, v{t4}, 4, v{tmp}")
            A(f"v_add_u32 v{ea}, v{ea}, v{tmp}")
            if base_const: A(f"v_add_u32 v{ea}, {base_const}, v{ea}")
            A(f"v_lshlrev_b32 v{ed}, 7, v{t2}")
            A(f"v_sub_u32 v{ed}, 64, v{ed}")
        def vtype(dst, dd):
            A(f"v_mul_u32_u24 v{dst}, {VPAIR}, v{t3}")
            A(f"v_mul_u32_u24 v{tmp}, {HEADSZ}, v{t0}")
            A(f"v_add3_u32 v{dst}, v{dst}, v{tmp}, s{st}")
            A(f"v_xor_b32 v{tmp}, v{t4}, v{t2}")
            A(f"v_lshlrev_b32 v{tmp}, 4, v{tmp}")
            A(f"v_lshl_add_u32 v{tmp}, v{t2}, 9, v{tmp}")
            A(f"v_add_u32 v{dst}, v{dst}, v{tmp}")
            A(f"v_add_u32 v{dst}, {KBLK}, v{dst}")
            A(f"v_mov_b32 v{dd}, 64")
        if isq: ktype(QOFF, KBLK)
        elif isk: ktype(0, HEADSZ)
        elif isv: vtype(ea, ed)
        else:
            ktype(0, HEADSZ)
            A(f"v_mul_i32_i24 v{tmp}, {KBLK-HEADSZ}, v{t0}")
            A(f"v_add_u32 v{tmp}, {QOFF}, v{tmp}")
            A(f"v_cmp_eq_u32 vcc, 0, v{typ}")
            A("s_nop 1")
            A(f"v_cndmask_b32 v{tmp}, 0, v{tmp}, vcc")
            A(f"v_add_u32 v{ea}, v{ea}, v{tmp}")
            vtype(t5, v2)
            A(f"v_cmp_eq_u32 vcc, 2, v{typ}")
            A("s_nop 1")
            A(f"v_cndmask_b32 v{ea}, v{ea}, v{t5}, vcc")
            A(f"v_cndmask_b32 v{ed}, v{ed}, v{v2}, vcc")
            A(f"v_mov_b32 v{g.esc}, 1.0")
            A(f"v_mov_b32 v{tmp}, {f32bits(CSCALE):#x}")
            A(f"v_cmp_eq_u32 vcc, 0, v{typ}")
            A("s_nop 1")
            A(f"v_cndmask_b32 v{g.esc}, v{g.esc}, v{tmp}, vcc")
            A(f"v_cmp_gt_u32 s[54:55], 3, v{typ}")
        A(f"v_add_u32 v{ed}, v{ea}, v{ed}")

def emit_epi_lds(A, r, g, nh):
    st4 = r.s_t[3]
    nt = 4 if nh == 0 else 3
    A("s_nop 7")
    A(f"s_mov_b32 s{st4}, {f32bits(CSCALE):#x}")
    order = [2, 3, 0, 1] if nh == 0 else [0, 1, 2]
    for t in order:
        Tf = 4 * nh + t
        isq = Tf < 2
        if Tf == 6:
            A("s_mov_b64 s[36:37], exec")
            A("s_mov_b64 exec, s[54:55]")
        for p in range(2):
            a0 = g.acc[2 * p][t]; a1 = g.acc[2 * p + 1][t]
            if isq:
                for j in range(4):
                    A(f"v_mul_f32 v{a0+j}, s{st4}, v{a0+j}")
                    A(f"v_mul_f32 v{a1+j}, s{st4}, v{a1+j}")
            elif Tf == 6:
                for j in range(4):
                    A(f"v_mul_f32 v{a0+j}, v{g.esc}, v{a0+j}")
                    A(f"v_mul_f32 v{a1+j}, v{g.esc}, v{a1+j}")
            pk = g.FA[p][t]
            A(f"v_cvt_pk_bf16_f32 v{pk}, v{a0}, v{a0+1}")
            A(f"v_cvt_pk_bf16_f32 v{pk+1}, v{a0+2}, v{a0+3}")
            A(f"v_cvt_pk_bf16_f32 v{pk+2}, v{a1}, v{a1+1}")
            A(f"v_cvt_pk_bf16_f32 v{pk+3}, v{a1+2}, v{a1+3}")
            A(f"ds_write_b128 v{g.ea[t] if p == 0 else g.ed[t]}, v[{pk}:{pk+3}]")
        if Tf == 6:
            A("s_mov_b64 exec, s[36:37]")

def emit_prefetch(A, r, g, d0, kind, kca, kcb):
    t0, t1, t2, t3 = r.t[:4]
    st, st2, st3, st4 = r.s_t
    A(f"s_lshl_b32 s{st}, s{r.s_hp}, 1\ns_and_b32 s{st2}, s{r.s_c}, 1\ns_add_u32 s{st}, s{st}, s{st2}")
    if kind == "x":
        A(f"v_lshrrev_b32 v{t3}, 4, v{r.lane}")
        A(f"v_add_u32 v{t3}, {kca}, v{t3}")
        A(f"v_min_u32 v{t3}, {kcb}, v{t3}")
        A(f"v_and_b32 v{t0}, 15, v{r.lane}")
        A(f"s_lshr_b32 s{st2}, s{r.s_c}, 1\ns_lshl_b32 s{st2}, s{st2}, 9\ns_lshl_b32 s{st3}, s{st}, 4\ns_add_u32 s{st2}, s{st2}, s{st3}")
        A(f"v_add_u32 v{t0}, s{st2}, v{t0}")
        A(f"v_mul_u32_u24 v{t0}, 1152, v{t0}")
        A(f"v_lshl_add_u32 v{t0}, v{t3}, 7, v{t0}")
        A(f"buffer_load_dword v{d0}, v{t0}, s[{g.s_xsrd}:{g.s_xsrd+3}], 0 offen")
    elif kind == "w":
        A(f"v_min_u32 v{t0}, 53, v{r.lane}")
        A(f"s_mul_i32 s{st2}, s{st}, 54")
        A(f"v_add_u32 v{t0}, s{st2}, v{t0}")
        A(f"v_mul_u32_u24 v{t1}, 2428, v{t0}")
        A(f"v_lshrrev_b32 v{t1}, 16, v{t1}")
        A(f"v_mul_u32_u24 v{t2}, 27, v{t1}")
        A(f"v_sub_u32 v{t2}, v{t0}, v{t2}")
        A(f"v_add_u32 v{t1}, {64*kca}, v{t1}")
        A(f"v_mul_u32_u24 v{t1}, 3456, v{t1}")
        A(f"v_lshl_add_u32 v{t1}, v{t2}, 7, v{t1}")
        A(f"buffer_load_dword v{d0}, v{t1}, s[{g.s_wsrd}:{g.s_wsrd+3}], 0 offen")

def emit_prefetch_batch(A, r, g, d0, jobs):
    done = A.newlabel("Lpfd")
    for w, (kind, a, b) in jobs.items():
        lab = A.newlabel("Lpf")
        A(f"s_cmp_eq_u32 s{r.s_w}, {w}\ns_cbranch_scc0 {lab}")
        emit_prefetch(A, r, g, d0, kind, a, b)
        A(f"s_branch {done}")
        A.label(lab)
    A.label(done)

def emit_loader_kv_setup(A, r, L):
    t0, t1, t2, t3 = r.t[:4]
    st, st2, st3, st4 = r.s_t
    A(f"v_lshrrev_b32 v{t0}, 5, v{r.lane}")
    A(f"v_and_b32 v{t1}, 31, v{r.lane}")
    A(f"v_lshlrev_b32 v{t2}, 2, v{t0}")
    A(f"v_xor_b32 v{t2}, v{t2}, v{t1}")
    A(f"v_lshlrev_b32 v{t2}, 4, v{t2}")
    A(f"v_lshl_add_u32 v{t2}, v{t0}, 12, v{t2}")
    A(f"v_xor_b32 v{t3}, v{t0}, v{t1}")
    A(f"v_lshlrev_b32 v{t3}, 4, v{t3}")
    A(f"v_lshl_add_u32 v{t3}, v{t0}, 12, v{t3}")
    for i in range(9):
        sl = L.s_lds[i]
        A(f"s_add_u32 s{st}, s{L.s_lw}, {4*i}")
        A(f"s_cmp_ge_u32 s{st}, 18")
        A(f"s_cselect_b32 s{st2}, 18, 0")
        A(f"s_mov_b32 s{st3}, {KPAIR}\ns_cmov_b32 s{st3}, {VPAIR}")
        A(f"s_cselect_b32 s{st4}, {KBLK}, 0")
        A(f"s_mov_b32 s{sl}, 576\ns_cmov_b32 s{sl}, 1152")
        A(f"s_cselect_b64 vcc, -1, 0")
        A(f"s_sub_u32 s{st}, s{st}, s{st2}")
        A(f"s_mul_i32 s{st2}, s{r.s_hp}, 36")
        A(f"s_add_u32 s{sl}, s{sl}, s{st2}")
        A(f"s_lshl_b32 s{st2}, s{st}, 1")
        A(f"s_add_u32 s{sl}, s{sl}, s{st2}")
        A(f"s_lshl_b32 s{sl}, s{sl}, 12")
        A(f"v_cndmask_b32 v{L.vdma[i]}, v{t2}, v{t3}, vcc")
        A(f"v_add_u32 v{L.vdma[i]}, s{sl}, v{L.vdma[i]}")
        A(f"s_cmp_ge_u32 s{st}, 9")
        A(f"s_cselect_b32 s{st2}, 9, 0")
        A(f"s_cselect_b32 s{sl}, {HEADSZ}, 0")
        A(f"s_sub_u32 s{st}, s{st}, s{st2}")
        A(f"s_mul_i32 s{st}, s{st}, s{st3}")
        A(f"s_add_u32 s{sl}, s{sl}, s{st}")
        A(f"s_add_u32 s{sl}, s{sl}, s{st4}")

def emit_loader_ones(A, r, L):
    t0, t1, t2, t3 = r.t[:4]
    A(f"v_subrev_u32 v{t1}, 512, v0")
    A(f"v_cmp_gt_u32 vcc, 192, v{t1}")
    A(f"v_lshlrev_b32 v{t1}, 2, v{t1}")
    A(f"v_mov_b32 v{t0}, 0x3f803f80")
    A(f"v_mov_b32 v{t3}, 0")
    A("s_and_saveexec_b64 s[36:37], vcc")
    lab = A.newlabel("Lones")
    A(f"s_cbranch_execz {lab}")
    for s in range(NSLOT):
        A(f"v_add_u32 v{t2}, {s*SLOT+ONES}, v{t1}")
        A(f"ds_write_b32 v{t2}, v{t0}")
        A(f"ds_write_b32 v{t2}, v{t3} offset:768")
    A.label(lab)
    A("s_mov_b64 exec, s[36:37]")

def emit_poll(A, r, L, seg_sgpr):
    t0 = r.t[0]; st, st2 = r.s_t[:2]
    A(f"s_lshl_b32 s{st}, s{seg_sgpr}, 7")
    A(f"v_and_b32 v{t0}, 3, v{r.lane}")
    A(f"v_lshlrev_b32 v{t0}, 2, v{t0}")
    A(f"v_add3_u32 v{t0}, v{t0}, v{L.vflag}, s{st}")
    b = L.buf[0]
    emit_pipelined_poll(A, f"global_load_dword {{d}}, v{t0}, s[{r.s_ws}:{r.s_ws+1}] sc1", [b, b+1, b+2, b+3], L.s_nonce, st2, depth=OPT.get("pdepth", 1))

def emit_loader_kv_dma(A, r, L):
    A(f"s_lshl_b32 s{r.s_chunk}, s{r.s_seg}, 9")
    for i in range(9):
        A(f"s_add_u32 m0, s{r.s_slotw}, s{L.s_lds[i]}")
        A("s_nop 0")
        A(f"buffer_load_dwordx4 v{L.vdma[i]}, s[{r.s_srd}:{r.s_srd+3}], s{r.s_chunk} offen{OPT.get('kvload', ' sc1')} lds")
    if OPT.get("xorseg", 0):
        A(f"s_add_u32 s50, s50, 1")
        A(f"s_xor_b32 s{r.s_seg}, s{r.s_c}, s50")
        A(f"s_and_b32 s{r.s_seg}, s{r.s_seg}, 7")
    else:
        A(f"s_add_u32 s{r.s_seg}, s{r.s_seg}, 1")
        A(f"s_and_b32 s{r.s_seg}, s{r.s_seg}, 7")
    A(f"s_add_u32 s{r.s_slotw}, s{r.s_slotw}, {SLOT}")
    A(f"s_cmp_eq_u32 s{r.s_slotw}, {NSLOT*SLOT}")
    A(f"s_cselect_b32 s{r.s_slotw}, 0, s{r.s_slotw}")

def emit_check(A, r, name, part=1):
    t0, t1 = r.t[:2]
    A(f"s_mov_b32 s40, 0x30800000")
    A(f"s_mov_b32 s41, 0x71800000")
    for u in range(2):
        A(f"v_mul_f32 v{r.t[2+u]}, 0, v{r.O[u]}")
        for i in range(1, 10): A(f"v_fma_f32 v{r.t[2+u]}, v{r.O[u]+i}, 0, v{r.t[2+u]}")
    A(f"v_add_f32 v{r.t[2]}, v{r.t[2]}, v{r.t[3]}")
    A(f"v_cmp_gt_f32 vcc, v{r.O[0]+10}, s40")
    A(f"v_cmp_lt_f32 s[42:43], v{r.O[0]+10}, s41")
    A("s_nop 3")
    A(f"s_and_b64 s[44:45], vcc, s[42:43]")
    A(f"v_cmp_gt_f32 vcc, v{r.O[1]+10}, s40")
    A(f"v_cmp_lt_f32 s[42:43], v{r.O[1]+10}, s41")
    A("s_nop 3")
    A(f"s_and_b64 s[44:45], s[44:45], vcc")
    A(f"s_and_b64 s[44:45], s[44:45], s[42:43]")
    A(f"v_cmp_o_f32 vcc, v{r.t[2]}, v{r.t[2]}")
    A("s_nop 3")
    A(f"s_and_b64 s[44:45], s[44:45], vcc")
    if OPT.get("forceslow"): A("s_mov_b64 s[44:45], 0")
    lab = A.newlabel("Lok")
    A("s_cmp_eq_u64 s[44:45], -1")
    A(f"s_cbranch_scc1 {lab}")
    A(f"v_mov_b32 v{t0}, {NONCE_LDS + 4}")
    A(f"v_mov_b32 v{t1}, 1")
    A(f"ds_write_b32 v{t0}, v{t1}")
    A("s_waitcnt lgkmcnt(0)")
    A.label(lab)
    if part: emit_flag_read(A, r)

def emit_flag_read(A, r):
    t0 = r.t[0]
    A("s_barrier")
    A(f"v_mov_b32 v{t0}, {NONCE_LDS + 4}")
    A(f"ds_read_b32 v{t0}, v{t0}")
    A("s_waitcnt lgkmcnt(0)")
    A(f"v_readfirstlane_b32 s40, v{t0}")
    A("s_nop 3")
    A("s_cmp_lg_u32 s40, 0")

def emit_slow_compute(A, r, name):
    t = r.t
    m = [t[4], t[5]]
    addrs = [r.kE, r.kO, r.tE, r.tO, r.vA]
    back = (8 % NSLOT) * SLOT
    for x in addrs: A(f"v_subrev_u32 v{x}, {back}, v{x}")
    for u in range(2):
        A(f"v_mov_b32 v{r.Qt[u]+1}, 0")
        A(f"v_mov_b32 v{m[u]}, 0xff800000")
        for i in range(16): A(f"v_mov_b32 v{r.O[u]+i}, 0")
    for ps in range(2):
        A(f"s_mov_b32 s46, 0")
        A.label(f"{name}_sl{ps}")
        A("s_barrier")
        A(f"s_mov_b32 s47, 0")
        A.label(f"{name}_st{ps}")
        for par in range(2):
            attn.k_reads(A, r, par, 0)
            if ps == 1: attn.v_reads(A, r, par, 0)
            A("s_waitcnt lgkmcnt(0)")
            for u in range(2):
                S0 = r.S[u]
                attn.mf_main(A, r, S0, 0, u)
                attn.mf_tail(A, r, S0, 0, u)
            A("s_nop 15")
            for u in range(2):
                S0 = r.S[u]
                if ps == 0:
                    for k in range(0, 16, 2):
                        A(f"v_max3_f32 v{m[u]}, v{m[u]}, v{S0+k}, v{S0+k+1}")
                else:
                    for k in range(16): A(f"v_sub_f32 v{S0+k}, v{S0+k}, v{m[u]}")
                    for k in range(16): A(f"v_exp_f32 v{S0+k}, v{S0+k}")
                    A("s_nop 1")
                    attn.mf_pv(A, r, u, r.V1[0], S0)
                    attn.mf_pv(A, r, u, r.V2[0], S0 + 8)
            if ps == 1: A("s_nop 7")
        for x in addrs: A(f"v_add_u32 v{x}, 128, v{x}")
        A("s_add_u32 s47, s47, 1\ns_cmp_lt_u32 s47, 4")
        A(f"s_cbranch_scc1 {name}_st{ps}")
        for x in addrs: A(f"v_subrev_u32 v{x}, 512, v{x}")
        A("s_barrier")
        A("s_add_u32 s46, s46, 1\ns_cmp_lt_u32 s46, 8")
        A(f"s_cbranch_scc1 {name}_sl{ps}")
        if ps == 0:
            A(f"v_mov_b32 v{t[0]}, v{m[0]}\nv_mov_b32 v{t[1]}, v{m[1]}")
            A("s_nop 1")
            A(f"v_permlane32_swap_b32 v{m[0]}, v{t[0]}")
            A(f"v_permlane32_swap_b32 v{m[1]}, v{t[1]}")
            A("s_nop 1")
            A(f"v_max_f32 v{m[0]}, v{m[0]}, v{t[0]}")
            A(f"v_max_f32 v{m[1]}, v{m[1]}, v{t[1]}")
    A("s_nop 15")

def emit_slow_loader(A, r, L, name):
    A(f"s_mov_b32 s46, 0")
    A.label(f"{name}_lsl")
    A(f"s_and_b32 s{r.s_seg}, s46, 7")
    A(f"s_mov_b32 s{r.s_slotw}, 0")
    emit_loader_kv_dma(A, r, L)
    A("s_waitcnt vmcnt(0)")
    A("s_barrier")
    A("s_barrier")
    A("s_add_u32 s46, s46, 1\ns_cmp_lt_u32 s46, 16")
    A(f"s_cbranch_scc1 {name}_lsl")

def gen_fused(name="fused_kernel", rt=None):
    A = Asm(); r = R(); g = R(); L = R()
    V = RegAlloc(1, 168, "v")
    attn.alloc_sregs(r); qkv.alloc_gemm_sregs(g)
    lane = V.alloc("lane"); tt = [V.alloc(f"t{i}") for i in range(6)]
    r.lane = lane; r.t = tt
    r.kE = V.alloc("kE"); r.kO = V.alloc("kO"); r.tE = V.alloc("tE"); r.tO = V.alloc("tO"); r.vA = V.alloc("vA")
    r.qE = V.alloc("qE"); r.qO = V.alloc("qO")
    g.ea = [V.alloc(f"ea{i}") for i in range(4)]; g.ed = [V.alloc(f"ed{i}") for i in range(4)]; g.esc = V.alloc("esc")
    vTR = V.alloc("vTR") if OPT.get("trace") else 0
    base = V.next
    Va = RegAlloc(base, 168, "v")
    r.idx = Va.alloc("idx")
    r.Qm = [Va.alloc(f"Qm{u}", 4, 2) for u in range(2)]
    r.Qt = [Va.alloc(f"Qt{u}", 2, 2) for u in range(2)]
    r.Km = [Va.alloc(f"Km{p}", 4, 2) for p in range(2)]
    r.Kt = [Va.alloc(f"Kt{p}", 2, 2) for p in range(2)]
    r.V1 = [Va.alloc(f"V1{p}", 4, 2) for p in range(2)]
    r.V2 = [Va.alloc(f"V2{p}", 4, 2) for p in range(2)]
    r.S = [Va.alloc(f"S{i}", 16, 4) for i in range(4)]
    r.O = [Va.alloc(f"O{u}", 16, 4) for u in range(2)]
    Vg = RegAlloc(base, 168, "v")
    g.aA = [Vg.alloc(f"aA{k}") for k in range(2)]
    g.aB = [Vg.alloc(f"aB{t}") for t in range(4)]
    g.FA = [[Vg.alloc(f"FA{s}{i}", 4, 2) for i in range(4)] for s in range(2)]
    g.FB = [[Vg.alloc(f"FB{s}{t}", 4, 2) for t in range(4)] for s in range(2)]
    g.acc = [[Vg.alloc(f"acc{i}{t}", 4, 4) for t in range(4)] for i in range(4)]
    vN = Vg.alloc("vN"); vPF = Vg.alloc("vPF"); vT = Vg.alloc("vT", 2, 2)
    Vl = RegAlloc(base, 168, "v")
    L.vx = [Vl.alloc(f"vx{i}") for i in range(4)]
    L.vw = [Vl.alloc(f"vw{i}") for i in range(2)]
    L.vdma = [Vl.alloc(f"vd{i}") for i in range(9)]
    L.vflag = Vl.alloc("vflag"); L.vlds = Vl.alloc("vlds")
    L.buf = [Vl.alloc(f"buf{i}", 4, 4) for i in range(9)]
    L.s_lw = 38; L.s_lds = list(range(72, 81)); L.s_dbg = 82; L.s_sh = 39; L.s_nonce = 81
    nv = max(Va.next, Vg.next, Vl.next)

    A(f".globl {name}\n.p2align 8\n.type {name},@function")
    A.label(name)
    A(f"s_cmp_ge_u32 s2, 256\ns_cbranch_scc1 {name}_end")
    A(f"s_load_dwordx2 s[{r.s_ws}:{r.s_ws+1}], s[0:1], 64")
    A("s_load_dwordx4 s[72:75], s[0:1], 0")
    A("s_load_dwordx4 s[76:79], s[0:1], 24")
    A(f"s_load_dwordx2 s[{L.s_dbg}:{L.s_dbg+1}], s[0:1], 56")
    F3 = OPT.get("fuse3", 1)
    if F3:
        r.no_osrd = True
        A("s_load_dwordx2 s[12:13], s[0:1], 16")
        A("s_load_dwordx2 s[6:7], s[0:1], 40")
        A("s_load_dwordx2 s[14:15], s[0:1], 48")
    S = Stamper(A, rt, enabled=rt is not None); S.start()
    T = Tracer(A, vTR, enabled=bool(OPT.get("trace"))); T.init(); T.mark(0); g.T = T
    attn.emit_ids(A, r)
    A("s_waitcnt lgkmcnt(0)")
    T.mark(22)
    A(f"s_cmp_eq_u32 s{r.s_b}, 0")
    A(f"s_cselect_b32 s{g.s_xsrd}, s72, s76")
    A(f"s_cselect_b32 s{g.s_xsrd+1}, s73, s77")
    A(f"s_cselect_b32 s{g.s_wsrd}, s74, s78")
    A(f"s_cselect_b32 s{g.s_wsrd+1}, s75, s79")
    if F3: A("s_cselect_b32 s12, s12, s6\ns_cselect_b32 s13, s13, s7")
    A(f"s_mov_b32 s{g.s_xsrd+2}, {2048*1152}\ns_mov_b32 s{g.s_xsrd+3}, 0x20000")
    A(f"s_mov_b32 s{g.s_wsrd+2}, {576*3456}\ns_mov_b32 s{g.s_wsrd+3}, 0x20000")
    if OPT.get("tlb", 0):
        labt = A.newlabel("Ltlb")
        A(f"s_cmp_lg_u32 s{r.s_w}, 7\ns_cbranch_scc1 {labt}")
        A(f"s_load_dword s40, s[{g.s_wsrd}:{g.s_wsrd+1}], 0")
        A(f"s_lshl_b32 s46, s{r.s_c}, 8\ns_mul_i32 s46, s46, 1152")
        A(f"s_load_dword s41, s[{g.s_xsrd}:{g.s_xsrd+1}], s46")
        A(f"s_mul_i32 s46, s{r.s_b}, {BLK_BYTES}\ns_mul_i32 s47, s{r.s_hp}, {36*4096}\ns_add_u32 s46, s46, s47\ns_add_u32 s46, s46, {576*4096}")
        A(f"s_load_dword s42, s[{r.s_ws}:{r.s_ws+1}], s46")
        A(f"s_add_u32 s47, s46, {576*4096}")
        A(f"s_load_dword s43, s[{r.s_ws}:{r.s_ws+1}], s47")
        A(f"s_mov_b32 s48, {FLAG_OFF}")
        A(f"s_load_dword s44, s[{r.s_ws}:{r.s_ws+1}], s48")
        A(f"s_mul_i32 s49, s{r.s_b}, {O_BLK}\ns_add_u32 s49, s49, {O_OFF}")
        A(f"s_load_dword s45, s[{r.s_ws}:{r.s_ws+1}], s49")
        A.label(labt)
    A(f"s_cmp_ge_u32 s{r.s_w}, 8")
    A(f"s_cbranch_scc1 {name}_loader")
    pf = OPT.get("pf", 6)
    if pf == 1: emit_prefetch_batch(A, r, g, vPF, {0: ("x", 2, 3), 1: ("w", 2, 3)})
    if pf == 2: emit_prefetch_batch(A, r, g, vPF, {0: ("x", 2, 3), 1: ("w", 2, 3), 2: ("x", 4, 5), 3: ("w", 4, 5)})
    if pf == 3: emit_prefetch_batch(A, r, g, vPF, {0: ("x", 2, 3), 1: ("w", 2, 3), 2: ("x", 4, 5), 3: ("w", 4, 5), 4: ("x", 6, 7), 5: ("w", 6, 7), 6: ("x", 8, 8), 7: ("w", 8, 8)})
    g.pf2 = {1: {2: ("x", 4, 5), 3: ("w", 4, 5), 4: ("x", 6, 7), 5: ("w", 6, 7), 6: ("x", 8, 8), 7: ("w", 8, 8)}, 2: {4: ("x", 6, 7), 5: ("w", 6, 7), 6: ("x", 8, 8), 7: ("w", 8, 8)}}.get(pf, {})
    g.pfreg = vPF
    if pf == 6:
        emit_prefetch_batch(A, r, g, vPF, {0: ("x", 2, 5), 1: ("w", 2, 2), 2: ("w", 3, 3), 3: ("w", 4, 4)})
        g.pf2 = {0: ("x", 6, 8), 1: ("w", 5, 5), 2: ("w", 6, 6), 3: ("w", 7, 7), 4: ("w", 8, 8)}
    if pf == 7:
        emit_prefetch_batch(A, r, g, vPF, {0: ("x", 2, 5), 1: ("w", 2, 2), 2: ("w", 3, 3)})
        g.pf2 = {0: ("x", 6, 8), 1: ("w", 4, 4), 2: ("w", 5, 5), 3: ("w", 6, 6), 4: ("w", 7, 7), 5: ("w", 8, 8)}
    if pf == 8:
        emit_prefetch_batch(A, r, g, vPF, {1: ("w", 2, 2), 2: ("w", 3, 3)})
        g.pf2 = {0: ("x", 6, 8), 1: ("w", 4, 4), 2: ("w", 5, 5), 3: ("w", 6, 6), 4: ("w", 7, 7), 5: ("w", 8, 8)}
    if pf == 9:
        emit_prefetch_batch(A, r, g, vPF, {1: ("w", 3, 3), 0: ("x", 4, 7)})
        g.pf2 = {0: ("x", 8, 8), 1: ("w", 4, 4), 2: ("w", 5, 5), 3: ("w", 6, 6), 4: ("w", 7, 7), 5: ("w", 8, 8)}
    if pf == 10:
        g.pf2 = {0: ("x", 4, 7), 1: ("w", 3, 3), 2: ("w", 4, 4), 3: ("w", 5, 5), 4: ("w", 6, 6), 5: ("w", 7, 7), 6: ("w", 8, 8), 7: ("x", 8, 8)}
    if pf == 11:
        emit_prefetch_batch(A, r, g, vPF, {0: ("x", 2, 5), 1: ("w", 2, 2), 2: ("w", 3, 3)})
        g.pf2 = {0: ("x", 6, 8), 1: ("w", 4, 4), 2: ("w", 5, 5), 3: ("w", 6, 6), 4: ("w", 7, 7), 5: ("w", 8, 8)}
    if pf == 4: g.pf2 = {2: ("x", 4, 5), 3: ("w", 4, 5), 4: ("x", 6, 7), 5: ("w", 6, 7), 6: ("x", 8, 8), 7: ("w", 8, 8)}
    if pf == 5: g.pf_pre = {2: ("x", 4, 5), 3: ("w", 4, 5), 4: ("x", 6, 7), 5: ("w", 6, 7), 6: ("x", 8, 8), 7: ("w", 8, 8)}
    attn.emit_srds(A, r)
    labn = A.newlabel("Lnonce")
    A(f"s_cmp_lg_u32 s{r.s_w}, 0\ns_cbranch_scc1 {labn}")
    A("s_memrealtime s[94:95]\ns_waitcnt lgkmcnt(0)")
    A("s_or_b32 s94, s94, 1")
    A(f"v_mov_b32 v{vT}, s94\nv_mov_b32 v{vT+1}, 0\nv_mov_b32 v{vN}, 0")
    A(f"v_cmp_eq_u32 vcc, 0, v{r.lane}")
    A("s_and_saveexec_b64 s[36:37], vcc")
    A(f"global_atomic_cmpswap v{vN}, v{vN}, v[{vT}:{vT+1}], s[{L.s_dbg}:{L.s_dbg+1}] sc0 sc1")
    A("s_mov_b64 exec, s[36:37]")
    A.label(labn)
    emit_compute_gemm_setup(A, r, g)
    attn.emit_read_addrs(A, r)
    A(f"v_mov_b32 v{r.qE}, v{r.t[4]}\nv_mov_b32 v{r.qO}, v{r.t[5]}")
    labe = A.newlabel("Lea"); labf = A.newlabel("Lea")
    A(f"s_cmp_ge_u32 s{r.s_w}, 4\ns_cbranch_scc1 {labe}")
    emit_epi_addr(A, r, g, 0)
    A(f"s_branch {labf}")
    A.label(labe)
    emit_epi_addr(A, r, g, 1)
    A.label(labf)
    emit_compute_gemm(A, r, g, name, S)
    S.mark(3)
    A("s_waitcnt vmcnt(0)")
    labn2 = A.newlabel("Lnonce")
    A(f"s_cmp_lg_u32 s{r.s_w}, 0\ns_cbranch_scc1 {labn2}")
    A("s_waitcnt vmcnt(0)")
    A(f"v_cmp_eq_u32 vcc, 0, v{vN}")
    A(f"v_mov_b32 v{r.t[0]}, {NONCE_LDS}")
    A("s_nop 0")
    A(f"v_cndmask_b32 v{vN}, v{vN}, v{vT}, vcc")
    A(f"v_cmp_eq_u32 vcc, 0, v{r.lane}")
    A("s_and_saveexec_b64 s[36:37], vcc")
    A(f"ds_write_b32 v{r.t[0]}, v{vN}")
    A(f"v_mov_b32 v{r.t[1]}, 0")
    A(f"ds_write_b32 v{r.t[0]}, v{r.t[1]} offset:4")
    A("s_mov_b64 exec, s[36:37]")
    A.label(labn2)
    A(f"v_mov_b32 v{r.idx}, 0xdddddddd")
    A("s_waitcnt lgkmcnt(0)")
    A("s_barrier")
    if OPT.get("fuse3", 1): tail.emit_srds(A, r)
    attn.emit_q_frags(A, r)
    attn.emit_attn_prologue(A, r)
    S.mark(4)
    T.mark(26)
    attn.OPT["nodma"] = 1
    attn.OPT["extdma"] = 1
    attn.OPT["tracer"] = T if OPT.get("itrace") else None
    attn.emit_attn_loop(A, r, name)
    S.mark(5)
    T.mark(27)
    if OPT.get("fuse3", 1):
        emit_check(A, r, name, part=0)
        tail.emit_stage_o(A, r)
        emit_flag_read(A, r)
        A(f"s_cbranch_scc0 {name}_go3")
        emit_slow_compute(A, r, name)
        tail.emit_stage_o(A, r)
        A("s_barrier")
        A.label(f"{name}_go3")
        labc = A.newlabel("Lc3")
        A(f"s_cmp_lt_u32 s{r.s_w}, 4\ns_cbranch_scc1 {labc}")
        nvp = tail.emit_publish(A, r, base, NONCE_LDS, name, S)
        assert nvp <= nv
        A.label(labc)
        nv3 = tail.emit_compute(A, r, name, base, T)
        assert nv3 <= nv
    else:
        emit_check(A, r, name)
        A(f"s_cbranch_scc0 {name}_store")
        emit_slow_compute(A, r, name)
        A.label(f"{name}_store")
        attn.emit_attn_store(A, r, OPT.get("oflags", ""))
    A(f"s_branch {name}_fin")
    A.label(f"{name}_loader")
    A("s_setprio 3")
    A(f"s_sub_u32 s{L.s_lw}, s{r.s_w}, 8")
    emit_loader_gemm_setup(A, r, g, L)
    A(f"s_mov_b32 s{g.s_kc}, 0\ns_mov_b32 s{g.s_stw}, 0")
    if OPT.get("pf", 6) in (4, 5):
        done4 = A.newlabel("Lpf4")
        for lw, job in {0: ("x", 0, 1), 1: ("w", 0, 1), 2: ("x", 2, 3), 3: ("w", 2, 3)}.items():
            lab4 = A.newlabel("Lpf4")
            A(f"s_cmp_eq_u32 s{L.s_lw}, {lw}\ns_cbranch_scc0 {lab4}")
            emit_prefetch(A, r, g, r.t[5], *job)
            A(f"s_branch {done4}")
            A.label(lab4)
        A.label(done4)
    if OPT.get("pf", 6) in (8, 9, 10, 11):
        done8 = A.newlabel("Lpf8")
        jobs8 = {0: ("x", 0, 1), 1: ("w", 0, 0), 2: ("w", 1, 1), 3: ("x", 2, 5)} if OPT["pf"] == 8 else {0: ("x", 0, 3), 1: ("w", 0, 0), 2: ("w", 1, 1), 3: ("w", 2, 2)}
        if OPT["pf"] == 11: jobs8 = {0: ("x", 0, 1), 1: ("w", 0, 0), 2: ("w", 1, 1)}
        for lw, job in jobs8.items():
            lab8 = A.newlabel("Lpf8")
            A(f"s_cmp_eq_u32 s{L.s_lw}, {lw}\ns_cbranch_scc0 {lab8}")
            emit_prefetch(A, r, g, r.t[5], *job)
            A(f"s_branch {done8}")
            A.label(lab8)
        A.label(done8)
        A("s_waitcnt vmcnt(0)")
    T.mark(23)
    emit_loader_gemm_dma(A, r, g, L)
    T.mark(24)
    emit_loader_gemm_dma(A, r, g, L)
    npf = 0
    T.mark(1)
    A(f"s_waitcnt vmcnt({12 + npf})")
    T.mark(2)
    A("s_barrier")
    S.mark(2)
    emit_loader_gemm_dma(A, r, g, L)
    for kc in range(NCH):
        rem = max(0, min(NCH - 1, kc + 2) - (kc + 1))
        A(f"s_waitcnt vmcnt({12*rem})")
        T.mark(3 + 2 * kc)
        A("s_barrier")
        T.mark(4 + 2 * kc)
        if kc + 3 < NCH: emit_loader_gemm_dma(A, r, g, L)
    S.mark(3)
    attn.emit_srds(A, r)
    emit_loader_kv_setup(A, r, L)
    emit_loader_ones(A, r, L)
    A(f"s_lshl_b32 s{r.s_t[0]}, s{r.s_b}, 4")
    A(f"s_add_u32 s{r.s_t[0]}, s{r.s_t[0]}, s{r.s_hp}")
    A(f"s_lshl_b32 s{r.s_t[0]}, s{r.s_t[0]}, 10")
    A(f"s_add_u32 s{r.s_t[0]}, s{r.s_t[0]}, {FLAG_OFF}")
    A(f"v_mov_b32 v{L.vflag}, s{r.s_t[0]}")
    A(f"v_lshlrev_b32 v{L.vlds}, 4, v{r.lane}")
    for i in range(9):
        A(f"v_add_u32 v{L.buf[i]+3}, s{L.s_lds[i]}, v{L.vlds}")
    A(f"s_lshl_b32 s{r.s_chunk}, s{r.s_c}, 9")
    A(f"v_mov_b32 v{r.t[2]}, {NONCE_LDS}")
    A("s_waitcnt lgkmcnt(0)")
    A("s_barrier")
    for i in range(9):
        A(f"ds_read_b128 v[{L.buf[i]}:{L.buf[i]+3}], v{L.buf[i]+3}")
    A(f"ds_read_b32 v{r.t[2]}, v{r.t[2]}")
    for i in range(9):
        A(f"s_waitcnt lgkmcnt({9-i})")
        A(f"buffer_store_dwordx4 v[{L.buf[i]}:{L.buf[i]+3}], v{L.vdma[i]}, s[{r.s_srd}:{r.s_srd+3}], s{r.s_chunk} offen sc1")
    A("s_waitcnt lgkmcnt(0)")
    A(f"v_readfirstlane_b32 s{L.s_nonce}, v{r.t[2]}")
    A("s_waitcnt vmcnt(0)")
    S.mark(4)
    A(f"s_lshl_b32 s{r.s_t[0]}, s{r.s_c}, 7")
    A(f"s_lshl_b32 s{r.s_t[1]}, s{L.s_lw}, 2")
    A(f"s_add_u32 s{r.s_t[0]}, s{r.s_t[0]}, s{r.s_t[1]}")
    A(f"v_add_u32 v{r.t[0]}, s{r.s_t[0]}, v{L.vflag}")
    A(f"v_mov_b32 v{r.t[1]}, s{L.s_nonce}")
    A(f"v_cmp_eq_u32 vcc, 0, v{r.lane}")
    A("s_and_saveexec_b64 s[36:37], vcc")
    A(f"global_store_dword v{r.t[0]}, v{r.t[1]}, s[{r.s_ws}:{r.s_ws+1}] sc1")
    A("s_mov_b64 exec, s[36:37]")
    if OPT.get("xorseg", 0): A(f"s_mov_b32 s50, 1\ns_xor_b32 s{r.s_seg}, s{r.s_c}, 1")
    else: A(f"s_add_u32 s{r.s_seg}, s{r.s_c}, 1\ns_and_b32 s{r.s_seg}, s{r.s_seg}, 7")
    A(f"s_mov_b32 s{r.s_slotw}, {SLOT}")
    emit_poll(A, r, L, r.s_seg)
    S.mark(5)
    emit_loader_kv_dma(A, r, L)
    if OPT.get("fuse3", 1):
        tail.emit_srds(A, r)
        P = tail.emit_loader_setup(A, r, L, Vl.next)
        assert P.top <= nv
    for i in range(8):
        A("s_waitcnt vmcnt(0)")
        if i == 0: S.mark(6)
        A("s_barrier")
        if i == 5 and OPT.get("pfwo", 1):
            if not F3:
                A("s_load_dwordx2 s[40:41], s[0:1], 16")
                A("s_load_dwordx2 s[42:43], s[0:1], 40")
            A(f"s_lshl_b32 s46, s{r.s_hp}, 1\ns_and_b32 s47, s{r.s_c}, 1\ns_add_u32 s46, s46, s47\ns_mul_i32 s46, s46, 162")
            A(f"s_lshl_b32 s47, s{L.s_lw}, 6")
            A(f"v_add_u32 v{r.t[1]}, s47, v{r.lane}")
            A(f"v_min_u32 v{r.t[1]}, 161, v{r.t[1]}")
            A(f"v_add_u32 v{r.t[1]}, s46, v{r.t[1]}")
            A(f"v_lshlrev_b32 v{r.t[1]}, 7, v{r.t[1]}")
            if not F3:
                A("s_waitcnt lgkmcnt(0)")
                A(f"s_cmp_eq_u32 s{r.s_b}, 0")
                A("s_cselect_b32 s44, s40, s42\ns_cselect_b32 s45, s41, s43")
                A(f"global_load_dword v{r.t[2]}, v{r.t[1]}, s[44:45]")
            else:
                A(f"global_load_dword v{r.t[2]}, v{r.t[1]}, s[12:13]")
        if i + 2 < 8:
            emit_poll(A, r, L, r.s_seg)
            emit_loader_kv_dma(A, r, L)
        if F3 and i == 6: tail.emit_w_chunks(A, r, L, P, range(0, 7))
        if F3 and i == 7: tail.emit_w_chunks(A, r, L, P, range(7, 9))
    emit_flag_read(A, r)
    A(f"s_cbranch_scc0 {name}_noslow")
    emit_slow_loader(A, r, L, name)
    if OPT.get("fuse3", 1):
        tail.emit_w_chunks(A, r, L, P, range(7, 9))
        A("s_barrier")
    A.label(f"{name}_noslow")
    if OPT.get("fuse3", 1):
        tail.emit_loader(A, r, L, P, name, T, S)
    A.label(f"{name}_fin")
    T.mark(30)
    T.dump(r.s_ws, r.t[0])
    S.dump(r.s_ws, r.t[0], r.S[0])
    A.label(f"{name}_end")
    A("s_endpgm")
    return A.text(), nv
```

```python
from emit import *
import attn, qkv, tail
from attn import R, ROWB, BLK_BYTES, O_OFF, O_BLK, KPAIR, VPAIR, KBLK, VBLK, HEADSZ, ONES, ZEROS, SLOT, NSLOT, QOFF
from qkv import XST, WST, STAGE, NST, NCH, CSCALE, f32bits

OPT = {}
NONCE_LDS = max(qkv.LDS_GEMM, attn.LDS_ATTN, tail.LDS_END)
LDS_FUSED = NONCE_LDS + 256
FLAG_OFF = 0x2000000

def emit_loader_gemm_setup(A, r, g, L):
    t0, t1, t2, t3, t4, t5 = r.t
    st, st2, st3, st4 = r.s_t
    lane = r.lane
    A(f"v_lshrrev_b32 v{t0}, 3, v{lane}")
    A(f"v_and_b32 v{t1}, 7, v{lane}")
    A(f"v_lshrrev_b32 v{t2}, 4, v{lane}")
    A(f"v_and_b32 v{t2}, 1, v{t2}")
    A(f"s_lshl_b32 s{st}, s{r.s_c}, 8")
    A(f"s_lshl_b32 s{st2}, s{L.s_lw}, 6")
    A(f"s_add_u32 s{st}, s{st}, s{st2}")
    A(f"v_add_u32 v{t0}, s{st}, v{t0}")
    A(f"v_mul_u32_u24 v{t0}, 1152, v{t0}")
    for i in range(4):
        A(f"v_or_b32 v{t3}, {i<<1}, v{t2}")
        A(f"v_xor_b32 v{t3}, v{t3}, v{t1}")
        A(f"v_lshl_add_u32 v{L.vx[i]}, v{t3}, 4, v{t0}")
        if i: A(f"v_add_u32 v{L.vx[i]}, {i*8*1152}, v{L.vx[i]}")
    A(f"v_lshrrev_b32 v{t0}, 4, v{lane}")
    A(f"s_lshl_b32 s{st}, s{L.s_lw}, 4")
    A(f"v_add_u32 v{t5}, s{st}, v{t0}")
    A(f"v_mul_u32_u24 v{t5}, 3456, v{t5}")
    A(f"s_mul_i32 s{st}, s{r.s_hp}, 72")
    A(f"v_add_u32 v{t5}, s{st}, v{t5}")
    for var in range(2):
        A(f"v_or_b32 v{t1}, {4*var}, v{t0}")
        A(f"v_lshlrev_b32 v{t1}, 1, v{t1}")
        A(f"v_and_b32 v{t2}, 15, v{lane}")
        A(f"v_xor_b32 v{t2}, v{t2}, v{t1}")
        A(f"v_lshrrev_b32 v{t3}, 2, v{t2}")
        A(f"v_and_b32 v{t4}, 3, v{t2}")
        A(f"v_min_u32 v{t1}, 2, v{t4}")
        A(f"v_cmp_eq_u32 vcc, 3, v{t3}")
        A("s_nop 1")
        A(f"v_cndmask_b32 v{t3}, v{t3}, v{t1}, vcc")
        A(f"v_lshlrev_b32 v{t4}, 4, v{t4}")
        A(f"v_cndmask_b32 v{t4}, v{t4}, 56, vcc")
        A(f"v_mul_u32_u24 v{t3}, 1152, v{t3}")
        A(f"v_add3_u32 v{L.vw[var]}, v{t3}, v{t4}, v{t5}")
    A(f"s_lshl_b32 s{g.s_mx}, s{L.s_lw}, 13")
    A(f"s_lshl_b32 s{g.s_mw}, s{L.s_lw}, 12")
    A(f"s_add_u32 s{g.s_mw}, s{g.s_mw}, {XST}")

def emit_loader_gemm_dma(A, r, g, L):
    st, st2 = r.s_t[:2]
    A(f"s_lshl_b32 s{g.s_xoff}, s{g.s_kc}, 7")
    A(f"s_mul_i32 s{g.s_woff}, s{g.s_kc}, {64*3456}")
    for i in range(4):
        A(f"s_add_u32 s{st}, s{g.s_stw}, s{g.s_mw}")
        A(f"s_add_u32 m0, s{st}, {1024*i}")
        A(f"s_add_u32 s{st2}, s{g.s_woff}, {4*3456*i}")
        A(f"buffer_load_dwordx4 v{L.vw[i>>1]}, s[{g.s_wsrd}:{g.s_wsrd+3}], s{st2} offen lds")
    for i in range(8):
        A(f"s_add_u32 s{st}, s{g.s_stw}, s{g.s_mx}")
        A(f"s_add_u32 m0, s{st}, {1024*i}")
        A(f"s_add_u32 s{st2}, s{g.s_xoff}, {32*1152*(i>>2)}")
        A(f"buffer_load_dwordx4 v{L.vx[i&3]}, s[{g.s_xsrd}:{g.s_xsrd+3}], s{st2} offen lds")
    A(f"s_add_u32 s{g.s_kc}, s{g.s_kc}, 1")
    A(f"s_add_u32 s{g.s_stw}, s{g.s_stw}, {STAGE}")
    A(f"s_cmp_eq_u32 s{g.s_stw}, {NST*STAGE}")
    A(f"s_cselect_b32 s{g.s_stw}, 0, s{g.s_stw}")

def emit_compute_gemm_setup(A, r, g):
    t0, t1, t2, t3, t4, t5 = r.t
    st, st2, st3, st4 = r.s_t
    lane = r.lane
    A(f"v_and_b32 v{t0}, 15, v{lane}")
    A(f"v_lshrrev_b32 v{t1}, 2, v{t0}")
    A(f"v_and_b32 v{t2}, 3, v{t0}")
    A(f"v_lshl_add_u32 v{t2}, v{t1}, 3, v{t2}")
    A(f"v_lshrrev_b32 v{t3}, 1, v{t0}")
    A(f"v_and_b32 v{t3}, 1, v{t3}")
    A(f"v_lshl_or_b32 v{t3}, v{t1}, 1, v{t3}")
    A(f"v_lshrrev_b32 v{t4}, 4, v{lane}")
    A(f"v_xor_b32 v{t3}, v{t3}, v{t4}")
    A(f"s_and_b32 s{st}, s{r.s_w}, 3")
    A(f"s_lshl_b32 s{st}, s{st}, 13")
    A(f"v_lshlrev_b32 v{t2}, 7, v{t2}")
    A(f"v_add_u32 v{t2}, s{st}, v{t2}")
    A(f"v_lshl_add_u32 v{g.aA[0]}, v{t3}, 4, v{t2}")
    A(f"v_xor_b32 v{t3}, 4, v{t3}")
    A(f"v_lshl_add_u32 v{g.aA[1]}, v{t3}, 4, v{t2}")
    A(f"v_lshrrev_b32 v{t0}, 4, v{lane}")
    A(f"v_lshrrev_b32 v{t1}, 2, v{lane}")
    A(f"v_and_b32 v{t1}, 3, v{t1}")
    A(f"v_lshl_add_u32 v{t2}, v{t0}, 3, v{t1}")
    A(f"v_lshlrev_b32 v{t2}, 8, v{t2}")
    A(f"v_add_u32 v{t2}, {XST}, v{t2}")
    A(f"v_and_b32 v{t0}, 1, v{t0}")
    A(f"v_lshl_or_b32 v{t0}, v{t0}, 2, v{t1}")
    A(f"v_and_b32 v{t3}, 3, v{lane}")
    A(f"v_lshlrev_b32 v{t4}, 3, v{t3}")
    A(f"v_add_u32 v{t4}, v{t4}, v{t2}")
    A(f"s_lshr_b32 s{st}, s{r.s_w}, 2")
    A(f"s_lshl_b32 s{st}, s{st}, 2")
    for t in range(4):
        A(f"s_add_u32 s{st2}, s{st}, {t}")
        A(f"v_xor_b32 v{t5}, s{st2}, v{t0}")
        A(f"v_lshl_add_u32 v{g.aB[t]}, v{t5}, 5, v{t4}")
    A(f"v_add_u32 v{t3}, 12, v{t3}")
    A(f"v_lshlrev_b32 v{t0}, 1, v{t0}")
    A(f"v_xor_b32 v{t3}, v{t3}, v{t0}")
    A(f"v_lshl_add_u32 v{t3}, v{t3}, 4, v{t2}")
    A(f"v_add_u32 v{t3}, 8, v{t3}")
    A(f"s_cmp_ge_u32 s{r.s_w}, 4")
    A(f"s_cselect_b64 vcc, -1, 0")
    A("s_nop 1")
    A(f"v_cndmask_b32 v{g.aB[2]}, v{g.aB[2]}, v{t3}, vcc")

def g_read_list(g, s, ks, nt):
    out = []
    for i in range(4):
        p, T = i // 2, i % 2
        out.append(f"ds_read_b128 v[{g.FA[s][i]}:{g.FA[s][i]+3}], v{g.aA[ks]} offset:{4096*p+512*T}")
    for t in range(nt):
        out.append(f"ds_read_b64_tr_b16 v[{g.FB[s][t]}:{g.FB[s][t]+1}], v{g.aB[t]} offset:{8192*ks}")
        out.append(f"ds_read_b64_tr_b16 v[{g.FB[s][t]+2}:{g.FB[s][t]+3}], v{g.aB[t]} offset:{8192*ks+1024}")
    return out
def g_mfma_list(g, s, nt):
    out = []
    for t in range(nt):
        for i in range(4):
            out.append(f"v_mfma_f32_16x16x32_bf16 v[{g.acc[i][t]}:{g.acc[i][t]+3}], v[{g.FA[s][i]}:{g.FA[s][i]+3}], v[{g.FB[s][t]}:{g.FB[s][t]+3}], v[{g.acc[i][t]}:{g.acc[i][t]+3}]")
    return out
def interleave(A, mf, rd, pre=()):
    extra = list(pre) + list(rd)
    k = 0
    for m in mf:
        A(m)
        if k < len(extra):
            A(extra[k]); k += 1
    while k < len(extra):
        A(extra[k]); k += 1

def emit_compute_gemm(A, r, g, name, S):
    A(f"s_mov_b32 s{g.s_rst}, 0")
    for i in range(4):
        for t in range(4):
            for j in range(4): A(f"v_mov_b32 v{g.acc[i][t]+j}, 0")
    if getattr(g, "pf_pre", None): emit_prefetch_batch(A, r, g, g.pfreg, g.pf_pre)
    g.T.mark(1)
    A("s_barrier")
    S.mark(2)
    g.T.mark(2)
    if g.pf2: emit_prefetch_batch(A, r, g, g.pfreg, g.pf2)
    A(f"s_cmp_ge_u32 s{r.s_w}, 4")
    A(f"s_cbranch_scc1 {name}_g1")
    for nh in range(2):
        nt = 4 if nh == 0 else 3
        if nh == 1:
            A.label(f"{name}_g1")
            if OPT.get("gprio"): A(f"s_setprio {OPT['gprio']}")
        for x in g_read_list(g, 0, 0, nt): A(x)
        A(f"s_mov_b32 s{r.s_it}, 0")
        if not OPT.get("gprog", 1): A("s_waitcnt lgkmcnt(0)")
        A.label(f"{name}_gl{nh}")
        burst = False
        mf = g_mfma_list(g, 0, nt); rd = g_read_list(g, 1, 1, nt)
        nold = 4 + 2 * nt
        k = 0
        for m_i, m in enumerate(mf):
            if OPT.get("gprog", 1) and m_i % 4 == 0:
                need = 4 + 2 * (m_i // 4 + 1)
                A(f"s_waitcnt lgkmcnt({min(15, nold - need + k)})")
            A(m)
            if k < len(rd): A(rd[k]); k += 1
        while k < len(rd): A(rd[k]); k += 1
        A(f"s_add_u32 s{g.s_rst}, s{g.s_rst}, 1")
        A(f"s_cmp_eq_u32 s{g.s_rst}, {NST}")
        A(f"s_mov_b32 s{g.s_gdelta}, {STAGE}\ns_cmov_b32 s{g.s_gdelta}, {-(NST-1)*STAGE & 0xffffffff}")
        A(f"s_cselect_b32 s{g.s_rst}, 0, s{g.s_rst}")
        A("s_waitcnt lgkmcnt(0)")
        A("s_barrier")
        upd = [f"v_add_u32 v{x}, s{g.s_gdelta}, v{x}" for x in [g.aA[0]] + g.aB[:nt] + [g.aA[1]]]
        mf = g_mfma_list(g, 1, nt)
        rd = g_read_list(g, 0, 0, nt)
        k = 0
        if burst:
            for x in upd + rd + mf: A(x)
        else:
            for x in upd[:2]: A(x)
            seq = upd[2:] + rd
            interleave(A, mf, seq)
        A(f"s_add_u32 s{r.s_it}, s{r.s_it}, 1")
        A(f"s_cmp_lt_u32 s{r.s_it}, {NCH}")
        if not OPT.get("gprog", 1): A(f"s_waitcnt lgkmcnt(0)")
        A(f"s_cbranch_scc1 {name}_gl{nh}")
        A("s_waitcnt lgkmcnt(0)")
        if nh == 1 and OPT.get("gprio"): A("s_setprio 0")
        emit_epi_lds(A, r, g, nh)
        if nh == 0: A(f"s_branch {name}_gdone")
    A.label(f"{name}_gdone")

def emit_epi_addr(A, r, g, nh):
    t0, t1, t2, t3, t4, t5 = r.t
    st, st2, st3, st4 = r.s_t
    lane = r.lane
    nt = 4 if nh == 0 else 3
    A(f"s_and_b32 s{st}, s{r.s_w}, 3")
    A(f"s_lshl_b32 s{st}, s{st}, 7")
    typ = g.FA[0][0]; col = g.FA[0][0] + 1; tmp = g.FA[0][0] + 2; v2 = g.FA[0][0] + 3
    for t in range(nt):
        Tf = 4 * nh + t
        ea = g.ea[t]; ed = g.ed[t]
        A(f"v_and_b32 v{t1}, 15, v{lane}")
        if Tf < 6:
            A(f"v_add_u32 v{col}, {16*(Tf & 1)}, v{t1}")
        else:
            A(f"v_lshrrev_b32 v{typ}, 2, v{t1}")
            A(f"v_and_b32 v{col}, 3, v{t1}")
            A(f"v_add_u32 v{col}, 32, v{col}")
        A(f"v_cmp_le_u32 vcc, 18, v{col}")
        A(f"v_subrev_u32 v{tmp}, 18, v{col}")
        A("s_nop 0")
        A(f"v_cndmask_b32 v{col}, v{col}, v{tmp}, vcc")
        A(f"v_cndmask_b32 v{t0}, 0, 1, vcc")
        A(f"v_and_b32 v{t2}, 1, v{col}")
        A(f"v_lshrrev_b32 v{t3}, 1, v{col}")
        A(f"v_lshrrev_b32 v{t4}, 4, v{lane}")
        isq = (Tf < 2); isk = (Tf in (2, 3)); isv = (Tf in (4, 5))
        def ktype(base_const, hstride):
            A(f"v_mul_u32_u24 v{ea}, {KPAIR}, v{t3}")
            A(f"v_mul_u32_u24 v{tmp}, {hstride}, v{t0}")
            A(f"v_add3_u32 v{ea}, v{ea}, v{tmp}, s{st}")
            A(f"v_mul_u32_u24 v{tmp}, {512+64}, v{t2}")
            A(f"v_lshl_add_u32 v{tmp}, v{t4}, 4, v{tmp}")
            A(f"v_add_u32 v{ea}, v{ea}, v{tmp}")
            if base_const: A(f"v_add_u32 v{ea}, {base_const}, v{ea}")
            A(f"v_lshlrev_b32 v{ed}, 7, v{t2}")
            A(f"v_sub_u32 v{ed}, 64, v{ed}")
        def vtype(dst, dd):
            A(f"v_mul_u32_u24 v{dst}, {VPAIR}, v{t3}")
            A(f"v_mul_u32_u24 v{tmp}, {HEADSZ}, v{t0}")
            A(f"v_add3_u32 v{dst}, v{dst}, v{tmp}, s{st}")
            A(f"v_xor_b32 v{tmp}, v{t4}, v{t2}")
            A(f"v_lshlrev_b32 v{tmp}, 4, v{tmp}")
            A(f"v_lshl_add_u32 v{tmp}, v{t2}, 9, v{tmp}")
            A(f"v_add_u32 v{dst}, v{dst}, v{tmp}")
            A(f"v_add_u32 v{dst}, {KBLK}, v{dst}")
            A(f"v_mov_b32 v{dd}, 64")
        if isq: ktype(QOFF, KBLK)
        elif isk: ktype(0, HEADSZ)
        elif isv: vtype(ea, ed)
        else:
            ktype(0, HEADSZ)
            A(f"v_mul_i32_i24 v{tmp}, {KBLK-HEADSZ}, v{t0}")
            A(f"v_add_u32 v{tmp}, {QOFF}, v{tmp}")
            A(f"v_cmp_eq_u32 vcc, 0, v{typ}")
            A("s_nop 1")
            A(f"v_cndmask_b32 v{tmp}, 0, v{tmp}, vcc")
            A(f"v_add_u32 v{ea}, v{ea}, v{tmp}")
            vtype(t5, v2)
            A(f"v_cmp_eq_u32 vcc, 2, v{typ}")
            A("s_nop 1")
            A(f"v_cndmask_b32 v{ea}, v{ea}, v{t5}, vcc")
            A(f"v_cndmask_b32 v{ed}, v{ed}, v{v2}, vcc")
            A(f"v_mov_b32 v{g.esc}, 1.0")
            A(f"v_mov_b32 v{tmp}, {f32bits(CSCALE):#x}")
            A(f"v_cmp_eq_u32 vcc, 0, v{typ}")
            A("s_nop 1")
            A(f"v_cndmask_b32 v{g.esc}, v{g.esc}, v{tmp}, vcc")
            A(f"v_cmp_gt_u32 s[54:55], 3, v{typ}")
        A(f"v_add_u32 v{ed}, v{ea}, v{ed}")

def emit_epi_lds(A, r, g, nh):
    st4 = r.s_t[3]
    nt = 4 if nh == 0 else 3
    A("s_nop 7")
    A(f"s_mov_b32 s{st4}, {f32bits(CSCALE):#x}")
    order = [2, 3, 0, 1] if nh == 0 else [0, 1, 2]
    for t in order:
        Tf = 4 * nh + t
        isq = Tf < 2
        if Tf == 6:
            A("s_mov_b64 s[36:37], exec")
            A("s_mov_b64 exec, s[54:55]")
        for p in range(2):
            a0 = g.acc[2 * p][t]; a1 = g.acc[2 * p + 1][t]
            if isq:
                for j in range(4):
                    A(f"v_mul_f32 v{a0+j}, s{st4}, v{a0+j}")
                    A(f"v_mul_f32 v{a1+j}, s{st4}, v{a1+j}")
            elif Tf == 6:
                for j in range(4):
                    A(f"v_mul_f32 v{a0+j}, v{g.esc}, v{a0+j}")
                    A(f"v_mul_f32 v{a1+j}, v{g.esc}, v{a1+j}")
            pk = g.FA[p][t]
            A(f"v_cvt_pk_bf16_f32 v{pk}, v{a0}, v{a0+1}")
            A(f"v_cvt_pk_bf16_f32 v{pk+1}, v{a0+2}, v{a0+3}")
            A(f"v_cvt_pk_bf16_f32 v{pk+2}, v{a1}, v{a1+1}")
            A(f"v_cvt_pk_bf16_f32 v{pk+3}, v{a1+2}, v{a1+3}")
            A(f"ds_write_b128 v{g.ea[t] if p == 0 else g.ed[t]}, v[{pk}:{pk+3}]")
        if Tf == 6:
            A("s_mov_b64 exec, s[36:37]")

def emit_prefetch(A, r, g, d0, kind, kca, kcb):
    t0, t1, t2, t3 = r.t[:4]
    st, st2, st3, st4 = r.s_t
    A(f"s_lshl_b32 s{st}, s{r.s_hp}, 1\ns_and_b32 s{st2}, s{r.s_c}, 1\ns_add_u32 s{st}, s{st}, s{st2}")
    if kind == "x":
        A(f"v_lshrrev_b32 v{t3}, 4, v{r.lane}")
        A(f"v_add_u32 v{t3}, {kca}, v{t3}")
        A(f"v_min_u32 v{t3}, {kcb}, v{t3}")
        A(f"v_and_b32 v{t0}, 15, v{r.lane}")
        A(f"s_lshr_b32 s{st2}, s{r.s_c}, 1\ns_lshl_b32 s{st2}, s{st2}, 9\ns_lshl_b32 s{st3}, s{st}, 4\ns_add_u32 s{st2}, s{st2}, s{st3}")
        A(f"v_add_u32 v{t0}, s{st2}, v{t0}")
        A(f"v_mul_u32_u24 v{t0}, 1152, v{t0}")
        A(f"v_lshl_add_u32 v{t0}, v{t3}, 7, v{t0}")
        A(f"buffer_load_dword v{d0}, v{t0}, s[{g.s_xsrd}:{g.s_xsrd+3}], 0 offen")
    elif kind == "w":
        A(f"v_min_u32 v{t0}, 53, v{r.lane}")
        A(f"s_mul_i32 s{st2}, s{st}, 54")
        A(f"v_add_u32 v{t0}, s{st2}, v{t0}")
        A(f"v_mul_u32_u24 v{t1}, 2428, v{t0}")
        A(f"v_lshrrev_b32 v{t1}, 16, v{t1}")
        A(f"v_mul_u32_u24 v{t2}, 27, v{t1}")
        A(f"v_sub_u32 v{t2}, v{t0}, v{t2}")
        A(f"v_add_u32 v{t1}, {64*kca}, v{t1}")
        A(f"v_mul_u32_u24 v{t1}, 3456, v{t1}")
        A(f"v_lshl_add_u32 v{t1}, v{t2}, 7, v{t1}")
        A(f"buffer_load_dword v{d0}, v{t1}, s[{g.s_wsrd}:{g.s_wsrd+3}], 0 offen")

def emit_prefetch_batch(A, r, g, d0, jobs):
    done = A.newlabel("Lpfd")
    for w, (kind, a, b) in jobs.items():
        lab = A.newlabel("Lpf")
        A(f"s_cmp_eq_u32 s{r.s_w}, {w}\ns_cbranch_scc0 {lab}")
        emit_prefetch(A, r, g, d0, kind, a, b)
        A(f"s_branch {done}")
        A.label(lab)
    A.label(done)

def emit_loader_kv_setup(A, r, L):
    t0, t1, t2, t3 = r.t[:4]
    st, st2, st3, st4 = r.s_t
    A(f"v_lshrrev_b32 v{t0}, 5, v{r.lane}")
    A(f"v_and_b32 v{t1}, 31, v{r.lane}")
    A(f"v_lshlrev_b32 v{t2}, 2, v{t0}")
    A(f"v_xor_b32 v{t2}, v{t2}, v{t1}")
    A(f"v_lshlrev_b32 v{t2}, 4, v{t2}")
    A(f"v_lshl_add_u32 v{t2}, v{t0}, 12, v{t2}")
    A(f"v_xor_b32 v{t3}, v{t0}, v{t1}")
    A(f"v_lshlrev_b32 v{t3}, 4, v{t3}")
    A(f"v_lshl_add_u32 v{t3}, v{t0}, 12, v{t3}")
    for i in range(9):
        sl = L.s_lds[i]
        A(f"s_add_u32 s{st}, s{L.s_lw}, {4*i}")
        A(f"s_cmp_ge_u32 s{st}, 18")
        A(f"s_cselect_b32 s{st2}, 18, 0")
        A(f"s_mov_b32 s{st3}, {KPAIR}\ns_cmov_b32 s{st3}, {VPAIR}")
        A(f"s_cselect_b32 s{st4}, {KBLK}, 0")
        A(f"s_mov_b32 s{sl}, 576\ns_cmov_b32 s{sl}, 1152")
        A(f"s_cselect_b64 vcc, -1, 0")
        A(f"s_sub_u32 s{st}, s{st}, s{st2}")
        A(f"s_mul_i32 s{st2}, s{r.s_hp}, 36")
        A(f"s_add_u32 s{sl}, s{sl}, s{st2}")
        A(f"s_lshl_b32 s{st2}, s{st}, 1")
        A(f"s_add_u32 s{sl}, s{sl}, s{st2}")
        A(f"s_lshl_b32 s{sl}, s{sl}, 12")
        A(f"v_cndmask_b32 v{L.vdma[i]}, v{t2}, v{t3}, vcc")
        A(f"v_add_u32 v{L.vdma[i]}, s{sl}, v{L.vdma[i]}")
        A(f"s_cmp_ge_u32 s{st}, 9")
        A(f"s_cselect_b32 s{st2}, 9, 0")
        A(f"s_cselect_b32 s{sl}, {HEADSZ}, 0")
        A(f"s_sub_u32 s{st}, s{st}, s{st2}")
        A(f"s_mul_i32 s{st}, s{st}, s{st3}")
        A(f"s_add_u32 s{sl}, s{sl}, s{st}")
        A(f"s_add_u32 s{sl}, s{sl}, s{st4}")

def emit_loader_ones(A, r, L):
    t0, t1, t2, t3 = r.t[:4]
    A(f"v_subrev_u32 v{t1}, 512, v0")
    A(f"v_cmp_gt_u32 vcc, 192, v{t1}")
    A(f"v_lshlrev_b32 v{t1}, 2, v{t1}")
    A(f"v_mov_b32 v{t0}, 0x3f803f80")
    A(f"v_mov_b32 v{t3}, 0")
    A("s_and_saveexec_b64 s[36:37], vcc")
    lab = A.newlabel("Lones")
    A(f"s_cbranch_execz {lab}")
    for s in range(NSLOT):
        A(f"v_add_u32 v{t2}, {s*SLOT+ONES}, v{t1}")
        A(f"ds_write_b32 v{t2}, v{t0}")
        A(f"ds_write_b32 v{t2}, v{t3} offset:768")
    A.label(lab)
    A("s_mov_b64 exec, s[36:37]")

def emit_poll(A, r, L, seg_sgpr):
    t0 = r.t[0]; st, st2 = r.s_t[:2]
    A(f"s_lshl_b32 s{st}, s{seg_sgpr}, 7")
    if OPT.get("kv1flag", 1):
        A(f"v_add_u32 v{t0}, s{st}, v{L.vflag}")
    else:
        A(f"v_and_b32 v{t0}, 3, v{r.lane}")
        A(f"v_lshlrev_b32 v{t0}, 2, v{t0}")
        A(f"v_add3_u32 v{t0}, v{t0}, v{L.vflag}, s{st}")
    b = L.buf[0]
    emit_pipelined_poll(A, f"global_load_dword {{d}}, v{t0}, s[{r.s_ws}:{r.s_ws+1}] sc1", [b, b+1, b+2, b+3], L.s_nonce, st2, depth=OPT.get("pdepth", 1))

def emit_loader_kv_dma(A, r, L):
    A(f"s_lshl_b32 s{r.s_chunk}, s{r.s_seg}, 9")
    for i in range(9):
        A(f"s_add_u32 m0, s{r.s_slotw}, s{L.s_lds[i]}")
        A("s_nop 0")
        A(f"buffer_load_dwordx4 v{L.vdma[i]}, s[{r.s_srd}:{r.s_srd+3}], s{r.s_chunk} offen{OPT.get('kvload', ' sc1')} lds")
    if OPT.get("xorseg", 0):
        A(f"s_add_u32 s50, s50, 1")
        A(f"s_xor_b32 s{r.s_seg}, s{r.s_c}, s50")
        A(f"s_and_b32 s{r.s_seg}, s{r.s_seg}, 7")
    else:
        A(f"s_add_u32 s{r.s_seg}, s{r.s_seg}, 1")
        A(f"s_and_b32 s{r.s_seg}, s{r.s_seg}, 7")
    A(f"s_add_u32 s{r.s_slotw}, s{r.s_slotw}, {SLOT}")
    A(f"s_cmp_eq_u32 s{r.s_slotw}, {NSLOT*SLOT}")
    A(f"s_cselect_b32 s{r.s_slotw}, 0, s{r.s_slotw}")

def emit_check(A, r, name, part=1):
    t0, t1 = r.t[:2]
    A(f"s_mov_b32 s40, 0x30800000")
    A(f"s_mov_b32 s41, 0x71800000")
    for u in range(2):
        A(f"v_mul_f32 v{r.t[2+u]}, 0, v{r.O[u]}")
        for i in range(1, 10): A(f"v_fma_f32 v{r.t[2+u]}, v{r.O[u]+i}, 0, v{r.t[2+u]}")
    A(f"v_add_f32 v{r.t[2]}, v{r.t[2]}, v{r.t[3]}")
    A(f"v_cmp_gt_f32 vcc, v{r.O[0]+10}, s40")
    A(f"v_cmp_lt_f32 s[42:43], v{r.O[0]+10}, s41")
    A("s_nop 3")
    A(f"s_and_b64 s[44:45], vcc, s[42:43]")
    A(f"v_cmp_gt_f32 vcc, v{r.O[1]+10}, s40")
    A(f"v_cmp_lt_f32 s[42:43], v{r.O[1]+10}, s41")
    A("s_nop 3")
    A(f"s_and_b64 s[44:45], s[44:45], vcc")
    A(f"s_and_b64 s[44:45], s[44:45], s[42:43]")
    A(f"v_cmp_o_f32 vcc, v{r.t[2]}, v{r.t[2]}")
    A("s_nop 3")
    A(f"s_and_b64 s[44:45], s[44:45], vcc")
    if OPT.get("forceslow"): A("s_mov_b64 s[44:45], 0")
    lab = A.newlabel("Lok")
    A("s_cmp_eq_u64 s[44:45], -1")
    A(f"s_cbranch_scc1 {lab}")
    A(f"v_mov_b32 v{t0}, {NONCE_LDS + 4}")
    A(f"v_mov_b32 v{t1}, 1")
    A(f"ds_write_b32 v{t0}, v{t1}")
    A("s_waitcnt lgkmcnt(0)")
    A.label(lab)
    if part: emit_flag_read(A, r)

def emit_flag_read(A, r):
    t0 = r.t[0]
    A("s_barrier")
    A(f"v_mov_b32 v{t0}, {NONCE_LDS + 4}")
    A(f"ds_read_b32 v{t0}, v{t0}")
    A("s_waitcnt lgkmcnt(0)")
    A(f"v_readfirstlane_b32 s40, v{t0}")
    A("s_nop 3")
    A("s_cmp_lg_u32 s40, 0")

def emit_slow_compute(A, r, name):
    t = r.t
    m = [t[4], t[5]]
    addrs = [r.kE, r.kO, r.tE, r.tO, r.vA]
    back = (8 % NSLOT) * SLOT
    for x in addrs: A(f"v_subrev_u32 v{x}, {back}, v{x}")
    for u in range(2):
        A(f"v_mov_b32 v{r.Qt[u]+1}, 0")
        A(f"v_mov_b32 v{m[u]}, 0xff800000")
        for i in range(16): A(f"v_mov_b32 v{r.O[u]+i}, 0")
    for ps in range(2):
        A(f"s_mov_b32 s46, 0")
        A.label(f"{name}_sl{ps}")
        A("s_barrier")
        A(f"s_mov_b32 s47, 0")
        A.label(f"{name}_st{ps}")
        for par in range(2):
            attn.k_reads(A, r, par, 0)
            if ps == 1: attn.v_reads(A, r, par, 0)
            A("s_waitcnt lgkmcnt(0)")
            for u in range(2):
                S0 = r.S[u]
                attn.mf_main(A, r, S0, 0, u)
                attn.mf_tail(A, r, S0, 0, u)
            A("s_nop 15")
            for u in range(2):
                S0 = r.S[u]
                if ps == 0:
                    for k in range(0, 16, 2):
                        A(f"v_max3_f32 v{m[u]}, v{m[u]}, v{S0+k}, v{S0+k+1}")
                else:
                    for k in range(16): A(f"v_sub_f32 v{S0+k}, v{S0+k}, v{m[u]}")
                    for k in range(16): A(f"v_exp_f32 v{S0+k}, v{S0+k}")
                    A("s_nop 1")
                    attn.mf_pv(A, r, u, r.V1[0], S0)
                    attn.mf_pv(A, r, u, r.V2[0], S0 + 8)
            if ps == 1: A("s_nop 7")
        for x in addrs: A(f"v_add_u32 v{x}, 128, v{x}")
        A("s_add_u32 s47, s47, 1\ns_cmp_lt_u32 s47, 4")
        A(f"s_cbranch_scc1 {name}_st{ps}")
        for x in addrs: A(f"v_subrev_u32 v{x}, 512, v{x}")
        A("s_barrier")
        A("s_add_u32 s46, s46, 1\ns_cmp_lt_u32 s46, 8")
        A(f"s_cbranch_scc1 {name}_sl{ps}")
        if ps == 0:
            A(f"v_mov_b32 v{t[0]}, v{m[0]}\nv_mov_b32 v{t[1]}, v{m[1]}")
            A("s_nop 1")
            A(f"v_permlane32_swap_b32 v{m[0]}, v{t[0]}")
            A(f"v_permlane32_swap_b32 v{m[1]}, v{t[1]}")
            A("s_nop 1")
            A(f"v_max_f32 v{m[0]}, v{m[0]}, v{t[0]}")
            A(f"v_max_f32 v{m[1]}, v{m[1]}, v{t[1]}")
    A("s_nop 15")

def emit_slow_loader(A, r, L, name):
    A(f"s_mov_b32 s46, 0")
    A.label(f"{name}_lsl")
    A(f"s_and_b32 s{r.s_seg}, s46, 7")
    A(f"s_mov_b32 s{r.s_slotw}, 0")
    emit_loader_kv_dma(A, r, L)
    A("s_waitcnt vmcnt(0)")
    A("s_barrier")
    A("s_barrier")
    A("s_add_u32 s46, s46, 1\ns_cmp_lt_u32 s46, 16")
    A(f"s_cbranch_scc1 {name}_lsl")

def gen_fused(name="fused_kernel", rt=None):
    A = Asm(); r = R(); g = R(); L = R()
    V = RegAlloc(1, 168, "v")
    attn.alloc_sregs(r); qkv.alloc_gemm_sregs(g)
    lane = V.alloc("lane"); tt = [V.alloc(f"t{i}") for i in range(6)]
    r.lane = lane; r.t = tt
    r.kE = V.alloc("kE"); r.kO = V.alloc("kO"); r.tE = V.alloc("tE"); r.tO = V.alloc("tO"); r.vA = V.alloc("vA")
    r.qE = V.alloc("qE"); r.qO = V.alloc("qO")
    g.ea = [V.alloc(f"ea{i}") for i in range(4)]; g.ed = [V.alloc(f"ed{i}") for i in range(4)]; g.esc = V.alloc("esc")
    vTR = V.alloc("vTR") if OPT.get("trace") else 0
    base = V.next
    Va = RegAlloc(base, 168, "v")
    r.idx = Va.alloc("idx")
    r.Qm = [Va.alloc(f"Qm{u}", 4, 2) for u in range(2)]
    r.Qt = [Va.alloc(f"Qt{u}", 2, 2) for u in range(2)]
    r.Km = [Va.alloc(f"Km{p}", 4, 2) for p in range(2)]
    r.Kt = [Va.alloc(f"Kt{p}", 2, 2) for p in range(2)]
    r.V1 = [Va.alloc(f"V1{p}", 4, 2) for p in range(2)]
    r.V2 = [Va.alloc(f"V2{p}", 4, 2) for p in range(2)]
    r.S = [Va.alloc(f"S{i}", 16, 4) for i in range(4)]
    r.O = [Va.alloc(f"O{u}", 16, 4) for u in range(2)]
    Vg = RegAlloc(base, 168, "v")
    g.aA = [Vg.alloc(f"aA{k}") for k in range(2)]
    g.aB = [Vg.alloc(f"aB{t}") for t in range(4)]
    g.FA = [[Vg.alloc(f"FA{s}{i}", 4, 2) for i in range(4)] for s in range(2)]
    g.FB = [[Vg.alloc(f"FB{s}{t}", 4, 2) for t in range(4)] for s in range(2)]
    g.acc = [[Vg.alloc(f"acc{i}{t}", 4, 4) for t in range(4)] for i in range(4)]
    vN = Vg.alloc("vN"); vPF = Vg.alloc("vPF"); vT = Vg.alloc("vT", 2, 2)
    Vl = RegAlloc(base, 168, "v")
    L.vx = [Vl.alloc(f"vx{i}") for i in range(4)]
    L.vw = [Vl.alloc(f"vw{i}") for i in range(2)]
    L.vdma = [Vl.alloc(f"vd{i}") for i in range(9)]
    L.vflag = Vl.alloc("vflag"); L.vlds = Vl.alloc("vlds")
    L.buf = [Vl.alloc(f"buf{i}", 4, 4) for i in range(9)]
    L.s_lw = 38; L.s_lds = list(range(72, 81)); L.s_dbg = 82; L.s_sh = 39; L.s_nonce = 81
    nv = max(Va.next, Vg.next, Vl.next)

    A(f".globl {name}\n.p2align 8\n.type {name},@function")
    A.label(name)
    A(f"s_cmp_ge_u32 s2, 256\ns_cbranch_scc1 {name}_end")
    A(f"s_load_dwordx2 s[{r.s_ws}:{r.s_ws+1}], s[0:1], 64")
    A("s_load_dwordx4 s[72:75], s[0:1], 0")
    A("s_load_dwordx4 s[76:79], s[0:1], 24")
    A(f"s_load_dwordx2 s[{L.s_dbg}:{L.s_dbg+1}], s[0:1], 56")
    F3 = OPT.get("fuse3", 1)
    if F3:
        r.no_osrd = True
        A("s_load_dwordx2 s[12:13], s[0:1], 16")
        A("s_load_dwordx2 s[6:7], s[0:1], 40")
        A("s_load_dwordx2 s[14:15], s[0:1], 48")
    S = Stamper(A, rt, enabled=rt is not None); S.start()
    T = Tracer(A, vTR, enabled=bool(OPT.get("trace"))); T.init(); T.mark(0); g.T = T
    attn.emit_ids(A, r)
    A("s_waitcnt lgkmcnt(0)")
    T.mark(22)
    A(f"s_cmp_eq_u32 s{r.s_b}, 0")
    A(f"s_cselect_b32 s{g.s_xsrd}, s72, s76")
    A(f"s_cselect_b32 s{g.s_xsrd+1}, s73, s77")
    A(f"s_cselect_b32 s{g.s_wsrd}, s74, s78")
    A(f"s_cselect_b32 s{g.s_wsrd+1}, s75, s79")
    if F3: A("s_cselect_b32 s12, s12, s6\ns_cselect_b32 s13, s13, s7")
    A(f"s_mov_b32 s{g.s_xsrd+2}, {2048*1152}\ns_mov_b32 s{g.s_xsrd+3}, 0x20000")
    A(f"s_mov_b32 s{g.s_wsrd+2}, {576*3456}\ns_mov_b32 s{g.s_wsrd+3}, 0x20000")
    if OPT.get("tlb", 0):
        labt = A.newlabel("Ltlb")
        A(f"s_cmp_lg_u32 s{r.s_w}, 7\ns_cbranch_scc1 {labt}")
        A(f"s_load_dword s40, s[{g.s_wsrd}:{g.s_wsrd+1}], 0")
        A(f"s_lshl_b32 s46, s{r.s_c}, 8\ns_mul_i32 s46, s46, 1152")
        A(f"s_load_dword s41, s[{g.s_xsrd}:{g.s_xsrd+1}], s46")
        A(f"s_mul_i32 s46, s{r.s_b}, {BLK_BYTES}\ns_mul_i32 s47, s{r.s_hp}, {36*4096}\ns_add_u32 s46, s46, s47\ns_add_u32 s46, s46, {576*4096}")
        A(f"s_load_dword s42, s[{r.s_ws}:{r.s_ws+1}], s46")
        A(f"s_add_u32 s47, s46, {576*4096}")
        A(f"s_load_dword s43, s[{r.s_ws}:{r.s_ws+1}], s47")
        A(f"s_mov_b32 s48, {FLAG_OFF}")
        A(f"s_load_dword s44, s[{r.s_ws}:{r.s_ws+1}], s48")
        A(f"s_mul_i32 s49, s{r.s_b}, {O_BLK}\ns_add_u32 s49, s49, {O_OFF}")
        A(f"s_load_dword s45, s[{r.s_ws}:{r.s_ws+1}], s49")
        A.label(labt)
    A(f"s_cmp_ge_u32 s{r.s_w}, 8")
    A(f"s_cbranch_scc1 {name}_loader")
    pf = OPT.get("pf", 6)
    if pf == 1: emit_prefetch_batch(A, r, g, vPF, {0: ("x", 2, 3), 1: ("w", 2, 3)})
    if pf == 2: emit_prefetch_batch(A, r, g, vPF, {0: ("x", 2, 3), 1: ("w", 2, 3), 2: ("x", 4, 5), 3: ("w", 4, 5)})
    if pf == 3: emit_prefetch_batch(A, r, g, vPF, {0: ("x", 2, 3), 1: ("w", 2, 3), 2: ("x", 4, 5), 3: ("w", 4, 5), 4: ("x", 6, 7), 5: ("w", 6, 7), 6: ("x", 8, 8), 7: ("w", 8, 8)})
    g.pf2 = {1: {2: ("x", 4, 5), 3: ("w", 4, 5), 4: ("x", 6, 7), 5: ("w", 6, 7), 6: ("x", 8, 8), 7: ("w", 8, 8)}, 2: {4: ("x", 6, 7), 5: ("w", 6, 7), 6: ("x", 8, 8), 7: ("w", 8, 8)}}.get(pf, {})
    g.pfreg = vPF
    if pf == 6:
        emit_prefetch_batch(A, r, g, vPF, {0: ("x", 2, 5), 1: ("w", 2, 2), 2: ("w", 3, 3), 3: ("w", 4, 4)})
        g.pf2 = {0: ("x", 6, 8), 1: ("w", 5, 5), 2: ("w", 6, 6), 3: ("w", 7, 7), 4: ("w", 8, 8)}
    if pf == 7:
        emit_prefetch_batch(A, r, g, vPF, {0: ("x", 2, 5), 1: ("w", 2, 2), 2: ("w", 3, 3)})
        g.pf2 = {0: ("x", 6, 8), 1: ("w", 4, 4), 2: ("w", 5, 5), 3: ("w", 6, 6), 4: ("w", 7, 7), 5: ("w", 8, 8)}
    if pf == 8:
        emit_prefetch_batch(A, r, g, vPF, {1: ("w", 2, 2), 2: ("w", 3, 3)})
        g.pf2 = {0: ("x", 6, 8), 1: ("w", 4, 4), 2: ("w", 5, 5), 3: ("w", 6, 6), 4: ("w", 7, 7), 5: ("w", 8, 8)}
    if pf == 9:
        emit_prefetch_batch(A, r, g, vPF, {1: ("w", 3, 3), 0: ("x", 4, 7)})
        g.pf2 = {0: ("x", 8, 8), 1: ("w", 4, 4), 2: ("w", 5, 5), 3: ("w", 6, 6), 4: ("w", 7, 7), 5: ("w", 8, 8)}
    if pf == 10:
        g.pf2 = {0: ("x", 4, 7), 1: ("w", 3, 3), 2: ("w", 4, 4), 3: ("w", 5, 5), 4: ("w", 6, 6), 5: ("w", 7, 7), 6: ("w", 8, 8), 7: ("x", 8, 8)}
    if pf == 11:
        emit_prefetch_batch(A, r, g, vPF, {0: ("x", 2, 5), 1: ("w", 2, 2), 2: ("w", 3, 3)})
        g.pf2 = {0: ("x", 6, 8), 1: ("w", 4, 4), 2: ("w", 5, 5), 3: ("w", 6, 6), 4: ("w", 7, 7), 5: ("w", 8, 8)}
    if pf == 4: g.pf2 = {2: ("x", 4, 5), 3: ("w", 4, 5), 4: ("x", 6, 7), 5: ("w", 6, 7), 6: ("x", 8, 8), 7: ("w", 8, 8)}
    if pf == 5: g.pf_pre = {2: ("x", 4, 5), 3: ("w", 4, 5), 4: ("x", 6, 7), 5: ("w", 6, 7), 6: ("x", 8, 8), 7: ("w", 8, 8)}
    attn.emit_srds(A, r)
    labn = A.newlabel("Lnonce")
    A(f"s_cmp_lg_u32 s{r.s_w}, 0\ns_cbranch_scc1 {labn}")
    A("s_memrealtime s[94:95]\ns_waitcnt lgkmcnt(0)")
    A("s_or_b32 s94, s94, 1")
    A(f"v_mov_b32 v{vT}, s94\nv_mov_b32 v{vT+1}, 0\nv_mov_b32 v{vN}, 0")
    A(f"v_cmp_eq_u32 vcc, 0, v{r.lane}")
    A("s_and_saveexec_b64 s[36:37], vcc")
    A(f"global_atomic_cmpswap v{vN}, v{vN}, v[{vT}:{vT+1}], s[{L.s_dbg}:{L.s_dbg+1}] sc0 sc1")
    A("s_mov_b64 exec, s[36:37]")
    A.label(labn)
    emit_compute_gemm_setup(A, r, g)
    attn.emit_read_addrs(A, r)
    A(f"v_mov_b32 v{r.qE}, v{r.t[4]}\nv_mov_b32 v{r.qO}, v{r.t[5]}")
    labe = A.newlabel("Lea"); labf = A.newlabel("Lea")
    A(f"s_cmp_ge_u32 s{r.s_w}, 4\ns_cbranch_scc1 {labe}")
    emit_epi_addr(A, r, g, 0)
    A(f"s_branch {labf}")
    A.label(labe)
    emit_epi_addr(A, r, g, 1)
    A.label(labf)
    emit_compute_gemm(A, r, g, name, S)
    S.mark(3)
    A("s_waitcnt vmcnt(0)")
    labn2 = A.newlabel("Lnonce")
    A(f"s_cmp_lg_u32 s{r.s_w}, 0\ns_cbranch_scc1 {labn2}")
    A("s_waitcnt vmcnt(0)")
    A(f"v_cmp_eq_u32 vcc, 0, v{vN}")
    A(f"v_mov_b32 v{r.t[0]}, {NONCE_LDS}")
    A("s_nop 0")
    A(f"v_cndmask_b32 v{vN}, v{vN}, v{vT}, vcc")
    A(f"v_cmp_eq_u32 vcc, 0, v{r.lane}")
    A("s_and_saveexec_b64 s[36:37], vcc")
    A(f"ds_write_b32 v{r.t[0]}, v{vN}")
    A(f"v_mov_b32 v{r.t[1]}, 0")
    A(f"ds_write_b32 v{r.t[0]}, v{r.t[1]} offset:4")
    A(f"ds_write_b32 v{r.t[0]}, v{r.t[1]} offset:8")
    A(f"ds_write_b32 v{r.t[0]}, v{r.t[1]} offset:12")
    A("s_mov_b64 exec, s[36:37]")
    A.label(labn2)
    A(f"v_mov_b32 v{r.idx}, 0xdddddddd")
    A("s_waitcnt lgkmcnt(0)")
    A("s_barrier")
    if OPT.get("fuse3", 1): tail.emit_srds(A, r)
    attn.emit_q_frags(A, r)
    attn.emit_attn_prologue(A, r)
    S.mark(4)
    T.mark(26)
    attn.OPT["nodma"] = 1
    attn.OPT["extdma"] = 1
    attn.OPT["tracer"] = T if OPT.get("itrace") else None
    attn.emit_attn_loop(A, r, name)
    S.mark(5)
    T.mark(27)
    if OPT.get("fuse3", 1):
        emit_check(A, r, name, part=0)
        tail.emit_publish_o(A, r)
        emit_flag_read(A, r)
        A(f"s_cbranch_scc0 {name}_go3")
        emit_slow_compute(A, r, name)
        A("s_waitcnt vmcnt(0)")
        tail.emit_publish_o(A, r)
        A.label(f"{name}_go3")
        lab4 = A.newlabel("Lw4")
        A(f"s_cmp_lt_u32 s{r.s_w}, 4\ns_cbranch_scc1 {lab4}")
        tail.emit_flag_o(A, r, NONCE_LDS, S)
        A(f"s_branch {name}_fin")
        A.label(lab4)
        nv3 = tail.emit_compute(A, r, name, base, T, pre_g3=lambda: tail.emit_flag_o(A, r, NONCE_LDS, S))
        assert nv3 <= nv
    else:
        emit_check(A, r, name)
        A(f"s_cbranch_scc0 {name}_store")
        emit_slow_compute(A, r, name)
        A.label(f"{name}_store")
        attn.emit_attn_store(A, r, OPT.get("oflags", ""))
    A(f"s_branch {name}_fin")
    A.label(f"{name}_loader")
    A("s_setprio 3")
    A(f"s_sub_u32 s{L.s_lw}, s{r.s_w}, 8")
    pfv = OPT.get("pf", 6)
    if pfv in (8, 9, 10, 11):
        done8 = A.newlabel("Lpf8")
        jobs8 = {0: ("x", 0, 1), 1: ("w", 0, 0), 2: ("w", 1, 1), 3: ("x", 2, 5)} if pfv == 8 else {0: ("x", 0, 3), 1: ("w", 0, 0), 2: ("w", 1, 1), 3: ("w", 2, 2)}
        if pfv == 11: jobs8 = {0: ("x", 0, 1), 1: ("w", 0, 0), 2: ("w", 1, 1)}
        for lw, job in jobs8.items():
            lab8 = A.newlabel("Lpf8")
            A(f"s_cmp_eq_u32 s{L.s_lw}, {lw}\ns_cbranch_scc0 {lab8}")
            emit_prefetch(A, r, g, L.vflag, *job)
            A(f"s_branch {done8}")
            A.label(lab8)
        A.label(done8)
    emit_loader_gemm_setup(A, r, g, L)
    A(f"s_mov_b32 s{g.s_kc}, 0\ns_mov_b32 s{g.s_stw}, 0")
    if pfv in (8, 9, 10, 11): A("s_waitcnt vmcnt(0)")
    T.mark(23)
    emit_loader_gemm_dma(A, r, g, L)
    T.mark(24)
    emit_loader_gemm_dma(A, r, g, L)
    npf = 0
    T.mark(1)
    A(f"s_waitcnt vmcnt({12 + npf})")
    T.mark(2)
    A("s_barrier")
    S.mark(2)
    emit_loader_gemm_dma(A, r, g, L)
    for kc in range(NCH):
        rem = max(0, min(NCH - 1, kc + 2) - (kc + 1))
        A(f"s_waitcnt vmcnt({12*rem})")
        T.mark(3 + 2 * kc)
        A("s_barrier")
        T.mark(4 + 2 * kc)
        if kc + 3 < NCH: emit_loader_gemm_dma(A, r, g, L)
    S.mark(3)
    attn.emit_srds(A, r)
    emit_loader_kv_setup(A, r, L)
    emit_loader_ones(A, r, L)
    A(f"s_lshl_b32 s{r.s_t[0]}, s{r.s_b}, 4")
    A(f"s_add_u32 s{r.s_t[0]}, s{r.s_t[0]}, s{r.s_hp}")
    A(f"s_lshl_b32 s{r.s_t[0]}, s{r.s_t[0]}, 10")
    A(f"s_add_u32 s{r.s_t[0]}, s{r.s_t[0]}, {FLAG_OFF}")
    A(f"v_mov_b32 v{L.vflag}, s{r.s_t[0]}")
    A(f"v_lshlrev_b32 v{L.vlds}, 4, v{r.lane}")
    for i in range(9):
        A(f"v_add_u32 v{L.buf[i]+3}, s{L.s_lds[i]}, v{L.vlds}")
    A(f"s_lshl_b32 s{r.s_chunk}, s{r.s_c}, 9")
    A(f"v_mov_b32 v{r.t[2]}, {NONCE_LDS}")
    A("s_waitcnt lgkmcnt(0)")
    A("s_barrier")
    for i in range(9):
        A(f"ds_read_b128 v[{L.buf[i]}:{L.buf[i]+3}], v{L.buf[i]+3}")
    A(f"ds_read_b32 v{r.t[2]}, v{r.t[2]}")
    for i in range(9):
        A(f"s_waitcnt lgkmcnt({9-i})")
        A(f"buffer_store_dwordx4 v[{L.buf[i]}:{L.buf[i]+3}], v{L.vdma[i]}, s[{r.s_srd}:{r.s_srd+3}], s{r.s_chunk} offen sc1")
    A("s_waitcnt lgkmcnt(0)")
    A(f"v_readfirstlane_b32 s{L.s_nonce}, v{r.t[2]}")
    A("s_waitcnt vmcnt(0)")
    S.mark(4)
    A(f"s_lshl_b32 s{r.s_t[0]}, s{r.s_c}, 7")
    A(f"v_add_u32 v{r.t[0]}, s{r.s_t[0]}, v{L.vflag}")
    A(f"v_mov_b32 v{r.t[1]}, s{L.s_nonce}")
    A(f"v_mov_b32 v{r.t[2]}, {NONCE_LDS}\nv_mov_b32 v{r.t[3]}, 1")
    A(f"v_cmp_eq_u32 vcc, 0, v{r.lane}")
    A("s_and_saveexec_b64 s[36:37], vcc")
    if OPT.get("kv1flag", 1):
        A(f"ds_add_rtn_u32 v{r.t[3]}, v{r.t[2]}, v{r.t[3]} offset:8")
        A("s_waitcnt lgkmcnt(0)")
        A(f"v_cmp_eq_u32 vcc, 3, v{r.t[3]}")
        A("s_and_b64 exec, exec, vcc")
        labk = A.newlabel("Lkf")
        A(f"s_cbranch_execz {labk}")
        A(f"global_store_dword v{r.t[0]}, v{r.t[1]}, s[{r.s_ws}:{r.s_ws+1}] sc1")
        A.label(labk)
    else:
        A(f"s_lshl_b32 s{r.s_t[1]}, s{L.s_lw}, 2")
        A(f"v_add_u32 v{r.t[0]}, s{r.s_t[1]}, v{r.t[0]}")
        A(f"global_store_dword v{r.t[0]}, v{r.t[1]}, s[{r.s_ws}:{r.s_ws+1}] sc1")
    A("s_mov_b64 exec, s[36:37]")
    if OPT.get("xorseg", 0): A(f"s_mov_b32 s50, 1\ns_xor_b32 s{r.s_seg}, s{r.s_c}, 1")
    else: A(f"s_add_u32 s{r.s_seg}, s{r.s_c}, 1\ns_and_b32 s{r.s_seg}, s{r.s_seg}, 7")
    A(f"s_mov_b32 s{r.s_slotw}, {SLOT}")
    emit_poll(A, r, L, r.s_seg)
    S.mark(5)
    emit_loader_kv_dma(A, r, L)
    if OPT.get("fuse3", 1):
        tail.emit_srds(A, r)
        P = tail.emit_loader_setup(A, r, L, Vl.next)
        assert P.top <= nv
    for i in range(8):
        A("s_waitcnt vmcnt(0)")
        if i == 0: S.mark(6)
        A("s_barrier")
        if i == 5 and OPT.get("pfwo", 1):
            if not F3:
                A("s_load_dwordx2 s[40:41], s[0:1], 16")
                A("s_load_dwordx2 s[42:43], s[0:1], 40")
            A(f"s_lshl_b32 s46, s{r.s_hp}, 1\ns_and_b32 s47, s{r.s_c}, 1\ns_add_u32 s46, s46, s47\ns_mul_i32 s46, s46, 162")
            A(f"s_lshl_b32 s47, s{L.s_lw}, 6")
            A(f"v_add_u32 v{r.t[1]}, s47, v{r.lane}")
            A(f"v_min_u32 v{r.t[1]}, 161, v{r.t[1]}")
            A(f"v_add_u32 v{r.t[1]}, s46, v{r.t[1]}")
            A(f"v_lshlrev_b32 v{r.t[1]}, 7, v{r.t[1]}")
            if not F3:
                A("s_waitcnt lgkmcnt(0)")
                A(f"s_cmp_eq_u32 s{r.s_b}, 0")
                A("s_cselect_b32 s44, s40, s42\ns_cselect_b32 s45, s41, s43")
                A(f"global_load_dword v{r.t[2]}, v{r.t[1]}, s[44:45]")
            else:
                A(f"global_load_dword v{r.t[2]}, v{r.t[1]}, s[12:13]")
        if i + 2 < 8:
            emit_poll(A, r, L, r.s_seg)
            emit_loader_kv_dma(A, r, L)
        if F3 and i == 6: tail.emit_w_chunks(A, r, L, P, range(0, 7))
        if F3 and i == 7: tail.emit_w_chunks(A, r, L, P, range(7, 9))
    emit_flag_read(A, r)
    A(f"s_cbranch_scc0 {name}_noslow")
    emit_slow_loader(A, r, L, name)
    if OPT.get("fuse3", 1):
        tail.emit_w_chunks(A, r, L, P, range(7, 9))
    A.label(f"{name}_noslow")
    if OPT.get("fuse3", 1):
        tail.emit_loader(A, r, L, P, name, T, S)
    A.label(f"{name}_fin")
    T.mark(30)
    T.dump(r.s_ws, r.t[0])
    S.dump(r.s_ws, r.t[0], r.S[0])
    A.label(f"{name}_end")
    A("s_endpgm")
    return A.text(), nv
```

```python
from emit import *

OX_OFF = 0x1000000
OXB = 18432
FL_REL = 0x900000
X_BYTES = 0xA00000
WCH = 64 * 144
WB1 = 83968
WB2 = 0
def wbase(j): return WB1 + j * WCH if j < 7 else WB2 + (j - 7) * WCH
OB = 2 * WCH
XST = 16384; NST = 4; NCH = 9
LDS_END = WB1 + 7 * WCH
assert OB + NST * XST <= WB1
S_XSRD = 56; S_WSRD = 60; S_DSRD = 64
OPT = {}
PERM = [0, 2, 4, 6, 9, 11, 13, 15, 1, 3, 5, 7, 8, 10, 12, 14]

def emit_srds(A, r):
    A(f"s_add_u32 s{S_XSRD}, s{r.s_ws}, {OX_OFF}\ns_addc_u32 s{S_XSRD+1}, s{r.s_ws+1}, 0")
    A(f"s_mov_b32 s{S_XSRD+2}, {X_BYTES}\ns_mov_b32 s{S_XSRD+3}, 0x20000")
    A(f"s_mov_b32 s{S_WSRD}, s12\ns_mov_b32 s{S_WSRD+1}, s13")
    A(f"s_mov_b32 s{S_WSRD+2}, {576*1152}\ns_mov_b32 s{S_WSRD+3}, 0x20000")
    A(f"s_mov_b32 s{S_DSRD}, s14\ns_mov_b32 s{S_DSRD+1}, s15\ns_mov_b32 s{S_DSRD+2}, {2048*2304}\ns_mov_b32 s{S_DSRD+3}, 0x20000")

def emit_publish_o(A, r):
    t0, t1, t2, t3 = r.t[:4]
    st, st2, st3, st4 = r.s_t
    for u in range(2):
        A(f"v_rcp_f32 v{r.t[4+u]}, v{r.O[u]+10}")
    A(f"s_lshl_b32 s{st}, s{r.s_b}, 3\ns_add_u32 s{st}, s{st}, s{r.s_c}\ns_lshl_b32 s{st}, s{st}, 4\ns_add_u32 s{st}, s{st}, s{r.s_hp}\ns_mul_i32 s{st}, s{st}, {OXB}")
    A(f"s_lshr_b32 s{st2}, s{r.s_w}, 2")
    A(f"s_and_b32 s{st3}, s{r.s_w}, 3")
    A(f"s_lshl_b32 s{st4}, s{st2}, 10\ns_add_u32 s{st4}, s{st4}, s{st}\ns_add_u32 s{st4}, s{st4}, 16384")
    A(f"s_lshl_b32 s{st2}, s{st2}, 13\ns_add_u32 s{st}, s{st}, s{st2}")
    A(f"s_lshl_b32 s{st2}, s{st3}, 11\ns_add_u32 s{st}, s{st}, s{st2}")
    A(f"s_lshl_b32 s{st2}, s{st3}, 8\ns_add_u32 s{st4}, s{st4}, s{st2}")
    A(f"v_and_b32 v{t0}, 31, v{r.lane}")
    A(f"v_lshrrev_b32 v{t1}, 5, v{r.lane}")
    A(f"v_lshlrev_b32 v{t2}, 5, v{t0}")
    A(f"v_lshl_add_u32 v{t2}, v{t1}, 4, v{t2}")
    A(f"v_lshlrev_b32 v{t3}, 2, v{t0}")
    for u in range(2):
        o = r.O[u]; rc = r.t[4 + u]
        for i in range(10):
            A(f"v_mul_f32 v{o+i}, v{o+i}, v{rc}")
        pk = r.S[u]
        for i in range(5):
            A(f"v_cvt_pk_bf16_f32 v{pk+i}, v{o+2*i}, v{o+2*i+1}")
        A(f"buffer_store_dwordx4 v[{pk}:{pk+3}], v{t2}, s[{S_XSRD}:{S_XSRD+3}], s{st} offen offset:{1024*u} sc1")
        A("s_mov_b64 s[36:37], exec")
        A("s_mov_b32 exec_hi, 0")
        A(f"buffer_store_dword v{pk+4}, v{t3}, s[{S_XSRD}:{S_XSRD+3}], s{st4} offen offset:{128*u} sc1")
        A("s_mov_b64 exec, s[36:37]")

def emit_flag_o(A, r, nonce_lds, S=None):
    t0, t1, t2 = r.t[:3]
    st, st2 = r.s_t[:2]
    A(f"v_mov_b32 v{t1}, {nonce_lds}")
    A(f"v_mov_b32 v{t2}, 1")
    A(f"s_lshl_b32 s{st}, s{r.s_b}, 3\ns_add_u32 s{st}, s{st}, s{r.s_c}\ns_lshl_b32 s{st}, s{st}, 4\ns_add_u32 s{st}, s{st}, s{r.s_hp}")
    A(f"s_lshl_b32 s{st}, s{st}, 7\ns_add_u32 s{st}, s{st}, {FL_REL}")
    A(f"v_mov_b32 v{t0}, s{st}")
    A("s_waitcnt vmcnt(0)")
    if S: S.mark(7)
    A(f"v_cmp_eq_u32 vcc, 0, v{r.lane}")
    A("s_and_saveexec_b64 s[36:37], vcc")
    A(f"ds_add_rtn_u32 v{t2}, v{t1}, v{t2} offset:12")
    A(f"ds_read_b32 v{t1}, v{t1}")
    A("s_waitcnt lgkmcnt(0)")
    A(f"v_cmp_eq_u32 vcc, 7, v{t2}")
    A("s_and_b64 exec, exec, vcc")
    lab = A.newlabel("Lfo")
    A(f"s_cbranch_execz {lab}")
    A(f"buffer_store_dword v{t1}, v{t0}, s[{S_XSRD}:{S_XSRD+3}], 0 offen sc1")
    A.label(lab)
    A("s_mov_b64 exec, s[36:37]")

def emit_compute(A, r, name, base, T=None, pre_g3=None):
    V = RegAlloc(base, 168, "v")
    t0, t1, t2, t3, t4, t5 = r.t
    lane = r.lane
    NT = 4
    aB = [V.alloc(f"aB{k}") for k in range(2)]
    aA = [V.alloc(f"aA{k}") for k in range(3)]
    aT = [V.alloc(f"aT{k}") for k in range(4)]
    FO = [[V.alloc(f"FO{s}{i}", 4, 2) for i in range(NT)] for s in range(2)]
    FW = [[V.alloc(f"FW{s}{i}", 4, 2) for i in range(3)] for s in range(2)]
    acc = [[V.alloc(f"acc{i}{c}", 4, 4) for c in range(3)] for i in range(NT)]
    st, st2, st3, st4 = r.s_t
    s_w = r.s_w; s_it = r.s_it; s_rst = 46; s_gd = 47
    A(f"s_and_b32 s{st3}, s{s_w}, 1")
    A(f"v_and_b32 v{t0}, 15, v{lane}")
    A(f"v_lshrrev_b32 v{t1}, 1, v{t0}")
    A(f"v_lshrrev_b32 v{t2}, 4, v{lane}")
    A(f"v_xor_b32 v{t1}, v{t1}, v{t2}")
    A(f"s_lshl_b32 s{st}, s{st3}, 13\ns_add_u32 s{st}, s{st}, {OB}")
    A(f"v_lshlrev_b32 v{t3}, 7, v{t0}")
    A(f"v_add_u32 v{t3}, s{st}, v{t3}")
    A(f"v_lshl_add_u32 v{aB[0]}, v{t1}, 4, v{t3}")
    A(f"v_xor_b32 v{t1}, 4, v{t1}")
    A(f"v_lshl_add_u32 v{aB[1]}, v{t1}, 4, v{t3}")
    A(f"v_lshlrev_b32 v{t2}, 11, v{t2}")
    A(f"v_lshl_add_u32 v{t2}, v{t0}, 2, v{t2}")
    A(f"s_lshl_b32 s{st}, s{st3}, 8\ns_add_u32 s{st}, s{st}, {OB + (8 % NST) * XST}")
    A(f"v_add_u32 v{aT[0]}, s{st}, v{t2}")
    A(f"v_add_u32 v{aT[1]}, 1024, v{aT[0]}")
    A(f"v_add_u32 v{aT[2]}, 8192, v{aT[0]}")
    A(f"v_add_u32 v{aT[3]}, 9216, v{aT[0]}")
    A(f"v_lshrrev_b32 v{t0}, 4, v{lane}")
    A(f"v_lshrrev_b32 v{t1}, 2, v{lane}")
    A(f"v_and_b32 v{t1}, 3, v{t1}")
    A(f"v_lshl_add_u32 v{t2}, v{t0}, 2, v{t1}")
    A(f"v_mul_u32_u24 v{t2}, 144, v{t2}")
    A(f"v_add_u32 v{t2}, {WB1}, v{t2}")
    A(f"v_and_b32 v{t3}, 3, v{lane}")
    def tile_addr(dst, ct):
        A(f"v_lshl_add_u32 v{dst}, v{t3}, 3, v{t2}")
        if ct: A(f"v_add_u32 v{dst}, {32*ct}, v{dst}")
    end = A.newlabel("Lt3e")
    for cg in range(2):
        tiles = [0, 1, 4] if cg == 0 else [2, 3]
        nt = len(tiles)
        nxt = A.newlabel("Lt3c")
        if cg == 0: A(f"s_cmp_ge_u32 s{s_w}, 2\ns_cbranch_scc1 {nxt}")
        for k, ct in enumerate(tiles): tile_addr(aA[k], ct)
        for i in range(NT):
            for c in range(nt):
                for j in range(4): A(f"v_mov_b32 v{acc[i][c]+j}, 0")
        def rlist(s, ks, tailchunk=False):
            out = []
            if OPT.get("nord"): return out
            def wr(c):
                out.append(f"ds_read_b64_tr_b16 v[{FW[s][c]}:{FW[s][c]+1}], v{aA[c]} offset:{4608*ks}")
                out.append(f"ds_read_b64_tr_b16 v[{FW[s][c]+2}:{FW[s][c]+3}], v{aA[c]} offset:{4608*ks+16*144}")
            wr(0)
            for i in range(NT):
                if tailchunk:
                    out.append(f"ds_read2_b32 v[{FO[s][i]}:{FO[s][i]+1}], v{aT[2*ks]} offset0:{16*i} offset1:{16*i+128}")
                    out.append(f"ds_read2_b32 v[{FO[s][i]+2}:{FO[s][i]+3}], v{aT[2*ks+1]} offset0:{16*i} offset1:{16*i+128}")
                else:
                    out.append(f"ds_read_b128 v[{FO[s][i]}:{FO[s][i]+3}], v{aB[ks]} offset:{2048*i}")
            for c in range(1, nt): wr(c)
            return out
        def mlist(s):
            out = []
            if OPT.get("nomf"): return ["s_nop 0"]
            for c in range(nt):
                for i in range(NT):
                    out.append(f"v_mfma_f32_16x16x32_bf16 v[{acc[i][c]}:{acc[i][c]+3}], v[{FW[s][c]}:{FW[s][c]+3}], v[{FO[s][i]}:{FO[s][i]+3}], v[{acc[i][c]}:{acc[i][c]+3}]")
            return out
        def inter(mf, ex, pending=None):
            per = max(1, -(-len(ex) // max(1, len(mf) // 2)))
            k = 0
            for mi, m in enumerate(mf):
                if pending is not None and mi % NT == 0 and not OPT.get("nord"):
                    first = len(pending) - 2 * (nt - 1)
                    need = first + 2 * (mi // NT)
                    A(f"s_waitcnt lgkmcnt({min(15, len(pending) - need + k)})")
                A(m)
                for _ in range(per):
                    if k < len(ex): A(ex[k]); k += 1
            while k < len(ex): A(ex[k]); k += 1
        A(f"s_mov_b32 s{s_rst}, 0\ns_mov_b32 s{s_it}, 0")
        if pre_g3: pre_g3()
        A("s_barrier")
        if T and cg == 0: T.mark(28)
        for x in rlist(0, 0): A(x)
        lab = f"{name}_t3l{cg}"
        A.label(lab)
        inter(mlist(0), rlist(1, 1), rlist(0, 0))
        A(f"s_add_u32 s{s_rst}, s{s_rst}, 1\ns_cmp_eq_u32 s{s_rst}, {NST}")
        A(f"s_mov_b32 s{s_gd}, {XST}\ns_cmov_b32 s{s_gd}, {-(NST-1)*XST & 0xffffffff}")
        A(f"s_cselect_b32 s{s_rst}, 0, s{s_rst}")
        A("s_waitcnt lgkmcnt(0)")
        A("s_barrier")
        for x in [aB[0], aB[1]]: A(f"v_add_u32 v{x}, s{s_gd}, v{x}")
        A(f"s_cmp_eq_u32 s{s_it}, 6")
        A(f"s_mov_b32 s{s_gd}, {WCH}\ns_cmov_b32 s{s_gd}, {(wbase(7) - wbase(6)) & 0xffffffff}")
        for x in aA[:nt]: A(f"v_add_u32 v{x}, s{s_gd}, v{x}")
        A(f"s_add_u32 s{s_it}, s{s_it}, 1\ns_cmp_lt_u32 s{s_it}, 8")
        labp = A.newlabel("Lt3p")
        A(f"s_cbranch_scc0 {labp}")
        inter(mlist(1), rlist(0, 0))
        A(f"s_branch {lab}")
        A.label(labp)
        inter(mlist(1), rlist(0, 0, True))
        inter(mlist(0), rlist(1, 1, True), rlist(0, 0, True))
        A("s_waitcnt lgkmcnt(0)")
        A("s_barrier")
        for m in mlist(1): A(m)
        if T and cg == 0: T.mark(29)
        A("s_nop 7")
        A(f"v_and_b32 v{t0}, 15, v{lane}")
        A(f"s_lshl_b32 s{st}, s{r.s_c}, 8\ns_lshr_b32 s{st2}, s{r.s_hp}, 3\ns_lshl_b32 s{st2}, s{st2}, 7\ns_add_u32 s{st}, s{st}, s{st2}")
        A(f"s_and_b32 s{st2}, s{s_w}, 1\ns_lshl_b32 s{st2}, s{st2}, 6\ns_add_u32 s{st}, s{st}, s{st2}")
        A(f"v_add_u32 v{t0}, s{st}, v{t0}")
        A(f"v_mul_u32_u24 v{t0}, 2304, v{t0}")
        A(f"v_lshrrev_b32 v{t1}, 4, v{lane}")
        A(f"s_mul_i32 s{st}, s{r.s_b}, 1152\ns_and_b32 s{st2}, s{r.s_hp}, 7\ns_mul_i32 s{st2}, s{st2}, 144\ns_add_u32 s{st}, s{st}, s{st2}")
        A(f"v_and_b32 v{t2}, 1, v{t1}")
        A(f"v_lshlrev_b32 v{t2}, 5, v{t2}")
        A(f"v_lshrrev_b32 v{t3}, 1, v{t1}")
        A(f"v_lshl_add_u32 v{t2}, v{t3}, 4, v{t2}")
        A(f"v_add_u32 v{t2}, v{t2}, v{t0}")
        A(f"v_lshl_add_u32 v{t3}, v{t1}, 3, v{t0}")
        fl = OPT.get("stflags", "")
        pks = [FO[0][i] for i in range(NT)]; p2s = [FO[1][i] for i in range(NT)]
        for i in range(NT):
            a0, a1 = acc[i][0], acc[i][1]
            pk = pks[i]
            A(f"v_cvt_pk_bf16_f32 v{pk}, v{a0}, v{a0+1}\nv_cvt_pk_bf16_f32 v{pk+1}, v{a0+2}, v{a0+3}")
            A(f"v_cvt_pk_bf16_f32 v{pk+2}, v{a1}, v{a1+1}\nv_cvt_pk_bf16_f32 v{pk+3}, v{a1+2}, v{a1+3}")
            if cg == 0:
                a2 = acc[i][2]; p2 = p2s[i]
                A(f"v_cvt_pk_bf16_f32 v{p2}, v{a2}, v{a2+1}\nv_cvt_pk_bf16_f32 v{p2+1}, v{a2+2}, v{a2+3}")
        A("s_nop 1")
        for i in range(NT):
            pk = pks[i]
            A(f"v_permlane16_swap_b32 v{pk}, v{pk+2}")
            A(f"v_permlane16_swap_b32 v{pk+1}, v{pk+3}")
        A("s_nop 1")
        for i in range(NT):
            if i: A(f"s_add_u32 s{st}, s{st}, {16*2304}")
            pk = pks[i]
            A(f"buffer_store_dwordx4 v[{pk}:{pk+3}], v{t2}, s[{S_DSRD}:{S_DSRD+3}], s{st} offen offset:{64*cg}{fl}")
            if cg == 0:
                p2 = p2s[i]
                A(f"v_cmp_gt_u32 vcc, 2, v{t1}")
                A("s_and_saveexec_b64 s[36:37], vcc")
                A(f"buffer_store_dwordx2 v[{p2}:{p2+1}], v{t3}, s[{S_DSRD}:{S_DSRD+3}], s{st} offen offset:128{fl}")
                A("s_mov_b64 exec, s[36:37]")
        if cg == 0:
            A(f"s_branch {end}")
            A.label(nxt)
    A.label(end)
    return V.next

def emit_loader_setup(A, r, L, base):
    V = RegAlloc(base, 168, "v")
    t0, t1, t2, t3, t4, t5 = r.t
    lane = r.lane; st, st2, st3, st4 = r.s_t
    P = type("P", (), {})()
    P.vo = [V.alloc(f"vo{i}") for i in range(4)]
    P.vt = V.alloc("vt")
    P.vfl = V.alloc("vfl"); P.vfl2 = V.alloc("vfl2")
    P.vw = [V.alloc(f"vw{i}") for i in range(3)]
    P.vw8 = [V.alloc(f"vw8{i}") for i in range(3)]
    P.buf = [V.alloc(f"b{i}", 4, 4) for i in range(5)]
    P.top = V.next
    lw = L.s_lw
    A(f"v_lshrrev_b32 v{t0}, 3, v{lane}")
    A(f"s_lshr_b32 s{st}, s{r.s_hp}, 3\ns_lshl_b32 s{st3}, s{st}, 7\ns_lshl_b32 s{st2}, s{lw}, 5\ns_add_u32 s{st}, s{st3}, s{st2}")
    A(f"v_add_u32 v{t0}, s{st}, v{t0}")
    A(f"v_and_b32 v{t1}, 7, v{lane}")
    A(f"v_lshrrev_b32 v{t2}, 4, v{lane}")
    for i in range(4):
        A(f"v_or_b32 v{t3}, {4*(i&1)}, v{t2}")
        A(f"v_xor_b32 v{t3}, v{t3}, v{t1}")
        A(f"v_add_u32 v{t4}, {8*i}, v{t0}")
        A(f"v_lshrrev_b32 v{t5}, 2, v{t3}")
        A(f"v_mul_u32_u24 v{t5}, {2*OXB}, v{t5}")
        A(f"v_lshl_add_u32 v{t5}, v{t4}, 5, v{t5}")
        A(f"v_bfe_u32 v{P.vo[i]}, v{t3}, 1, 1")
        A(f"v_lshl_add_u32 v{t5}, v{P.vo[i]}, 13, v{t5}")
        A(f"v_and_b32 v{P.vo[i]}, 1, v{t3}")
        A(f"v_lshl_add_u32 v{P.vo[i]}, v{P.vo[i]}, 4, v{t5}")
    A(f"s_lshl_b32 s{st3}, s{st3}, 2\ns_add_u32 s{st3}, s{st3}, 16384")
    A(f"v_and_b32 v{P.vt}, 31, v{lane}")
    A(f"v_lshlrev_b32 v{P.vt}, 4, v{P.vt}")
    A(f"v_lshrrev_b32 v{t5}, 5, v{lane}")
    A(f"v_lshl_add_u32 v{P.vt}, v{t5}, 10, v{P.vt}")
    A(f"v_add_u32 v{P.vt}, s{st3}, v{P.vt}")
    A(f"s_lshl_b32 s{st}, s{r.s_b}, 3\ns_add_u32 s{st}, s{st}, s{r.s_c}\ns_lshl_b32 s{st}, s{st}, 11\ns_add_u32 s{st}, s{st}, {FL_REL}")
    A(f"v_lshrrev_b32 v{t0}, 3, v{lane}")
    A(f"v_lshrrev_b32 v{t1}, 2, v{t0}")
    A(f"v_lshl_add_u32 v{t2}, v{t0}, 1, v{t1}")
    A(f"v_xor_b32 v{t1}, 1, v{t1}")
    A(f"v_lshl_add_u32 v{t3}, v{t0}, 1, v{t1}")
    A(f"v_lshlrev_b32 v{t2}, 7, v{t2}")
    A(f"v_lshlrev_b32 v{t3}, 7, v{t3}")
    A(f"v_add_u32 v{P.vfl}, s{st}, v{t2}")
    A(f"v_add_u32 v{P.vfl2}, s{st}, v{t3}")
    A(f"s_and_b32 s{st3}, s{r.s_hp}, 7\ns_mul_i32 s{st3}, s{st3}, 144")
    for k in range(3):
        if k < 2: A(f"s_add_u32 s{st}, s{lw}, {4*k}\ns_lshl_b32 s{st}, s{st}, 6")
        else: A(f"s_movk_i32 s{st}, 512")
        A(f"v_add_u32 v{t3}, s{st}, v{lane}")
        A(f"v_mul_u32_u24 v{t4}, 7282, v{t3}")
        A(f"v_lshrrev_b32 v{t4}, 16, v{t4}")
        A(f"v_mul_u32_u24 v{t0}, 9, v{t4}")
        A(f"v_sub_u32 v{t3}, v{t3}, v{t0}")
        A(f"v_lshlrev_b32 v{t3}, 4, v{t3}")
        A(f"v_add_u32 v{t3}, s{st3}, v{t3}")
        A(f"v_lshrrev_b32 v{t0}, 5, v{t4}")
        A(f"v_mul_u32_u24 v{t0}, 72, v{t0}")
        A(f"v_bfe_u32 v{t1}, v{t4}, 3, 1")
        A(f"v_mul_u32_u24 v{t1}, 18, v{t1}")
        A(f"v_add_u32 v{t0}, v{t0}, v{t1}")
        A(f"v_bfe_u32 v{t1}, v{t4}, 2, 1")
        A(f"v_lshl_add_u32 v{t0}, v{t1}, 3, v{t0}")
        A(f"v_bfe_u32 v{t1}, v{t4}, 4, 1")
        A(f"v_lshl_add_u32 v{t0}, v{t1}, 2, v{t0}")
        A(f"v_and_b32 v{t1}, 3, v{t4}")
        A(f"v_add_u32 v{t0}, v{t0}, v{t1}")
        A(f"v_mul_u32_u24 v{t0}, 1152, v{t0}")
        A(f"v_add_u32 v{P.vw[k]}, v{t0}, v{t3}")
        A(f"v_lshrrev_b32 v{t0}, 5, v{t4}")
        A(f"v_lshlrev_b32 v{t0}, 3, v{t0}")
        A(f"v_bfe_u32 v{t1}, v{t4}, 2, 2")
        A(f"v_lshl_add_u32 v{t0}, v{t1}, 1, v{t0}")
        A(f"v_bfe_u32 v{t1}, v{t4}, 4, 1")
        A(f"v_add_u32 v{t0}, v{t0}, v{t1}")
        A(f"v_mul_u32_u24 v{t0}, 36, v{t0}")
        A(f"v_and_b32 v{t1}, 3, v{t4}")
        A(f"v_add3_u32 v{t0}, v{t0}, v{t1}, 16")
        A(f"v_lshrrev_b32 v{t1}, 1, v{t1}")
        A(f"v_lshl_add_u32 v{t0}, v{t1}, 4, v{t0}")
        A(f"v_mul_u32_u24 v{t0}, 1152, v{t0}")
        A(f"v_add_u32 v{P.vw8[k]}, v{t0}, v{t3}")
    A(f"s_lshl_b32 s51, s{r.s_b}, 3\ns_add_u32 s51, s51, s{r.s_c}\ns_mul_i32 s51, s51, {16*OXB}")
    A(f"s_mul_i32 s52, s{r.s_hp}, {OXB}\ns_add_u32 s52, s52, s51")
    A(f"s_lshl_b32 s53, s{r.s_b}, 3\ns_add_u32 s53, s53, s{r.s_c}\ns_lshl_b32 s53, s53, 4\ns_add_u32 s53, s53, s{r.s_hp}")
    A(f"s_lshl_b32 s53, s53, 7\ns_lshl_b32 s{st2}, s{lw}, 2\ns_add_u32 s53, s53, s{st2}\ns_add_u32 s53, s53, {FL_REL}")
    return P

def emit_w_chunks(A, r, L, P, chunks):
    st, st2 = r.s_t[:2]
    lw = L.s_lw
    for j in chunks:
        regs = P.vw if j < 8 else P.vw8
        so = 36 * PERM[2 * j] * 1152 if j < 8 else 0
        for k in range(3):
            lab = None
            if k == 2:
                lab = A.newlabel("Lw8")
                A(f"s_cmp_lg_u32 s{lw}, 0\ns_cbranch_scc1 {lab}")
                A(f"s_mov_b32 m0, {wbase(j) + 8192}")
            else:
                A(f"s_lshl_b32 s{st}, s{lw}, 10\ns_add_u32 m0, s{st}, {wbase(j) + 4096*k}")
            A(f"s_mov_b32 s{st2}, {so}")
            A(f"buffer_load_dwordx4 v{regs[k]}, s[{S_WSRD}:{S_WSRD+3}], s{st2} offen lds")
            if lab: A.label(lab)

def emit_loader(A, r, L, P, name, T=None, S=None):
    t0, t1, t2 = r.t[:3]
    lane = r.lane; st, st2, st3, st4 = r.s_t
    lw = L.s_lw
    def o_dma(j, stage):
        for i in range(4):
            A(f"s_lshl_b32 s{st}, s{lw}, 12\ns_add_u32 m0, s{st}, {OB + stage*XST + 1024*i}")
            if j < 8:
                A(f"s_add_u32 s{st2}, s51, {PERM[2*j]*OXB}")
                A(f"buffer_load_dwordx4 v{P.vo[i]}, s[{S_XSRD}:{S_XSRD+3}], s{st2} offen{OPT.get('oload', ' sc1')} lds")
            else:
                A(f"s_lshl_b32 s{st2}, s{lw}, 2\ns_add_u32 s{st2}, s{st2}, {i}\ns_mul_i32 s{st2}, s{st2}, {OXB}\ns_add_u32 s{st2}, s{st2}, s51")
                A(f"buffer_load_dwordx4 v{P.vt}, s[{S_XSRD}:{S_XSRD+3}], s{st2} offen{OPT.get('oload', ' sc1')} lds")
    b = P.buf[0]
    emit_pipelined_poll(A, f"buffer_load_dword {{d}}, v{P.vfl}, s[{S_XSRD}:{S_XSRD+3}], 0 offen sc1", [b, b+1, b+2, b+3], L.s_nonce, st3, depth=1)
    if T: T.mark(28)
    q = []
    for j in range(NST):
        o_dma(j, j); q += [j] * 4
    def wait_for(j):
        last = max(i for i, c in enumerate(q) if c <= j)
        A(f"s_waitcnt vmcnt({len(q) - 1 - last})")
    wait_for(0)
    A("s_barrier")
    for it in range(NCH):
        if it + 1 < NCH and not OPT.get("nowait"): wait_for(it + 1)
        A("s_barrier")
        j = it + NST
        if j == NST:
            emit_pipelined_poll(A, f"buffer_load_dword {{d}}, v{P.vfl2}, s[{S_XSRD}:{S_XSRD+3}], 0 offen sc1", [b, b+1, b+2, b+3], L.s_nonce, st3, depth=1)
            if T: T.mark(29)
            if OPT.get("pfo2", 0):
                labp = A.newlabel("Lpfo")
                A(f"s_cmp_lg_u32 s{lw}, 3\ns_cbranch_scc1 {labp}")
                A(f"s_and_b32 s{st}, s{r.s_hp}, 7")
                A(f"s_lshr_b32 s{st2}, s{r.s_hp}, 3")
                labq = A.newlabel("Lpfo"); labr = A.newlabel("Lpfo")
                A(f"s_cmp_ge_u32 s{st}, 6\ns_cbranch_scc1 {labq}")
                A(f"s_add_u32 s{st}, s{st}, 2\ns_cmp_lt_u32 s{st}, 4\ns_cselect_b32 s{st4}, 1, 0\ns_lshl_b32 s{st}, s{st}, 1\ns_add_u32 s{st}, s{st}, s{st4}")
                A(f"s_mul_i32 s{st}, s{st}, {OXB}\ns_lshl_b32 s{st2}, s{st2}, 13\ns_add_u32 s{st}, s{st}, s{st2}\ns_add_u32 s{st}, s{st}, s51")
                A(f"v_lshlrev_b32 v{t1}, 7, v{lane}")
                A(f"s_branch {labr}")
                A.label(labq)
                A(f"s_sub_u32 s{st}, s{st}, 6\ns_mul_i32 s{st}, s{st}, {8*OXB}\ns_lshl_b32 s{st2}, s{st2}, 10\ns_add_u32 s{st}, s{st}, s{st2}\ns_add_u32 s{st}, s{st}, 16384\ns_add_u32 s{st}, s{st}, s51")
                A(f"v_lshrrev_b32 v{t1}, 3, v{lane}")
                A(f"v_mul_u32_u24 v{t1}, {OXB}, v{t1}")
                A(f"v_and_b32 v{t2}, 7, v{lane}")
                A(f"v_lshl_add_u32 v{t1}, v{t2}, 7, v{t1}")
                A.label(labr)
                A(f"buffer_load_dword v{t2}, v{t1}, s[{S_XSRD}:{S_XSRD+3}], s{st} offen{OPT.get('pfflag', '')}")
                A.label(labp)
        if j < NCH:
            if not OPT.get("nodma"): o_dma(j, j % NST)
            q += [j] * 4
```

```python
class Asm:
    def __init__(self):
        self.lines = []
        self.nlab = 0
    def __call__(self, s=""):
        for l in s.split("\n"):
            self.lines.append(l if (l.endswith(":") or l.startswith(".") or l.startswith(";")) else "  " + l.strip())
    def label(self, name):
        self.lines.append(name + ":")
    def newlabel(self, p="L"):
        self.nlab += 1
        return f"{p}_{self.nlab}"
    def comment(self, s):
        self.lines.append("  ; " + s)
    def text(self):
        return "\n".join(self.lines) + "\n"

def vr(base, n=1):
    return f"v{base}" if n == 1 else f"v[{base}:{base+n-1}]"
def sr(base, n=1):
    return f"s{base}" if n == 1 else f"s[{base}:{base+n-1}]"
def ar(base, n=1):
    return f"a{base}" if n == 1 else f"a[{base}:{base+n-1}]"

class RegAlloc:
    def __init__(self, start, limit, kind="v"):
        self.next = start; self.limit = limit; self.kind = kind; self.names = {}
    def alloc(self, name, n=1, align=1):
        if n > 1 and align == 1: align = 2
        b = (self.next + align - 1) // align * align
        self.next = b + n
        assert self.next <= self.limit, f"out of {self.kind} regs at {name}"
        self.names[name] = (b, n)
        return b

def kernel_desc(name, vgpr, sgpr=102, accum=None, lds=0):
    import attn
    if attn.OPT.get("agpr"):
        accum = attn.OPT["agpr"]; vgpr = accum + 32
    if accum is None: accum = (vgpr + 3) // 4 * 4
    return f""".p2align 6
.amdhsa_kernel {name}
  .amdhsa_next_free_vgpr {vgpr}
  .amdhsa_next_free_sgpr {sgpr}
  .amdhsa_accum_offset {accum}
  .amdhsa_group_segment_fixed_size 0
  .amdhsa_kernarg_size 72
  .amdhsa_user_sgpr_count 2
  .amdhsa_user_sgpr_kernarg_segment_ptr 1
  .amdhsa_system_sgpr_workgroup_id_x 1
  .amdhsa_float_denorm_mode_32 3
.end_amdhsa_kernel
"""

STAMP_OFF = 0x8000000
class Stamper:
    def __init__(self, A, kidx, sbase=84, stmp=92, enabled=True):
        self.A = A; self.k = kidx; self.sb = sbase; self.tmp = stmp; self.en = enabled
    def start(self):
        if not self.en: return
        A = self.A
        for i in range(8): A(f"s_mov_b32 s{self.sb+i}, 0")
        self.mark(0)
    def mark(self, i):
        if not self.en: return
        A = self.A
        A(f"s_memrealtime s[{self.tmp}:{self.tmp+1}]")
        A("s_waitcnt lgkmcnt(0)")
        A(f"s_mov_b32 s{self.sb+i}, s{self.tmp}")
    def dump(self, s_ws, vtmp, vdata8, wave_sgpr_expr_v0=True):
        if not self.en: return
        A = self.A
        A("s_waitcnt vmcnt(0)")
        self.mark(1)
        A(f"v_lshrrev_b32 v{vtmp}, 6, v0")
        A(f"s_lshl_b32 s{self.tmp}, s2, 4")
        A(f"v_add_u32 v{vtmp}, s{self.tmp}, v{vtmp}")
        A(f"v_lshlrev_b32 v{vtmp}, 5, v{vtmp}")
        A(f"v_add_u32 v{vtmp}, {STAMP_OFF + self.k * 256 * 16 * 32}, v{vtmp}")
        for i in range(8): A(f"v_mov_b32 v{vdata8+i}, s{self.sb+i}")
        A(f"v_and_b32 v{vdata8+8}, 63, v0")
        A(f"v_cmp_eq_u32 vcc, 0, v{vdata8+8}")
        A("s_and_saveexec_b64 s[36:37], vcc")
        A(f"global_store_dwordx4 v{vtmp}, v[{vdata8}:{vdata8+3}], s[{s_ws}:{s_ws+1}]")
        A(f"global_store_dwordx4 v{vtmp}, v[{vdata8+4}:{vdata8+7}], s[{s_ws}:{s_ws+1}] offset:16")
        A("s_mov_b64 exec, s[36:37]")

TRACE_OFF = 0x9000000
class Tracer:
    def __init__(self, A, vtr, tmp=96, enabled=True):
        self.A = A; self.v = vtr; self.tmp = tmp; self.en = enabled; self.n = 0; self.names = []
    def init(self):
        if self.en: self.A(f"v_mov_b32 v{self.v}, 0")
    def mark(self, idx, name=None):
        if not self.en: return
        A = self.A
        A(f"s_memrealtime s[{self.tmp}:{self.tmp+1}]")
        A(f"s_memtime s[{self.tmp+2}:{self.tmp+3}]")
        A("s_waitcnt lgkmcnt(0)")
        A(f"v_writelane_b32 v{self.v}, s{self.tmp}, {2*idx}")
        A(f"v_writelane_b32 v{self.v}, s{self.tmp+2}, {2*idx+1}")
    def mark_dyn(self, base, s_idx):
        if not self.en: return
        A = self.A
        A(f"s_memrealtime s[{self.tmp}:{self.tmp+1}]")
        A(f"s_memtime s[{self.tmp+2}:{self.tmp+3}]")
        A("s_waitcnt lgkmcnt(0)")
        A(f"s_lshl_b32 s{self.tmp+1}, s{s_idx}, 1")
        A(f"s_add_u32 s{self.tmp+1}, s{self.tmp+1}, {2*base}")
        A(f"s_mov_b32 m0, s{self.tmp+1}")
        A(f"v_writelane_b32 v{self.v}, s{self.tmp}, m0")
        A(f"s_add_u32 m0, m0, 1")
        A(f"v_writelane_b32 v{self.v}, s{self.tmp+2}, m0")
    def dump(self, s_ws, vtmp):
        if not self.en: return
        A = self.A
        A(f"v_lshrrev_b32 v{vtmp}, 6, v0")
        A(f"s_lshl_b32 s{self.tmp}, s2, 4")
        A(f"v_add_u32 v{vtmp}, s{self.tmp}, v{vtmp}")
        A(f"v_lshlrev_b32 v{vtmp}, 8, v{vtmp}")
        A(f"v_and_b32 v{vtmp+1}, 63, v0")
        A(f"v_lshl_add_u32 v{vtmp}, v{vtmp+1}, 2, v{vtmp}")
        A(f"v_add_u32 v{vtmp}, {TRACE_OFF}, v{vtmp}")
        A(f"global_store_dword v{vtmp}, v{self.v}, s[{s_ws}:{s_ws+1}]")

def emit_pipelined_poll(A, load_fmt, regs, s_nonce, s_cnt, depth=1, limit=0x4000):
    lab = A.newlabel("Lpp"); done = A.newlabel("Lppd")
    for k in range(depth - 1):
        A(load_fmt.format(d=f"v{regs[k]}"))
    A(f"s_mov_b32 s{s_cnt}, 0")
    A.label(lab)
    for k in range(depth):
        A(load_fmt.format(d=f"v{regs[(k + depth - 1) % depth]}"))
        A(f"s_waitcnt vmcnt({depth - 1})")
        A(f"v_cmp_eq_u32 vcc, s{s_nonce}, v{regs[k]}")
        A("s_nop 3")
        A("s_cmp_eq_u64 vcc, -1")
        A(f"s_cbranch_scc1 {done}")
    A(f"s_add_u32 s{s_cnt}, s{s_cnt}, 1\ns_cmp_lt_u32 s{s_cnt}, {limit}")
    A(f"s_cbranch_scc1 {lab}")
    A.label(done)

def emit_shared_poll(A, load_fmt, regs, s_nonce, s_cnt, s_lw, epoch, lds_addr, vt0, vt1, limit=0x4000, depth=1):
    other = A.newlabel("Lsp"); done = A.newlabel("Lspd")
    A(f"v_mov_b32 v{vt0}, {lds_addr}")
    A(f"s_cmp_lg_u32 s{s_lw}, 0\ns_cbranch_scc1 {other}")
    emit_pipelined_poll(A, load_fmt, regs, s_nonce, s_cnt, depth=depth, limit=limit)
    A(f"v_mov_b32 v{vt1}, {epoch}")
    A(f"ds_write_b32 v{vt0}, v{vt1}")
    A("s_waitcnt lgkmcnt(0)")
    A(f"s_branch {done}")
    A.label(other)
    lab = A.newlabel("Lspl")
    A(f"s_mov_b32 s{s_cnt}, 0")
    A.label(lab)
    A(f"ds_read_b32 v{vt1}, v{vt0}")
    A("s_waitcnt lgkmcnt(0)")
    A(f"v_cmp_le_u32 vcc, {epoch}, v{vt1}")
    A("s_nop 3")
    A("s_cmp_eq_u64 vcc, -1")
    A(f"s_cbranch_scc1 {done}")
    A(f"s_add_u32 s{s_cnt}, s{s_cnt}, 1\ns_cmp_lt_u32 s{s_cnt}, {limit * 16}")
    A(f"s_cbranch_scc1 {lab}")
    A.label(done)
```

```python
from emit import *
import attn, qkv, tail
from attn import R, ROWB, BLK_BYTES, O_OFF, O_BLK, KPAIR, VPAIR, KBLK, VBLK, HEADSZ, ONES, ZEROS, SLOT, NSLOT, QOFF
from qkv import XST, WST, STAGE, NST, NCH, CSCALE, f32bits

OPT = {}
NONCE_LDS = max(qkv.LDS_GEMM, attn.LDS_ATTN, tail.LDS_END)
LDS_FUSED = NONCE_LDS + 256
FLAG_OFF = 0x2000000

def emit_loader_gemm_setup(A, r, g, L):
    t0, t1, t2, t3, t4, t5 = r.t
    st, st2, st3, st4 = r.s_t
    lane = r.lane
    A(f"v_lshrrev_b32 v{t0}, 3, v{lane}")
    A(f"v_and_b32 v{t1}, 7, v{lane}")
    A(f"v_lshrrev_b32 v{t2}, 4, v{lane}")
    A(f"v_and_b32 v{t2}, 1, v{t2}")
    A(f"s_lshl_b32 s{st}, s{r.s_c}, 8")
    A(f"s_lshl_b32 s{st2}, s{L.s_lw}, 6")
    A(f"s_add_u32 s{st}, s{st}, s{st2}")
    A(f"v_add_u32 v{t0}, s{st}, v{t0}")
    A(f"v_mul_u32_u24 v{t0}, 1152, v{t0}")
    for i in range(4):
        A(f"v_or_b32 v{t3}, {i<<1}, v{t2}")
        A(f"v_xor_b32 v{t3}, v{t3}, v{t1}")
        A(f"v_lshl_add_u32 v{L.vx[i]}, v{t3}, 4, v{t0}")
        if i: A(f"v_add_u32 v{L.vx[i]}, {i*8*1152}, v{L.vx[i]}")
    A(f"v_lshrrev_b32 v{t0}, 4, v{lane}")
    A(f"s_lshl_b32 s{st}, s{L.s_lw}, 4")
    A(f"v_add_u32 v{t5}, s{st}, v{t0}")
    A(f"v_mul_u32_u24 v{t5}, 3456, v{t5}")
    A(f"s_mul_i32 s{st}, s{r.s_hp}, 72")
    A(f"v_add_u32 v{t5}, s{st}, v{t5}")
    for var in range(2):
        A(f"v_or_b32 v{t1}, {4*var}, v{t0}")
        A(f"v_lshlrev_b32 v{t1}, 1, v{t1}")
        A(f"v_and_b32 v{t2}, 15, v{lane}")
        A(f"v_xor_b32 v{t2}, v{t2}, v{t1}")
        A(f"v_lshrrev_b32 v{t3}, 2, v{t2}")
        A(f"v_and_b32 v{t4}, 3, v{t2}")
        A(f"v_min_u32 v{t1}, 2, v{t4}")
        A(f"v_cmp_eq_u32 vcc, 3, v{t3}")
        A("s_nop 1")
        A(f"v_cndmask_b32 v{t3}, v{t3}, v{t1}, vcc")
        A(f"v_lshlrev_b32 v{t4}, 4, v{t4}")
        A(f"v_cndmask_b32 v{t4}, v{t4}, 56, vcc")
        A(f"v_mul_u32_u24 v{t3}, 1152, v{t3}")
        A(f"v_add3_u32 v{L.vw[var]}, v{t3}, v{t4}, v{t5}")
    A(f"s_lshl_b32 s{g.s_mx}, s{L.s_lw}, 13")
    A(f"s_lshl_b32 s{g.s_mw}, s{L.s_lw}, 12")
    A(f"s_add_u32 s{g.s_mw}, s{g.s_mw}, {XST}")

def emit_loader_gemm_dma(A, r, g, L):
    st, st2 = r.s_t[:2]
    A(f"s_lshl_b32 s{g.s_xoff}, s{g.s_kc}, 7")
    A(f"s_mul_i32 s{g.s_woff}, s{g.s_kc}, {64*3456}")
    for i in range(4):
        A(f"s_add_u32 s{st}, s{g.s_stw}, s{g.s_mw}")
        A(f"s_add_u32 m0, s{st}, {1024*i}")
        A(f"s_add_u32 s{st2}, s{g.s_woff}, {4*3456*i}")
        A(f"buffer_load_dwordx4 v{L.vw[i>>1]}, s[{g.s_wsrd}:{g.s_wsrd+3}], s{st2} offen lds")
    for i in range(8):
        A(f"s_add_u32 s{st}, s{g.s_stw}, s{g.s_mx}")
        A(f"s_add_u32 m0, s{st}, {1024*i}")
        A(f"s_add_u32 s{st2}, s{g.s_xoff}, {32*1152*(i>>2)}")
        A(f"buffer_load_dwordx4 v{L.vx[i&3]}, s[{g.s_xsrd}:{g.s_xsrd+3}], s{st2} offen lds")
    A(f"s_add_u32 s{g.s_kc}, s{g.s_kc}, 1")
    A(f"s_add_u32 s{g.s_stw}, s{g.s_stw}, {STAGE}")
    A(f"s_cmp_eq_u32 s{g.s_stw}, {NST*STAGE}")
    A(f"s_cselect_b32 s{g.s_stw}, 0, s{g.s_stw}")

def emit_compute_gemm_setup(A, r, g):
    t0, t1, t2, t3, t4, t5 = r.t
    st, st2, st3, st4 = r.s_t
    lane = r.lane
    A(f"v_and_b32 v{t0}, 15, v{lane}")
    A(f"v_lshrrev_b32 v{t1}, 2, v{t0}")
    A(f"v_and_b32 v{t2}, 3, v{t0}")
    A(f"v_lshl_add_u32 v{t2}, v{t1}, 3, v{t2}")
    A(f"v_lshrrev_b32 v{t3}, 1, v{t0}")
    A(f"v_and_b32 v{t3}, 1, v{t3}")
    A(f"v_lshl_or_b32 v{t3}, v{t1}, 1, v{t3}")
    A(f"v_lshrrev_b32 v{t4}, 4, v{lane}")
    A(f"v_xor_b32 v{t3}, v{t3}, v{t4}")
    A(f"s_and_b32 s{st}, s{r.s_w}, 3")
    A(f"s_lshl_b32 s{st}, s{st}, 13")
    A(f"v_lshlrev_b32 v{t2}, 7, v{t2}")
    A(f"v_add_u32 v{t2}, s{st}, v{t2}")
    A(f"v_lshl_add_u32 v{g.aA[0]}, v{t3}, 4, v{t2}")
    A(f"v_xor_b32 v{t3}, 4, v{t3}")
    A(f"v_lshl_add_u32 v{g.aA[1]}, v{t3}, 4, v{t2}")
    A(f"v_lshrrev_b32 v{t0}, 4, v{lane}")
    A(f"v_lshrrev_b32 v{t1}, 2, v{lane}")
    A(f"v_and_b32 v{t1}, 3, v{t1}")
    A(f"v_lshl_add_u32 v{t2}, v{t0}, 3, v{t1}")
    A(f"v_lshlrev_b32 v{t2}, 8, v{t2}")
    A(f"v_add_u32 v{t2}, {XST}, v{t2}")
    A(f"v_and_b32 v{t0}, 1, v{t0}")
    A(f"v_lshl_or_b32 v{t0}, v{t0}, 2, v{t1}")
    A(f"v_and_b32 v{t3}, 3, v{lane}")
    A(f"v_lshlrev_b32 v{t4}, 3, v{t3}")
    A(f"v_add_u32 v{t4}, v{t4}, v{t2}")
    A(f"s_lshr_b32 s{st}, s{r.s_w}, 2")
    A(f"s_lshl_b32 s{st}, s{st}, 2")
    for t in range(4):
        A(f"s_add_u32 s{st2}, s{st}, {t}")
        A(f"v_xor_b32 v{t5}, s{st2}, v{t0}")
        A(f"v_lshl_add_u32 v{g.aB[t]}, v{t5}, 5, v{t4}")
    A(f"v_add_u32 v{t3}, 12, v{t3}")
    A(f"v_lshlrev_b32 v{t0}, 1, v{t0}")
    A(f"v_xor_b32 v{t3}, v{t3}, v{t0}")
    A(f"v_lshl_add_u32 v{t3}, v{t3}, 4, v{t2}")
    A(f"v_add_u32 v{t3}, 8, v{t3}")
    A(f"s_cmp_ge_u32 s{r.s_w}, 4")
    A(f"s_cselect_b64 vcc, -1, 0")
    A("s_nop 1")
    A(f"v_cndmask_b32 v{g.aB[2]}, v{g.aB[2]}, v{t3}, vcc")

def g_read_list(g, s, ks, nt):
    out = []
    for i in range(4):
        p, T = i // 2, i % 2
        out.append(f"ds_read_b128 v[{g.FA[s][i]}:{g.FA[s][i]+3}], v{g.aA[ks]} offset:{4096*p+512*T}")
    for t in range(nt):
        out.append(f"ds_read_b64_tr_b16 v[{g.FB[s][t]}:{g.FB[s][t]+1}], v{g.aB[t]} offset:{8192*ks}")
        out.append(f"ds_read_b64_tr_b16 v[{g.FB[s][t]+2}:{g.FB[s][t]+3}], v{g.aB[t]} offset:{8192*ks+1024}")
    return out
def g_mfma_list(g, s, nt):
    out = []
    for t in range(nt):
        for i in range(4):
            out.append(f"v_mfma_f32_16x16x32_bf16 v[{g.acc[i][t]}:{g.acc[i][t]+3}], v[{g.FA[s][i]}:{g.FA[s][i]+3}], v[{g.FB[s][t]}:{g.FB[s][t]+3}], v[{g.acc[i][t]}:{g.acc[i][t]+3}]")
    return out
def interleave(A, mf, rd, pre=()):
    extra = list(pre) + list(rd)
    k = 0
    for m in mf:
        A(m)
        if k < len(extra):
            A(extra[k]); k += 1
    while k < len(extra):
        A(extra[k]); k += 1

def emit_compute_gemm(A, r, g, name, S):
    A(f"s_mov_b32 s{g.s_rst}, 0")
    for i in range(4):
        for t in range(4):
            for j in range(4): A(f"v_mov_b32 v{g.acc[i][t]+j}, 0")
    if getattr(g, "pf_pre", None): emit_prefetch_batch(A, r, g, g.pfreg, g.pf_pre)
    g.T.mark(1)
    A("s_barrier")
    S.mark(2)
    g.T.mark(2)
    if g.pf2: emit_prefetch_batch(A, r, g, g.pfreg, g.pf2)
    A(f"s_cmp_ge_u32 s{r.s_w}, 4")
    A(f"s_cbranch_scc1 {name}_g1")
    for nh in range(2):
        nt = 4 if nh == 0 else 3
        if nh == 1:
            A.label(f"{name}_g1")
            if OPT.get("gprio"): A(f"s_setprio {OPT['gprio']}")
        for x in g_read_list(g, 0, 0, nt): A(x)
        A(f"s_mov_b32 s{r.s_it}, 0")
        if not OPT.get("gprog", 1): A("s_waitcnt lgkmcnt(0)")
        A.label(f"{name}_gl{nh}")
        burst = False
        mf = g_mfma_list(g, 0, nt); rd = g_read_list(g, 1, 1, nt)
        nold = 4 + 2 * nt
        k = 0
        for m_i, m in enumerate(mf):
            if OPT.get("gprog", 1) and m_i % 4 == 0:
                need = 4 + 2 * (m_i // 4 + 1)
                A(f"s_waitcnt lgkmcnt({min(15, nold - need + k)})")
            A(m)
            if k < len(rd): A(rd[k]); k += 1
        while k < len(rd): A(rd[k]); k += 1
        A(f"s_add_u32 s{g.s_rst}, s{g.s_rst}, 1")
        A(f"s_cmp_eq_u32 s{g.s_rst}, {NST}")
        A(f"s_mov_b32 s{g.s_gdelta}, {STAGE}\ns_cmov_b32 s{g.s_gdelta}, {-(NST-1)*STAGE & 0xffffffff}")
        A(f"s_cselect_b32 s{g.s_rst}, 0, s{g.s_rst}")
        A("s_waitcnt lgkmcnt(0)")
        A("s_barrier")
        upd = [f"v_add_u32 v{x}, s{g.s_gdelta}, v{x}" for x in [g.aA[0]] + g.aB[:nt] + [g.aA[1]]]
        mf = g_mfma_list(g, 1, nt)
        rd = g_read_list(g, 0, 0, nt)
        k = 0
        if burst:
            for x in upd + rd + mf: A(x)
        else:
            for x in upd[:2]: A(x)
            seq = upd[2:] + rd
            interleave(A, mf, seq)
        A(f"s_add_u32 s{r.s_it}, s{r.s_it}, 1")
        A(f"s_cmp_lt_u32 s{r.s_it}, {NCH}")
        if not OPT.get("gprog", 1): A(f"s_waitcnt lgkmcnt(0)")
        A(f"s_cbranch_scc1 {name}_gl{nh}")
        A("s_waitcnt lgkmcnt(0)")
        if nh == 1 and OPT.get("gprio"): A("s_setprio 0")
        emit_epi_lds(A, r, g, nh)
        if nh == 0: A(f"s_branch {name}_gdone")
    A.label(f"{name}_gdone")

def emit_epi_addr(A, r, g, nh):
    t0, t1, t2, t3, t4, t5 = r.t
    st, st2, st3, st4 = r.s_t
    lane = r.lane
    nt = 4 if nh == 0 else 3
    A(f"s_and_b32 s{st}, s{r.s_w}, 3")
    A(f"s_lshl_b32 s{st}, s{st}, 7")
    typ = g.FA[0][0]; col = g.FA[0][0] + 1; tmp = g.FA[0][0] + 2; v2 = g.FA[0][0] + 3
    for t in range(nt):
        Tf = 4 * nh + t
        ea = g.ea[t]; ed = g.ed[t]
        A(f"v_and_b32 v{t1}, 15, v{lane}")
        if Tf < 6:
            A(f"v_add_u32 v{col}, {16*(Tf & 1)}, v{t1}")
        else:
            A(f"v_lshrrev_b32 v{typ}, 2, v{t1}")
            A(f"v_and_b32 v{col}, 3, v{t1}")
            A(f"v_add_u32 v{col}, 32, v{col}")
        A(f"v_cmp_le_u32 vcc, 18, v{col}")
        A(f"v_subrev_u32 v{tmp}, 18, v{col}")
        A("s_nop 0")
        A(f"v_cndmask_b32 v{col}, v{col}, v{tmp}, vcc")
        A(f"v_cndmask_b32 v{t0}, 0, 1, vcc")
        A(f"v_and_b32 v{t2}, 1, v{col}")
        A(f"v_lshrrev_b32 v{t3}, 1, v{col}")
        A(f"v_lshrrev_b32 v{t4}, 4, v{lane}")
        isq = (Tf < 2); isk = (Tf in (2, 3)); isv = (Tf in (4, 5))
        def ktype(base_const, hstride):
            A(f"v_mul_u32_u24 v{ea}, {KPAIR}, v{t3}")
            A(f"v_mul_u32_u24 v{tmp}, {hstride}, v{t0}")
            A(f"v_add3_u32 v{ea}, v{ea}, v{tmp}, s{st}")
            A(f"v_mul_u32_u24 v{tmp}, {512+64}, v{t2}")
            A(f"v_lshl_add_u32 v{tmp}, v{t4}, 4, v{tmp}")
            A(f"v_add_u32 v{ea}, v{ea}, v{tmp}")
            if base_const: A(f"v_add_u32 v{ea}, {base_const}, v{ea}")
            A(f"v_lshlrev_b32 v{ed}, 7, v{t2}")
            A(f"v_sub_u32 v{ed}, 64, v{ed}")
        def vtype(dst, dd):
            A(f"v_mul_u32_u24 v{dst}, {VPAIR}, v{t3}")
            A(f"v_mul_u32_u24 v{tmp}, {HEADSZ}, v{t0}")
            A(f"v_add3_u32 v{dst}, v{dst}, v{tmp}, s{st}")
            A(f"v_xor_b32 v{tmp}, v{t4}, v{t2}")
            A(f"v_lshlrev_b32 v{tmp}, 4, v{tmp}")
            A(f"v_lshl_add_u32 v{tmp}, v{t2}, 9, v{tmp}")
            A(f"v_add_u32 v{dst}, v{dst}, v{tmp}")
            A(f"v_add_u32 v{dst}, {KBLK}, v{dst}")
            A(f"v_mov_b32 v{dd}, 64")
        if isq: ktype(QOFF, KBLK)
        elif isk: ktype(0, HEADSZ)
        elif isv: vtype(ea, ed)
        else:
            ktype(0, HEADSZ)
            A(f"v_mul_i32_i24 v{tmp}, {KBLK-HEADSZ}, v{t0}")
            A(f"v_add_u32 v{tmp}, {QOFF}, v{tmp}")
            A(f"v_cmp_eq_u32 vcc, 0, v{typ}")
            A("s_nop 1")
            A(f"v_cndmask_b32 v{tmp}, 0, v{tmp}, vcc")
            A(f"v_add_u32 v{ea}, v{ea}, v{tmp}")
            vtype(t5, v2)
            A(f"v_cmp_eq_u32 vcc, 2, v{typ}")
            A("s_nop 1")
            A(f"v_cndmask_b32 v{ea}, v{ea}, v{t5}, vcc")
            A(f"v_cndmask_b32 v{ed}, v{ed}, v{v2}, vcc")
            A(f"v_mov_b32 v{g.esc}, 1.0")
            A(f"v_mov_b32 v{tmp}, {f32bits(CSCALE):#x}")
            A(f"v_cmp_eq_u32 vcc, 0, v{typ}")
            A("s_nop 1")
            A(f"v_cndmask_b32 v{g.esc}, v{g.esc}, v{tmp}, vcc")
            A(f"v_cmp_gt_u32 s[54:55], 3, v{typ}")
        A(f"v_add_u32 v{ed}, v{ea}, v{ed}")

def emit_epi_lds(A, r, g, nh):
    st4 = r.s_t[3]
    nt = 4 if nh == 0 else 3
    A("s_nop 7")
    A(f"s_mov_b32 s{st4}, {f32bits(CSCALE):#x}")
    order = [2, 3, 0, 1] if nh == 0 else [0, 1, 2]
    for t in order:
        Tf = 4 * nh + t
        isq = Tf < 2
        if Tf == 6:
            A("s_mov_b64 s[36:37], exec")
            A("s_mov_b64 exec, s[54:55]")
        for p in range(2):
            a0 = g.acc[2 * p][t]; a1 = g.acc[2 * p + 1][t]
            if isq:
                for j in range(4):
                    A(f"v_mul_f32 v{a0+j}, s{st4}, v{a0+j}")
                    A(f"v_mul_f32 v{a1+j}, s{st4}, v{a1+j}")
            elif Tf == 6:
                for j in range(4):
                    A(f"v_mul_f32 v{a0+j}, v{g.esc}, v{a0+j}")
                    A(f"v_mul_f32 v{a1+j}, v{g.esc}, v{a1+j}")
            pk = g.FA[p][t]
            A(f"v_cvt_pk_bf16_f32 v{pk}, v{a0}, v{a0+1}")
            A(f"v_cvt_pk_bf16_f32 v{pk+1}, v{a0+2}, v{a0+3}")
            A(f"v_cvt_pk_bf16_f32 v{pk+2}, v{a1}, v{a1+1}")
            A(f"v_cvt_pk_bf16_f32 v{pk+3}, v{a1+2}, v{a1+3}")
            A(f"ds_write_b128 v{g.ea[t] if p == 0 else g.ed[t]}, v[{pk}:{pk+3}]")
        if Tf == 6:
            A("s_mov_b64 exec, s[36:37]")

def emit_prefetch(A, r, g, d0, kind, kca, kcb):
    t0, t1, t2, t3 = r.t[:4]
    st, st2, st3, st4 = r.s_t
    A(f"s_lshl_b32 s{st}, s{r.s_hp}, 1\ns_and_b32 s{st2}, s{r.s_c}, 1\ns_add_u32 s{st}, s{st}, s{st2}")
    if kind == "x":
        A(f"v_lshrrev_b32 v{t3}, 4, v{r.lane}")
        A(f"v_add_u32 v{t3}, {kca}, v{t3}")
        A(f"v_min_u32 v{t3}, {kcb}, v{t3}")
        A(f"v_and_b32 v{t0}, 15, v{r.lane}")
        A(f"s_lshr_b32 s{st2}, s{r.s_c}, 1\ns_lshl_b32 s{st2}, s{st2}, 9\ns_lshl_b32 s{st3}, s{st}, 4\ns_add_u32 s{st2}, s{st2}, s{st3}")
        A(f"v_add_u32 v{t0}, s{st2}, v{t0}")
        A(f"v_mul_u32_u24 v{t0}, 1152, v{t0}")
        A(f"v_lshl_add_u32 v{t0}, v{t3}, 7, v{t0}")
        A(f"buffer_load_dword v{d0}, v{t0}, s[{g.s_xsrd}:{g.s_xsrd+3}], 0 offen")
    elif kind == "w":
        A(f"v_min_u32 v{t0}, 53, v{r.lane}")
        A(f"s_mul_i32 s{st2}, s{st}, 54")
        A(f"v_add_u32 v{t0}, s{st2}, v{t0}")
        A(f"v_mul_u32_u24 v{t1}, 2428, v{t0}")
        A(f"v_lshrrev_b32 v{t1}, 16, v{t1}")
        A(f"v_mul_u32_u24 v{t2}, 27, v{t1}")
        A(f"v_sub_u32 v{t2}, v{t0}, v{t2}")
        A(f"v_add_u32 v{t1}, {64*kca}, v{t1}")
        A(f"v_mul_u32_u24 v{t1}, 3456, v{t1}")
        A(f"v_lshl_add_u32 v{t1}, v{t2}, 7, v{t1}")
        A(f"buffer_load_dword v{d0}, v{t1}, s[{g.s_wsrd}:{g.s_wsrd+3}], 0 offen")

def emit_prefetch_batch(A, r, g, d0, jobs):
    done = A.newlabel("Lpfd")
    for w, (kind, a, b) in jobs.items():
        lab = A.newlabel("Lpf")
        A(f"s_cmp_eq_u32 s{r.s_w}, {w}\ns_cbranch_scc0 {lab}")
        emit_prefetch(A, r, g, d0, kind, a, b)
        A(f"s_branch {done}")
        A.label(lab)
    A.label(done)

def emit_loader_kv_setup(A, r, L):
    t0, t1, t2, t3 = r.t[:4]
    st, st2, st3, st4 = r.s_t
    A(f"v_lshrrev_b32 v{t0}, 5, v{r.lane}")
    A(f"v_and_b32 v{t1}, 31, v{r.lane}")
    A(f"v_lshlrev_b32 v{t2}, 2, v{t0}")
    A(f"v_xor_b32 v{t2}, v{t2}, v{t1}")
    A(f"v_lshlrev_b32 v{t2}, 4, v{t2}")
    A(f"v_lshl_add_u32 v{t2}, v{t0}, 12, v{t2}")
    A(f"v_xor_b32 v{t3}, v{t0}, v{t1}")
    A(f"v_lshlrev_b32 v{t3}, 4, v{t3}")
    A(f"v_lshl_add_u32 v{t3}, v{t0}, 12, v{t3}")
    for i in range(9):
        sl = L.s_lds[i]
        A(f"s_add_u32 s{st}, s{L.s_lw}, {4*i}")
        A(f"s_cmp_ge_u32 s{st}, 18")
        A(f"s_cselect_b32 s{st2}, 18, 0")
        A(f"s_mov_b32 s{st3}, {KPAIR}\ns_cmov_b32 s{st3}, {VPAIR}")
        A(f"s_cselect_b32 s{st4}, {KBLK}, 0")
        A(f"s_mov_b32 s{sl}, 576\ns_cmov_b32 s{sl}, 1152")
        A(f"s_cselect_b64 vcc, -1, 0")
        A(f"s_sub_u32 s{st}, s{st}, s{st2}")
        A(f"s_mul_i32 s{st2}, s{r.s_hp}, 36")
        A(f"s_add_u32 s{sl}, s{sl}, s{st2}")
        A(f"s_lshl_b32 s{st2}, s{st}, 1")
        A(f"s_add_u32 s{sl}, s{sl}, s{st2}")
        A(f"s_lshl_b32 s{sl}, s{sl}, 12")
        A(f"v_cndmask_b32 v{L.vdma[i]}, v{t2}, v{t3}, vcc")
        A(f"v_add_u32 v{L.vdma[i]}, s{sl}, v{L.vdma[i]}")
        A(f"s_cmp_ge_u32 s{st}, 9")
        A(f"s_cselect_b32 s{st2}, 9, 0")
        A(f"s_cselect_b32 s{sl}, {HEADSZ}, 0")
        A(f"s_sub_u32 s{st}, s{st}, s{st2}")
        A(f"s_mul_i32 s{st}, s{st}, s{st3}")
        A(f"s_add_u32 s{sl}, s{sl}, s{st}")
        A(f"s_add_u32 s{sl}, s{sl}, s{st4}")

def emit_loader_ones(A, r, L):
    t0, t1, t2, t3 = r.t[:4]
    A(f"v_subrev_u32 v{t1}, 512, v0")
    A(f"v_cmp_gt_u32 vcc, 192, v{t1}")
    A(f"v_lshlrev_b32 v{t1}, 2, v{t1}")
    A(f"v_mov_b32 v{t0}, 0x3f803f80")
    A(f"v_mov_b32 v{t3}, 0")
    A("s_and_saveexec_b64 s[36:37], vcc")
    lab = A.newlabel("Lones")
    A(f"s_cbranch_execz {lab}")
    for s in range(NSLOT):
        A(f"v_add_u32 v{t2}, {s*SLOT+ONES}, v{t1}")
        A(f"ds_write_b32 v{t2}, v{t0}")
        A(f"ds_write_b32 v{t2}, v{t3} offset:768")
    A.label(lab)
    A("s_mov_b64 exec, s[36:37]")

def emit_poll(A, r, L, seg_sgpr):
    t0 = r.t[0]; st, st2 = r.s_t[:2]
    A(f"s_lshl_b32 s{st}, s{seg_sgpr}, 7")
    if OPT.get("kv1flag", 1):
        A(f"v_add_u32 v{t0}, s{st}, v{L.vflag}")
    else:
        A(f"v_and_b32 v{t0}, 3, v{r.lane}")
        A(f"v_lshlrev_b32 v{t0}, 2, v{t0}")
        A(f"v_add3_u32 v{t0}, v{t0}, v{L.vflag}, s{st}")
    b = L.buf[0]
    if OPT.get("spoll", 1):
        L.epoch = getattr(L, "epoch", 0) + 1
        emit_shared_poll(A, f"global_load_dword {{d}}, v{t0}, s[{r.s_ws}:{r.s_ws+1}] sc1", [b, b+1, b+2, b+3], L.s_nonce, st2, L.s_lw, L.epoch, NONCE_LDS + 16, r.t[1], r.t[2])
    else:
        emit_pipelined_poll(A, f"global_load_dword {{d}}, v{t0}, s[{r.s_ws}:{r.s_ws+1}] sc1", [b, b+1, b+2, b+3], L.s_nonce, st2, depth=OPT.get("pdepth", 1))

def emit_loader_kv_dma(A, r, L):
    A(f"s_lshl_b32 s{r.s_chunk}, s{r.s_seg}, 9")
    for i in range(9):
        A(f"s_add_u32 m0, s{r.s_slotw}, s{L.s_lds[i]}")
        A("s_nop 0")
        A(f"buffer_load_dwordx4 v{L.vdma[i]}, s[{r.s_srd}:{r.s_srd+3}], s{r.s_chunk} offen{OPT.get('kvload', ' sc1')} lds")
    if OPT.get("xorseg", 0):
        A(f"s_add_u32 s50, s50, 1")
        A(f"s_xor_b32 s{r.s_seg}, s{r.s_c}, s50")
        A(f"s_and_b32 s{r.s_seg}, s{r.s_seg}, 7")
    else:
        A(f"s_add_u32 s{r.s_seg}, s{r.s_seg}, 1")
        A(f"s_and_b32 s{r.s_seg}, s{r.s_seg}, 7")
    A(f"s_add_u32 s{r.s_slotw}, s{r.s_slotw}, {SLOT}")
    A(f"s_cmp_eq_u32 s{r.s_slotw}, {NSLOT*SLOT}")
    A(f"s_cselect_b32 s{r.s_slotw}, 0, s{r.s_slotw}")

def emit_check(A, r, name, part=1):
    t0, t1 = r.t[:2]
    A(f"s_mov_b32 s40, 0x30800000")
    A(f"s_mov_b32 s41, 0x71800000")
    for u in range(2):
        A(f"v_mul_f32 v{r.t[2+u]}, 0, v{r.O[u]}")
        for i in range(1, 10): A(f"v_fma_f32 v{r.t[2+u]}, v{r.O[u]+i}, 0, v{r.t[2+u]}")
    A(f"v_add_f32 v{r.t[2]}, v{r.t[2]}, v{r.t[3]}")
    A(f"v_cmp_gt_f32 vcc, v{r.O[0]+10}, s40")
    A(f"v_cmp_lt_f32 s[42:43], v{r.O[0]+10}, s41")
    A("s_nop 3")
    A(f"s_and_b64 s[44:45], vcc, s[42:43]")
    A(f"v_cmp_gt_f32 vcc, v{r.O[1]+10}, s40")
    A(f"v_cmp_lt_f32 s[42:43], v{r.O[1]+10}, s41")
    A("s_nop 3")
    A(f"s_and_b64 s[44:45], s[44:45], vcc")
    A(f"s_and_b64 s[44:45], s[44:45], s[42:43]")
    A(f"v_cmp_o_f32 vcc, v{r.t[2]}, v{r.t[2]}")
    A("s_nop 3")
    A(f"s_and_b64 s[44:45], s[44:45], vcc")
    if OPT.get("forceslow"): A("s_mov_b64 s[44:45], 0")
    lab = A.newlabel("Lok")
    A("s_cmp_eq_u64 s[44:45], -1")
    A(f"s_cbranch_scc1 {lab}")
    A(f"v_mov_b32 v{t0}, {NONCE_LDS + 4}")
    A(f"v_mov_b32 v{t1}, 1")
    A(f"ds_write_b32 v{t0}, v{t1}")
    A("s_waitcnt lgkmcnt(0)")
    A.label(lab)
    if part: emit_flag_read(A, r)

def emit_flag_read(A, r):
    t0 = r.t[0]
    A("s_barrier")
    A(f"v_mov_b32 v{t0}, {NONCE_LDS + 4}")
    A(f"ds_read_b32 v{t0}, v{t0}")
    A("s_waitcnt lgkmcnt(0)")
    A(f"v_readfirstlane_b32 s40, v{t0}")
    A("s_nop 3")
    A("s_cmp_lg_u32 s40, 0")

def emit_slow_compute(A, r, name):
    t = r.t
    m = [t[4], t[5]]
    addrs = [r.kE, r.kO, r.tE, r.tO, r.vA]
    back = (8 % NSLOT) * SLOT
    for x in addrs: A(f"v_subrev_u32 v{x}, {back}, v{x}")
    for u in range(2):
        A(f"v_mov_b32 v{r.Qt[u]+1}, 0")
        A(f"v_mov_b32 v{m[u]}, 0xff800000")
        for i in range(16): A(f"v_mov_b32 v{r.O[u]+i}, 0")
    for ps in range(2):
        A(f"s_mov_b32 s46, 0")
        A.label(f"{name}_sl{ps}")
        A("s_barrier")
        A(f"s_mov_b32 s47, 0")
        A.label(f"{name}_st{ps}")
        for par in range(2):
            attn.k_reads(A, r, par, 0)
            if ps == 1: attn.v_reads(A, r, par, 0)
            A("s_waitcnt lgkmcnt(0)")
            for u in range(2):
                S0 = r.S[u]
                attn.mf_main(A, r, S0, 0, u)
                attn.mf_tail(A, r, S0, 0, u)
            A("s_nop 15")
            for u in range(2):
                S0 = r.S[u]
                if ps == 0:
                    for k in range(0, 16, 2):
                        A(f"v_max3_f32 v{m[u]}, v{m[u]}, v{S0+k}, v{S0+k+1}")
                else:
                    for k in range(16): A(f"v_sub_f32 v{S0+k}, v{S0+k}, v{m[u]}")
                    for k in range(16): A(f"v_exp_f32 v{S0+k}, v{S0+k}")
                    A("s_nop 1")
                    attn.mf_pv(A, r, u, r.V1[0], S0)
                    attn.mf_pv(A, r, u, r.V2[0], S0 + 8)
            if ps == 1: A("s_nop 7")
        for x in addrs: A(f"v_add_u32 v{x}, 128, v{x}")
        A("s_add_u32 s47, s47, 1\ns_cmp_lt_u32 s47, 4")
        A(f"s_cbranch_scc1 {name}_st{ps}")
        for x in addrs: A(f"v_subrev_u32 v{x}, 512, v{x}")
        A("s_barrier")
        A("s_add_u32 s46, s46, 1\ns_cmp_lt_u32 s46, 8")
        A(f"s_cbranch_scc1 {name}_sl{ps}")
        if ps == 0:
            A(f"v_mov_b32 v{t[0]}, v{m[0]}\nv_mov_b32 v{t[1]}, v{m[1]}")
            A("s_nop 1")
            A(f"v_permlane32_swap_b32 v{m[0]}, v{t[0]}")
            A(f"v_permlane32_swap_b32 v{m[1]}, v{t[1]}")
            A("s_nop 1")
            A(f"v_max_f32 v{m[0]}, v{m[0]}, v{t[0]}")
            A(f"v_max_f32 v{m[1]}, v{m[1]}, v{t[1]}")
    A("s_nop 15")

def emit_slow_loader(A, r, L, name):
    A(f"s_mov_b32 s46, 0")
    A.label(f"{name}_lsl")
    A(f"s_and_b32 s{r.s_seg}, s46, 7")
    A(f"s_mov_b32 s{r.s_slotw}, 0")
    emit_loader_kv_dma(A, r, L)
    A("s_waitcnt vmcnt(0)")
    A("s_barrier")
    A("s_barrier")
    A("s_add_u32 s46, s46, 1\ns_cmp_lt_u32 s46, 16")
    A(f"s_cbranch_scc1 {name}_lsl")

def gen_fused(name="fused_kernel", rt=None):
    A = Asm(); r = R(); g = R(); L = R()
    V = RegAlloc(1, 168, "v")
    attn.alloc_sregs(r); qkv.alloc_gemm_sregs(g)
    lane = V.alloc("lane"); tt = [V.alloc(f"t{i}") for i in range(6)]
    r.lane = lane; r.t = tt
    r.kE = V.alloc("kE"); r.kO = V.alloc("kO"); r.tE = V.alloc("tE"); r.tO = V.alloc("tO"); r.vA = V.alloc("vA")
    r.qE = V.alloc("qE"); r.qO = V.alloc("qO")
    g.ea = [V.alloc(f"ea{i}") for i in range(4)]; g.ed = [V.alloc(f"ed{i}") for i in range(4)]; g.esc = V.alloc("esc")
    vTR = V.alloc("vTR") if OPT.get("trace") else 0
    base = V.next
    Va = RegAlloc(base, 168, "v")
    r.idx = Va.alloc("idx")
    r.Qm = [Va.alloc(f"Qm{u}", 4, 2) for u in range(2)]
    r.Qt = [Va.alloc(f"Qt{u}", 2, 2) for u in range(2)]
    r.Km = [Va.alloc(f"Km{p}", 4, 2) for p in range(2)]
    r.Kt = [Va.alloc(f"Kt{p}", 2, 2) for p in range(2)]
    r.V1 = [Va.alloc(f"V1{p}", 4, 2) for p in range(2)]
    r.V2 = [Va.alloc(f"V2{p}", 4, 2) for p in range(2)]
    r.S = [Va.alloc(f"S{i}", 16, 4) for i in range(4)]
    r.O = [Va.alloc(f"O{u}", 16, 4) for u in range(2)]
    Vg = RegAlloc(base, 168, "v")
    g.aA = [Vg.alloc(f"aA{k}") for k in range(2)]
    g.aB = [Vg.alloc(f"aB{t}") for t in range(4)]
    g.FA = [[Vg.alloc(f"FA{s}{i}", 4, 2) for i in range(4)] for s in range(2)]
    g.FB = [[Vg.alloc(f"FB{s}{t}", 4, 2) for t in range(4)] for s in range(2)]
    g.acc = [[Vg.alloc(f"acc{i}{t}", 4, 4) for t in range(4)] for i in range(4)]
    vN = Vg.alloc("vN"); vPF = Vg.alloc("vPF"); vT = Vg.alloc("vT", 2, 2)
    Vl = RegAlloc(base, 168, "v")
    L.vx = [Vl.alloc(f"vx{i}") for i in range(4)]
    L.vw = [Vl.alloc(f"vw{i}") for i in range(2)]
    L.vdma = [Vl.alloc(f"vd{i}") for i in range(9)]
    L.vflag = Vl.alloc("vflag"); L.vlds = Vl.alloc("vlds")
    L.buf = [Vl.alloc(f"buf{i}", 4, 4) for i in range(9)]
    L.lds_epoch = NONCE_LDS + 16; L.s_lw = 38; L.s_lds = list(range(72, 81)); L.s_dbg = 82; L.s_sh = 39; L.s_nonce = 81
    nv = max(Va.next, Vg.next, Vl.next)

    A(f".globl {name}\n.p2align 8\n.type {name},@function")
    A.label(name)
    A(f"s_cmp_ge_u32 s2, 256\ns_cbranch_scc1 {name}_end")
    A(f"s_load_dwordx2 s[{r.s_ws}:{r.s_ws+1}], s[0:1], 64")
    A("s_load_dwordx4 s[72:75], s[0:1], 0")
    A("s_load_dwordx4 s[76:79], s[0:1], 24")
    A(f"s_load_dwordx2 s[{L.s_dbg}:{L.s_dbg+1}], s[0:1], 56")
    F3 = OPT.get("fuse3", 1)
    if F3:
        r.no_osrd = True
        A("s_load_dwordx2 s[12:13], s[0:1], 16")
        A("s_load_dwordx2 s[6:7], s[0:1], 40")
        A("s_load_dwordx2 s[14:15], s[0:1], 48")
    S = Stamper(A, rt, enabled=rt is not None); S.start()
    T = Tracer(A, vTR, enabled=bool(OPT.get("trace"))); T.init(); T.mark(0); g.T = T
    attn.emit_ids(A, r)
    A("s_waitcnt lgkmcnt(0)")
    T.mark(22)
    A(f"s_cmp_eq_u32 s{r.s_b}, 0")
    A(f"s_cselect_b32 s{g.s_xsrd}, s72, s76")
    A(f"s_cselect_b32 s{g.s_xsrd+1}, s73, s77")
    A(f"s_cselect_b32 s{g.s_wsrd}, s74, s78")
    A(f"s_cselect_b32 s{g.s_wsrd+1}, s75, s79")
    if F3: A("s_cselect_b32 s12, s12, s6\ns_cselect_b32 s13, s13, s7")
    A(f"s_mov_b32 s{g.s_xsrd+2}, {2048*1152}\ns_mov_b32 s{g.s_xsrd+3}, 0x20000")
    A(f"s_mov_b32 s{g.s_wsrd+2}, {576*3456}\ns_mov_b32 s{g.s_wsrd+3}, 0x20000")
    if OPT.get("tlb", 0):
        labt = A.newlabel("Ltlb")
        A(f"s_cmp_lg_u32 s{r.s_w}, 7\ns_cbranch_scc1 {labt}")
        A(f"s_load_dword s40, s[{g.s_wsrd}:{g.s_wsrd+1}], 0")
        A(f"s_lshl_b32 s46, s{r.s_c}, 8\ns_mul_i32 s46, s46, 1152")
        A(f"s_load_dword s41, s[{g.s_xsrd}:{g.s_xsrd+1}], s46")
        A(f"s_mul_i32 s46, s{r.s_b}, {BLK_BYTES}\ns_mul_i32 s47, s{r.s_hp}, {36*4096}\ns_add_u32 s46, s46, s47\ns_add_u32 s46, s46, {576*4096}")
        A(f"s_load_dword s42, s[{r.s_ws}:{r.s_ws+1}], s46")
        A(f"s_add_u32 s47, s46, {576*4096}")
        A(f"s_load_dword s43, s[{r.s_ws}:{r.s_ws+1}], s47")
        A(f"s_mov_b32 s48, {FLAG_OFF}")
        A(f"s_load_dword s44, s[{r.s_ws}:{r.s_ws+1}], s48")
        A(f"s_mul_i32 s49, s{r.s_b}, {O_BLK}\ns_add_u32 s49, s49, {O_OFF}")
        A(f"s_load_dword s45, s[{r.s_ws}:{r.s_ws+1}], s49")
        A.label(labt)
    A(f"s_cmp_ge_u32 s{r.s_w}, 8")
    A(f"s_cbranch_scc1 {name}_loader")
    pf = OPT.get("pf", 6)
    if pf == 1: emit_prefetch_batch(A, r, g, vPF, {0: ("x", 2, 3), 1: ("w", 2, 3)})
    if pf == 2: emit_prefetch_batch(A, r, g, vPF, {0: ("x", 2, 3), 1: ("w", 2, 3), 2: ("x", 4, 5), 3: ("w", 4, 5)})
    if pf == 3: emit_prefetch_batch(A, r, g, vPF, {0: ("x", 2, 3), 1: ("w", 2, 3), 2: ("x", 4, 5), 3: ("w", 4, 5), 4: ("x", 6, 7), 5: ("w", 6, 7), 6: ("x", 8, 8), 7: ("w", 8, 8)})
    g.pf2 = {1: {2: ("x", 4, 5), 3: ("w", 4, 5), 4: ("x", 6, 7), 5: ("w", 6, 7), 6: ("x", 8, 8), 7: ("w", 8, 8)}, 2: {4: ("x", 6, 7), 5: ("w", 6, 7), 6: ("x", 8, 8), 7: ("w", 8, 8)}}.get(pf, {})
    g.pfreg = vPF
    if pf == 6:
        emit_prefetch_batch(A, r, g, vPF, {0: ("x", 2, 5), 1: ("w", 2, 2), 2: ("w", 3, 3), 3: ("w", 4, 4)})
        g.pf2 = {0: ("x", 6, 8), 1: ("w", 5, 5), 2: ("w", 6, 6), 3: ("w", 7, 7), 4: ("w", 8, 8)}
    if pf == 7:
        emit_prefetch_batch(A, r, g, vPF, {0: ("x", 2, 5), 1: ("w", 2, 2), 2: ("w", 3, 3)})
        g.pf2 = {0: ("x", 6, 8), 1: ("w", 4, 4), 2: ("w", 5, 5), 3: ("w", 6, 6), 4: ("w", 7, 7), 5: ("w", 8, 8)}
    if pf == 8:
        emit_prefetch_batch(A, r, g, vPF, {1: ("w", 2, 2), 2: ("w", 3, 3)})
        g.pf2 = {0: ("x", 6, 8), 1: ("w", 4, 4), 2: ("w", 5, 5), 3: ("w", 6, 6), 4: ("w", 7, 7), 5: ("w", 8, 8)}
    if pf == 9:
        emit_prefetch_batch(A, r, g, vPF, {1: ("w", 3, 3), 0: ("x", 4, 7)})
        g.pf2 = {0: ("x", 8, 8), 1: ("w", 4, 4), 2: ("w", 5, 5), 3: ("w", 6, 6), 4: ("w", 7, 7), 5: ("w", 8, 8)}
    if pf == 10:
        g.pf2 = {0: ("x", 4, 7), 1: ("w", 3, 3), 2: ("w", 4, 4), 3: ("w", 5, 5), 4: ("w", 6, 6), 5: ("w", 7, 7), 6: ("w", 8, 8), 7: ("x", 8, 8)}
    if pf == 11:
        emit_prefetch_batch(A, r, g, vPF, {0: ("x", 2, 5), 1: ("w", 2, 2), 2: ("w", 3, 3)})
        g.pf2 = {0: ("x", 6, 8), 1: ("w", 4, 4), 2: ("w", 5, 5), 3: ("w", 6, 6), 4: ("w", 7, 7), 5: ("w", 8, 8)}
    if pf == 4: g.pf2 = {2: ("x", 4, 5), 3: ("w", 4, 5), 4: ("x", 6, 7), 5: ("w", 6, 7), 6: ("x", 8, 8), 7: ("w", 8, 8)}
    if pf == 5: g.pf_pre = {2: ("x", 4, 5), 3: ("w", 4, 5), 4: ("x", 6, 7), 5: ("w", 6, 7), 6: ("x", 8, 8), 7: ("w", 8, 8)}
    attn.emit_srds(A, r)
    labn = A.newlabel("Lnonce")
    A(f"s_cmp_lg_u32 s{r.s_w}, 0\ns_cbranch_scc1 {labn}")
    A("s_memrealtime s[94:95]\ns_waitcnt lgkmcnt(0)")
    A("s_or_b32 s94, s94, 1")
    A(f"v_mov_b32 v{vT}, s94\nv_mov_b32 v{vT+1}, 0\nv_mov_b32 v{vN}, 0")
    A(f"v_cmp_eq_u32 vcc, 0, v{r.lane}")
    A("s_and_saveexec_b64 s[36:37], vcc")
    A(f"global_atomic_cmpswap v{vN}, v{vN}, v[{vT}:{vT+1}], s[{L.s_dbg}:{L.s_dbg+1}] sc0 sc1")
    A("s_mov_b64 exec, s[36:37]")
    A.label(labn)
    emit_compute_gemm_setup(A, r, g)
    attn.emit_read_addrs(A, r)
    A(f"v_mov_b32 v{r.qE}, v{r.t[4]}\nv_mov_b32 v{r.qO}, v{r.t[5]}")
    labe = A.newlabel("Lea"); labf = A.newlabel("Lea")
    A(f"s_cmp_ge_u32 s{r.s_w}, 4\ns_cbranch_scc1 {labe}")
    emit_epi_addr(A, r, g, 0)
    A(f"s_branch {labf}")
    A.label(labe)
    emit_epi_addr(A, r, g, 1)
    A.label(labf)
    emit_compute_gemm(A, r, g, name, S)
    S.mark(3)
    A("s_waitcnt vmcnt(0)")
    labn2 = A.newlabel("Lnonce")
    A(f"s_cmp_lg_u32 s{r.s_w}, 0\ns_cbranch_scc1 {labn2}")
    A("s_waitcnt vmcnt(0)")
    A(f"v_cmp_eq_u32 vcc, 0, v{vN}")
    A(f"v_mov_b32 v{r.t[0]}, {NONCE_LDS}")
    A("s_nop 0")
    A(f"v_cndmask_b32 v{vN}, v{vN}, v{vT}, vcc")
    A(f"v_cmp_eq_u32 vcc, 0, v{r.lane}")
    A("s_and_saveexec_b64 s[36:37], vcc")
    A(f"ds_write_b32 v{r.t[0]}, v{vN}")
    A(f"v_mov_b32 v{r.t[1]}, 0")
    A(f"ds_write_b32 v{r.t[0]}, v{r.t[1]} offset:4")
    A(f"ds_write_b32 v{r.t[0]}, v{r.t[1]} offset:8")
    A(f"ds_write_b32 v{r.t[0]}, v{r.t[1]} offset:12")
    A(f"ds_write_b32 v{r.t[0]}, v{r.t[1]} offset:16")
    A("s_mov_b64 exec, s[36:37]")
    A.label(labn2)
    A(f"v_mov_b32 v{r.idx}, 0xdddddddd")
    A("s_waitcnt lgkmcnt(0)")
    A("s_barrier")
    if OPT.get("fuse3", 1): tail.emit_srds(A, r)
    attn.emit_q_frags(A, r)
    attn.emit_attn_prologue(A, r)
    S.mark(4)
    T.mark(26)
    attn.OPT["nodma"] = 1
    attn.OPT["extdma"] = 1
    attn.OPT["tracer"] = T if OPT.get("itrace") else None
    attn.emit_attn_loop(A, r, name)
    S.mark(5)
    T.mark(27)
    if OPT.get("fuse3", 1):
        tail.emit_publish_o(A, r)
        emit_check(A, r, name, part=0)
        emit_flag_read(A, r)
        A(f"s_cbranch_scc0 {name}_go3")
        emit_slow_compute(A, r, name)
        A("s_waitcnt vmcnt(0)")
        tail.emit_publish_o(A, r)
        A.label(f"{name}_go3")
        lab4 = A.newlabel("Lw4")
        A(f"s_cmp_lt_u32 s{r.s_w}, 4\ns_cbranch_scc1 {lab4}")
        tail.emit_flag_o(A, r, NONCE_LDS, S)
        A(f"s_branch {name}_fin")
        A.label(lab4)
        nv3 = tail.emit_compute(A, r, name, base, T, pre_g3=lambda: tail.emit_flag_o(A, r, NONCE_LDS, S))
        assert nv3 <= nv
    else:
        emit_check(A, r, name)
        A(f"s_cbranch_scc0 {name}_store")
        emit_slow_compute(A, r, name)
        A.label(f"{name}_store")
        attn.emit_attn_store(A, r, OPT.get("oflags", ""))
    A(f"s_branch {name}_fin")
    A.label(f"{name}_loader")
    A("s_setprio 3")
    A(f"s_sub_u32 s{L.s_lw}, s{r.s_w}, 8")
    pfv = OPT.get("pf", 6)
    if pfv in (8, 9, 10, 11):
        done8 = A.newlabel("Lpf8")
        jobs8 = {0: ("x", 0, 1), 1: ("w", 0, 0), 2: ("w", 1, 1), 3: ("x", 2, 5)} if pfv == 8 else {0: ("x", 0, 3), 1: ("w", 0, 0), 2: ("w", 1, 1), 3: ("w", 2, 2)}
        if pfv == 11: jobs8 = {0: ("x", 0, 1), 1: ("w", 0, 0), 2: ("w", 1, 1)}
        for lw, job in jobs8.items():
            lab8 = A.newlabel("Lpf8")
            A(f"s_cmp_eq_u32 s{L.s_lw}, {lw}\ns_cbranch_scc0 {lab8}")
            emit_prefetch(A, r, g, L.vflag, *job)
            A(f"s_branch {done8}")
            A.label(lab8)
        A.label(done8)
    emit_loader_gemm_setup(A, r, g, L)
    A(f"s_mov_b32 s{g.s_kc}, 0\ns_mov_b32 s{g.s_stw}, 0")
    if pfv in (8, 9, 10, 11): A("s_waitcnt vmcnt(0)")
    T.mark(23)
    emit_loader_gemm_dma(A, r, g, L)
    T.mark(24)
    emit_loader_gemm_dma(A, r, g, L)
    npf = 0
    T.mark(1)
    A(f"s_waitcnt vmcnt({12 + npf})")
    T.mark(2)
    A("s_barrier")
    S.mark(2)
    emit_loader_gemm_dma(A, r, g, L)
    for kc in range(NCH):
        rem = max(0, min(NCH - 1, kc + 2) - (kc + 1))
        A(f"s_waitcnt vmcnt({12*rem})")
        T.mark(3 + 2 * kc)
        A("s_barrier")
        T.mark(4 + 2 * kc)
        if kc + 3 < NCH: emit_loader_gemm_dma(A, r, g, L)
    S.mark(3)
    attn.emit_srds(A, r)
    emit_loader_kv_setup(A, r, L)
    emit_loader_ones(A, r, L)
    A(f"s_lshl_b32 s{r.s_t[0]}, s{r.s_b}, 4")
    A(f"s_add_u32 s{r.s_t[0]}, s{r.s_t[0]}, s{r.s_hp}")
    A(f"s_lshl_b32 s{r.s_t[0]}, s{r.s_t[0]}, 10")
    A(f"s_add_u32 s{r.s_t[0]}, s{r.s_t[0]}, {FLAG_OFF}")
    A(f"v_mov_b32 v{L.vflag}, s{r.s_t[0]}")
    A(f"v_lshlrev_b32 v{L.vlds}, 4, v{r.lane}")
    for i in range(9):
        A(f"v_add_u32 v{L.buf[i]+3}, s{L.s_lds[i]}, v{L.vlds}")
    A(f"s_lshl_b32 s{r.s_chunk}, s{r.s_c}, 9")
    A(f"v_mov_b32 v{r.t[2]}, {NONCE_LDS}")
    A("s_waitcnt lgkmcnt(0)")
    A("s_barrier")
    for i in range(9):
        A(f"ds_read_b128 v[{L.buf[i]}:{L.buf[i]+3}], v{L.buf[i]+3}")
    A(f"ds_read_b32 v{r.t[2]}, v{r.t[2]}")
    for i in range(9):
        A(f"s_waitcnt lgkmcnt({9-i})")
        A(f"buffer_store_dwordx4 v[{L.buf[i]}:{L.buf[i]+3}], v{L.vdma[i]}, s[{r.s_srd}:{r.s_srd+3}], s{r.s_chunk} offen sc1")
    A("s_waitcnt lgkmcnt(0)")
    A(f"v_readfirstlane_b32 s{L.s_nonce}, v{r.t[2]}")
    A("s_waitcnt vmcnt(0)")
    S.mark(4)
    A(f"s_lshl_b32 s{r.s_t[0]}, s{r.s_c}, 7")
    A(f"v_add_u32 v{r.t[0]}, s{r.s_t[0]}, v{L.vflag}")
    A(f"v_mov_b32 v{r.t[1]}, s{L.s_nonce}")
    A(f"v_mov_b32 v{r.t[2]}, {NONCE_LDS}\nv_mov_b32 v{r.t[3]}, 1")
    A(f"v_cmp_eq_u32 vcc, 0, v{r.lane}")
    A("s_and_saveexec_b64 s[36:37], vcc")
    if OPT.get("kv1flag", 1):
        A(f"ds_add_rtn_u32 v{r.t[3]}, v{r.t[2]}, v{r.t[3]} offset:8")
        A("s_waitcnt lgkmcnt(0)")
        A(f"v_cmp_eq_u32 vcc, 3, v{r.t[3]}")
        A("s_and_b64 exec, exec, vcc")
        labk = A.newlabel("Lkf")
        A(f"s_cbranch_execz {labk}")
        A(f"global_store_dword v{r.t[0]}, v{r.t[1]}, s[{r.s_ws}:{r.s_ws+1}] sc1")
        A.label(labk)
    else:
        A(f"s_lshl_b32 s{r.s_t[1]}, s{L.s_lw}, 2")
        A(f"v_add_u32 v{r.t[0]}, s{r.s_t[1]}, v{r.t[0]}")
        A(f"global_store_dword v{r.t[0]}, v{r.t[1]}, s[{r.s_ws}:{r.s_ws+1}] sc1")
    A("s_mov_b64 exec, s[36:37]")
    if OPT.get("xorseg", 0): A(f"s_mov_b32 s50, 1\ns_xor_b32 s{r.s_seg}, s{r.s_c}, 1")
    else: A(f"s_add_u32 s{r.s_seg}, s{r.s_c}, 1\ns_and_b32 s{r.s_seg}, s{r.s_seg}, 7")
    A(f"s_mov_b32 s{r.s_slotw}, {SLOT}")
    emit_poll(A, r, L, r.s_seg)
    S.mark(5)
    emit_loader_kv_dma(A, r, L)
    if OPT.get("fuse3", 1):
        tail.emit_srds(A, r)
        P = tail.emit_loader_setup(A, r, L, Vl.next)
        assert P.top <= nv
    for i in range(8):
        A("s_waitcnt vmcnt(0)")
        if i == 0: S.mark(6)
        A("s_barrier")
        if i == 5 and OPT.get("pfwo", 1):
            if not F3:
                A("s_load_dwordx2 s[40:41], s[0:1], 16")
                A("s_load_dwordx2 s[42:43], s[0:1], 40")
            A(f"s_lshl_b32 s46, s{r.s_hp}, 1\ns_and_b32 s47, s{r.s_c}, 1\ns_add_u32 s46, s46, s47\ns_mul_i32 s46, s46, 162")
            A(f"s_lshl_b32 s47, s{L.s_lw}, 6")
            A(f"v_add_u32 v{r.t[1]}, s47, v{r.lane}")
            A(f"v_min_u32 v{r.t[1]}, 161, v{r.t[1]}")
            A(f"v_add_u32 v{r.t[1]}, s46, v{r.t[1]}")
            A(f"v_lshlrev_b32 v{r.t[1]}, 7, v{r.t[1]}")
            if not F3:
                A("s_waitcnt lgkmcnt(0)")
                A(f"s_cmp_eq_u32 s{r.s_b}, 0")
                A("s_cselect_b32 s44, s40, s42\ns_cselect_b32 s45, s41, s43")
                A(f"global_load_dword v{r.t[2]}, v{r.t[1]}, s[44:45]")
            else:
                A(f"global_load_dword v{r.t[2]}, v{r.t[1]}, s[12:13]")
        if i + 2 < 8:
            emit_poll(A, r, L, r.s_seg)
            emit_loader_kv_dma(A, r, L)
        if F3 and i == 6: tail.emit_w_chunks(A, r, L, P, range(0, 7))
        if F3 and i == 7: tail.emit_w_chunks(A, r, L, P, range(7, 9))
    emit_flag_read(A, r)
    A(f"s_cbranch_scc0 {name}_noslow")
    emit_slow_loader(A, r, L, name)
    if OPT.get("fuse3", 1):
        tail.emit_w_chunks(A, r, L, P, range(7, 9))
    A.label(f"{name}_noslow")
    if OPT.get("fuse3", 1):
        tail.emit_loader(A, r, L, P, name, T, S)
    A.label(f"{name}_fin")
    T.mark(30)
    T.dump(r.s_ws, r.t[0])
    S.dump(r.s_ws, r.t[0], r.S[0])
    A.label(f"{name}_end")
    A("s_endpgm")
    return A.text(), nv
```

```python
from emit import *

OX_OFF = 0x1000000
OXB = 18432
FL_REL = 0x900000
X_BYTES = 0xA00000
WCH = 64 * 144
WB1 = 83968
WB2 = 0
def wbase(j): return WB1 + j * WCH if j < 7 else WB2 + (j - 7) * WCH
OB = 2 * WCH
XST = 16384; NST = 4; NCH = 9
LDS_END = WB1 + 7 * WCH
assert OB + NST * XST <= WB1
S_XSRD = 56; S_WSRD = 60; S_DSRD = 64
OPT = {}
PERM = [0, 2, 4, 6, 9, 11, 13, 15, 1, 3, 5, 7, 8, 10, 12, 14]

def emit_srds(A, r):
    A(f"s_add_u32 s{S_XSRD}, s{r.s_ws}, {OX_OFF}\ns_addc_u32 s{S_XSRD+1}, s{r.s_ws+1}, 0")
    A(f"s_mov_b32 s{S_XSRD+2}, {X_BYTES}\ns_mov_b32 s{S_XSRD+3}, 0x20000")
    A(f"s_mov_b32 s{S_WSRD}, s12\ns_mov_b32 s{S_WSRD+1}, s13")
    A(f"s_mov_b32 s{S_WSRD+2}, {576*1152}\ns_mov_b32 s{S_WSRD+3}, 0x20000")
    A(f"s_mov_b32 s{S_DSRD}, s14\ns_mov_b32 s{S_DSRD+1}, s15\ns_mov_b32 s{S_DSRD+2}, {2048*2304}\ns_mov_b32 s{S_DSRD+3}, 0x20000")

def emit_publish_o(A, r):
    t0, t1, t2, t3 = r.t[:4]
    st, st2, st3, st4 = r.s_t
    for u in range(2):
        A(f"v_rcp_f32 v{r.t[4+u]}, v{r.O[u]+10}")
    A(f"s_lshl_b32 s{st}, s{r.s_b}, 3\ns_add_u32 s{st}, s{st}, s{r.s_c}\ns_lshl_b32 s{st}, s{st}, 4\ns_add_u32 s{st}, s{st}, s{r.s_hp}\ns_mul_i32 s{st}, s{st}, {OXB}")
    A(f"s_lshr_b32 s{st2}, s{r.s_w}, 2")
    A(f"s_and_b32 s{st3}, s{r.s_w}, 3")
    A(f"s_lshl_b32 s{st4}, s{st2}, 10\ns_add_u32 s{st4}, s{st4}, s{st}\ns_add_u32 s{st4}, s{st4}, 16384")
    A(f"s_lshl_b32 s{st2}, s{st2}, 13\ns_add_u32 s{st}, s{st}, s{st2}")
    A(f"s_lshl_b32 s{st2}, s{st3}, 11\ns_add_u32 s{st}, s{st}, s{st2}")
    A(f"s_lshl_b32 s{st2}, s{st3}, 8\ns_add_u32 s{st4}, s{st4}, s{st2}")
    A(f"v_and_b32 v{t0}, 31, v{r.lane}")
    A(f"v_lshrrev_b32 v{t1}, 5, v{r.lane}")
    A(f"v_lshlrev_b32 v{t2}, 5, v{t0}")
    A(f"v_lshl_add_u32 v{t2}, v{t1}, 4, v{t2}")
    A(f"v_lshlrev_b32 v{t3}, 2, v{t0}")
    for u in range(2):
        o = r.O[u]; rc = r.t[4 + u]
        for i in range(10):
            A(f"v_mul_f32 v{o+i}, v{o+i}, v{rc}")
        pk = r.S[u]
        for i in range(5):
            A(f"v_cvt_pk_bf16_f32 v{pk+i}, v{o+2*i}, v{o+2*i+1}")
        A(f"buffer_store_dwordx4 v[{pk}:{pk+3}], v{t2}, s[{S_XSRD}:{S_XSRD+3}], s{st} offen offset:{1024*u} sc1")
        A("s_mov_b64 s[36:37], exec")
        A("s_mov_b32 exec_hi, 0")
        A(f"buffer_store_dword v{pk+4}, v{t3}, s[{S_XSRD}:{S_XSRD+3}], s{st4} offen offset:{128*u} sc1")
        A("s_mov_b64 exec, s[36:37]")

def emit_flag_o(A, r, nonce_lds, S=None):
    t0, t1, t2 = r.t[:3]
    st, st2 = r.s_t[:2]
    A(f"v_mov_b32 v{t1}, {nonce_lds}")
    A(f"v_mov_b32 v{t2}, 1")
    A(f"s_lshl_b32 s{st}, s{r.s_b}, 3\ns_add_u32 s{st}, s{st}, s{r.s_c}\ns_lshl_b32 s{st}, s{st}, 4\ns_add_u32 s{st}, s{st}, s{r.s_hp}")
    A(f"s_lshl_b32 s{st}, s{st}, 7\ns_add_u32 s{st}, s{st}, {FL_REL}")
    A(f"v_mov_b32 v{t0}, s{st}")
    A("s_waitcnt vmcnt(0)")
    if S: S.mark(7)
    A(f"v_cmp_eq_u32 vcc, 0, v{r.lane}")
    A("s_and_saveexec_b64 s[36:37], vcc")
    A(f"ds_add_rtn_u32 v{t2}, v{t1}, v{t2} offset:12")
    A(f"ds_read_b32 v{t1}, v{t1}")
    A("s_waitcnt lgkmcnt(0)")
    A(f"v_cmp_eq_u32 vcc, 7, v{t2}")
    A("s_and_b64 exec, exec, vcc")
    lab = A.newlabel("Lfo")
    A(f"s_cbranch_execz {lab}")
    A(f"buffer_store_dword v{t1}, v{t0}, s[{S_XSRD}:{S_XSRD+3}], 0 offen sc1")
    A.label(lab)
    A("s_mov_b64 exec, s[36:37]")

def emit_compute(A, r, name, base, T=None, pre_g3=None):
    V = RegAlloc(base, 168, "v")
    t0, t1, t2, t3, t4, t5 = r.t
    lane = r.lane
    NT = 4
    aB = [V.alloc(f"aB{k}") for k in range(2)]
    aA = [V.alloc(f"aA{k}") for k in range(3)]
    aT = [V.alloc(f"aT{k}") for k in range(4)]
    FO = [[V.alloc(f"FO{s}{i}", 4, 2) for i in range(NT)] for s in range(2)]
    FW = [[V.alloc(f"FW{s}{i}", 4, 2) for i in range(3)] for s in range(2)]
    acc = [[V.alloc(f"acc{i}{c}", 4, 4) for c in range(3)] for i in range(NT)]
    st, st2, st3, st4 = r.s_t
    s_w = r.s_w; s_it = r.s_it; s_rst = 46; s_gd = 47
    A(f"s_and_b32 s{st3}, s{s_w}, 1")
    A(f"v_and_b32 v{t0}, 15, v{lane}")
    A(f"v_lshrrev_b32 v{t1}, 1, v{t0}")
    A(f"v_lshrrev_b32 v{t2}, 4, v{lane}")
    A(f"v_xor_b32 v{t1}, v{t1}, v{t2}")
    A(f"s_lshl_b32 s{st}, s{st3}, 13\ns_add_u32 s{st}, s{st}, {OB}")
    A(f"v_lshlrev_b32 v{t3}, 7, v{t0}")
    A(f"v_add_u32 v{t3}, s{st}, v{t3}")
    A(f"v_lshl_add_u32 v{aB[0]}, v{t1}, 4, v{t3}")
    A(f"v_xor_b32 v{t1}, 4, v{t1}")
    A(f"v_lshl_add_u32 v{aB[1]}, v{t1}, 4, v{t3}")
    A(f"v_lshlrev_b32 v{t2}, 11, v{t2}")
    A(f"v_lshl_add_u32 v{t2}, v{t0}, 2, v{t2}")
    A(f"s_lshl_b32 s{st}, s{st3}, 8\ns_add_u32 s{st}, s{st}, {OB + (8 % NST) * XST}")
    A(f"v_add_u32 v{aT[0]}, s{st}, v{t2}")
    A(f"v_add_u32 v{aT[1]}, 1024, v{aT[0]}")
    A(f"v_add_u32 v{aT[2]}, 8192, v{aT[0]}")
    A(f"v_add_u32 v{aT[3]}, 9216, v{aT[0]}")
    A(f"v_lshrrev_b32 v{t0}, 4, v{lane}")
    A(f"v_lshrrev_b32 v{t1}, 2, v{lane}")
    A(f"v_and_b32 v{t1}, 3, v{t1}")
    A(f"v_lshl_add_u32 v{t2}, v{t0}, 2, v{t1}")
    A(f"v_mul_u32_u24 v{t2}, 144, v{t2}")
    A(f"v_add_u32 v{t2}, {WB1}, v{t2}")
    A(f"v_and_b32 v{t3}, 3, v{lane}")
    def tile_addr(dst, ct):
        A(f"v_lshl_add_u32 v{dst}, v{t3}, 3, v{t2}")
        if ct: A(f"v_add_u32 v{dst}, {32*ct}, v{dst}")
    end = A.newlabel("Lt3e")
    for cg in range(2):
        tiles = [0, 1, 4] if cg == 0 else [2, 3]
        nt = len(tiles)
        nxt = A.newlabel("Lt3c")
        if cg == 0: A(f"s_cmp_ge_u32 s{s_w}, 2\ns_cbranch_scc1 {nxt}")
        for k, ct in enumerate(tiles): tile_addr(aA[k], ct)
        for i in range(NT):
            for c in range(nt):
                for j in range(4): A(f"v_mov_b32 v{acc[i][c]+j}, 0")
        def rlist(s, ks, tailchunk=False):
            out = []
            if OPT.get("nord"): return out
            def wr(c):
                out.append(f"ds_read_b64_tr_b16 v[{FW[s][c]}:{FW[s][c]+1}], v{aA[c]} offset:{4608*ks}")
                out.append(f"ds_read_b64_tr_b16 v[{FW[s][c]+2}:{FW[s][c]+3}], v{aA[c]} offset:{4608*ks+16*144}")
            wr(0)
            for i in range(NT):
                if tailchunk:
                    out.append(f"ds_read2_b32 v[{FO[s][i]}:{FO[s][i]+1}], v{aT[2*ks]} offset0:{16*i} offset1:{16*i+128}")
                    out.append(f"ds_read2_b32 v[{FO[s][i]+2}:{FO[s][i]+3}], v{aT[2*ks+1]} offset0:{16*i} offset1:{16*i+128}")
                else:
                    out.append(f"ds_read_b128 v[{FO[s][i]}:{FO[s][i]+3}], v{aB[ks]} offset:{2048*i}")
            for c in range(1, nt): wr(c)
            return out
        def mlist(s):
            out = []
            if OPT.get("nomf"): return ["s_nop 0"]
            for c in range(nt):
                for i in range(NT):
                    out.append(f"v_mfma_f32_16x16x32_bf16 v[{acc[i][c]}:{acc[i][c]+3}], v[{FW[s][c]}:{FW[s][c]+3}], v[{FO[s][i]}:{FO[s][i]+3}], v[{acc[i][c]}:{acc[i][c]+3}]")
            return out
        def inter(mf, ex, pending=None):
            per = max(1, -(-len(ex) // max(1, len(mf) // 2)))
            k = 0
            for mi, m in enumerate(mf):
                if pending is not None and mi % NT == 0 and not OPT.get("nord"):
                    first = len(pending) - 2 * (nt - 1)
                    need = first + 2 * (mi // NT)
                    A(f"s_waitcnt lgkmcnt({min(15, len(pending) - need + k)})")
                A(m)
                for _ in range(per):
                    if k < len(ex): A(ex[k]); k += 1
            while k < len(ex): A(ex[k]); k += 1
        A(f"s_mov_b32 s{s_rst}, 0\ns_mov_b32 s{s_it}, 0")
        if pre_g3: pre_g3()
        A("s_barrier")
        if T and cg == 0: T.mark(28)
        for x in rlist(0, 0): A(x)
        lab = f"{name}_t3l{cg}"
        A.label(lab)
        inter(mlist(0), rlist(1, 1), rlist(0, 0))
        A(f"s_add_u32 s{s_rst}, s{s_rst}, 1\ns_cmp_eq_u32 s{s_rst}, {NST}")
        A(f"s_mov_b32 s{s_gd}, {XST}\ns_cmov_b32 s{s_gd}, {-(NST-1)*XST & 0xffffffff}")
        A(f"s_cselect_b32 s{s_rst}, 0, s{s_rst}")
        A("s_waitcnt lgkmcnt(0)")
        A("s_barrier")
        for x in [aB[0], aB[1]]: A(f"v_add_u32 v{x}, s{s_gd}, v{x}")
        A(f"s_cmp_eq_u32 s{s_it}, 6")
        A(f"s_mov_b32 s{s_gd}, {WCH}\ns_cmov_b32 s{s_gd}, {(wbase(7) - wbase(6)) & 0xffffffff}")
        for x in aA[:nt]: A(f"v_add_u32 v{x}, s{s_gd}, v{x}")
        A(f"s_add_u32 s{s_it}, s{s_it}, 1\ns_cmp_lt_u32 s{s_it}, 8")
        labp = A.newlabel("Lt3p")
        A(f"s_cbranch_scc0 {labp}")
        inter(mlist(1), rlist(0, 0))
        A(f"s_branch {lab}")
        A.label(labp)
        inter(mlist(1), rlist(0, 0, True))
        inter(mlist(0), rlist(1, 1, True), rlist(0, 0, True))
        A("s_waitcnt lgkmcnt(0)")
        A("s_barrier")
        for m in mlist(1): A(m)
        if T and cg == 0: T.mark(29)
        A("s_nop 7")
        A(f"v_and_b32 v{t0}, 15, v{lane}")
        A(f"s_lshl_b32 s{st}, s{r.s_c}, 8\ns_lshr_b32 s{st2}, s{r.s_hp}, 3\ns_lshl_b32 s{st2}, s{st2}, 7\ns_add_u32 s{st}, s{st}, s{st2}")
        A(f"s_and_b32 s{st2}, s{s_w}, 1\ns_lshl_b32 s{st2}, s{st2}, 6\ns_add_u32 s{st}, s{st}, s{st2}")
        A(f"v_add_u32 v{t0}, s{st}, v{t0}")
        A(f"v_mul_u32_u24 v{t0}, 2304, v{t0}")
        A(f"v_lshrrev_b32 v{t1}, 4, v{lane}")
        A(f"s_mul_i32 s{st}, s{r.s_b}, 1152\ns_and_b32 s{st2}, s{r.s_hp}, 7\ns_mul_i32 s{st2}, s{st2}, 144\ns_add_u32 s{st}, s{st}, s{st2}")
        A(f"v_and_b32 v{t2}, 1, v{t1}")
        A(f"v_lshlrev_b32 v{t2}, 5, v{t2}")
        A(f"v_lshrrev_b32 v{t3}, 1, v{t1}")
        A(f"v_lshl_add_u32 v{t2}, v{t3}, 4, v{t2}")
        A(f"v_add_u32 v{t2}, v{t2}, v{t0}")
        A(f"v_lshl_add_u32 v{t3}, v{t1}, 3, v{t0}")
        fl = OPT.get("stflags", "")
        pks = [FO[0][i] for i in range(NT)]; p2s = [FO[1][i] for i in range(NT)]
        for i in range(NT):
            a0, a1 = acc[i][0], acc[i][1]
            pk = pks[i]
            A(f"v_cvt_pk_bf16_f32 v{pk}, v{a0}, v{a0+1}\nv_cvt_pk_bf16_f32 v{pk+1}, v{a0+2}, v{a0+3}")
            A(f"v_cvt_pk_bf16_f32 v{pk+2}, v{a1}, v{a1+1}\nv_cvt_pk_bf16_f32 v{pk+3}, v{a1+2}, v{a1+3}")
            if cg == 0:
                a2 = acc[i][2]; p2 = p2s[i]
                A(f"v_cvt_pk_bf16_f32 v{p2}, v{a2}, v{a2+1}\nv_cvt_pk_bf16_f32 v{p2+1}, v{a2+2}, v{a2+3}")
        A("s_nop 1")
        for i in range(NT):
            pk = pks[i]
            A(f"v_permlane16_swap_b32 v{pk}, v{pk+2}")
            A(f"v_permlane16_swap_b32 v{pk+1}, v{pk+3}")
        A("s_nop 1")
        for i in range(NT):
            if i: A(f"s_add_u32 s{st}, s{st}, {16*2304}")
            pk = pks[i]
            A(f"buffer_store_dwordx4 v[{pk}:{pk+3}], v{t2}, s[{S_DSRD}:{S_DSRD+3}], s{st} offen offset:{64*cg}{fl}")
            if cg == 0:
                p2 = p2s[i]
                A(f"v_cmp_gt_u32 vcc, 2, v{t1}")
                A("s_and_saveexec_b64 s[36:37], vcc")
                A(f"buffer_store_dwordx2 v[{p2}:{p2+1}], v{t3}, s[{S_DSRD}:{S_DSRD+3}], s{st} offen offset:128{fl}")
                A("s_mov_b64 exec, s[36:37]")
        if cg == 0:
            A(f"s_branch {end}")
            A.label(nxt)
    A.label(end)
    return V.next

def emit_loader_setup(A, r, L, base):
    V = RegAlloc(base, 168, "v")
    t0, t1, t2, t3, t4, t5 = r.t
    lane = r.lane; st, st2, st3, st4 = r.s_t
    P = type("P", (), {})()
    P.vo = [V.alloc(f"vo{i}") for i in range(4)]
    P.vt = V.alloc("vt")
    P.vfl = V.alloc("vfl"); P.vfl2 = V.alloc("vfl2")
    P.vw = [V.alloc(f"vw{i}") for i in range(3)]
    P.vw8 = [V.alloc(f"vw8{i}") for i in range(3)]
    P.buf = [V.alloc(f"b{i}", 4, 4) for i in range(5)]
    P.top = V.next
    lw = L.s_lw
    A(f"v_lshrrev_b32 v{t0}, 3, v{lane}")
    A(f"s_lshr_b32 s{st}, s{r.s_hp}, 3\ns_lshl_b32 s{st3}, s{st}, 7\ns_lshl_b32 s{st2}, s{lw}, 5\ns_add_u32 s{st}, s{st3}, s{st2}")
    A(f"v_add_u32 v{t0}, s{st}, v{t0}")
    A(f"v_and_b32 v{t1}, 7, v{lane}")
    A(f"v_lshrrev_b32 v{t2}, 4, v{lane}")
    for i in range(4):
        A(f"v_or_b32 v{t3}, {4*(i&1)}, v{t2}")
        A(f"v_xor_b32 v{t3}, v{t3}, v{t1}")
        A(f"v_add_u32 v{t4}, {8*i}, v{t0}")
        A(f"v_lshrrev_b32 v{t5}, 2, v{t3}")
        A(f"v_mul_u32_u24 v{t5}, {2*OXB}, v{t5}")
        A(f"v_lshl_add_u32 v{t5}, v{t4}, 5, v{t5}")
        A(f"v_bfe_u32 v{P.vo[i]}, v{t3}, 1, 1")
        A(f"v_lshl_add_u32 v{t5}, v{P.vo[i]}, 13, v{t5}")
        A(f"v_and_b32 v{P.vo[i]}, 1, v{t3}")
        A(f"v_lshl_add_u32 v{P.vo[i]}, v{P.vo[i]}, 4, v{t5}")
    A(f"s_lshl_b32 s{st3}, s{st3}, 2\ns_add_u32 s{st3}, s{st3}, 16384")
    A(f"v_and_b32 v{P.vt}, 31, v{lane}")
    A(f"v_lshlrev_b32 v{P.vt}, 4, v{P.vt}")
    A(f"v_lshrrev_b32 v{t5}, 5, v{lane}")
    A(f"v_lshl_add_u32 v{P.vt}, v{t5}, 10, v{P.vt}")
    A(f"v_add_u32 v{P.vt}, s{st3}, v{P.vt}")
    A(f"s_lshl_b32 s{st}, s{r.s_b}, 3\ns_add_u32 s{st}, s{st}, s{r.s_c}\ns_lshl_b32 s{st}, s{st}, 11\ns_add_u32 s{st}, s{st}, {FL_REL}")
    A(f"v_lshrrev_b32 v{t0}, 3, v{lane}")
    A(f"v_lshrrev_b32 v{t1}, 2, v{t0}")
    A(f"v_lshl_add_u32 v{t2}, v{t0}, 1, v{t1}")
    A(f"v_xor_b32 v{t1}, 1, v{t1}")
    A(f"v_lshl_add_u32 v{t3}, v{t0}, 1, v{t1}")
    A(f"v_lshlrev_b32 v{t2}, 7, v{t2}")
    A(f"v_lshlrev_b32 v{t3}, 7, v{t3}")
    A(f"v_add_u32 v{P.vfl}, s{st}, v{t2}")
    A(f"v_add_u32 v{P.vfl2}, s{st}, v{t3}")
    A(f"s_and_b32 s{st3}, s{r.s_hp}, 7\ns_mul_i32 s{st3}, s{st3}, 144")
    for k in range(3):
        if k < 2: A(f"s_add_u32 s{st}, s{lw}, {4*k}\ns_lshl_b32 s{st}, s{st}, 6")
        else: A(f"s_movk_i32 s{st}, 512")
        A(f"v_add_u32 v{t3}, s{st}, v{lane}")
        A(f"v_mul_u32_u24 v{t4}, 7282, v{t3}")
        A(f"v_lshrrev_b32 v{t4}, 16, v{t4}")
        A(f"v_mul_u32_u24 v{t0}, 9, v{t4}")
        A(f"v_sub_u32 v{t3}, v{t3}, v{t0}")
        A(f"v_lshlrev_b32 v{t3}, 4, v{t3}")
        A(f"v_add_u32 v{t3}, s{st3}, v{t3}")
        A(f"v_lshrrev_b32 v{t0}, 5, v{t4}")
        A(f"v_mul_u32_u24 v{t0}, 72, v{t0}")
        A(f"v_bfe_u32 v{t1}, v{t4}, 3, 1")
        A(f"v_mul_u32_u24 v{t1}, 18, v{t1}")
        A(f"v_add_u32 v{t0}, v{t0}, v{t1}")
        A(f"v_bfe_u32 v{t1}, v{t4}, 2, 1")
        A(f"v_lshl_add_u32 v{t0}, v{t1}, 3, v{t0}")
        A(f"v_bfe_u32 v{t1}, v{t4}, 4, 1")
        A(f"v_lshl_add_u32 v{t0}, v{t1}, 2, v{t0}")
        A(f"v_and_b32 v{t1}, 3, v{t4}")
        A(f"v_add_u32 v{t0}, v{t0}, v{t1}")
        A(f"v_mul_u32_u24 v{t0}, 1152, v{t0}")
        A(f"v_add_u32 v{P.vw[k]}, v{t0}, v{t3}")
        A(f"v_lshrrev_b32 v{t0}, 5, v{t4}")
        A(f"v_lshlrev_b32 v{t0}, 3, v{t0}")
        A(f"v_bfe_u32 v{t1}, v{t4}, 2, 2")
        A(f"v_lshl_add_u32 v{t0}, v{t1}, 1, v{t0}")
        A(f"v_bfe_u32 v{t1}, v{t4}, 4, 1")
        A(f"v_add_u32 v{t0}, v{t0}, v{t1}")
        A(f"v_mul_u32_u24 v{t0}, 36, v{t0}")
        A(f"v_and_b32 v{t1}, 3, v{t4}")
        A(f"v_add3_u32 v{t0}, v{t0}, v{t1}, 16")
        A(f"v_lshrrev_b32 v{t1}, 1, v{t1}")
        A(f"v_lshl_add_u32 v{t0}, v{t1}, 4, v{t0}")
        A(f"v_mul_u32_u24 v{t0}, 1152, v{t0}")
        A(f"v_add_u32 v{P.vw8[k]}, v{t0}, v{t3}")
    A(f"s_lshl_b32 s51, s{r.s_b}, 3\ns_add_u32 s51, s51, s{r.s_c}\ns_mul_i32 s51, s51, {16*OXB}")
    A(f"s_mul_i32 s52, s{r.s_hp}, {OXB}\ns_add_u32 s52, s52, s51")
    A(f"s_lshl_b32 s53, s{r.s_b}, 3\ns_add_u32 s53, s53, s{r.s_c}\ns_lshl_b32 s53, s53, 4\ns_add_u32 s53, s53, s{r.s_hp}")
    A(f"s_lshl_b32 s53, s53, 7\ns_lshl_b32 s{st2}, s{lw}, 2\ns_add_u32 s53, s53, s{st2}\ns_add_u32 s53, s53, {FL_REL}")
    return P

def emit_w_chunks(A, r, L, P, chunks):
    st, st2 = r.s_t[:2]
    lw = L.s_lw
    for j in chunks:
        regs = P.vw if j < 8 else P.vw8
        so = 36 * PERM[2 * j] * 1152 if j < 8 else 0
        for k in range(3):
            lab = None
            if k == 2:
                lab = A.newlabel("Lw8")
                A(f"s_cmp_lg_u32 s{lw}, 0\ns_cbranch_scc1 {lab}")
                A(f"s_mov_b32 m0, {wbase(j) + 8192}")
            else:
                A(f"s_lshl_b32 s{st}, s{lw}, 10\ns_add_u32 m0, s{st}, {wbase(j) + 4096*k}")
            A(f"s_mov_b32 s{st2}, {so}")
            A(f"buffer_load_dwordx4 v{regs[k]}, s[{S_WSRD}:{S_WSRD+3}], s{st2} offen lds")
            if lab: A.label(lab)

def emit_loader(A, r, L, P, name, T=None, S=None):
    t0, t1, t2 = r.t[:3]
    lane = r.lane; st, st2, st3, st4 = r.s_t
    lw = L.s_lw
    def o_dma(j, stage):
        for i in range(4):
            A(f"s_lshl_b32 s{st}, s{lw}, 12\ns_add_u32 m0, s{st}, {OB + stage*XST + 1024*i}")
            if j < 8:
                A(f"s_add_u32 s{st2}, s51, {PERM[2*j]*OXB}")
                A(f"buffer_load_dwordx4 v{P.vo[i]}, s[{S_XSRD}:{S_XSRD+3}], s{st2} offen{OPT.get('oload', ' sc1')} lds")
            else:
                A(f"s_lshl_b32 s{st2}, s{lw}, 2\ns_add_u32 s{st2}, s{st2}, {i}\ns_mul_i32 s{st2}, s{st2}, {OXB}\ns_add_u32 s{st2}, s{st2}, s51")
                A(f"buffer_load_dwordx4 v{P.vt}, s[{S_XSRD}:{S_XSRD+3}], s{st2} offen{OPT.get('oload', ' sc1')} lds")
    b = P.buf[0]
    def poll(vreg):
        fmt = f"buffer_load_dword {{d}}, v{vreg}, s[{S_XSRD}:{S_XSRD+3}], 0 offen sc1"
        if OPT.get("spoll", 1):
            L.epoch = getattr(L, "epoch", 0) + 1
            emit_shared_poll(A, fmt, [b, b+1, b+2, b+3], L.s_nonce, st3, L.s_lw, L.epoch, L.lds_epoch, t1, t2, depth=OPT.get('pdepth', 1))
        else:
            emit_pipelined_poll(A, fmt, [b, b+1, b+2, b+3], L.s_nonce, st3, depth=1)
    poll(P.vfl)
    if T: T.mark(28)
    q = []
    for j in range(NST):
        o_dma(j, j); q += [j] * 4
    def wait_for(j):
        last = max(i for i, c in enumerate(q) if c <= j)
        A(f"s_waitcnt vmcnt({len(q) - 1 - last})")
    wait_for(0)
    A("s_barrier")
    for it in range(NCH):
        if it + 1 < NCH and not OPT.get("nowait"): wait_for(it + 1)
        A("s_barrier")
        j = it + NST
        if j == NST:
            poll(P.vfl2)
            if T: T.mark(29)
            if OPT.get("pfo2", 0):
                labp = A.newlabel("Lpfo")
                A(f"s_cmp_lg_u32 s{lw}, 3\ns_cbranch_scc1 {labp}")
                A(f"s_and_b32 s{st}, s{r.s_hp}, 7")
                A(f"s_lshr_b32 s{st2}, s{r.s_hp}, 3")
                labq = A.newlabel("Lpfo"); labr = A.newlabel("Lpfo")
                A(f"s_cmp_ge_u32 s{st}, 6\ns_cbranch_scc1 {labq}")
                A(f"s_add_u32 s{st}, s{st}, 2\ns_cmp_lt_u32 s{st}, 4\ns_cselect_b32 s{st4}, 1, 0\ns_lshl_b32 s{st}, s{st}, 1\ns_add_u32 s{st}, s{st}, s{st4}")
                A(f"s_mul_i32 s{st}, s{st}, {OXB}\ns_lshl_b32 s{st2}, s{st2}, 13\ns_add_u32 s{st}, s{st}, s{st2}\ns_add_u32 s{st}, s{st}, s51")
                A(f"v_lshlrev_b32 v{t1}, 7, v{lane}")
                A(f"s_branch {labr}")
                A.label(labq)
                A(f"s_sub_u32 s{st}, s{st}, 6\ns_mul_i32 s{st}, s{st}, {8*OXB}\ns_lshl_b32 s{st2}, s{st2}, 10\ns_add_u32 s{st}, s{st}, s{st2}\ns_add_u32 s{st}, s{st}, 16384\ns_add_u32 s{st}, s{st}, s51")
                A(f"v_lshrrev_b32 v{t1}, 3, v{lane}")
                A(f"v_mul_u32_u24 v{t1}, {OXB}, v{t1}")
                A(f"v_and_b32 v{t2}, 7, v{lane}")
                A(f"v_lshl_add_u32 v{t1}, v{t2}, 7, v{t1}")
                A.label(labr)
                A(f"buffer_load_dword v{t2}, v{t1}, s[{S_XSRD}:{S_XSRD+3}], s{st} offen{OPT.get('pfflag', '')}")
                A.label(labp)
        if j < NCH:
            if not OPT.get("nodma"): o_dma(j, j % NST)
            q += [j] * 4
```

```python
from emit import *
import attn, qkv, tail
from attn import R, ROWB, BLK_BYTES, O_OFF, O_BLK, KPAIR, VPAIR, KBLK, VBLK, HEADSZ, ONES, ZEROS, SLOT, NSLOT, QOFF
from qkv import XST, WST, STAGE, NST, NCH, CSCALE, f32bits

OPT = {}
NONCE_LDS = max(qkv.LDS_GEMM, attn.LDS_ATTN, tail.LDS_END)
LDS_FUSED = NONCE_LDS + 256
FLAG_OFF = 0x2000000

def emit_loader_gemm_setup(A, r, g, L):
    t0, t1, t2, t3, t4, t5 = r.t
    st, st2, st3, st4 = r.s_t
    lane = r.lane
    A(f"v_lshrrev_b32 v{t0}, 3, v{lane}")
    A(f"v_and_b32 v{t1}, 7, v{lane}")
    A(f"v_lshrrev_b32 v{t2}, 4, v{lane}")
    A(f"v_and_b32 v{t2}, 1, v{t2}")
    A(f"s_lshl_b32 s{st}, s{r.s_c}, 8")
    A(f"s_lshl_b32 s{st2}, s{L.s_lw}, 6")
    A(f"s_add_u32 s{st}, s{st}, s{st2}")
    A(f"v_add_u32 v{t0}, s{st}, v{t0}")
    A(f"v_mul_u32_u24 v{t0}, 1152, v{t0}")
    for i in range(4):
        A(f"v_or_b32 v{t3}, {i<<1}, v{t2}")
        A(f"v_xor_b32 v{t3}, v{t3}, v{t1}")
        A(f"v_lshl_add_u32 v{L.vx[i]}, v{t3}, 4, v{t0}")
        if i: A(f"v_add_u32 v{L.vx[i]}, {i*8*1152}, v{L.vx[i]}")
    A(f"v_lshrrev_b32 v{t0}, 4, v{lane}")
    A(f"s_lshl_b32 s{st}, s{L.s_lw}, 4")
    A(f"v_add_u32 v{t5}, s{st}, v{t0}")
    A(f"v_mul_u32_u24 v{t5}, 3456, v{t5}")
    A(f"s_mul_i32 s{st}, s{r.s_hp}, 72")
    A(f"v_add_u32 v{t5}, s{st}, v{t5}")
    for var in range(2):
        A(f"v_or_b32 v{t1}, {4*var}, v{t0}")
        A(f"v_lshlrev_b32 v{t1}, 1, v{t1}")
        A(f"v_and_b32 v{t2}, 15, v{lane}")
        A(f"v_xor_b32 v{t2}, v{t2}, v{t1}")
        A(f"v_lshrrev_b32 v{t3}, 2, v{t2}")
        A(f"v_and_b32 v{t4}, 3, v{t2}")
        A(f"v_min_u32 v{t1}, 2, v{t4}")
        A(f"v_cmp_eq_u32 vcc, 3, v{t3}")
        A("s_nop 1")
        A(f"v_cndmask_b32 v{t3}, v{t3}, v{t1}, vcc")
        A(f"v_lshlrev_b32 v{t4}, 4, v{t4}")
        A(f"v_cndmask_b32 v{t4}, v{t4}, 56, vcc")
        A(f"v_mul_u32_u24 v{t3}, 1152, v{t3}")
        A(f"v_add3_u32 v{L.vw[var]}, v{t3}, v{t4}, v{t5}")
    A(f"s_lshl_b32 s{g.s_mx}, s{L.s_lw}, 13")
    A(f"s_lshl_b32 s{g.s_mw}, s{L.s_lw}, 12")
    A(f"s_add_u32 s{g.s_mw}, s{g.s_mw}, {XST}")

def emit_loader_gemm_dma(A, r, g, L):
    st, st2 = r.s_t[:2]
    A(f"s_lshl_b32 s{g.s_xoff}, s{g.s_kc}, 7")
    A(f"s_mul_i32 s{g.s_woff}, s{g.s_kc}, {64*3456}")
    for i in range(4):
        A(f"s_add_u32 s{st}, s{g.s_stw}, s{g.s_mw}")
        A(f"s_add_u32 m0, s{st}, {1024*i}")
        A(f"s_add_u32 s{st2}, s{g.s_woff}, {4*3456*i}")
        A(f"buffer_load_dwordx4 v{L.vw[i>>1]}, s[{g.s_wsrd}:{g.s_wsrd+3}], s{st2} offen lds")
    for i in range(8):
        A(f"s_add_u32 s{st}, s{g.s_stw}, s{g.s_mx}")
        A(f"s_add_u32 m0, s{st}, {1024*i}")
        A(f"s_add_u32 s{st2}, s{g.s_xoff}, {32*1152*(i>>2)}")
        A(f"buffer_load_dwordx4 v{L.vx[i&3]}, s[{g.s_xsrd}:{g.s_xsrd+3}], s{st2} offen lds")
    A(f"s_add_u32 s{g.s_kc}, s{g.s_kc}, 1")
    A(f"s_add_u32 s{g.s_stw}, s{g.s_stw}, {STAGE}")
    A(f"s_cmp_eq_u32 s{g.s_stw}, {NST*STAGE}")
    A(f"s_cselect_b32 s{g.s_stw}, 0, s{g.s_stw}")

def emit_compute_gemm_setup(A, r, g):
    t0, t1, t2, t3, t4, t5 = r.t
    st, st2, st3, st4 = r.s_t
    lane = r.lane
    A(f"v_and_b32 v{t0}, 15, v{lane}")
    A(f"v_lshrrev_b32 v{t1}, 2, v{t0}")
    A(f"v_and_b32 v{t2}, 3, v{t0}")
    A(f"v_lshl_add_u32 v{t2}, v{t1}, 3, v{t2}")
    A(f"v_lshrrev_b32 v{t3}, 1, v{t0}")
    A(f"v_and_b32 v{t3}, 1, v{t3}")
    A(f"v_lshl_or_b32 v{t3}, v{t1}, 1, v{t3}")
    A(f"v_lshrrev_b32 v{t4}, 4, v{lane}")
    A(f"v_xor_b32 v{t3}, v{t3}, v{t4}")
    A(f"s_and_b32 s{st}, s{r.s_w}, 3")
    A(f"s_lshl_b32 s{st}, s{st}, 13")
    A(f"v_lshlrev_b32 v{t2}, 7, v{t2}")
    A(f"v_add_u32 v{t2}, s{st}, v{t2}")
    A(f"v_lshl_add_u32 v{g.aA[0]}, v{t3}, 4, v{t2}")
    A(f"v_xor_b32 v{t3}, 4, v{t3}")
    A(f"v_lshl_add_u32 v{g.aA[1]}, v{t3}, 4, v{t2}")
    A(f"v_lshrrev_b32 v{t0}, 4, v{lane}")
    A(f"v_lshrrev_b32 v{t1}, 2, v{lane}")
    A(f"v_and_b32 v{t1}, 3, v{t1}")
    A(f"v_lshl_add_u32 v{t2}, v{t0}, 3, v{t1}")
    A(f"v_lshlrev_b32 v{t2}, 8, v{t2}")
    A(f"v_add_u32 v{t2}, {XST}, v{t2}")
    A(f"v_and_b32 v{t0}, 1, v{t0}")
    A(f"v_lshl_or_b32 v{t0}, v{t0}, 2, v{t1}")
    A(f"v_and_b32 v{t3}, 3, v{lane}")
    A(f"v_lshlrev_b32 v{t4}, 3, v{t3}")
    A(f"v_add_u32 v{t4}, v{t4}, v{t2}")
    A(f"s_lshr_b32 s{st}, s{r.s_w}, 2")
    A(f"s_lshl_b32 s{st}, s{st}, 2")
    for t in range(4):
        A(f"s_add_u32 s{st2}, s{st}, {t}")
        A(f"v_xor_b32 v{t5}, s{st2}, v{t0}")
        A(f"v_lshl_add_u32 v{g.aB[t]}, v{t5}, 5, v{t4}")
    A(f"v_add_u32 v{t3}, 12, v{t3}")
    A(f"v_lshlrev_b32 v{t0}, 1, v{t0}")
    A(f"v_xor_b32 v{t3}, v{t3}, v{t0}")
    A(f"v_lshl_add_u32 v{t3}, v{t3}, 4, v{t2}")
    A(f"v_add_u32 v{t3}, 8, v{t3}")
    A(f"s_cmp_ge_u32 s{r.s_w}, 4")
    A(f"s_cselect_b64 vcc, -1, 0")
    A("s_nop 1")
    A(f"v_cndmask_b32 v{g.aB[2]}, v{g.aB[2]}, v{t3}, vcc")

def g_read_list(g, s, ks, nt):
    out = []
    for i in range(4):
        p, T = i // 2, i % 2
        out.append(f"ds_read_b128 v[{g.FA[s][i]}:{g.FA[s][i]+3}], v{g.aA[ks]} offset:{4096*p+512*T}")
    for t in range(nt):
        out.append(f"ds_read_b64_tr_b16 v[{g.FB[s][t]}:{g.FB[s][t]+1}], v{g.aB[t]} offset:{8192*ks}")
        out.append(f"ds_read_b64_tr_b16 v[{g.FB[s][t]+2}:{g.FB[s][t]+3}], v{g.aB[t]} offset:{8192*ks+1024}")
    return out
def g_mfma_list(g, s, nt):
    out = []
    for t in range(nt):
        for i in range(4):
            out.append(f"v_mfma_f32_16x16x32_bf16 v[{g.acc[i][t]}:{g.acc[i][t]+3}], v[{g.FA[s][i]}:{g.FA[s][i]+3}], v[{g.FB[s][t]}:{g.FB[s][t]+3}], v[{g.acc[i][t]}:{g.acc[i][t]+3}]")
    return out
def interleave(A, mf, rd, pre=()):
    extra = list(pre) + list(rd)
    k = 0
    for m in mf:
        A(m)
        if k < len(extra):
            A(extra[k]); k += 1
    while k < len(extra):
        A(extra[k]); k += 1

def emit_compute_gemm(A, r, g, name, S):
    A(f"s_mov_b32 s{g.s_rst}, 0")
    for i in range(4):
        for t in range(4):
            for j in range(4): A(f"v_mov_b32 v{g.acc[i][t]+j}, 0")
    if getattr(g, "pf_pre", None): emit_prefetch_batch(A, r, g, g.pfreg, g.pf_pre)
    g.T.mark(1)
    A("s_barrier")
    S.mark(2)
    g.T.mark(2)
    if g.pf2: emit_prefetch_batch(A, r, g, g.pfreg, g.pf2)
    A(f"s_cmp_ge_u32 s{r.s_w}, 4")
    A(f"s_cbranch_scc1 {name}_g1")
    for nh in range(2):
        nt = 4 if nh == 0 else 3
        if nh == 1:
            A.label(f"{name}_g1")
            if OPT.get("gprio"): A(f"s_setprio {OPT['gprio']}")
        for x in g_read_list(g, 0, 0, nt): A(x)
        A(f"s_mov_b32 s{r.s_it}, 0")
        if not OPT.get("gprog", 1): A("s_waitcnt lgkmcnt(0)")
        A.label(f"{name}_gl{nh}")
        burst = False
        mf = g_mfma_list(g, 0, nt); rd = g_read_list(g, 1, 1, nt)
        nold = 4 + 2 * nt
        k = 0
        for m_i, m in enumerate(mf):
            if OPT.get("gprog", 1) and m_i % 4 == 0:
                need = 4 + 2 * (m_i // 4 + 1)
                A(f"s_waitcnt lgkmcnt({min(15, nold - need + k)})")
            A(m)
            if k < len(rd): A(rd[k]); k += 1
        while k < len(rd): A(rd[k]); k += 1
        A(f"s_add_u32 s{g.s_rst}, s{g.s_rst}, 1")
        A(f"s_cmp_eq_u32 s{g.s_rst}, {NST}")
        A(f"s_mov_b32 s{g.s_gdelta}, {STAGE}\ns_cmov_b32 s{g.s_gdelta}, {-(NST-1)*STAGE & 0xffffffff}")
        A(f"s_cselect_b32 s{g.s_rst}, 0, s{g.s_rst}")
        A("s_waitcnt lgkmcnt(0)")
        A("s_barrier")
        upd = [f"v_add_u32 v{x}, s{g.s_gdelta}, v{x}" for x in [g.aA[0]] + g.aB[:nt] + [g.aA[1]]]
        mf = g_mfma_list(g, 1, nt)
        rd = g_read_list(g, 0, 0, nt)
        k = 0
        if burst:
            for x in upd + rd + mf: A(x)
        else:
            for x in upd[:2]: A(x)
            seq = upd[2:] + rd
            interleave(A, mf, seq)
        A(f"s_add_u32 s{r.s_it}, s{r.s_it}, 1")
        A(f"s_cmp_lt_u32 s{r.s_it}, {NCH}")
        if not OPT.get("gprog", 1): A(f"s_waitcnt lgkmcnt(0)")
        A(f"s_cbranch_scc1 {name}_gl{nh}")
        A("s_waitcnt lgkmcnt(0)")
        if OPT.get("kvdirect", 0): A("s_waitcnt vmcnt(0)")
        if nh == 1 and OPT.get("gprio"): A("s_setprio 0")
        emit_epi_lds(A, r, g, nh)
        if nh == 0: A(f"s_branch {name}_gdone")
    A.label(f"{name}_gdone")

def emit_epi_addr(A, r, g, nh):
    t0, t1, t2, t3, t4, t5 = r.t
    st, st2, st3, st4 = r.s_t
    lane = r.lane
    nt = 4 if nh == 0 else 3
    A(f"s_and_b32 s{st}, s{r.s_w}, 3")
    A(f"s_lshl_b32 s{st}, s{st}, 7")
    typ = g.FA[0][0]; col = g.FA[0][0] + 1; tmp = g.FA[0][0] + 2; v2 = g.FA[0][0] + 3
    for t in range(nt):
        Tf = 4 * nh + t
        ea = g.ea[t]; ed = g.ed[t]
        A(f"v_and_b32 v{t1}, 15, v{lane}")
        if Tf < 6:
            A(f"v_add_u32 v{col}, {16*(Tf & 1)}, v{t1}")
        else:
            A(f"v_lshrrev_b32 v{typ}, 2, v{t1}")
            A(f"v_and_b32 v{col}, 3, v{t1}")
            A(f"v_add_u32 v{col}, 32, v{col}")
        A(f"v_cmp_le_u32 vcc, 18, v{col}")
        A(f"v_subrev_u32 v{tmp}, 18, v{col}")
        A("s_nop 0")
        A(f"v_cndmask_b32 v{col}, v{col}, v{tmp}, vcc")
        A(f"v_cndmask_b32 v{t0}, 0, 1, vcc")
        A(f"v_and_b32 v{t2}, 1, v{col}")
        A(f"v_lshrrev_b32 v{t3}, 1, v{col}")
        A(f"v_lshrrev_b32 v{t4}, 4, v{lane}")
        isq = (Tf < 2); isk = (Tf in (2, 3)); isv = (Tf in (4, 5))
        def ktype(base_const, hstride):
            A(f"v_mul_u32_u24 v{ea}, {KPAIR}, v{t3}")
            A(f"v_mul_u32_u24 v{tmp}, {hstride}, v{t0}")
            A(f"v_add3_u32 v{ea}, v{ea}, v{tmp}, s{st}")
            A(f"v_mul_u32_u24 v{tmp}, {512+64}, v{t2}")
            A(f"v_lshl_add_u32 v{tmp}, v{t4}, 4, v{tmp}")
            A(f"v_add_u32 v{ea}, v{ea}, v{tmp}")
            if base_const: A(f"v_add_u32 v{ea}, {base_const}, v{ea}")
            A(f"v_lshlrev_b32 v{ed}, 7, v{t2}")
            A(f"v_sub_u32 v{ed}, 64, v{ed}")
        def vtype(dst, dd):
            A(f"v_mul_u32_u24 v{dst}, {VPAIR}, v{t3}")
            A(f"v_mul_u32_u24 v{tmp}, {HEADSZ}, v{t0}")
            A(f"v_add3_u32 v{dst}, v{dst}, v{tmp}, s{st}")
            A(f"v_xor_b32 v{tmp}, v{t4}, v{t2}")
            A(f"v_lshlrev_b32 v{tmp}, 4, v{tmp}")
            A(f"v_lshl_add_u32 v{tmp}, v{t2}, 9, v{tmp}")
            A(f"v_add_u32 v{dst}, v{dst}, v{tmp}")
            A(f"v_add_u32 v{dst}, {KBLK}, v{dst}")
            A(f"v_mov_b32 v{dd}, 64")
        if isq: ktype(QOFF, KBLK)
        elif isk: ktype(0, HEADSZ)
        elif isv: vtype(ea, ed)
        else:
            ktype(0, HEADSZ)
            A(f"v_mul_i32_i24 v{tmp}, {KBLK-HEADSZ}, v{t0}")
            A(f"v_add_u32 v{tmp}, {QOFF}, v{tmp}")
            A(f"v_cmp_eq_u32 vcc, 0, v{typ}")
            A("s_nop 1")
            A(f"v_cndmask_b32 v{tmp}, 0, v{tmp}, vcc")
            A(f"v_add_u32 v{ea}, v{ea}, v{tmp}")
            vtype(t5, v2)
            A(f"v_cmp_eq_u32 vcc, 2, v{typ}")
            A("s_nop 1")
            A(f"v_cndmask_b32 v{ea}, v{ea}, v{t5}, vcc")
            A(f"v_cndmask_b32 v{ed}, v{ed}, v{v2}, vcc")
            A(f"v_mov_b32 v{g.esc}, 1.0")
            A(f"v_mov_b32 v{tmp}, {f32bits(CSCALE):#x}")
            A(f"v_cmp_eq_u32 vcc, 0, v{typ}")
            A("s_nop 1")
            A(f"v_cndmask_b32 v{g.esc}, v{g.esc}, v{tmp}, vcc")
            A(f"v_cmp_gt_u32 s[54:55], 3, v{typ}")
        A(f"v_add_u32 v{ed}, v{ea}, v{ed}")
        if g.eg is not None and Tf >= 2:
            eg = g.eg[t - 2 if nh == 0 else t]
            A(f"v_and_b32 v{t1}, 15, v{lane}")
            if Tf < 6:
                A(f"s_mul_i32 s{st2}, s{r.s_hp}, 36\ns_add_u32 s{st2}, s{st2}, {576*(Tf >> 1) + 16*(Tf & 1)}")
                A(f"v_add_u32 v{eg}, s{st2}, v{t1}")
            else:
                A(f"v_lshrrev_b32 v{eg}, 2, v{t1}")
                A(f"v_mul_u32_u24 v{eg}, 576, v{eg}")
                A(f"v_and_b32 v{t1}, 3, v{t1}")
                A(f"s_mul_i32 s{st2}, s{r.s_hp}, 36\ns_add_u32 s{st2}, s{st2}, 32")
                A(f"v_add3_u32 v{eg}, v{eg}, v{t1}, s{st2}")
                A(f"v_cmp_lt_u32 s[52:53], 0, v{typ}")
                A("s_nop 3")
                A("s_and_b64 s[52:53], s[52:53], s[54:55]")
            A(f"v_lshlrev_b32 v{eg}, 12, v{eg}")
            A(f"v_lshrrev_b32 v{t1}, 4, v{lane}")
            A(f"v_lshl_add_u32 v{eg}, v{t1}, 4, v{eg}")
            A(f"v_add_u32 v{eg}, s{st}, v{eg}")

def emit_epi_lds(A, r, g, nh):
    st4 = r.s_t[3]
    nt = 4 if nh == 0 else 3
    A("s_nop 7")
    A(f"s_mov_b32 s{st4}, {f32bits(CSCALE):#x}")
    A(f"s_lshl_b32 s{r.s_chunk}, s{r.s_c}, 9")
    order = [2, 3, 0, 1] if nh == 0 else [0, 1, 2]
    for t in order:
        Tf = 4 * nh + t
        if OPT.get("e1a", 0) and nh == 0 and t == 0:
            A("s_waitcnt lgkmcnt(0)")
            A("s_barrier")
        isq = Tf < 2
        if Tf == 6:
            A("s_mov_b64 s[36:37], exec")
            A("s_mov_b64 exec, s[54:55]")
        for p in range(2):
            a0 = g.acc[2 * p][t]; a1 = g.acc[2 * p + 1][t]
            if isq:
                for j in range(4):
                    A(f"v_mul_f32 v{a0+j}, s{st4}, v{a0+j}")
                    A(f"v_mul_f32 v{a1+j}, s{st4}, v{a1+j}")
            elif Tf == 6:
                for j in range(4):
                    A(f"v_mul_f32 v{a0+j}, v{g.esc}, v{a0+j}")
                    A(f"v_mul_f32 v{a1+j}, v{g.esc}, v{a1+j}")
            pk = g.FA[p][t]
            A(f"v_cvt_pk_bf16_f32 v{pk}, v{a0}, v{a0+1}")
            A(f"v_cvt_pk_bf16_f32 v{pk+1}, v{a0+2}, v{a0+3}")
            A(f"v_cvt_pk_bf16_f32 v{pk+2}, v{a1}, v{a1+1}")
            A(f"v_cvt_pk_bf16_f32 v{pk+3}, v{a1+2}, v{a1+3}")
            A(f"ds_write_b128 v{g.ea[t] if p == 0 else g.ed[t]}, v[{pk}:{pk+3}]")
            if g.eg is not None and Tf >= 2:
                eg = g.eg[t - 2 if nh == 0 else t]
                if Tf == 6: A("s_mov_b64 exec, s[52:53]")
                A(f"buffer_store_dwordx4 v[{pk}:{pk+3}], v{eg}, s[{r.s_srd}:{r.s_srd+3}], s{r.s_chunk} offen offset:{64*p} sc1")
                if Tf == 6: A("s_mov_b64 exec, s[54:55]")
        if Tf == 6:
            A("s_mov_b64 exec, s[36:37]")
    if OPT.get("e1a", 0) and nh == 1:
        A("s_waitcnt lgkmcnt(0)")
        A("s_barrier")

def emit_prefetch(A, r, g, d0, kind, kca, kcb):
    t0, t1, t2, t3 = r.t[:4]
    st, st2, st3, st4 = r.s_t
    A(f"s_lshl_b32 s{st}, s{r.s_hp}, 1\ns_and_b32 s{st2}, s{r.s_c}, 1\ns_add_u32 s{st}, s{st}, s{st2}")
    if kind == "x":
        A(f"v_lshrrev_b32 v{t3}, 4, v{r.lane}")
        A(f"v_add_u32 v{t3}, {kca}, v{t3}")
        A(f"v_min_u32 v{t3}, {kcb}, v{t3}")
        A(f"v_and_b32 v{t0}, 15, v{r.lane}")
        A(f"s_lshr_b32 s{st2}, s{r.s_c}, 1\ns_lshl_b32 s{st2}, s{st2}, 9\ns_lshl_b32 s{st3}, s{st}, 4\ns_add_u32 s{st2}, s{st2}, s{st3}")
        A(f"v_add_u32 v{t0}, s{st2}, v{t0}")
        A(f"v_mul_u32_u24 v{t0}, 1152, v{t0}")
        A(f"v_lshl_add_u32 v{t0}, v{t3}, 7, v{t0}")
        A(f"buffer_load_dword v{d0}, v{t0}, s[{g.s_xsrd}:{g.s_xsrd+3}], 0 offen")
    elif kind == "w":
        A(f"v_min_u32 v{t0}, 53, v{r.lane}")
        A(f"s_mul_i32 s{st2}, s{st}, 54")
        A(f"v_add_u32 v{t0}, s{st2}, v{t0}")
        A(f"v_mul_u32_u24 v{t1}, 2428, v{t0}")
        A(f"v_lshrrev_b32 v{t1}, 16, v{t1}")
        A(f"v_mul_u32_u24 v{t2}, 27, v{t1}")
        A(f"v_sub_u32 v{t2}, v{t0}, v{t2}")
        A(f"v_add_u32 v{t1}, {64*kca}, v{t1}")
        A(f"v_mul_u32_u24 v{t1}, 3456, v{t1}")
        A(f"v_lshl_add_u32 v{t1}, v{t2}, 7, v{t1}")
        A(f"buffer_load_dword v{d0}, v{t1}, s[{g.s_wsrd}:{g.s_wsrd+3}], 0 offen")

def emit_prefetch_batch(A, r, g, d0, jobs):
    done = A.newlabel("Lpfd")
    for w, (kind, a, b) in jobs.items():
        lab = A.newlabel("Lpf")
        A(f"s_cmp_eq_u32 s{r.s_w}, {w}\ns_cbranch_scc0 {lab}")
        emit_prefetch(A, r, g, d0, kind, a, b)
        A(f"s_branch {done}")
        A.label(lab)
    A.label(done)

def emit_loader_kv_setup(A, r, L):
    t0, t1, t2, t3 = r.t[:4]
    st, st2, st3, st4 = r.s_t
    A(f"v_lshrrev_b32 v{t0}, 5, v{r.lane}")
    A(f"v_and_b32 v{t1}, 31, v{r.lane}")
    A(f"v_lshlrev_b32 v{t2}, 2, v{t0}")
    A(f"v_xor_b32 v{t2}, v{t2}, v{t1}")
    A(f"v_lshlrev_b32 v{t2}, 4, v{t2}")
    A(f"v_lshl_add_u32 v{t2}, v{t0}, 12, v{t2}")
    A(f"v_xor_b32 v{t3}, v{t0}, v{t1}")
    A(f"v_lshlrev_b32 v{t3}, 4, v{t3}")
    A(f"v_lshl_add_u32 v{t3}, v{t0}, 12, v{t3}")
    for i in range(9):
        sl = L.s_lds[i]
        A(f"s_add_u32 s{st}, s{L.s_lw}, {4*i}")
        A(f"s_cmp_ge_u32 s{st}, 18")
        A(f"s_cselect_b32 s{st2}, 18, 0")
        A(f"s_mov_b32 s{st3}, {KPAIR}\ns_cmov_b32 s{st3}, {VPAIR}")
        A(f"s_cselect_b32 s{st4}, {KBLK}, 0")
        A(f"s_mov_b32 s{sl}, 576\ns_cmov_b32 s{sl}, 1152")
        A(f"s_cselect_b64 vcc, -1, 0")
        A(f"s_sub_u32 s{st}, s{st}, s{st2}")
        A(f"s_mul_i32 s{st2}, s{r.s_hp}, 36")
        A(f"s_add_u32 s{sl}, s{sl}, s{st2}")
        A(f"s_lshl_b32 s{st2}, s{st}, 1")
        A(f"s_add_u32 s{sl}, s{sl}, s{st2}")
        A(f"s_lshl_b32 s{sl}, s{sl}, 12")
        A(f"v_cndmask_b32 v{L.vdma[i]}, v{t2}, v{t3}, vcc")
        A(f"v_add_u32 v{L.vdma[i]}, s{sl}, v{L.vdma[i]}")
        A(f"s_cmp_ge_u32 s{st}, 9")
        A(f"s_cselect_b32 s{st2}, 9, 0")
        A(f"s_cselect_b32 s{sl}, {HEADSZ}, 0")
        A(f"s_sub_u32 s{st}, s{st}, s{st2}")
        A(f"s_mul_i32 s{st}, s{st}, s{st3}")
        A(f"s_add_u32 s{sl}, s{sl}, s{st}")
        A(f"s_add_u32 s{sl}, s{sl}, s{st4}")

def emit_loader_ones(A, r, L):
    t0, t1, t2, t3 = r.t[:4]
    A(f"v_subrev_u32 v{t1}, 512, v0")
    A(f"v_cmp_gt_u32 vcc, 192, v{t1}")
    A(f"v_lshlrev_b32 v{t1}, 2, v{t1}")
    A(f"v_mov_b32 v{t0}, 0x3f803f80")
    A(f"v_mov_b32 v{t3}, 0")
    A("s_and_saveexec_b64 s[36:37], vcc")
    lab = A.newlabel("Lones")
    A(f"s_cbranch_execz {lab}")
    for s in range(NSLOT):
        A(f"v_add_u32 v{t2}, {s*SLOT+ONES}, v{t1}")
        A(f"ds_write_b32 v{t2}, v{t0}")
        A(f"ds_write_b32 v{t2}, v{t3} offset:768")
    A.label(lab)
    A("s_mov_b64 exec, s[36:37]")

def emit_poll(A, r, L, seg_sgpr):
    t0 = r.t[0]; st, st2 = r.s_t[:2]
    A(f"s_lshl_b32 s{st}, s{seg_sgpr}, 7")
    if OPT.get("kv1flag", 1):
        A(f"v_add_u32 v{t0}, s{st}, v{L.vflag}")
    else:
        A(f"v_and_b32 v{t0}, 3, v{r.lane}")
        A(f"v_lshlrev_b32 v{t0}, 2, v{t0}")
        A(f"v_add3_u32 v{t0}, v{t0}, v{L.vflag}, s{st}")
    b = L.buf[0]
    if OPT.get("spoll", 1):
        L.epoch = getattr(L, "epoch", 0) + 1
        emit_shared_poll(A, f"global_load_dword {{d}}, v{t0}, s[{r.s_ws}:{r.s_ws+1}] sc1", [b, b+1, b+2, b+3], L.s_nonce, st2, L.s_lw, L.epoch, NONCE_LDS + 16, r.t[1], r.t[2], depth=OPT.get('pdepth', 1))
    else:
        emit_pipelined_poll(A, f"global_load_dword {{d}}, v{t0}, s[{r.s_ws}:{r.s_ws+1}] sc1", [b, b+1, b+2, b+3], L.s_nonce, st2, depth=OPT.get("pdepth", 1))

def emit_loader_kv_dma(A, r, L):
    A(f"s_lshl_b32 s{r.s_chunk}, s{r.s_seg}, 9")
    for i in range(9):
        A(f"s_add_u32 m0, s{r.s_slotw}, s{L.s_lds[i]}")
        A("s_nop 0")
        A(f"buffer_load_dwordx4 v{L.vdma[i]}, s[{r.s_srd}:{r.s_srd+3}], s{r.s_chunk} offen{OPT.get('kvload', ' sc1')} lds")
    if OPT.get("xorseg", 0):
        A(f"s_add_u32 s50, s50, 1")
        A(f"s_xor_b32 s{r.s_seg}, s{r.s_c}, s50")
        A(f"s_and_b32 s{r.s_seg}, s{r.s_seg}, 7")
    else:
        A(f"s_add_u32 s{r.s_seg}, s{r.s_seg}, 1")
        A(f"s_and_b32 s{r.s_seg}, s{r.s_seg}, 7")
    A(f"s_add_u32 s{r.s_slotw}, s{r.s_slotw}, {SLOT}")
    A(f"s_cmp_eq_u32 s{r.s_slotw}, {NSLOT*SLOT}")
    A(f"s_cselect_b32 s{r.s_slotw}, 0, s{r.s_slotw}")

def emit_check(A, r, name, part=1):
    t0, t1 = r.t[:2]
    A(f"s_mov_b32 s40, 0x30800000")
    A(f"s_mov_b32 s41, 0x71800000")
    for u in range(2):
        A(f"v_mul_f32 v{r.t[2+u]}, 0, v{r.O[u]}")
        for i in range(1, 10): A(f"v_fma_f32 v{r.t[2+u]}, v{r.O[u]+i}, 0, v{r.t[2+u]}")
    A(f"v_add_f32 v{r.t[2]}, v{r.t[2]}, v{r.t[3]}")
    A(f"v_cmp_gt_f32 vcc, v{r.O[0]+10}, s40")
    A(f"v_cmp_lt_f32 s[42:43], v{r.O[0]+10}, s41")
    A("s_nop 3")
    A(f"s_and_b64 s[44:45], vcc, s[42:43]")
    A(f"v_cmp_gt_f32 vcc, v{r.O[1]+10}, s40")
    A(f"v_cmp_lt_f32 s[42:43], v{r.O[1]+10}, s41")
    A("s_nop 3")
    A(f"s_and_b64 s[44:45], s[44:45], vcc")
    A(f"s_and_b64 s[44:45], s[44:45], s[42:43]")
    A(f"v_cmp_o_f32 vcc, v{r.t[2]}, v{r.t[2]}")
    A("s_nop 3")
    A(f"s_and_b64 s[44:45], s[44:45], vcc")
    if OPT.get("forceslow"): A("s_mov_b64 s[44:45], 0")
    lab = A.newlabel("Lok")
    A("s_cmp_eq_u64 s[44:45], -1")
    A(f"s_cbranch_scc1 {lab}")
    A(f"v_mov_b32 v{t0}, {NONCE_LDS + 4}")
    A(f"v_mov_b32 v{t1}, 1")
    A(f"ds_write_b32 v{t0}, v{t1}")
    A("s_waitcnt lgkmcnt(0)")
    A.label(lab)
    if part: emit_flag_read(A, r)

def emit_flag_read(A, r):
    t0 = r.t[0]
    A("s_barrier")
    A(f"v_mov_b32 v{t0}, {NONCE_LDS + 4}")
    A(f"ds_read_b32 v{t0}, v{t0}")
    A("s_waitcnt lgkmcnt(0)")
    A(f"v_readfirstlane_b32 s40, v{t0}")
    A("s_nop 3")
    A("s_cmp_lg_u32 s40, 0")

def emit_slow_compute(A, r, name):
    t = r.t
    m = [t[4], t[5]]
    addrs = [r.kE, r.kO, r.tE, r.tO, r.vA]
    back = (8 % NSLOT) * SLOT
    for x in addrs: A(f"v_subrev_u32 v{x}, {back}, v{x}")
    for u in range(2):
        A(f"v_mov_b32 v{r.Qt[u]+1}, 0")
        A(f"v_mov_b32 v{m[u]}, 0xff800000")
        for i in range(16): A(f"v_mov_b32 v{r.O[u]+i}, 0")
    for ps in range(2):
        A(f"s_mov_b32 s46, 0")
        A.label(f"{name}_sl{ps}")
        A("s_barrier")
        A(f"s_mov_b32 s47, 0")
        A.label(f"{name}_st{ps}")
        for par in range(2):
            attn.k_reads(A, r, par, 0)
            if ps == 1: attn.v_reads(A, r, par, 0)
            A("s_waitcnt lgkmcnt(0)")
            for u in range(2):
                S0 = r.S[u]
                attn.mf_main(A, r, S0, 0, u)
                attn.mf_tail(A, r, S0, 0, u)
            A("s_nop 15")
            for u in range(2):
                S0 = r.S[u]
                if ps == 0:
                    for k in range(0, 16, 2):
                        A(f"v_max3_f32 v{m[u]}, v{m[u]}, v{S0+k}, v{S0+k+1}")
                else:
                    for k in range(16): A(f"v_sub_f32 v{S0+k}, v{S0+k}, v{m[u]}")
                    for k in range(16): A(f"v_exp_f32 v{S0+k}, v{S0+k}")
                    A("s_nop 1")
                    attn.mf_pv(A, r, u, r.V1[0], S0)
                    attn.mf_pv(A, r, u, r.V2[0], S0 + 8)
            if ps == 1: A("s_nop 7")
        for x in addrs: A(f"v_add_u32 v{x}, 128, v{x}")
        A("s_add_u32 s47, s47, 1\ns_cmp_lt_u32 s47, 4")
        A(f"s_cbranch_scc1 {name}_st{ps}")
        for x in addrs: A(f"v_subrev_u32 v{x}, 512, v{x}")
        A("s_barrier")
        A("s_add_u32 s46, s46, 1\ns_cmp_lt_u32 s46, 8")
        A(f"s_cbranch_scc1 {name}_sl{ps}")
        if ps == 0:
            A(f"v_mov_b32 v{t[0]}, v{m[0]}\nv_mov_b32 v{t[1]}, v{m[1]}")
            A("s_nop 1")
            A(f"v_permlane32_swap_b32 v{m[0]}, v{t[0]}")
            A(f"v_permlane32_swap_b32 v{m[1]}, v{t[1]}")
            A("s_nop 1")
            A(f"v_max_f32 v{m[0]}, v{m[0]}, v{t[0]}")
            A(f"v_max_f32 v{m[1]}, v{m[1]}, v{t[1]}")
    A("s_nop 15")

def emit_slow_loader(A, r, L, name):
    A(f"s_mov_b32 s46, 0")
    A.label(f"{name}_lsl")
    A(f"s_and_b32 s{r.s_seg}, s46, 7")
    A(f"s_mov_b32 s{r.s_slotw}, 0")
    emit_loader_kv_dma(A, r, L)
    A("s_waitcnt vmcnt(0)")
    A("s_barrier")
    A("s_barrier")
    A("s_add_u32 s46, s46, 1\ns_cmp_lt_u32 s46, 16")
    A(f"s_cbranch_scc1 {name}_lsl")

def gen_fused(name="fused_kernel", rt=None):
    A = Asm(); r = R(); g = R(); L = R()
    V = RegAlloc(1, 168, "v")
    attn.alloc_sregs(r); qkv.alloc_gemm_sregs(g)
    lane = V.alloc("lane"); tt = [V.alloc(f"t{i}") for i in range(6)]
    r.lane = lane; r.t = tt
    r.kE = V.alloc("kE"); r.kO = V.alloc("kO"); r.tE = V.alloc("tE"); r.tO = V.alloc("tO"); r.vA = V.alloc("vA")
    r.qE = V.alloc("qE"); r.qO = V.alloc("qO")
    g.ea = [V.alloc(f"ea{i}") for i in range(4)]; g.ed = [V.alloc(f"ed{i}") for i in range(4)]; g.esc = V.alloc("esc")
    g.eg = [V.alloc(f"eg{i}") for i in range(3)] if OPT.get("kvdirect", 0) else None
    vTR = V.alloc("vTR") if OPT.get("trace") else 0
    base = V.next
    Va = RegAlloc(base, 168, "v")
    r.idx = Va.alloc("idx")
    r.Qm = [Va.alloc(f"Qm{u}", 4, 2) for u in range(2)]
    r.Qt = [Va.alloc(f"Qt{u}", 2, 2) for u in range(2)]
    r.Km = [Va.alloc(f"Km{p}", 4, 2) for p in range(2)]
    r.Kt = [Va.alloc(f"Kt{p}", 2, 2) for p in range(2)]
    r.V1 = [Va.alloc(f"V1{p}", 4, 2) for p in range(2)]
    r.V2 = [Va.alloc(f"V2{p}", 4, 2) for p in range(2)]
    r.S = [Va.alloc(f"S{i}", 16, 4) for i in range(4)]
    r.O = [Va.alloc(f"O{u}", 16, 4) for u in range(2)]
    Vg = RegAlloc(base, 168, "v")
    g.aA = [Vg.alloc(f"aA{k}") for k in range(2)]
    g.aB = [Vg.alloc(f"aB{t}") for t in range(4)]
    g.FA = [[Vg.alloc(f"FA{s}{i}", 4, 2) for i in range(4)] for s in range(2)]
    g.FB = [[Vg.alloc(f"FB{s}{t}", 4, 2) for t in range(4)] for s in range(2)]
    g.acc = [[Vg.alloc(f"acc{i}{t}", 4, 4) for t in range(4)] for i in range(4)]
    vN = Vg.alloc("vN"); vPF = Vg.alloc("vPF"); vT = Vg.alloc("vT", 2, 2)
    Vl = RegAlloc(base, 168, "v")
    L.vx = [Vl.alloc(f"vx{i}") for i in range(4)]
    L.vw = [Vl.alloc(f"vw{i}") for i in range(2)]
    L.vdma = [Vl.alloc(f"vd{i}") for i in range(9)]
    L.vflag = Vl.alloc("vflag"); L.vlds = Vl.alloc("vlds")
    L.buf = [Vl.alloc(f"buf{i}", 4, 4) for i in range(9)]
    L.lds_epoch = NONCE_LDS + 16; L.s_lw = 38; L.s_lds = list(range(72, 81)); L.s_dbg = 82; L.s_sh = 39; L.s_nonce = 81
    nv = max(Va.next, Vg.next, Vl.next)

    A(f".globl {name}\n.p2align 8\n.type {name},@function")
    A.label(name)
    A(f"s_cmp_ge_u32 s2, 256\ns_cbranch_scc1 {name}_end")
    A(f"s_load_dwordx2 s[{r.s_ws}:{r.s_ws+1}], s[0:1], 64")
    A("s_load_dwordx4 s[72:75], s[0:1], 0")
    A("s_load_dwordx4 s[76:79], s[0:1], 24")
    A(f"s_load_dwordx2 s[{L.s_dbg}:{L.s_dbg+1}], s[0:1], 56")
    F3 = OPT.get("fuse3", 1)
    if F3:
        r.no_osrd = True
        A("s_load_dwordx2 s[12:13], s[0:1], 16")
        A("s_load_dwordx2 s[6:7], s[0:1], 40")
        A("s_load_dwordx2 s[14:15], s[0:1], 48")
    S = Stamper(A, rt, enabled=rt is not None); S.start()
    T = Tracer(A, vTR, enabled=bool(OPT.get("trace"))); T.init(); T.mark(0); g.T = T
    attn.emit_ids(A, r)
    A("s_waitcnt lgkmcnt(0)")
    T.mark(22)
    A(f"s_cmp_eq_u32 s{r.s_b}, 0")
    A(f"s_cselect_b32 s{g.s_xsrd}, s72, s76")
    A(f"s_cselect_b32 s{g.s_xsrd+1}, s73, s77")
    A(f"s_cselect_b32 s{g.s_wsrd}, s74, s78")
    A(f"s_cselect_b32 s{g.s_wsrd+1}, s75, s79")
    if F3: A("s_cselect_b32 s12, s12, s6\ns_cselect_b32 s13, s13, s7")
    A(f"s_mov_b32 s{g.s_xsrd+2}, {2048*1152}\ns_mov_b32 s{g.s_xsrd+3}, 0x20000")
    A(f"s_mov_b32 s{g.s_wsrd+2}, {576*3456}\ns_mov_b32 s{g.s_wsrd+3}, 0x20000")
    if OPT.get("tlb", 0):
        labt = A.newlabel("Ltlb")
        A(f"s_cmp_lg_u32 s{r.s_w}, 7\ns_cbranch_scc1 {labt}")
        A(f"s_load_dword s40, s[{g.s_wsrd}:{g.s_wsrd+1}], 0")
        A(f"s_lshl_b32 s46, s{r.s_c}, 8\ns_mul_i32 s46, s46, 1152")
        A(f"s_load_dword s41, s[{g.s_xsrd}:{g.s_xsrd+1}], s46")
        A(f"s_mul_i32 s46, s{r.s_b}, {BLK_BYTES}\ns_mul_i32 s47, s{r.s_hp}, {36*4096}\ns_add_u32 s46, s46, s47\ns_add_u32 s46, s46, {576*4096}")
        A(f"s_load_dword s42, s[{r.s_ws}:{r.s_ws+1}], s46")
        A(f"s_add_u32 s47, s46, {576*4096}")
        A(f"s_load_dword s43, s[{r.s_ws}:{r.s_ws+1}], s47")
        A(f"s_mov_b32 s48, {FLAG_OFF}")
        A(f"s_load_dword s44, s[{r.s_ws}:{r.s_ws+1}], s48")
        A(f"s_mul_i32 s49, s{r.s_b}, {O_BLK}\ns_add_u32 s49, s49, {O_OFF}")
        A(f"s_load_dword s45, s[{r.s_ws}:{r.s_ws+1}], s49")
        A.label(labt)
    A(f"s_cmp_ge_u32 s{r.s_w}, 8")
    A(f"s_cbranch_scc1 {name}_loader")
    pf = OPT.get("pf", 6)
    if pf == 1: emit_prefetch_batch(A, r, g, vPF, {0: ("x", 2, 3), 1: ("w", 2, 3)})
    if pf == 2: emit_prefetch_batch(A, r, g, vPF, {0: ("x", 2, 3), 1: ("w", 2, 3), 2: ("x", 4, 5), 3: ("w", 4, 5)})
    if pf == 3: emit_prefetch_batch(A, r, g, vPF, {0: ("x", 2, 3), 1: ("w", 2, 3), 2: ("x", 4, 5), 3: ("w", 4, 5), 4: ("x", 6, 7), 5: ("w", 6, 7), 6: ("x", 8, 8), 7: ("w", 8, 8)})
    g.pf2 = {1: {2: ("x", 4, 5), 3: ("w", 4, 5), 4: ("x", 6, 7), 5: ("w", 6, 7), 6: ("x", 8, 8), 7: ("w", 8, 8)}, 2: {4: ("x", 6, 7), 5: ("w", 6, 7), 6: ("x", 8, 8), 7: ("w", 8, 8)}}.get(pf, {})
    g.pfreg = vPF
    if pf == 6:
        emit_prefetch_batch(A, r, g, vPF, {0: ("x", 2, 5), 1: ("w", 2, 2), 2: ("w", 3, 3), 3: ("w", 4, 4)})
        g.pf2 = {0: ("x", 6, 8), 1: ("w", 5, 5), 2: ("w", 6, 6), 3: ("w", 7, 7), 4: ("w", 8, 8)}
    if pf == 7:
        emit_prefetch_batch(A, r, g, vPF, {0: ("x", 2, 5), 1: ("w", 2, 2), 2: ("w", 3, 3)})
        g.pf2 = {0: ("x", 6, 8), 1: ("w", 4, 4), 2: ("w", 5, 5), 3: ("w", 6, 6), 4: ("w", 7, 7), 5: ("w", 8, 8)}
    if pf == 8:
        emit_prefetch_batch(A, r, g, vPF, {1: ("w", 2, 2), 2: ("w", 3, 3)})
        g.pf2 = {0: ("x", 6, 8), 1: ("w", 4, 4), 2: ("w", 5, 5), 3: ("w", 6, 6), 4: ("w", 7, 7), 5: ("w", 8, 8)}
    if pf == 9:
        emit_prefetch_batch(A, r, g, vPF, {1: ("w", 3, 3), 0: ("x", 4, 7)})
        g.pf2 = {0: ("x", 8, 8), 1: ("w", 4, 4), 2: ("w", 5, 5), 3: ("w", 6, 6), 4: ("w", 7, 7), 5: ("w", 8, 8)}
    if pf == 10:
        g.pf2 = {0: ("x", 4, 7), 1: ("w", 3, 3), 2: ("w", 4, 4), 3: ("w", 5, 5), 4: ("w", 6, 6), 5: ("w", 7, 7), 6: ("w", 8, 8), 7: ("x", 8, 8)}
    if pf == 11:
        emit_prefetch_batch(A, r, g, vPF, {0: ("x", 2, 5), 1: ("w", 2, 2), 2: ("w", 3, 3)})
        g.pf2 = {0: ("x", 6, 8), 1: ("w", 4, 4), 2: ("w", 5, 5), 3: ("w", 6, 6), 4: ("w", 7, 7), 5: ("w", 8, 8)}
    if pf == 4: g.pf2 = {2: ("x", 4, 5), 3: ("w", 4, 5), 4: ("x", 6, 7), 5: ("w", 6, 7), 6: ("x", 8, 8), 7: ("w", 8, 8)}
    if pf == 5: g.pf_pre = {2: ("x", 4, 5), 3: ("w", 4, 5), 4: ("x", 6, 7), 5: ("w", 6, 7), 6: ("x", 8, 8), 7: ("w", 8, 8)}
    attn.emit_srds(A, r)
    labn = A.newlabel("Lnonce")
    A(f"s_cmp_lg_u32 s{r.s_w}, 0\ns_cbranch_scc1 {labn}")
    A("s_memrealtime s[94:95]\ns_waitcnt lgkmcnt(0)")
    A("s_or_b32 s94, s94, 1")
    A(f"v_mov_b32 v{vT}, s94\nv_mov_b32 v{vT+1}, 0\nv_mov_b32 v{vN}, 0")
    A(f"v_cmp_eq_u32 vcc, 0, v{r.lane}")
    A("s_and_saveexec_b64 s[36:37], vcc")
    A(f"global_atomic_cmpswap v{vN}, v{vN}, v[{vT}:{vT+1}], s[{L.s_dbg}:{L.s_dbg+1}] sc0 sc1")
    A("s_mov_b64 exec, s[36:37]")
    A.label(labn)
    emit_compute_gemm_setup(A, r, g)
    attn.emit_read_addrs(A, r)
    A(f"v_mov_b32 v{r.qE}, v{r.t[4]}\nv_mov_b32 v{r.qO}, v{r.t[5]}")
    labe = A.newlabel("Lea"); labf = A.newlabel("Lea")
    A(f"s_cmp_ge_u32 s{r.s_w}, 4\ns_cbranch_scc1 {labe}")
    emit_epi_addr(A, r, g, 0)
    A(f"s_branch {labf}")
    A.label(labe)
    emit_epi_addr(A, r, g, 1)
    A.label(labf)
    emit_compute_gemm(A, r, g, name, S)
    S.mark(3)
    if not OPT.get("kvdirect", 0): A("s_waitcnt vmcnt(0)")
    labn2 = A.newlabel("Lnonce")
    A(f"s_cmp_lg_u32 s{r.s_w}, 0\ns_cbranch_scc1 {labn2}")
    if not OPT.get("kvdirect", 0): A("s_waitcnt vmcnt(0)")
    A(f"v_cmp_eq_u32 vcc, 0, v{vN}")
    A(f"v_mov_b32 v{r.t[0]}, {NONCE_LDS}")
    A("s_nop 0")
    A(f"v_cndmask_b32 v{vN}, v{vN}, v{vT}, vcc")
    A(f"v_cmp_eq_u32 vcc, 0, v{r.lane}")
    A("s_and_saveexec_b64 s[36:37], vcc")
    A(f"ds_write_b32 v{r.t[0]}, v{vN}")
    A(f"v_mov_b32 v{r.t[1]}, 0")
    A(f"ds_write_b32 v{r.t[0]}, v{r.t[1]} offset:4")
    A(f"ds_write_b32 v{r.t[0]}, v{r.t[1]} offset:8")
    A(f"ds_write_b32 v{r.t[0]}, v{r.t[1]} offset:12")
    A(f"ds_write_b32 v{r.t[0]}, v{r.t[1]} offset:16")
    A("s_mov_b64 exec, s[36:37]")
    A.label(labn2)
    A(f"v_mov_b32 v{r.idx}, 0xdddddddd")
    A("s_waitcnt lgkmcnt(0)")
    A("s_barrier")
    if OPT.get("fuse3", 1): tail.emit_srds(A, r)
    attn.emit_q_frags(A, r)
    attn.emit_attn_prologue(A, r)
    S.mark(4)
    T.mark(26)
    attn.OPT["nodma"] = 1
    attn.OPT["extdma"] = 1
    if OPT.get("kvdirect", 0):
        def kvflag():
            lab = A.newlabel("Lkv"); lab2 = A.newlabel("Lkv")
            t0, t1, t2 = r.t[:3]
            A(f"s_cmp_lg_u32 s{r.s_it}, 0\ns_cbranch_scc1 {lab}")
            A(f"s_lshl_b32 s40, s{r.s_b}, 4\ns_add_u32 s40, s40, s{r.s_hp}\ns_lshl_b32 s40, s40, 3\ns_add_u32 s40, s40, s{r.s_c}\ns_lshl_b32 s40, s40, 7\ns_add_u32 s40, s40, {FLAG_OFF}")
            A(f"v_mov_b32 v{t0}, s40\nv_mov_b32 v{t1}, {NONCE_LDS}\nv_mov_b32 v{t2}, 1")
            A("s_waitcnt vmcnt(0)")
            A(f"v_cmp_eq_u32 vcc, 0, v{r.lane}")
            A("s_and_saveexec_b64 s[36:37], vcc")
            A(f"ds_add_rtn_u32 v{t2}, v{t1}, v{t2} offset:8")
            A(f"ds_read_b32 v{t1}, v{t1}")
            A("s_waitcnt lgkmcnt(0)")
            A(f"v_cmp_eq_u32 vcc, 7, v{t2}")
            A("s_and_b64 exec, exec, vcc")
            A(f"s_cbranch_execz {lab2}")
            A(f"global_store_dword v{t0}, v{t1}, s[{r.s_ws}:{r.s_ws+1}] sc1")
            A.label(lab2)
            A("s_mov_b64 exec, s[36:37]")
            A("s_nop 3")
            A.label(lab)
        attn.OPT["hook_kv"] = (OPT.get("kvstep", 2), kvflag)
    else:
        attn.OPT["hook_kv"] = None
    attn.OPT["tracer"] = T if OPT.get("itrace") else None
    attn.emit_attn_loop(A, r, name)
    S.mark(5)
    T.mark(27)
    if OPT.get("fuse3", 1):
        tail.emit_publish_o(A, r)
        emit_check(A, r, name, part=0)
        emit_flag_read(A, r)
        A(f"s_cbranch_scc0 {name}_go3")
        emit_slow_compute(A, r, name)
        A("s_waitcnt vmcnt(0)")
        tail.emit_publish_o(A, r)
        A.label(f"{name}_go3")
        lab4 = A.newlabel("Lw4")
        A(f"s_cmp_lt_u32 s{r.s_w}, 4\ns_cbranch_scc1 {lab4}")
        tail.emit_flag_o(A, r, NONCE_LDS, S)
        A(f"s_branch {name}_fin")
        A.label(lab4)
        nv3 = tail.emit_compute(A, r, name, base, T, pre_g3=lambda: tail.emit_flag_o(A, r, NONCE_LDS, S))
        assert nv3 <= nv
    else:
        emit_check(A, r, name)
        A(f"s_cbranch_scc0 {name}_store")
        emit_slow_compute(A, r, name)
        A.label(f"{name}_store")
        attn.emit_attn_store(A, r, OPT.get("oflags", ""))
    A(f"s_branch {name}_fin")
    A.label(f"{name}_loader")
    A("s_setprio 3")
    A(f"s_sub_u32 s{L.s_lw}, s{r.s_w}, 8")
    pfv = OPT.get("pf", 6)
    if pfv in (8, 9, 10, 11):
        done8 = A.newlabel("Lpf8")
        jobs8 = {0: ("x", 0, 1), 1: ("w", 0, 0), 2: ("w", 1, 1), 3: ("x", 2, 5)} if pfv == 8 else {0: ("x", 0, 3), 1: ("w", 0, 0), 2: ("w", 1, 1), 3: ("w", 2, 2)}
        if pfv == 11: jobs8 = {0: ("x", 0, 1), 1: ("w", 0, 0), 2: ("w", 1, 1)}
        for lw, job in jobs8.items():
            lab8 = A.newlabel("Lpf8")
            A(f"s_cmp_eq_u32 s{L.s_lw}, {lw}\ns_cbranch_scc0 {lab8}")
            emit_prefetch(A, r, g, L.vflag, *job)
            A(f"s_branch {done8}")
            A.label(lab8)
        A.label(done8)
    emit_loader_gemm_setup(A, r, g, L)
    A(f"s_mov_b32 s{g.s_kc}, 0\ns_mov_b32 s{g.s_stw}, 0")
    if pfv in (8, 9, 10, 11): A("s_waitcnt vmcnt(0)")
    T.mark(23)
    emit_loader_gemm_dma(A, r, g, L)
    T.mark(24)
    emit_loader_gemm_dma(A, r, g, L)
    npf = 0
    T.mark(1)
    A(f"s_waitcnt vmcnt({12 + npf})")
    T.mark(2)
    A("s_barrier")
    S.mark(2)
    emit_loader_gemm_dma(A, r, g, L)
    for kc in range(NCH):
        rem = max(0, min(NCH - 1, kc + 2) - (kc + 1))
        A(f"s_waitcnt vmcnt({12*rem})")
        T.mark(3 + 2 * kc)
        A("s_barrier")
        T.mark(4 + 2 * kc)
        if kc + 3 < NCH: emit_loader_gemm_dma(A, r, g, L)
    S.mark(3)
    attn.emit_srds(A, r)
    emit_loader_kv_setup(A, r, L)
    emit_loader_ones(A, r, L)
    A(f"s_lshl_b32 s{r.s_t[0]}, s{r.s_b}, 4")
    A(f"s_add_u32 s{r.s_t[0]}, s{r.s_t[0]}, s{r.s_hp}")
    A(f"s_lshl_b32 s{r.s_t[0]}, s{r.s_t[0]}, 10")
    A(f"s_add_u32 s{r.s_t[0]}, s{r.s_t[0]}, {FLAG_OFF}")
    A(f"v_mov_b32 v{L.vflag}, s{r.s_t[0]}")
    A(f"v_lshlrev_b32 v{L.vlds}, 4, v{r.lane}")
    if OPT.get("kvdirect", 0):
        A(f"v_mov_b32 v{r.t[2]}, {NONCE_LDS}")
        A("s_waitcnt lgkmcnt(0)")
        A("s_barrier")
        A(f"ds_read_b32 v{r.t[2]}, v{r.t[2]}")
        A("s_waitcnt lgkmcnt(0)")
        A(f"v_readfirstlane_b32 s{L.s_nonce}, v{r.t[2]}")
        S.mark(4)
    else:
        for i in range(9):
            A(f"v_add_u32 v{L.buf[i]+3}, s{L.s_lds[i]}, v{L.vlds}")
        A(f"s_lshl_b32 s{r.s_chunk}, s{r.s_c}, 9")
        A(f"v_mov_b32 v{r.t[2]}, {NONCE_LDS}")
        A("s_waitcnt lgkmcnt(0)")
        A("s_barrier")
        for i in range(9):
            A(f"ds_read_b128 v[{L.buf[i]}:{L.buf[i]+3}], v{L.buf[i]+3}")
        A(f"ds_read_b32 v{r.t[2]}, v{r.t[2]}")
        for i in range(9):
            A(f"s_waitcnt lgkmcnt({9-i})")
            A(f"buffer_store_dwordx4 v[{L.buf[i]}:{L.buf[i]+3}], v{L.vdma[i]}, s[{r.s_srd}:{r.s_srd+3}], s{r.s_chunk} offen sc1")
        if OPT.get("e1a", 0):
            A("s_barrier")
            A(f"v_mov_b32 v{r.t[2]}, {NONCE_LDS}")
            A(f"ds_read_b32 v{r.t[2]}, v{r.t[2]}")
        A("s_waitcnt lgkmcnt(0)")
        A(f"v_readfirstlane_b32 s{L.s_nonce}, v{r.t[2]}")
        A("s_waitcnt vmcnt(0)")
        S.mark(4)
        A(f"s_lshl_b32 s{r.s_t[0]}, s{r.s_c}, 7")
        A(f"v_add_u32 v{r.t[0]}, s{r.s_t[0]}, v{L.vflag}")
        A(f"v_mov_b32 v{r.t[1]}, s{L.s_nonce}")
        A(f"v_mov_b32 v{r.t[2]}, {NONCE_LDS}\nv_mov_b32 v{r.t[3]}, 1")
        A(f"v_cmp_eq_u32 vcc, 0, v{r.lane}")
        A("s_and_saveexec_b64 s[36:37], vcc")
        if OPT.get("kv1flag", 1):
            A(f"ds_add_rtn_u32 v{r.t[3]}, v{r.t[2]}, v{r.t[3]} offset:8")
            A("s_waitcnt lgkmcnt(0)")
            A(f"v_cmp_eq_u32 vcc, 3, v{r.t[3]}")
            A("s_and_b64 exec, exec, vcc")
            labk = A.newlabel("Lkf")
            A(f"s_cbranch_execz {labk}")
            A(f"global_store_dword v{r.t[0]}, v{r.t[1]}, s[{r.s_ws}:{r.s_ws+1}] sc1")
            A.label(labk)
        else:
            A(f"s_lshl_b32 s{r.s_t[1]}, s{L.s_lw}, 2")
            A(f"v_add_u32 v{r.t[0]}, s{r.s_t[1]}, v{r.t[0]}")
            A(f"global_store_dword v{r.t[0]}, v{r.t[1]}, s[{r.s_ws}:{r.s_ws+1}] sc1")
        A("s_mov_b64 exec, s[36:37]")
    if OPT.get("xorseg", 0): A(f"s_mov_b32 s50, 1\ns_xor_b32 s{r.s_seg}, s{r.s_c}, 1")
    else: A(f"s_add_u32 s{r.s_seg}, s{r.s_c}, 1\ns_and_b32 s{r.s_seg}, s{r.s_seg}, 7")
    A(f"s_mov_b32 s{r.s_slotw}, {SLOT}")
    emit_poll(A, r, L, r.s_seg)
    S.mark(5)
    emit_loader_kv_dma(A, r, L)
    if OPT.get("fuse3", 1):
        tail.emit_srds(A, r)
        P = tail.emit_loader_setup(A, r, L, Vl.next)
        assert P.top <= nv
    for i in range(8):
        A("s_waitcnt vmcnt(0)")
        if i == 0: S.mark(6)
        A("s_barrier")
        if i == 5 and OPT.get("pfwo", 1):
            if not F3:
                A("s_load_dwordx2 s[40:41], s[0:1], 16")
                A("s_load_dwordx2 s[42:43], s[0:1], 40")
            A(f"s_lshl_b32 s46, s{r.s_hp}, 1\ns_and_b32 s47, s{r.s_c}, 1\ns_add_u32 s46, s46, s47\ns_mul_i32 s46, s46, 162")
            A(f"s_lshl_b32 s47, s{L.s_lw}, 6")
            A(f"v_add_u32 v{r.t[1]}, s47, v{r.lane}")
            A(f"v_min_u32 v{r.t[1]}, 161, v{r.t[1]}")
            A(f"v_add_u32 v{r.t[1]}, s46, v{r.t[1]}")
            A(f"v_lshlrev_b32 v{r.t[1]}, 7, v{r.t[1]}")
            if not F3:
                A("s_waitcnt lgkmcnt(0)")
                A(f"s_cmp_eq_u32 s{r.s_b}, 0")
                A("s_cselect_b32 s44, s40, s42\ns_cselect_b32 s45, s41, s43")
                A(f"global_load_dword v{r.t[2]}, v{r.t[1]}, s[44:45]")
            else:
                A(f"global_load_dword v{r.t[2]}, v{r.t[1]}, s[12:13]")
        if i + 2 < 8:
            emit_poll(A, r, L, r.s_seg)
            emit_loader_kv_dma(A, r, L)
        if F3 and i == 6: tail.emit_w_chunks(A, r, L, P, range(0, 7))
        if F3 and i == 7: tail.emit_w_chunks(A, r, L, P, range(7, 9))
    emit_flag_read(A, r)
    A(f"s_cbranch_scc0 {name}_noslow")
    emit_slow_loader(A, r, L, name)
    if OPT.get("fuse3", 1):
        tail.emit_w_chunks(A, r, L, P, range(7, 9))
    A.label(f"{name}_noslow")
    if OPT.get("fuse3", 1):
        tail.emit_loader(A, r, L, P, name, T, S)
    A.label(f"{name}_fin")
    T.mark(30)
    T.dump(r.s_ws, r.t[0])
    S.dump(r.s_ws, r.t[0], r.S[0])
    A.label(f"{name}_end")
    A("s_endpgm")
    return A.text(), nv
```

```python
from emit import *
import attn, qkv, tail
from attn import R, ROWB, BLK_BYTES, O_OFF, O_BLK, KPAIR, VPAIR, KBLK, VBLK, HEADSZ, ONES, ZEROS, SLOT, NSLOT, QOFF
from qkv import XST, WST, STAGE, NST, NCH, CSCALE, f32bits

OPT = {}
NONCE_LDS = max(qkv.LDS_GEMM, attn.LDS_ATTN, tail.LDS_END)
LDS_FUSED = NONCE_LDS + 256
FLAG_OFF = 0x2000000

def emit_loader_gemm_setup(A, r, g, L):
    t0, t1, t2, t3, t4, t5 = r.t
    st, st2, st3, st4 = r.s_t
    lane = r.lane
    A(f"v_lshrrev_b32 v{t0}, 3, v{lane}")
    A(f"v_and_b32 v{t1}, 7, v{lane}")
    A(f"v_lshrrev_b32 v{t2}, 4, v{lane}")
    A(f"v_and_b32 v{t2}, 1, v{t2}")
    A(f"s_lshl_b32 s{st}, s{r.s_c}, 8")
    A(f"s_lshl_b32 s{st2}, s{L.s_lw}, 6")
    A(f"s_add_u32 s{st}, s{st}, s{st2}")
    A(f"v_add_u32 v{t0}, s{st}, v{t0}")
    A(f"v_mul_u32_u24 v{t0}, 1152, v{t0}")
    for i in range(4):
        A(f"v_or_b32 v{t3}, {i<<1}, v{t2}")
        A(f"v_xor_b32 v{t3}, v{t3}, v{t1}")
        A(f"v_lshl_add_u32 v{L.vx[i]}, v{t3}, 4, v{t0}")
        if i: A(f"v_add_u32 v{L.vx[i]}, {i*8*1152}, v{L.vx[i]}")
    A(f"v_lshrrev_b32 v{t0}, 4, v{lane}")
    A(f"s_lshl_b32 s{st}, s{L.s_lw}, 4")
    A(f"v_add_u32 v{t5}, s{st}, v{t0}")
    A(f"v_mul_u32_u24 v{t5}, 3456, v{t5}")
    A(f"s_mul_i32 s{st}, s{r.s_hp}, 72")
    A(f"v_add_u32 v{t5}, s{st}, v{t5}")
    for var in range(2):
        A(f"v_or_b32 v{t1}, {4*var}, v{t0}")
        A(f"v_lshlrev_b32 v{t1}, 1, v{t1}")
        A(f"v_and_b32 v{t2}, 15, v{lane}")
        A(f"v_xor_b32 v{t2}, v{t2}, v{t1}")
        A(f"v_lshrrev_b32 v{t3}, 2, v{t2}")
        A(f"v_and_b32 v{t4}, 3, v{t2}")
        A(f"v_min_u32 v{t1}, 2, v{t4}")
        A(f"v_cmp_eq_u32 vcc, 3, v{t3}")
        A("s_nop 1")
        A(f"v_cndmask_b32 v{t3}, v{t3}, v{t1}, vcc")
        A(f"v_lshlrev_b32 v{t4}, 4, v{t4}")
        A(f"v_cndmask_b32 v{t4}, v{t4}, 56, vcc")
        A(f"v_mul_u32_u24 v{t3}, 1152, v{t3}")
        A(f"v_add3_u32 v{L.vw[var]}, v{t3}, v{t4}, v{t5}")
    A(f"s_lshl_b32 s{g.s_mx}, s{L.s_lw}, 13")
    A(f"s_lshl_b32 s{g.s_mw}, s{L.s_lw}, 12")
    A(f"s_add_u32 s{g.s_mw}, s{g.s_mw}, {XST}")

def emit_loader_gemm_dma(A, r, g, L):
    st, st2 = r.s_t[:2]
    A(f"s_lshl_b32 s{g.s_xoff}, s{g.s_kc}, 7")
    A(f"s_mul_i32 s{g.s_woff}, s{g.s_kc}, {64*3456}")
    for i in range(4):
        A(f"s_add_u32 s{st}, s{g.s_stw}, s{g.s_mw}")
        A(f"s_add_u32 m0, s{st}, {1024*i}")
        A(f"s_add_u32 s{st2}, s{g.s_woff}, {4*3456*i}")
        A(f"buffer_load_dwordx4 v{L.vw[i>>1]}, s[{g.s_wsrd}:{g.s_wsrd+3}], s{st2} offen lds")
    for i in range(8):
        A(f"s_add_u32 s{st}, s{g.s_stw}, s{g.s_mx}")
        A(f"s_add_u32 m0, s{st}, {1024*i}")
        A(f"s_add_u32 s{st2}, s{g.s_xoff}, {32*1152*(i>>2)}")
        A(f"buffer_load_dwordx4 v{L.vx[i&3]}, s[{g.s_xsrd}:{g.s_xsrd+3}], s{st2} offen lds")
    A(f"s_add_u32 s{g.s_kc}, s{g.s_kc}, 1")
    A(f"s_add_u32 s{g.s_stw}, s{g.s_stw}, {STAGE}")
    A(f"s_cmp_eq_u32 s{g.s_stw}, {NST*STAGE}")
    A(f"s_cselect_b32 s{g.s_stw}, 0, s{g.s_stw}")

def emit_compute_gemm_setup(A, r, g):
    t0, t1, t2, t3, t4, t5 = r.t
    st, st2, st3, st4 = r.s_t
    lane = r.lane
    A(f"v_and_b32 v{t0}, 15, v{lane}")
    A(f"v_lshrrev_b32 v{t1}, 2, v{t0}")
    A(f"v_and_b32 v{t2}, 3, v{t0}")
    A(f"v_lshl_add_u32 v{t2}, v{t1}, 3, v{t2}")
    A(f"v_lshrrev_b32 v{t3}, 1, v{t0}")
    A(f"v_and_b32 v{t3}, 1, v{t3}")
    A(f"v_lshl_or_b32 v{t3}, v{t1}, 1, v{t3}")
    A(f"v_lshrrev_b32 v{t4}, 4, v{lane}")
    A(f"v_xor_b32 v{t3}, v{t3}, v{t4}")
    A(f"s_and_b32 s{st}, s{r.s_w}, 3")
    A(f"s_lshl_b32 s{st}, s{st}, 13")
    A(f"v_lshlrev_b32 v{t2}, 7, v{t2}")
    A(f"v_add_u32 v{t2}, s{st}, v{t2}")
    A(f"v_lshl_add_u32 v{g.aA[0]}, v{t3}, 4, v{t2}")
    A(f"v_xor_b32 v{t3}, 4, v{t3}")
    A(f"v_lshl_add_u32 v{g.aA[1]}, v{t3}, 4, v{t2}")
    A(f"v_lshrrev_b32 v{t0}, 4, v{lane}")
    A(f"v_lshrrev_b32 v{t1}, 2, v{lane}")
    A(f"v_and_b32 v{t1}, 3, v{t1}")
    A(f"v_lshl_add_u32 v{t2}, v{t0}, 3, v{t1}")
    A(f"v_lshlrev_b32 v{t2}, 8, v{t2}")
    A(f"v_add_u32 v{t2}, {XST}, v{t2}")
    A(f"v_and_b32 v{t0}, 1, v{t0}")
    A(f"v_lshl_or_b32 v{t0}, v{t0}, 2, v{t1}")
    A(f"v_and_b32 v{t3}, 3, v{lane}")
    A(f"v_lshlrev_b32 v{t4}, 3, v{t3}")
    A(f"v_add_u32 v{t4}, v{t4}, v{t2}")
    A(f"s_lshr_b32 s{st}, s{r.s_w}, 2")
    A(f"s_lshl_b32 s{st}, s{st}, 2")
    for t in range(4):
        A(f"s_add_u32 s{st2}, s{st}, {t}")
        A(f"v_xor_b32 v{t5}, s{st2}, v{t0}")
        A(f"v_lshl_add_u32 v{g.aB[t]}, v{t5}, 5, v{t4}")
    A(f"v_add_u32 v{t3}, 12, v{t3}")
    A(f"v_lshlrev_b32 v{t0}, 1, v{t0}")
    A(f"v_xor_b32 v{t3}, v{t3}, v{t0}")
    A(f"v_lshl_add_u32 v{t3}, v{t3}, 4, v{t2}")
    A(f"v_add_u32 v{t3}, 8, v{t3}")
    A(f"s_cmp_ge_u32 s{r.s_w}, 4")
    A(f"s_cselect_b64 vcc, -1, 0")
    A("s_nop 1")
    A(f"v_cndmask_b32 v{g.aB[2]}, v{g.aB[2]}, v{t3}, vcc")

def g_read_list(g, s, ks, nt):
    out = []
    for i in range(4):
        p, T = i // 2, i % 2
        out.append(f"ds_read_b128 v[{g.FA[s][i]}:{g.FA[s][i]+3}], v{g.aA[ks]} offset:{4096*p+512*T}")
    for t in range(nt):
        out.append(f"ds_read_b64_tr_b16 v[{g.FB[s][t]}:{g.FB[s][t]+1}], v{g.aB[t]} offset:{8192*ks}")
        out.append(f"ds_read_b64_tr_b16 v[{g.FB[s][t]+2}:{g.FB[s][t]+3}], v{g.aB[t]} offset:{8192*ks+1024}")
    return out
def g_mfma_list(g, s, nt):
    out = []
    for t in range(nt):
        for i in range(4):
            out.append(f"v_mfma_f32_16x16x32_bf16 v[{g.acc[i][t]}:{g.acc[i][t]+3}], v[{g.FA[s][i]}:{g.FA[s][i]+3}], v[{g.FB[s][t]}:{g.FB[s][t]+3}], v[{g.acc[i][t]}:{g.acc[i][t]+3}]")
    return out
def interleave(A, mf, rd, pre=()):
    extra = list(pre) + list(rd)
    k = 0
    for m in mf:
        A(m)
        if k < len(extra):
            A(extra[k]); k += 1
    while k < len(extra):
        A(extra[k]); k += 1

def emit_compute_gemm(A, r, g, name, S):
    A(f"s_mov_b32 s{g.s_rst}, 0")
    for i in range(4):
        for t in range(4):
            for j in range(4): A(f"v_mov_b32 v{g.acc[i][t]+j}, 0")
    if getattr(g, "pf_pre", None): emit_prefetch_batch(A, r, g, g.pfreg, g.pf_pre)
    g.T.mark(1)
    A("s_barrier")
    S.mark(2)
    g.T.mark(2)
    if g.pf2: emit_prefetch_batch(A, r, g, g.pfreg, g.pf2)
    A(f"s_cmp_ge_u32 s{r.s_w}, 4")
    A(f"s_cbranch_scc1 {name}_g1")
    for nh in range(2):
        nt = 4 if nh == 0 else 3
        if nh == 1:
            A.label(f"{name}_g1")
            if OPT.get("gprio"): A(f"s_setprio {OPT['gprio']}")
        for x in g_read_list(g, 0, 0, nt): A(x)
        A(f"s_mov_b32 s{r.s_it}, 0")
        if not OPT.get("gprog", 1): A("s_waitcnt lgkmcnt(0)")
        A.label(f"{name}_gl{nh}")
        burst = False
        mf = g_mfma_list(g, 0, nt); rd = g_read_list(g, 1, 1, nt)
        nold = 4 + 2 * nt
        k = 0
        for m_i, m in enumerate(mf):
            if OPT.get("gprog", 1) and m_i % 4 == 0:
                need = 4 + 2 * (m_i // 4 + 1)
                A(f"s_waitcnt lgkmcnt({min(15, nold - need + k)})")
            A(m)
            if k < len(rd): A(rd[k]); k += 1
        while k < len(rd): A(rd[k]); k += 1
        A(f"s_add_u32 s{g.s_rst}, s{g.s_rst}, 1")
        A(f"s_cmp_eq_u32 s{g.s_rst}, {NST}")
        A(f"s_mov_b32 s{g.s_gdelta}, {STAGE}\ns_cmov_b32 s{g.s_gdelta}, {-(NST-1)*STAGE & 0xffffffff}")
        A(f"s_cselect_b32 s{g.s_rst}, 0, s{g.s_rst}")
        A("s_waitcnt lgkmcnt(0)")
        A("s_barrier")
        upd = [f"v_add_u32 v{x}, s{g.s_gdelta}, v{x}" for x in [g.aA[0]] + g.aB[:nt] + [g.aA[1]]]
        mf = g_mfma_list(g, 1, nt)
        rd = g_read_list(g, 0, 0, nt)
        k = 0
        if burst:
            for x in upd + rd + mf: A(x)
        else:
            for x in upd[:2]: A(x)
            seq = upd[2:] + rd
            interleave(A, mf, seq)
        A(f"s_add_u32 s{r.s_it}, s{r.s_it}, 1")
        A(f"s_cmp_lt_u32 s{r.s_it}, {NCH}")
        if not OPT.get("gprog", 1): A(f"s_waitcnt lgkmcnt(0)")
        A(f"s_cbranch_scc1 {name}_gl{nh}")
        A("s_waitcnt lgkmcnt(0)")
        if OPT.get("kvdirect", 0): A("s_waitcnt vmcnt(0)")
        if nh == 1 and OPT.get("gprio"): A("s_setprio 0")
        emit_epi_lds(A, r, g, nh)
        if nh == 0: A(f"s_branch {name}_gdone")
    A.label(f"{name}_gdone")

def emit_epi_addr(A, r, g, nh):
    t0, t1, t2, t3, t4, t5 = r.t
    st, st2, st3, st4 = r.s_t
    lane = r.lane
    nt = 4 if nh == 0 else 3
    A(f"s_and_b32 s{st}, s{r.s_w}, 3")
    A(f"s_lshl_b32 s{st}, s{st}, 7")
    typ = g.FA[0][0]; col = g.FA[0][0] + 1; tmp = g.FA[0][0] + 2; v2 = g.FA[0][0] + 3
    for t in range(nt):
        Tf = 4 * nh + t
        ea = g.ea[t]; ed = g.ed[t]
        A(f"v_and_b32 v{t1}, 15, v{lane}")
        if Tf < 6:
            A(f"v_add_u32 v{col}, {16*(Tf & 1)}, v{t1}")
        else:
            A(f"v_lshrrev_b32 v{typ}, 2, v{t1}")
            A(f"v_and_b32 v{col}, 3, v{t1}")
            A(f"v_add_u32 v{col}, 32, v{col}")
        A(f"v_cmp_le_u32 vcc, 18, v{col}")
        A(f"v_subrev_u32 v{tmp}, 18, v{col}")
        A("s_nop 0")
        A(f"v_cndmask_b32 v{col}, v{col}, v{tmp}, vcc")
        A(f"v_cndmask_b32 v{t0}, 0, 1, vcc")
        A(f"v_and_b32 v{t2}, 1, v{col}")
        A(f"v_lshrrev_b32 v{t3}, 1, v{col}")
        A(f"v_lshrrev_b32 v{t4}, 4, v{lane}")
        isq = (Tf < 2); isk = (Tf in (2, 3)); isv = (Tf in (4, 5))
        def ktype(base_const, hstride):
            A(f"v_mul_u32_u24 v{ea}, {KPAIR}, v{t3}")
            A(f"v_mul_u32_u24 v{tmp}, {hstride}, v{t0}")
            A(f"v_add3_u32 v{ea}, v{ea}, v{tmp}, s{st}")
            A(f"v_mul_u32_u24 v{tmp}, {512+64}, v{t2}")
            A(f"v_lshl_add_u32 v{tmp}, v{t4}, 4, v{tmp}")
            A(f"v_add_u32 v{ea}, v{ea}, v{tmp}")
            if base_const: A(f"v_add_u32 v{ea}, {base_const}, v{ea}")
            A(f"v_lshlrev_b32 v{ed}, 7, v{t2}")
            A(f"v_sub_u32 v{ed}, 64, v{ed}")
        def vtype(dst, dd):
            A(f"v_mul_u32_u24 v{dst}, {VPAIR}, v{t3}")
            A(f"v_mul_u32_u24 v{tmp}, {HEADSZ}, v{t0}")
            A(f"v_add3_u32 v{dst}, v{dst}, v{tmp}, s{st}")
            A(f"v_xor_b32 v{tmp}, v{t4}, v{t2}")
            A(f"v_lshlrev_b32 v{tmp}, 4, v{tmp}")
            A(f"v_lshl_add_u32 v{tmp}, v{t2}, 9, v{tmp}")
            A(f"v_add_u32 v{dst}, v{dst}, v{tmp}")
            A(f"v_add_u32 v{dst}, {KBLK}, v{dst}")
            A(f"v_mov_b32 v{dd}, 64")
        if isq: ktype(QOFF, KBLK)
        elif isk: ktype(0, HEADSZ)
        elif isv: vtype(ea, ed)
        else:
            ktype(0, HEADSZ)
            A(f"v_mul_i32_i24 v{tmp}, {KBLK-HEADSZ}, v{t0}")
            A(f"v_add_u32 v{tmp}, {QOFF}, v{tmp}")
            A(f"v_cmp_eq_u32 vcc, 0, v{typ}")
            A("s_nop 1")
            A(f"v_cndmask_b32 v{tmp}, 0, v{tmp}, vcc")
            A(f"v_add_u32 v{ea}, v{ea}, v{tmp}")
            vtype(t5, v2)
            A(f"v_cmp_eq_u32 vcc, 2, v{typ}")
            A("s_nop 1")
            A(f"v_cndmask_b32 v{ea}, v{ea}, v{t5}, vcc")
            A(f"v_cndmask_b32 v{ed}, v{ed}, v{v2}, vcc")
            A(f"v_mov_b32 v{g.esc}, 1.0")
            A(f"v_mov_b32 v{tmp}, {f32bits(CSCALE):#x}")
            A(f"v_cmp_eq_u32 vcc, 0, v{typ}")
            A("s_nop 1")
            A(f"v_cndmask_b32 v{g.esc}, v{g.esc}, v{tmp}, vcc")
            A(f"v_cmp_gt_u32 s[54:55], 3, v{typ}")
        A(f"v_add_u32 v{ed}, v{ea}, v{ed}")
        if g.eg is not None and Tf >= 2:
            eg = g.eg[t - 2 if nh == 0 else t]
            A(f"v_and_b32 v{t1}, 15, v{lane}")
            if Tf < 6:
                A(f"s_mul_i32 s{st2}, s{r.s_hp}, 36\ns_add_u32 s{st2}, s{st2}, {576*(Tf >> 1) + 16*(Tf & 1)}")
                A(f"v_add_u32 v{eg}, s{st2}, v{t1}")
            else:
                A(f"v_lshrrev_b32 v{eg}, 2, v{t1}")
                A(f"v_mul_u32_u24 v{eg}, 576, v{eg}")
                A(f"v_and_b32 v{t1}, 3, v{t1}")
                A(f"s_mul_i32 s{st2}, s{r.s_hp}, 36\ns_add_u32 s{st2}, s{st2}, 32")
                A(f"v_add3_u32 v{eg}, v{eg}, v{t1}, s{st2}")
                A(f"v_cmp_lt_u32 s[52:53], 0, v{typ}")
                A("s_nop 3")
                A("s_and_b64 s[52:53], s[52:53], s[54:55]")
            A(f"v_lshlrev_b32 v{eg}, 12, v{eg}")
            A(f"v_lshrrev_b32 v{t1}, 4, v{lane}")
            A(f"v_lshl_add_u32 v{eg}, v{t1}, 4, v{eg}")
            A(f"v_add_u32 v{eg}, s{st}, v{eg}")

def emit_epi_lds(A, r, g, nh):
    st4 = r.s_t[3]
    nt = 4 if nh == 0 else 3
    A("s_nop 7")
    A(f"s_mov_b32 s{st4}, {f32bits(CSCALE):#x}")
    A(f"s_lshl_b32 s{r.s_chunk}, s{r.s_c}, 9")
    order = [2, 3, 0, 1] if nh == 0 else [0, 1, 2]
    for t in order:
        Tf = 4 * nh + t
        if OPT.get("e1a", 0) and nh == 0 and t == 0:
            A("s_waitcnt lgkmcnt(0)")
            A("s_barrier")
        isq = Tf < 2
        if Tf == 6:
            A("s_mov_b64 s[36:37], exec")
            A("s_mov_b64 exec, s[54:55]")
        for p in range(2):
            a0 = g.acc[2 * p][t]; a1 = g.acc[2 * p + 1][t]
            if isq:
                for j in range(4):
                    A(f"v_mul_f32 v{a0+j}, s{st4}, v{a0+j}")
                    A(f"v_mul_f32 v{a1+j}, s{st4}, v{a1+j}")
            elif Tf == 6:
                for j in range(4):
                    A(f"v_mul_f32 v{a0+j}, v{g.esc}, v{a0+j}")
                    A(f"v_mul_f32 v{a1+j}, v{g.esc}, v{a1+j}")
            pk = g.FA[p][t]
            A(f"v_cvt_pk_bf16_f32 v{pk}, v{a0}, v{a0+1}")
            A(f"v_cvt_pk_bf16_f32 v{pk+1}, v{a0+2}, v{a0+3}")
            A(f"v_cvt_pk_bf16_f32 v{pk+2}, v{a1}, v{a1+1}")
            A(f"v_cvt_pk_bf16_f32 v{pk+3}, v{a1+2}, v{a1+3}")
            A(f"ds_write_b128 v{g.ea[t] if p == 0 else g.ed[t]}, v[{pk}:{pk+3}]")
            if g.eg is not None and Tf >= 2:
                eg = g.eg[t - 2 if nh == 0 else t]
                if Tf == 6: A("s_mov_b64 exec, s[52:53]")
                A(f"buffer_store_dwordx4 v[{pk}:{pk+3}], v{eg}, s[{r.s_srd}:{r.s_srd+3}], s{r.s_chunk} offen offset:{64*p} sc1")
                if Tf == 6: A("s_mov_b64 exec, s[54:55]")
        if Tf == 6:
            A("s_mov_b64 exec, s[36:37]")
    if OPT.get("e1a", 0) and nh == 1:
        A("s_waitcnt lgkmcnt(0)")
        A("s_barrier")

def emit_prefetch(A, r, g, d0, kind, kca, kcb):
    t0, t1, t2, t3 = r.t[:4]
    st, st2, st3, st4 = r.s_t
    A(f"s_lshl_b32 s{st}, s{r.s_hp}, 1\ns_and_b32 s{st2}, s{r.s_c}, 1\ns_add_u32 s{st}, s{st}, s{st2}")
    if kind == "x":
        A(f"v_lshrrev_b32 v{t3}, 4, v{r.lane}")
        A(f"v_add_u32 v{t3}, {kca}, v{t3}")
        A(f"v_min_u32 v{t3}, {kcb}, v{t3}")
        A(f"v_and_b32 v{t0}, 15, v{r.lane}")
        A(f"s_lshr_b32 s{st2}, s{r.s_c}, 1\ns_lshl_b32 s{st2}, s{st2}, 9\ns_lshl_b32 s{st3}, s{st}, 4\ns_add_u32 s{st2}, s{st2}, s{st3}")
        A(f"v_add_u32 v{t0}, s{st2}, v{t0}")
        A(f"v_mul_u32_u24 v{t0}, 1152, v{t0}")
        A(f"v_lshl_add_u32 v{t0}, v{t3}, 7, v{t0}")
        A(f"buffer_load_dword v{d0}, v{t0}, s[{g.s_xsrd}:{g.s_xsrd+3}], 0 offen")
    elif kind == "w":
        A(f"v_min_u32 v{t0}, 53, v{r.lane}")
        A(f"s_mul_i32 s{st2}, s{st}, 54")
        A(f"v_add_u32 v{t0}, s{st2}, v{t0}")
        A(f"v_mul_u32_u24 v{t1}, 2428, v{t0}")
        A(f"v_lshrrev_b32 v{t1}, 16, v{t1}")
        A(f"v_mul_u32_u24 v{t2}, 27, v{t1}")
        A(f"v_sub_u32 v{t2}, v{t0}, v{t2}")
        A(f"v_add_u32 v{t1}, {64*kca}, v{t1}")
        A(f"v_mul_u32_u24 v{t1}, 3456, v{t1}")
        A(f"v_lshl_add_u32 v{t1}, v{t2}, 7, v{t1}")
        A(f"buffer_load_dword v{d0}, v{t1}, s[{g.s_wsrd}:{g.s_wsrd+3}], 0 offen")

def emit_prefetch_batch(A, r, g, d0, jobs):
    done = A.newlabel("Lpfd")
    for w, (kind, a, b) in jobs.items():
        lab = A.newlabel("Lpf")
        A(f"s_cmp_eq_u32 s{r.s_w}, {w}\ns_cbranch_scc0 {lab}")
        emit_prefetch(A, r, g, d0, kind, a, b)
        A(f"s_branch {done}")
        A.label(lab)
    A.label(done)

def emit_loader_kv_setup(A, r, L):
    t0, t1, t2, t3 = r.t[:4]
    st, st2, st3, st4 = r.s_t
    A(f"v_lshrrev_b32 v{t0}, 5, v{r.lane}")
    A(f"v_and_b32 v{t1}, 31, v{r.lane}")
    A(f"v_lshlrev_b32 v{t2}, 2, v{t0}")
    A(f"v_xor_b32 v{t2}, v{t2}, v{t1}")
    A(f"v_lshlrev_b32 v{t2}, 4, v{t2}")
    A(f"v_lshl_add_u32 v{t2}, v{t0}, 12, v{t2}")
    A(f"v_xor_b32 v{t3}, v{t0}, v{t1}")
    A(f"v_lshlrev_b32 v{t3}, 4, v{t3}")
    A(f"v_lshl_add_u32 v{t3}, v{t0}, 12, v{t3}")
    for i in range(9):
        sl = L.s_lds[i]
        A(f"s_add_u32 s{st}, s{L.s_lw}, {4*i}")
        A(f"s_cmp_ge_u32 s{st}, 18")
        A(f"s_cselect_b32 s{st2}, 18, 0")
        A(f"s_mov_b32 s{st3}, {KPAIR}\ns_cmov_b32 s{st3}, {VPAIR}")
        A(f"s_cselect_b32 s{st4}, {KBLK}, 0")
        A(f"s_mov_b32 s{sl}, 576\ns_cmov_b32 s{sl}, 1152")
        A(f"s_cselect_b64 vcc, -1, 0")
        A(f"s_sub_u32 s{st}, s{st}, s{st2}")
        A(f"s_mul_i32 s{st2}, s{r.s_hp}, 36")
        A(f"s_add_u32 s{sl}, s{sl}, s{st2}")
        A(f"s_lshl_b32 s{st2}, s{st}, 1")
        A(f"s_add_u32 s{sl}, s{sl}, s{st2}")
        A(f"s_lshl_b32 s{sl}, s{sl}, 12")
        A(f"v_cndmask_b32 v{L.vdma[i]}, v{t2}, v{t3}, vcc")
        A(f"v_add_u32 v{L.vdma[i]}, s{sl}, v{L.vdma[i]}")
        A(f"s_cmp_ge_u32 s{st}, 9")
        A(f"s_cselect_b32 s{st2}, 9, 0")
        A(f"s_cselect_b32 s{sl}, {HEADSZ}, 0")
        A(f"s_sub_u32 s{st}, s{st}, s{st2}")
        A(f"s_mul_i32 s{st}, s{st}, s{st3}")
        A(f"s_add_u32 s{sl}, s{sl}, s{st}")
        A(f"s_add_u32 s{sl}, s{sl}, s{st4}")

def emit_loader_ones(A, r, L):
    t0, t1, t2, t3 = r.t[:4]
    A(f"v_subrev_u32 v{t1}, 512, v0")
    A(f"v_cmp_gt_u32 vcc, 192, v{t1}")
    A(f"v_lshlrev_b32 v{t1}, 2, v{t1}")
    A(f"v_mov_b32 v{t0}, 0x3f803f80")
    A(f"v_mov_b32 v{t3}, 0")
    A("s_and_saveexec_b64 s[36:37], vcc")
    lab = A.newlabel("Lones")
    A(f"s_cbranch_execz {lab}")
    for s in range(NSLOT):
        A(f"v_add_u32 v{t2}, {s*SLOT+ONES}, v{t1}")
        A(f"ds_write_b32 v{t2}, v{t0}")
        A(f"ds_write_b32 v{t2}, v{t3} offset:768")
    A.label(lab)
    A("s_mov_b64 exec, s[36:37]")

def emit_poll(A, r, L, seg_sgpr):
    t0 = r.t[0]; st, st2 = r.s_t[:2]
    A(f"s_lshl_b32 s{st}, s{seg_sgpr}, 7")
    if OPT.get("kv1flag", 1):
        A(f"v_add_u32 v{t0}, s{st}, v{L.vflag}")
    else:
        A(f"v_and_b32 v{t0}, 3, v{r.lane}")
        A(f"v_lshlrev_b32 v{t0}, 2, v{t0}")
        A(f"v_add3_u32 v{t0}, v{t0}, v{L.vflag}, s{st}")
    b = L.buf[0]
    if OPT.get("spoll", 1):
        L.epoch = getattr(L, "epoch", 0) + 1
        emit_shared_poll(A, f"global_load_dword {{d}}, v{t0}, s[{r.s_ws}:{r.s_ws+1}] sc1", [b, b+1, b+2, b+3], L.s_nonce, st2, L.s_lw, L.epoch, NONCE_LDS + 16, r.t[1], r.t[2], depth=OPT.get('pdepth', 1))
    else:
        emit_pipelined_poll(A, f"global_load_dword {{d}}, v{t0}, s[{r.s_ws}:{r.s_ws+1}] sc1", [b, b+1, b+2, b+3], L.s_nonce, st2, depth=OPT.get("pdepth", 1))

def emit_loader_kv_dma(A, r, L):
    A(f"s_lshl_b32 s{r.s_chunk}, s{r.s_seg}, 9")
    for i in range(9):
        A(f"s_add_u32 m0, s{r.s_slotw}, s{L.s_lds[i]}")
        A("s_nop 0")
        A(f"buffer_load_dwordx4 v{L.vdma[i]}, s[{r.s_srd}:{r.s_srd+3}], s{r.s_chunk} offen{OPT.get('kvload', ' sc1')} lds")
    if OPT.get("xorseg", 0):
        A(f"s_add_u32 s50, s50, 1")
        A(f"s_xor_b32 s{r.s_seg}, s{r.s_c}, s50")
        A(f"s_and_b32 s{r.s_seg}, s{r.s_seg}, 7")
    else:
        A(f"s_add_u32 s{r.s_seg}, s{r.s_seg}, 1")
        A(f"s_and_b32 s{r.s_seg}, s{r.s_seg}, 7")
    A(f"s_add_u32 s{r.s_slotw}, s{r.s_slotw}, {SLOT}")
    A(f"s_cmp_eq_u32 s{r.s_slotw}, {NSLOT*SLOT}")
    A(f"s_cselect_b32 s{r.s_slotw}, 0, s{r.s_slotw}")

def emit_check(A, r, name, part=1):
    t0, t1 = r.t[:2]
    A(f"s_mov_b32 s40, 0x30800000")
    A(f"s_mov_b32 s41, 0x71800000")
    for u in range(2):
        A(f"v_mul_f32 v{r.t[2+u]}, 0, v{r.O[u]}")
        for i in range(1, 10): A(f"v_fma_f32 v{r.t[2+u]}, v{r.O[u]+i}, 0, v{r.t[2+u]}")
    A(f"v_add_f32 v{r.t[2]}, v{r.t[2]}, v{r.t[3]}")
    A(f"v_cmp_gt_f32 vcc, v{r.O[0]+10}, s40")
    A(f"v_cmp_lt_f32 s[42:43], v{r.O[0]+10}, s41")
    A("s_nop 3")
    A(f"s_and_b64 s[44:45], vcc, s[42:43]")
    A(f"v_cmp_gt_f32 vcc, v{r.O[1]+10}, s40")
    A(f"v_cmp_lt_f32 s[42:43], v{r.O[1]+10}, s41")
    A("s_nop 3")
    A(f"s_and_b64 s[44:45], s[44:45], vcc")
    A(f"s_and_b64 s[44:45], s[44:45], s[42:43]")
    A(f"v_cmp_o_f32 vcc, v{r.t[2]}, v{r.t[2]}")
    A("s_nop 3")
    A(f"s_and_b64 s[44:45], s[44:45], vcc")
    if OPT.get("forceslow"): A("s_mov_b64 s[44:45], 0")
    lab = A.newlabel("Lok")
    A("s_cmp_eq_u64 s[44:45], -1")
    A(f"s_cbranch_scc1 {lab}")
    A(f"v_mov_b32 v{t0}, {NONCE_LDS + 4}")
    A(f"v_mov_b32 v{t1}, 1")
    A(f"ds_write_b32 v{t0}, v{t1}")
    A("s_waitcnt lgkmcnt(0)")
    A.label(lab)
    if part: emit_flag_read(A, r)

def emit_flag_read(A, r):
    t0 = r.t[0]
    A("s_barrier")
    A(f"v_mov_b32 v{t0}, {NONCE_LDS + 4}")
    A(f"ds_read_b32 v{t0}, v{t0}")
    A("s_waitcnt lgkmcnt(0)")
    A(f"v_readfirstlane_b32 s40, v{t0}")
    A("s_nop 3")
    A("s_cmp_lg_u32 s40, 0")

def emit_slow_compute(A, r, name):
    t = r.t
    m = [t[4], t[5]]
    addrs = [r.kE, r.kO, r.tE, r.tO, r.vA]
    back = (8 % NSLOT) * SLOT
    for x in addrs: A(f"v_subrev_u32 v{x}, {back}, v{x}")
    for u in range(2):
        A(f"v_mov_b32 v{r.Qt[u]+1}, 0")
        A(f"v_mov_b32 v{m[u]}, 0xff800000")
        for i in range(16): A(f"v_mov_b32 v{r.O[u]+i}, 0")
    for ps in range(2):
        A(f"s_mov_b32 s46, 0")
        A.label(f"{name}_sl{ps}")
        A("s_barrier")
        A(f"s_mov_b32 s47, 0")
        A.label(f"{name}_st{ps}")
        for par in range(2):
            attn.k_reads(A, r, par, 0)
            if ps == 1: attn.v_reads(A, r, par, 0)
            A("s_waitcnt lgkmcnt(0)")
            for u in range(2):
                S0 = r.S[u]
                attn.mf_main(A, r, S0, 0, u)
                attn.mf_tail(A, r, S0, 0, u)
            A("s_nop 15")
            for u in range(2):
                S0 = r.S[u]
                if ps == 0:
                    for k in range(0, 16, 2):
                        A(f"v_max3_f32 v{m[u]}, v{m[u]}, v{S0+k}, v{S0+k+1}")
                else:
                    for k in range(16): A(f"v_sub_f32 v{S0+k}, v{S0+k}, v{m[u]}")
                    for k in range(16): A(f"v_exp_f32 v{S0+k}, v{S0+k}")
                    A("s_nop 1")
                    attn.mf_pv(A, r, u, r.V1[0], S0)
                    attn.mf_pv(A, r, u, r.V2[0], S0 + 8)
            if ps == 1: A("s_nop 7")
        for x in addrs: A(f"v_add_u32 v{x}, 128, v{x}")
        A("s_add_u32 s47, s47, 1\ns_cmp_lt_u32 s47, 4")
        A(f"s_cbranch_scc1 {name}_st{ps}")
        for x in addrs: A(f"v_subrev_u32 v{x}, 512, v{x}")
        A("s_barrier")
        A("s_add_u32 s46, s46, 1\ns_cmp_lt_u32 s46, 8")
        A(f"s_cbranch_scc1 {name}_sl{ps}")
        if ps == 0:
            A(f"v_mov_b32 v{t[0]}, v{m[0]}\nv_mov_b32 v{t[1]}, v{m[1]}")
            A("s_nop 1")
            A(f"v_permlane32_swap_b32 v{m[0]}, v{t[0]}")
            A(f"v_permlane32_swap_b32 v{m[1]}, v{t[1]}")
            A("s_nop 1")
            A(f"v_max_f32 v{m[0]}, v{m[0]}, v{t[0]}")
            A(f"v_max_f32 v{m[1]}, v{m[1]}, v{t[1]}")
    A("s_nop 15")

def emit_slow_loader(A, r, L, name):
    A(f"s_mov_b32 s46, 0")
    A.label(f"{name}_lsl")
    A(f"s_and_b32 s{r.s_seg}, s46, 7")
    A(f"s_mov_b32 s{r.s_slotw}, 0")
    emit_loader_kv_dma(A, r, L)
    A("s_waitcnt vmcnt(0)")
    A("s_barrier")
    A("s_barrier")
    A("s_add_u32 s46, s46, 1\ns_cmp_lt_u32 s46, 16")
    A(f"s_cbranch_scc1 {name}_lsl")

def gen_fused(name="fused_kernel", rt=None):
    A = Asm(); r = R(); g = R(); L = R()
    V = RegAlloc(1, 168, "v")
    attn.alloc_sregs(r); qkv.alloc_gemm_sregs(g)
    lane = V.alloc("lane"); tt = [V.alloc(f"t{i}") for i in range(6)]
    r.lane = lane; r.t = tt
    r.kE = V.alloc("kE"); r.kO = V.alloc("kO"); r.tE = V.alloc("tE"); r.tO = V.alloc("tO"); r.vA = V.alloc("vA")
    r.qE = V.alloc("qE"); r.qO = V.alloc("qO")
    g.ea = [V.alloc(f"ea{i}") for i in range(4)]; g.ed = [V.alloc(f"ed{i}") for i in range(4)]; g.esc = V.alloc("esc")
    g.eg = [V.alloc(f"eg{i}") for i in range(3)] if OPT.get("kvdirect", 0) else None
    vTR = V.alloc("vTR") if OPT.get("trace") else 0
    base = V.next
    Va = RegAlloc(base, 168, "v")
    r.idx = Va.alloc("idx")
    r.Qm = [Va.alloc(f"Qm{u}", 4, 2) for u in range(2)]
    r.Qt = [Va.alloc(f"Qt{u}", 2, 2) for u in range(2)]
    r.Km = [Va.alloc(f"Km{p}", 4, 2) for p in range(2)]
    r.Kt = [Va.alloc(f"Kt{p}", 2, 2) for p in range(2)]
    r.V1 = [Va.alloc(f"V1{p}", 4, 2) for p in range(2)]
    r.V2 = [Va.alloc(f"V2{p}", 4, 2) for p in range(2)]
    r.S = [Va.alloc(f"S{i}", 16, 4) for i in range(4)]
    r.O = [Va.alloc(f"O{u}", 16, 4) for u in range(2)]
    Vg = RegAlloc(base, 168, "v")
    g.aA = [Vg.alloc(f"aA{k}") for k in range(2)]
    g.aB = [Vg.alloc(f"aB{t}") for t in range(4)]
    g.FA = [[Vg.alloc(f"FA{s}{i}", 4, 2) for i in range(4)] for s in range(2)]
    g.FB = [[Vg.alloc(f"FB{s}{t}", 4, 2) for t in range(4)] for s in range(2)]
    g.acc = [[Vg.alloc(f"acc{i}{t}", 4, 4) for t in range(4)] for i in range(4)]
    vN = Vg.alloc("vN"); vPF = Vg.alloc("vPF"); vT = Vg.alloc("vT", 2, 2)
    Vl = RegAlloc(base, 168, "v")
    L.vx = [Vl.alloc(f"vx{i}") for i in range(4)]
    L.vw = [Vl.alloc(f"vw{i}") for i in range(2)]
    L.vdma = [Vl.alloc(f"vd{i}") for i in range(9)]
    L.vflag = Vl.alloc("vflag"); L.vlds = Vl.alloc("vlds")
    L.buf = [Vl.alloc(f"buf{i}", 4, 4) for i in range(9)]
    L.lds_epoch = NONCE_LDS + 16; L.s_lw = 38; L.s_lds = list(range(72, 81)); L.s_dbg = 82; L.s_sh = 39; L.s_nonce = 81
    nv = max(Va.next, Vg.next, Vl.next)

    A(f".globl {name}\n.p2align 8\n.type {name},@function")
    A.label(name)
    A(f"s_cmp_ge_u32 s2, 256\ns_cbranch_scc1 {name}_end")
    A(f"s_load_dwordx2 s[{r.s_ws}:{r.s_ws+1}], s[0:1], 64")
    A("s_load_dwordx4 s[72:75], s[0:1], 0")
    A("s_load_dwordx4 s[76:79], s[0:1], 24")
    A(f"s_load_dwordx2 s[{L.s_dbg}:{L.s_dbg+1}], s[0:1], 56")
    F3 = OPT.get("fuse3", 1)
    if F3:
        r.no_osrd = True
        A("s_load_dwordx2 s[12:13], s[0:1], 16")
        A("s_load_dwordx2 s[6:7], s[0:1], 40")
        A("s_load_dwordx2 s[14:15], s[0:1], 48")
    S = Stamper(A, rt, enabled=rt is not None); S.start()
    T = Tracer(A, vTR, enabled=bool(OPT.get("trace"))); T.init(); T.mark(0); g.T = T
    attn.emit_ids(A, r)
    A("s_waitcnt lgkmcnt(0)")
    T.mark(22)
    A(f"s_cmp_eq_u32 s{r.s_b}, 0")
    A(f"s_cselect_b32 s{g.s_xsrd}, s72, s76")
    A(f"s_cselect_b32 s{g.s_xsrd+1}, s73, s77")
    A(f"s_cselect_b32 s{g.s_wsrd}, s74, s78")
    A(f"s_cselect_b32 s{g.s_wsrd+1}, s75, s79")
    if F3: A("s_cselect_b32 s12, s12, s6\ns_cselect_b32 s13, s13, s7")
    A(f"s_mov_b32 s{g.s_xsrd+2}, {2048*1152}\ns_mov_b32 s{g.s_xsrd+3}, 0x20000")
    A(f"s_mov_b32 s{g.s_wsrd+2}, {576*3456}\ns_mov_b32 s{g.s_wsrd+3}, 0x20000")
    if OPT.get("tlb", 0):
        labt = A.newlabel("Ltlb")
        A(f"s_cmp_lg_u32 s{r.s_w}, 7\ns_cbranch_scc1 {labt}")
        A(f"s_load_dword s40, s[{g.s_wsrd}:{g.s_wsrd+1}], 0")
        A(f"s_lshl_b32 s46, s{r.s_c}, 8\ns_mul_i32 s46, s46, 1152")
        A(f"s_load_dword s41, s[{g.s_xsrd}:{g.s_xsrd+1}], s46")
        A(f"s_mul_i32 s46, s{r.s_b}, {BLK_BYTES}\ns_mul_i32 s47, s{r.s_hp}, {36*4096}\ns_add_u32 s46, s46, s47\ns_add_u32 s46, s46, {576*4096}")
        A(f"s_load_dword s42, s[{r.s_ws}:{r.s_ws+1}], s46")
        A(f"s_add_u32 s47, s46, {576*4096}")
        A(f"s_load_dword s43, s[{r.s_ws}:{r.s_ws+1}], s47")
        A(f"s_mov_b32 s48, {FLAG_OFF}")
        A(f"s_load_dword s44, s[{r.s_ws}:{r.s_ws+1}], s48")
        A(f"s_mul_i32 s49, s{r.s_b}, {O_BLK}\ns_add_u32 s49, s49, {O_OFF}")
        A(f"s_load_dword s45, s[{r.s_ws}:{r.s_ws+1}], s49")
        A.label(labt)
    A(f"s_cmp_ge_u32 s{r.s_w}, 8")
    A(f"s_cbranch_scc1 {name}_loader")
    pf = OPT.get("pf", 6)
    if pf == 1: emit_prefetch_batch(A, r, g, vPF, {0: ("x", 2, 3), 1: ("w", 2, 3)})
    if pf == 2: emit_prefetch_batch(A, r, g, vPF, {0: ("x", 2, 3), 1: ("w", 2, 3), 2: ("x", 4, 5), 3: ("w", 4, 5)})
    if pf == 3: emit_prefetch_batch(A, r, g, vPF, {0: ("x", 2, 3), 1: ("w", 2, 3), 2: ("x", 4, 5), 3: ("w", 4, 5), 4: ("x", 6, 7), 5: ("w", 6, 7), 6: ("x", 8, 8), 7: ("w", 8, 8)})
    g.pf2 = {1: {2: ("x", 4, 5), 3: ("w", 4, 5), 4: ("x", 6, 7), 5: ("w", 6, 7), 6: ("x", 8, 8), 7: ("w", 8, 8)}, 2: {4: ("x", 6, 7), 5: ("w", 6, 7), 6: ("x", 8, 8), 7: ("w", 8, 8)}}.get(pf, {})
    g.pfreg = vPF
    if pf == 6:
        emit_prefetch_batch(A, r, g, vPF, {0: ("x", 2, 5), 1: ("w", 2, 2), 2: ("w", 3, 3), 3: ("w", 4, 4)})
        g.pf2 = {0: ("x", 6, 8), 1: ("w", 5, 5), 2: ("w", 6, 6), 3: ("w", 7, 7), 4: ("w", 8, 8)}
    if pf == 7:
        emit_prefetch_batch(A, r, g, vPF, {0: ("x", 2, 5), 1: ("w", 2, 2), 2: ("w", 3, 3)})
        g.pf2 = {0: ("x", 6, 8), 1: ("w", 4, 4), 2: ("w", 5, 5), 3: ("w", 6, 6), 4: ("w", 7, 7), 5: ("w", 8, 8)}
    if pf == 8:
        emit_prefetch_batch(A, r, g, vPF, {1: ("w", 2, 2), 2: ("w", 3, 3)})
        g.pf2 = {0: ("x", 6, 8), 1: ("w", 4, 4), 2: ("w", 5, 5), 3: ("w", 6, 6), 4: ("w", 7, 7), 5: ("w", 8, 8)}
    if pf == 9:
        emit_prefetch_batch(A, r, g, vPF, {1: ("w", 3, 3), 0: ("x", 4, 7)})
        g.pf2 = {0: ("x", 8, 8), 1: ("w", 4, 4), 2: ("w", 5, 5), 3: ("w", 6, 6), 4: ("w", 7, 7), 5: ("w", 8, 8)}
    if pf == 10:
        g.pf2 = {0: ("x", 4, 7), 1: ("w", 3, 3), 2: ("w", 4, 4), 3: ("w", 5, 5), 4: ("w", 6, 6), 5: ("w", 7, 7), 6: ("w", 8, 8), 7: ("x", 8, 8)}
    if pf == 11:
        emit_prefetch_batch(A, r, g, vPF, {0: ("x", 2, 5), 1: ("w", 2, 2), 2: ("w", 3, 3)})
        g.pf2 = {0: ("x", 6, 8), 1: ("w", 4, 4), 2: ("w", 5, 5), 3: ("w", 6, 6), 4: ("w", 7, 7), 5: ("w", 8, 8)}
    if pf == 4: g.pf2 = {2: ("x", 4, 5), 3: ("w", 4, 5), 4: ("x", 6, 7), 5: ("w", 6, 7), 6: ("x", 8, 8), 7: ("w", 8, 8)}
    if pf == 5: g.pf_pre = {2: ("x", 4, 5), 3: ("w", 4, 5), 4: ("x", 6, 7), 5: ("w", 6, 7), 6: ("x", 8, 8), 7: ("w", 8, 8)}
    attn.emit_srds(A, r)
    labn = A.newlabel("Lnonce")
    A(f"s_cmp_lg_u32 s{r.s_w}, 0\ns_cbranch_scc1 {labn}")
    A("s_memrealtime s[94:95]\ns_waitcnt lgkmcnt(0)")
    A("s_or_b32 s94, s94, 1")
    A(f"v_mov_b32 v{vT}, s94\nv_mov_b32 v{vT+1}, 0\nv_mov_b32 v{vN}, 0")
    A(f"v_cmp_eq_u32 vcc, 0, v{r.lane}")
    A("s_and_saveexec_b64 s[36:37], vcc")
    A(f"global_atomic_cmpswap v{vN}, v{vN}, v[{vT}:{vT+1}], s[{L.s_dbg}:{L.s_dbg+1}] sc0 sc1")
    A("s_mov_b64 exec, s[36:37]")
    A.label(labn)
    emit_compute_gemm_setup(A, r, g)
    attn.emit_read_addrs(A, r)
    A(f"v_mov_b32 v{r.qE}, v{r.t[4]}\nv_mov_b32 v{r.qO}, v{r.t[5]}")
    labe = A.newlabel("Lea"); labf = A.newlabel("Lea")
    A(f"s_cmp_ge_u32 s{r.s_w}, 4\ns_cbranch_scc1 {labe}")
    emit_epi_addr(A, r, g, 0)
    A(f"s_branch {labf}")
    A.label(labe)
    emit_epi_addr(A, r, g, 1)
    A.label(labf)
    emit_compute_gemm(A, r, g, name, S)
    S.mark(3)
    if not OPT.get("kvdirect", 0): A("s_waitcnt vmcnt(0)")
    labn2 = A.newlabel("Lnonce")
    A(f"s_cmp_lg_u32 s{r.s_w}, 0\ns_cbranch_scc1 {labn2}")
    if not OPT.get("kvdirect", 0): A("s_waitcnt vmcnt(0)")
    A(f"v_cmp_eq_u32 vcc, 0, v{vN}")
    A(f"v_mov_b32 v{r.t[0]}, {NONCE_LDS}")
    A("s_nop 0")
    A(f"v_cndmask_b32 v{vN}, v{vN}, v{vT}, vcc")
    A(f"v_cmp_eq_u32 vcc, 0, v{r.lane}")
    A("s_and_saveexec_b64 s[36:37], vcc")
    A(f"ds_write_b32 v{r.t[0]}, v{vN}")
    A(f"v_mov_b32 v{r.t[1]}, 0")
    A(f"ds_write_b32 v{r.t[0]}, v{r.t[1]} offset:4")
    A(f"ds_write_b32 v{r.t[0]}, v{r.t[1]} offset:8")
    A(f"ds_write_b32 v{r.t[0]}, v{r.t[1]} offset:12")
    A(f"ds_write_b32 v{r.t[0]}, v{r.t[1]} offset:16")
    A("s_mov_b64 exec, s[36:37]")
    A.label(labn2)
    A(f"v_mov_b32 v{r.idx}, 0xdddddddd")
    A("s_waitcnt lgkmcnt(0)")
    A("s_barrier")
    if OPT.get("fuse3", 1): tail.emit_srds(A, r)
    attn.emit_q_frags(A, r)
    attn.emit_attn_prologue(A, r)
    S.mark(4)
    T.mark(26)
    attn.OPT["nodma"] = 1
    attn.OPT["extdma"] = 1
    if OPT.get("kvdirect", 0):
        def kvflag():
            lab = A.newlabel("Lkv"); lab2 = A.newlabel("Lkv")
            t0, t1, t2 = r.t[:3]
            A(f"s_cmp_lg_u32 s{r.s_it}, 0\ns_cbranch_scc1 {lab}")
            A(f"s_lshl_b32 s40, s{r.s_b}, 4\ns_add_u32 s40, s40, s{r.s_hp}\ns_lshl_b32 s40, s40, 3\ns_add_u32 s40, s40, s{r.s_c}\ns_lshl_b32 s40, s40, 7\ns_add_u32 s40, s40, {FLAG_OFF}")
            A(f"v_mov_b32 v{t0}, s40\nv_mov_b32 v{t1}, {NONCE_LDS}\nv_mov_b32 v{t2}, 1")
            A("s_waitcnt vmcnt(0)")
            A(f"v_cmp_eq_u32 vcc, 0, v{r.lane}")
            A("s_and_saveexec_b64 s[36:37], vcc")
            A(f"ds_add_rtn_u32 v{t2}, v{t1}, v{t2} offset:8")
            A(f"ds_read_b32 v{t1}, v{t1}")
            A("s_waitcnt lgkmcnt(0)")
            A(f"v_cmp_eq_u32 vcc, 7, v{t2}")
            A("s_and_b64 exec, exec, vcc")
            A(f"s_cbranch_execz {lab2}")
            A(f"global_store_dword v{t0}, v{t1}, s[{r.s_ws}:{r.s_ws+1}] sc1")
            A.label(lab2)
            A("s_mov_b64 exec, s[36:37]")
            A("s_nop 3")
            A.label(lab)
        attn.OPT["hook_kv"] = (OPT.get("kvstep", 2), kvflag)
    else:
        attn.OPT["hook_kv"] = None
    attn.OPT["tracer"] = T if OPT.get("itrace") else None
    attn.emit_attn_loop(A, r, name)
    S.mark(5)
    T.mark(27)
    if OPT.get("fuse3", 1):
        tail.emit_publish_o(A, r)
        emit_check(A, r, name, part=0)
        emit_flag_read(A, r)
        A(f"s_cbranch_scc0 {name}_go3")
        emit_slow_compute(A, r, name)
        A("s_waitcnt vmcnt(0)")
        tail.emit_publish_o(A, r)
        A.label(f"{name}_go3")
        lab4 = A.newlabel("Lw4")
        A(f"s_cmp_lt_u32 s{r.s_w}, 4\ns_cbranch_scc1 {lab4}")
        tail.emit_flag_o(A, r, NONCE_LDS, S)
        A(f"s_branch {name}_fin")
        A.label(lab4)
        nv3 = tail.emit_compute(A, r, name, base, T, pre_g3=lambda: tail.emit_flag_o(A, r, NONCE_LDS, S))
        assert nv3 <= nv
    else:
        emit_check(A, r, name)
        A(f"s_cbranch_scc0 {name}_store")
        emit_slow_compute(A, r, name)
        A.label(f"{name}_store")
        attn.emit_attn_store(A, r, OPT.get("oflags", ""))
    A(f"s_branch {name}_fin")
    A.label(f"{name}_loader")
    A("s_setprio 3")
    A(f"s_sub_u32 s{L.s_lw}, s{r.s_w}, 8")
    pfv = OPT.get("pf", 6)
    if pfv in (8, 9, 10, 11):
        done8 = A.newlabel("Lpf8")
        jobs8 = {0: ("x", 0, 1), 1: ("w", 0, 0), 2: ("w", 1, 1), 3: ("x", 2, 5)} if pfv == 8 else {0: ("x", 0, 3), 1: ("w", 0, 0), 2: ("w", 1, 1), 3: ("w", 2, 2)}
        if pfv == 11: jobs8 = {0: ("x", 0, 1), 1: ("w", 0, 0), 2: ("w", 1, 1)}
        for lw, job in jobs8.items():
            lab8 = A.newlabel("Lpf8")
            A(f"s_cmp_eq_u32 s{L.s_lw}, {lw}\ns_cbranch_scc0 {lab8}")
            emit_prefetch(A, r, g, L.vflag, *job)
            A(f"s_branch {done8}")
            A.label(lab8)
        A.label(done8)
    emit_loader_gemm_setup(A, r, g, L)
    A(f"s_mov_b32 s{g.s_kc}, 0\ns_mov_b32 s{g.s_stw}, 0")
    if pfv in (8, 9, 10, 11): A("s_waitcnt vmcnt(0)")
    T.mark(23)
    emit_loader_gemm_dma(A, r, g, L)
    T.mark(24)
    emit_loader_gemm_dma(A, r, g, L)
    npf = 0
    T.mark(1)
    A(f"s_waitcnt vmcnt({12 + npf})")
    T.mark(2)
    A("s_barrier")
    S.mark(2)
    lazy = OPT.get("lazy", 0)
    if lazy:
        labz = A.newlabel("Llazy"); labe2 = A.newlabel("Llazy")
        A(f"s_lshr_b32 s{r.s_t[0]}, s{r.s_hp}, 3\ns_xor_b32 s{r.s_t[0]}, s{r.s_t[0]}, s{r.s_hp}\ns_and_b32 s{r.s_t[0]}, s{r.s_t[0]}, 1")
        A(f"s_cmp_eq_u32 s{r.s_t[0]}, 0\ns_cbranch_scc1 {labz}")
    emit_loader_gemm_dma(A, r, g, L)
    for kc in range(NCH):
        rem = max(0, min(NCH - 1, kc + 2) - (kc + 1))
        A(f"s_waitcnt vmcnt({12*rem})")
        T.mark(3 + 2 * kc)
        A("s_barrier")
        T.mark(4 + 2 * kc)
        if kc + 3 < NCH: emit_loader_gemm_dma(A, r, g, L)
    if lazy:
        A(f"s_branch {labe2}")
        A.label(labz)
        nl = lazy
        issued = 2
        for kc in range(NCH):
            rem = max(0, issued - 1 - (kc + 1))
            A(f"s_waitcnt vmcnt({12*rem})")
            T.mark(3 + 2 * kc)
            A("s_barrier")
            T.mark(4 + 2 * kc)
            target = min(NCH - 1, kc + (2 if kc < nl else 3))
            while issued <= target:
                emit_loader_gemm_dma(A, r, g, L); issued += 1
        A.label(labe2)
    S.mark(3)
    attn.emit_srds(A, r)
    emit_loader_kv_setup(A, r, L)
    emit_loader_ones(A, r, L)
    A(f"s_lshl_b32 s{r.s_t[0]}, s{r.s_b}, 4")
    A(f"s_add_u32 s{r.s_t[0]}, s{r.s_t[0]}, s{r.s_hp}")
    A(f"s_lshl_b32 s{r.s_t[0]}, s{r.s_t[0]}, 10")
    A(f"s_add_u32 s{r.s_t[0]}, s{r.s_t[0]}, {FLAG_OFF}")
    A(f"v_mov_b32 v{L.vflag}, s{r.s_t[0]}")
    A(f"v_lshlrev_b32 v{L.vlds}, 4, v{r.lane}")
    if OPT.get("kvdirect", 0):
        A(f"v_mov_b32 v{r.t[2]}, {NONCE_LDS}")
        A("s_waitcnt lgkmcnt(0)")
        A("s_barrier")
        A(f"ds_read_b32 v{r.t[2]}, v{r.t[2]}")
        A("s_waitcnt lgkmcnt(0)")
        A(f"v_readfirstlane_b32 s{L.s_nonce}, v{r.t[2]}")
        S.mark(4)
    else:
        for i in range(9):
            A(f"v_add_u32 v{L.buf[i]+3}, s{L.s_lds[i]}, v{L.vlds}")
        A(f"s_lshl_b32 s{r.s_chunk}, s{r.s_c}, 9")
        A(f"v_mov_b32 v{r.t[2]}, {NONCE_LDS}")
        A("s_waitcnt lgkmcnt(0)")
        A("s_barrier")
        for i in range(9):
            A(f"ds_read_b128 v[{L.buf[i]}:{L.buf[i]+3}], v{L.buf[i]+3}")
        A(f"ds_read_b32 v{r.t[2]}, v{r.t[2]}")
        for i in range(9):
            A(f"s_waitcnt lgkmcnt({9-i})")
            A(f"buffer_store_dwordx4 v[{L.buf[i]}:{L.buf[i]+3}], v{L.vdma[i]}, s[{r.s_srd}:{r.s_srd+3}], s{r.s_chunk} offen sc1")
        if OPT.get("e1a", 0):
            A("s_barrier")
            A(f"v_mov_b32 v{r.t[2]}, {NONCE_LDS}")
            A(f"ds_read_b32 v{r.t[2]}, v{r.t[2]}")
        A("s_waitcnt lgkmcnt(0)")
        A(f"v_readfirstlane_b32 s{L.s_nonce}, v{r.t[2]}")
        A("s_waitcnt vmcnt(0)")
        S.mark(4)
        A(f"s_lshl_b32 s{r.s_t[0]}, s{r.s_c}, 7")
        A(f"v_add_u32 v{r.t[0]}, s{r.s_t[0]}, v{L.vflag}")
        A(f"v_mov_b32 v{r.t[1]}, s{L.s_nonce}")
        A(f"v_mov_b32 v{r.t[2]}, {NONCE_LDS}\nv_mov_b32 v{r.t[3]}, 1")
        A(f"v_cmp_eq_u32 vcc, 0, v{r.lane}")
        A("s_and_saveexec_b64 s[36:37], vcc")
        if OPT.get("kv1flag", 1):
            A(f"ds_add_rtn_u32 v{r.t[3]}, v{r.t[2]}, v{r.t[3]} offset:8")
            A("s_waitcnt lgkmcnt(0)")
            A(f"v_cmp_eq_u32 vcc, 3, v{r.t[3]}")
            A("s_and_b64 exec, exec, vcc")
            labk = A.newlabel("Lkf")
            A(f"s_cbranch_execz {labk}")
            A(f"global_store_dword v{r.t[0]}, v{r.t[1]}, s[{r.s_ws}:{r.s_ws+1}] sc1")
            A.label(labk)
        else:
            A(f"s_lshl_b32 s{r.s_t[1]}, s{L.s_lw}, 2")
            A(f"v_add_u32 v{r.t[0]}, s{r.s_t[1]}, v{r.t[0]}")
            A(f"global_store_dword v{r.t[0]}, v{r.t[1]}, s[{r.s_ws}:{r.s_ws+1}] sc1")
        A("s_mov_b64 exec, s[36:37]")
    if OPT.get("xorseg", 0): A(f"s_mov_b32 s50, 1\ns_xor_b32 s{r.s_seg}, s{r.s_c}, 1")
    else: A(f"s_add_u32 s{r.s_seg}, s{r.s_c}, 1\ns_and_b32 s{r.s_seg}, s{r.s_seg}, 7")
    A(f"s_mov_b32 s{r.s_slotw}, {SLOT}")
    emit_poll(A, r, L, r.s_seg)
    S.mark(5)
    emit_loader_kv_dma(A, r, L)
    if OPT.get("fuse3", 1):
        tail.emit_srds(A, r)
        P = tail.emit_loader_setup(A, r, L, Vl.next)
        assert P.top <= nv
    for i in range(8):
        A("s_waitcnt vmcnt(0)")
        if i == 0: S.mark(6)
        A("s_barrier")
        if i == 5 and OPT.get("pfwo", 1):
            if not F3:
                A("s_load_dwordx2 s[40:41], s[0:1], 16")
                A("s_load_dwordx2 s[42:43], s[0:1], 40")
            A(f"s_lshl_b32 s46, s{r.s_hp}, 1\ns_and_b32 s47, s{r.s_c}, 1\ns_add_u32 s46, s46, s47\ns_mul_i32 s46, s46, 162")
            A(f"s_lshl_b32 s47, s{L.s_lw}, 6")
            A(f"v_add_u32 v{r.t[1]}, s47, v{r.lane}")
            A(f"v_min_u32 v{r.t[1]}, 161, v{r.t[1]}")
            A(f"v_add_u32 v{r.t[1]}, s46, v{r.t[1]}")
            A(f"v_lshlrev_b32 v{r.t[1]}, 7, v{r.t[1]}")
            if not F3:
                A("s_waitcnt lgkmcnt(0)")
                A(f"s_cmp_eq_u32 s{r.s_b}, 0")
                A("s_cselect_b32 s44, s40, s42\ns_cselect_b32 s45, s41, s43")
                A(f"global_load_dword v{r.t[2]}, v{r.t[1]}, s[44:45]")
            else:
                A(f"global_load_dword v{r.t[2]}, v{r.t[1]}, s[12:13]")
        if i + 2 < 8:
            emit_poll(A, r, L, r.s_seg)
            emit_loader_kv_dma(A, r, L)
        if F3 and i == 6: tail.emit_w_chunks(A, r, L, P, range(0, 7))
        if F3 and i == 7: tail.emit_w_chunks(A, r, L, P, range(7, 9))
    emit_flag_read(A, r)
    A(f"s_cbranch_scc0 {name}_noslow")
    emit_slow_loader(A, r, L, name)
    if OPT.get("fuse3", 1):
        tail.emit_w_chunks(A, r, L, P, range(7, 9))
    A.label(f"{name}_noslow")
    if OPT.get("fuse3", 1):
        tail.emit_loader(A, r, L, P, name, T, S)
    A.label(f"{name}_fin")
    T.mark(30)
    T.dump(r.s_ws, r.t[0])
    S.dump(r.s_ws, r.t[0], r.S[0])
    A.label(f"{name}_end")
    A("s_endpgm")
    return A.text(), nv
```

```python
import sys
sys.path.insert(0, "gen")
import attn, qkv, oproj, fused, tail
from emit import kernel_desc
attn.OPT.update(dict(zrows=1, pphase=1))
for a in sys.argv[2:]:
    k, _, v = a.partition("=")
    if k.startswith("a."): attn.OPT[k[2:]] = int(v) if v.lstrip("-").isdigit() else v
    elif k.startswith("f."): fused.OPT[k[2:]] = (int(v) if v.isdigit() else ("" if v == "none" else " " + v.replace("+", " ")))
    elif k.startswith("t."): tail.OPT[k[2:]] = (int(v) if v.isdigit() else ("" if v == "none" else " " + v.replace("+", " ")))
    elif k.startswith("o."): oproj.OPT[k[2:]] = (int(v) if v.isdigit() else ("" if v == "none" else " " + v.replace("+", " ")))
RT = "rt" in sys.argv
KN = "concat_heads__mha_block__mha_block__prompt_kernel" if fused.OPT.get("fuse3", 1) else "fused_kernel"
t1, n1 = fused.gen_fused(KN, rt=0 if RT else None)
F3 = fused.OPT.get("fuse3", 1)
t3, n3 = oproj.gen_oproj("oproj_kernel", rt=1 if RT else None) if not F3 else ("", 0)
ref = open("concat_heads__mha_block__mha_block__prompt.s.ref").read().splitlines()
hdr = [l for l in ref if l.startswith(";")][:10]
out = "\n".join(hdr) + "\n"
if F3:
    out += f"; @launch grid=(256,1,1) block=(768,1,1) lds={fused.LDS_FUSED}\n"
else:
    out += f"; @launch kernel=fused_kernel grid=(256,1,1) block=(768,1,1) lds={fused.LDS_FUSED}\n"
    out += f"; @launch kernel=oproj_kernel grid=(256,1,1) block=(512,1,1) lds={oproj.LDS_OP}\n"
DOC = """; ---------------------------------------------------------------------------------------------------------
;           Q is scaled by log2(e)/sqrt(18) before its bf16 rounding and stays in LDS; K^T/V^T are published write-through.
; ---------------------------------------------------------------------------------------------------------
"""
out += '.amdgcn_target "amdgcn-amd-amdhsa--gfx950"\n' + DOC + '.text\n' + t1 + t3
out += '.section .rodata,"a"\n' + kernel_desc(KN, n1) + (kernel_desc("oproj_kernel", n3) if not F3 else "")
dst = sys.argv[1]
open(dst, "w").write(out)
print("written", dst, len(out), "vgprs", n1, n3)
```
